```python
import torch

def _softmax(x, axis=-1):
    return torch.softmax(x, dim=axis)

def _gelu(x):
    return torch.nn.functional.gelu(x, approximate='tanh')

def _silu(x):
    return torch.nn.functional.silu(x)

def _sigmoid(x):
    return torch.sigmoid(x)

def _layernorm(x, axis=-1, eps=1e-05):
    m = x.mean(dim=axis, keepdim=True)
    v = x.var(dim=axis, keepdim=True, unbiased=False)
    return (x - m) / torch.sqrt(v + eps)

def _scatter_add(tgt, idx, src, axis=0):
    return tgt.clone().index_add_(axis, idx, src)

def _segment_sum(src, seg, n):
    out = torch.zeros((n,) + src.shape[1:], dtype=src.dtype)
    return out.index_add_(0, seg, src)

def _pad(x, pw):
    flat = tuple((v for pair in reversed(pw) for v in pair))
    return torch.nn.functional.pad(x, flat)
kernel_name = 'gather_scatter__tensor_product_equiv_mace__graph'

def setup_inputs():

    _w = lambda a: (lambda t: t.to(torch.bfloat16) if t.is_floating_point() else t)(torch.as_tensor(a))
    N, deg = (10000, 32)
    Lmax, C, De = (1, 128, 16)
    M = (Lmax + 1) ** 2
    E = N * deg
    src = (lambda lo, hi, *s: torch.randint(lo, hi, s))(0, N, E).to(torch.int64)
    dst = (lambda lo, hi, *s: torch.randint(lo, hi, s))(0, N, E).to(torch.int64)
    r = (lambda *s: torch.randn(*s, dtype=torch.bfloat16) * 0.05)(E, 3).to(float)
    r = r / (torch.linalg.norm(r, dim=-1, keepdim=True).to(float) + 1e-06)
    rx, ry, rz = (r[:, 0].clone(), r[:, 1].clone(), r[:, 2].clone())
    x2, y2, z2 = (rx * rx, ry * ry, rz * rz)
    sh_list = [torch.ones_like(rx), rx, ry, rz, rx * ry, ry * rz, 2.0 * z2 - x2 - y2, rx * rz, x2 - y2, ry * (3.0 * x2 - y2), rx * ry * rz, ry * (4.0 * z2 - x2 - y2), rz * (2.0 * z2 - 3.0 * x2 - 3.0 * y2), rx * (4.0 * z2 - x2 - y2), rz * (x2 - y2), rx * (x2 - 3.0 * y2)]
    sh16 = torch.stack(sh_list, dim=-1).to(float)
    pad = max(0, M - 16)
    sh_full = torch.cat([sh16, torch.zeros((E, pad), dtype=float)], dim=-1)[:, :M]
    cg = ((lambda *s: torch.randn(*s, dtype=torch.bfloat16) * 0.05)(M, M, M) * (1.0 / float(M))).to(float)
    return {'x': _w(((lambda *s: torch.randn(*s, dtype=torch.bfloat16) * 0.05)(N, M, C) * 0.3).to(float)), 'src': _w(src), 'dst': _w(dst), 'sh': _w(sh_full.to(float)), 'edge_attr': _w(((lambda *s: torch.randn(*s, dtype=torch.bfloat16) * 0.05)(E, De) * 0.3).to(float)), 'cg': _w(cg), 'w_r': _w(((lambda *s: torch.randn(*s, dtype=torch.bfloat16) * 0.05)(De, C) * (1.0 / float(De) ** 0.5)).to(float)), 'w_out': _w(((lambda *s: torch.randn(*s, dtype=torch.bfloat16) * 0.05)(C, C) * (1.0 / float(C) ** 0.5)).to(float))}

def reference(x, src, dst, sh, edge_attr, cg, w_r, w_out):
    N = x.shape[0]
    M = x.shape[1]
    C = x.shape[2]
    h = x[src]
    tp = torch.einsum('uvw,euc,ev->ewc', cg, h, sh)
    rw = edge_attr @ w_r
    msg = tp * rw[:, None, :]
    msg2 = msg.reshape(-1, M * C)
    agg = _segment_sum(msg2, dst, N).reshape(N, M, C)
    out = torch.einsum('nmc,cd->nmd', agg, w_out)
    return out
```

```python
import re

_REG = re.compile(r"\b([vsa])(\d+)\b|\b([vsa])\[(\d+):(\d+)\]|\b(vcc|exec|m0|exec_lo|exec_hi|vcc_lo|vcc_hi)\b")


def regs_of(op):
    out = set()
    for m in _REG.finditer(op):
        if m.group(1):
            out.add((m.group(1), int(m.group(2))))
        elif m.group(3):
            for i in range(int(m.group(4)), int(m.group(5)) + 1):
                out.add((m.group(3), i))
        else:
            n = m.group(6)
            out.add(("x", n.split("_")[0]))
    return out


def split_ops(s):
    ops, depth, cur = [], 0, ""
    for ch in s:
        if ch in "[(":
            depth += 1
        if ch in "])":
            depth -= 1
        if ch == "," and depth == 0:
            ops.append(cur.strip())
            cur = ""
        else:
            cur += ch
    if cur.strip():
        ops.append(cur.strip())
    return ops


def mfma_passes(mn):
    if "4x4x4" in mn:
        return 2
    if "16x16x" in mn:
        return 4
    if "32x32x" in mn:
        return 8
    raise ValueError(mn)


class Ins:
    def __init__(self, text, idx_range=None):
        self.text = text
        t = text.split(";")[0].strip()
        parts = t.split(None, 1)
        self.mn = parts[0]
        rest = parts[1] if len(parts) > 1 else ""
        ops = split_ops(rest)
        self.ops = ops
        mn = self.mn
        self.is_mfma = mn.startswith(("v_mfma", "v_smfmac"))
        self.is_valu = mn.startswith("v_") and not self.is_mfma
        self.is_salu = mn.startswith("s_")
        self.is_ds = mn.startswith("ds_")
        self.is_vmem = mn.startswith("buffer_") or mn.startswith("global_")
        self.is_dpp = "_dpp" in mn or "quad_perm" in t or "row_" in t
        self.is_lds_dma = self.is_vmem and (t.endswith(" lds") or "load_lds" in mn)
        self.w, self.r = set(), set()
        R = [regs_of(o) for o in ops]
        if self.is_mfma:
            self.w = R[0]
            self.a, self.b, self.c = R[1], R[2], R[3]
            if mn.startswith("v_smfmac"):
                self.b, self.c = R[2] | R[3], R[0]
            self.r = self.a | self.b | self.c
            self.passes = mfma_passes(mn)
        elif self.is_valu:
            nd = 1
            if mn.startswith(("v_add_co", "v_addc_co", "v_sub_co", "v_subb_co", "v_mad_u64")):
                nd = 2
            for x in R[:nd]:
                self.w |= x
            for x in R[nd:]:
                self.r |= x
            if mn.startswith(("v_fmac", "v_writelane", "v_permlane")) or self.is_dpp or "sdwa" in mn:
                self.r |= R[0]
            if mn.startswith("v_permlane"):
                self.w |= R[1]
            if mn.startswith("v_cmpx"):
                self.w.add(("x", "exec"))
            if idx_range is not None:
                self.w |= idx_range
                self.r |= idx_range
        elif self.is_ds:
            if mn.startswith("ds_read") or "_rtn" in mn or "permute" in mn or "swizzle" in mn:
                self.w = R[0]
                for x in R[1:]:
                    self.r |= x
            else:
                for x in R:
                    self.r |= x
        elif self.is_vmem:
            if "load" in mn and not self.is_lds_dma:
                self.w = R[0]
                for x in R[1:]:
                    self.r |= x
            else:
                for x in R:
                    self.r |= x
            self.wide_store = ("store_dwordx3" in mn or "store_dwordx4" in mn)
            if self.wide_store:
                self.sdata = R[0] if mn.startswith("buffer_") else R[1]
        elif self.is_salu:
            if mn.startswith(("s_cmp", "s_cbranch", "s_branch", "s_waitcnt", "s_nop", "s_barrier", "s_endpgm", "s_setprio", "s_bitcmp")):
                for x in R:
                    self.r |= x
            elif mn.startswith("s_set_gpr_idx"):
                for x in R:
                    self.r |= x
                self.w.add(("x", "m0"))
            else:
                if R:
                    self.w = set(R[0])
                for x in R[1:]:
                    self.r |= x
                if "saveexec" in mn:
                    self.w.add(("x", "exec"))

    def states(self):
        if self.mn == "s_nop":
            return int(self.ops[0], 0) + 1
        return 1


def need(p, c):
    n = 0
    pv = {r for r in p.w if r[0] in "va"}
    ps = {r for r in p.w if r[0] == "s" or r == ("x", "vcc")}
    if p.is_valu:
        if c.is_mfma and pv & c.r:
            n = max(n, 2)
        if c.is_valu:
            if c.mn.startswith(("v_readlane", "v_readfirstlane")) and pv & c.r:
                n = max(n, 1)
            if c.mn.startswith("v_permlane") and pv & c.r:
                n = max(n, 2)
            if ps & c.r:
                n = max(n, 4 if c.mn.startswith(("v_readlane", "v_writelane")) else 2)
            if ("x", "exec") in p.w:
                if c.is_dpp:
                    n = max(n, 5)
                if c.mn.startswith(("v_readlane", "v_readfirstlane", "v_writelane", "v_permlane")):
                    n = max(n, 4)
                if ("x", "exec") in c.r:
                    n = max(n, 2)
            if p.mn.startswith("v_dot") and pv & (c.r | c.w):
                same = p.mn == c.mn and not (pv & (regs_of(c.ops[1]) | regs_of(c.ops[2])))
                if not same:
                    n = max(n, 3)
            if ("sdwa" in p.mn or "op_sel" in p.text and not p.mn.startswith("v_pk")) and pv & (c.r | c.w):
                n = max(n, 1)
        if c.is_mfma and ("x", "exec") in p.w:
            n = max(n, 4)
        if c.is_vmem and ps & c.r:
            n = max(n, 5)
        if c.is_salu and ps & c.r:
            n = max(n, 1)
    if c.is_valu and c.is_dpp and pv & c.r and (p.is_valu or p.is_mfma):
        n = max(n, 2)
    if p.is_mfma:
        k = {2: 0, 4: 1, 8: 2}[p.passes]
        if c.is_mfma:
            if pv & (c.a | c.b):
                n = max(n, (5, 8, 12)[k])
            if pv & c.c:
                if p.w == c.c and p.passes == c.passes:
                    n = max(n, (2, 0, 0)[k])
                else:
                    n = max(n, (4, 6, 10)[k])
            elif pv & c.w:
                n = max(n, (4, 6, 10)[k])
        elif (c.is_valu or c.is_ds or c.is_vmem) and pv & (c.r | c.w):
            n = max(n, (5, 8, 12)[k])
        if c.is_valu and p.c & c.w:
            n = max(n, (1, 3, 7)[k])
    if p.is_salu and ("x", "m0") in p.w and c.is_lds_dma:
        n = max(n, 1)
    if p.is_vmem and getattr(p, "wide_store", False) and p.sdata & c.w:
        n = max(n, 2)
    return n


class Emitter:
    def __init__(self):
        self.lines = []
        self.hist = []
        self.idx_range = None
        self.in_idx = False
        self.nops = 0

    def raw(self, s):
        self.lines.append(s)

    def label(self, name, pad=0):
        self.lines.append(name + ":")
        if pad:
            self("s_nop %d" % (pad - 1))

    def __call__(self, *texts):
        for text in texts:
            self._one(text)

    def _one(self, text):
        if text.startswith(".") or text.startswith(";"):
            self.lines.append(text)
            return
        ins = Ins(text, self.idx_range if self.in_idx else None)
        dist = 0
        pad = 0
        for p in reversed(self.hist):
            n = need(p, ins)
            if n > dist:
                pad = max(pad, n - dist)
            dist += p.states()
            if dist >= 20:
                break
        if pad:
            nop = Ins("s_nop %d" % (pad - 1))
            self.lines.append("    " + nop.text)
            self.hist.append(nop)
            self.nops += 1
        self.lines.append("    " + text)
        self.hist.append(ins)
        self.hist = self.hist[-24:]
        if ins.mn == "s_set_gpr_idx_on":
            self.in_idx = True
        if ins.mn == "s_set_gpr_idx_off":
            self.in_idx = False

    def text(self):
        return "\n".join(self.lines) + "\n"
```

```python
import sys, os
sys.path.insert(0, os.path.dirname(os.path.abspath(__file__)))
from emit import Emitter

NAME = "gather_scatter__tensor_product_equiv_mace__graph"
N, E = 10000, 320000
CH, NCH = 1280, 250
WS_TAB, WS_SK, WS_EA, WS_TS = 0, 0x40000, 0x400000, 0x2000000
CAP, GAP = 1536, 16

DEF = dict(D=6, TS=0, K1POL="nt", K1ST="", TABPOL="", SKPOL="", EAPOL="", OUTPOL="", EXTRA=0)

PART39 = [[3, 11, 21, 31, 36], [5, 8, 20, 27, 38], [0, 6, 7, 13, 39], [9, 14, 18, 25, 34], [10, 16, 19, 24, 32], [4, 12, 26, 29, 33], [1, 17, 23, 28, 37], [2, 15, 22, 30, 35]]
PART40 = [[1, 10, 15, 30, 39], [2, 9, 21, 28, 37], [4, 14, 22, 27, 31], [6, 12, 18, 24, 35], [3, 8, 16, 29, 38], [5, 13, 17, 26, 34], [0, 20, 23, 32, 36], [7, 11, 19, 25, 33]]


def vr(a, n):
    return f"v[{a}:{a+n-1}]" if n > 1 else f"v{a}"


def scan_dpp(e, v, full):
    for k in (1, 2, 4, 8):
        e(f"v_add_u32_dpp v{v}, v{v}, v{v} row_shr:{k} row_mask:0xf bank_mask:0xf")
    e(f"v_add_u32_dpp v{v}, v{v}, v{v} row_bcast:15 row_mask:0xa bank_mask:0xf")
    if full:
        e(f"v_add_u32_dpp v{v}, v{v}, v{v} row_bcast:31 row_mask:0xc bank_mask:0xf")


class TS:
    def __init__(self, e, on, regs, kidx):
        self.e, self.on, self.regs, self.n, self.kidx = e, on, regs, 0, kidx

    def stamp(self):
        if self.on:
            r = self.regs[self.n]
            self.e(f"s_memrealtime s[{r}:{r+1}]")
            self.n += 1

    def flush(self, ws, wave, v):
        if not self.on:
            return
        e = self.e
        e("s_waitcnt vmcnt(0) lgkmcnt(0)")
        self.stamp()
        e("s_waitcnt lgkmcnt(0)")
        e(f"s_lshl_b32 s2, s2, 4", f"s_add_u32 s2, s2, s{wave}", f"s_lshl_b32 s2, s2, 6", f"s_add_u32 s2, s2, {WS_TS + self.kidx * 0x80000}")
        e(f"v_mov_b32 v{v}, s2")
        for i in range(self.n):
            e(f"v_mov_b32 v{v+1}, s{self.regs[i]}")
            e(f"global_store_dword v{v}, v{v+1}, s[{ws}:{ws+1}] offset:{4*i}")


def gen_k1(P):
    e = Emitter()
    CNT, START, INV, SKS, EAST = 0, 1024, 2048, 7168, 22528
    LDS = EAST + CH * 32
    pol, st = P["K1POL"], P["K1ST"]
    ts = TS(e, P["TS"], list(range(40, 64, 2)), 0)
    e(f"s_cmp_ge_u32 s2, {NCH}", "s_cbranch_scc1 K1_done")
    e("s_load_dwordx4 s[4:7], s[0:1], 8")
    e("s_load_dwordx4 s[8:11], s[0:1], 24")
    e("s_load_dwordx2 s[12:13], s[0:1], 80")
    ts.stamp()
    e("v_lshrrev_b32 v12, 6, v0", "v_lshlrev_b32 v1, 3, v0", "v_lshlrev_b32 v2, 4, v0", "v_and_b32 v3, 63, v0")
    e("v_readfirstlane_b32 s3, v12")
    e("v_lshlrev_b32 v13, 2, v0", "v_mov_b32 v14, 0", "v_mov_b32 v15, 1")
    e("ds_write_b32 v13, v14")
    e(f"s_mul_i32 s14, s2, {CH*4}", f"s_mul_i32 s15, s2, {CH*8}", f"s_mul_i32 s26, s2, {CH*32}")
    e("s_lshl_b32 s27, s3, 12")
    e("v_lshl_add_u32 v16, v3, 4, s27")
    e(f"s_add_u32 m0, s27, {EAST}")
    e("s_waitcnt lgkmcnt(0)")
    e("s_add_u32 s6, s6, s14", "s_addc_u32 s7, s7, 0")
    e(f"global_load_dwordx2 v[4:5], v1, s[6:7] {pol}")
    e("s_add_u32 s4, s4, s14", "s_addc_u32 s5, s5, 0")
    e(f"global_load_dwordx2 v[6:7], v1, s[4:5] {pol}")
    e("s_add_u32 s8, s8, s15", "s_addc_u32 s9, s9, 0")
    e(f"global_load_dwordx4 v[8:11], v2, s[8:9] {pol}")
    e("s_add_u32 s16, s10, s26", "s_addc_u32 s17, s11, 0", f"s_mov_b32 s18, {CH*32}", "s_mov_b32 s19, 0x20000")
    for i in range(4):
        e(f"buffer_load_dwordx4 v16, s[16:19], 0 offen offset:{i*1024} {pol} lds")
    e("s_lshl_b32 s14, s2, 10", "s_add_u32 s20, s12, s14", "s_addc_u32 s21, s13, 0")
    e(f"s_mul_i32 s14, s2, {CH*12}", f"s_add_u32 s14, s14, {WS_SK}", "s_add_u32 s22, s12, s14", "s_addc_u32 s23, s13, 0")
    e(f"s_add_u32 s26, s26, {WS_EA}", "s_add_u32 s24, s12, s26", "s_addc_u32 s25, s13, 0")
    e("s_mov_b32 s28, 109951168", "s_movk_i32 s29, 625", "s_movk_i32 s30, 838")
    e("s_barrier")
    e("s_waitcnt vmcnt(6)")
    ts.stamp()
    for k in range(2):
        e(f"v_mul_hi_u32 v{20+k}, v{4+k}, s28")
    for k in range(2):
        e(f"v_lshlrev_b32 v{22+k}, 2, v{20+k}")
        e(f"ds_add_rtn_u32 v{24+k}, v{22+k}, v15 offset:{CNT}")
    for k in range(2):
        e(f"v_mad_u32_u24 v{26+k}, v{20+k}, s29, 15", f"v_lshrrev_b32 v{26+k}, 4, v{26+k}", f"v_sub_u32 v{26+k}, v{4+k}, v{26+k}")
        e(f"v_lshrrev_b32 v{28+k}, 3, v{20+k}", f"v_and_b32 v{28+k}, 28, v{28+k}")
    e("s_waitcnt vmcnt(5)")
    for k in range(2):
        e(f"v_mul_u32_u24 v{30+k}, s30, v{6+k}", f"v_lshrrev_b32 v{30+k}, 18, v{30+k}", f"v_sub_u32 v{30+k}, v{30+k}, v{28+k}",
          f"v_and_b32 v{30+k}, 31, v{30+k}", f"v_lshl_or_b32 v{30+k}, v{26+k}, 5, v{30+k}",
          f"v_lshlrev_b32 v{30+k}, 21, v{30+k}", f"v_lshl_or_b32 v{30+k}, v{6+k}, 7, v{30+k}")
    e("v_lshlrev_b32 v12, 4, v3")
    e("s_waitcnt lgkmcnt(0)", "s_barrier")
    e(f"ds_read_b128 v[32:35], v12 offset:{CNT}")
    e("v_lshlrev_b32 v44, 6, v0", "v_add_u32 v45, 32, v44")
    e("s_waitcnt lgkmcnt(0)")
    e("v_add_u32 v36, v32, v33", "v_add3_u32 v36, v36, v34, v35", "v_mov_b32 v37, v36")
    scan_dpp(e, 37, True)
    e("v_sub_u32 v40, v37, v36", "v_add_u32 v41, v40, v32", "v_add_u32 v42, v41, v33", "v_add_u32 v43, v42, v34")
    e(f"ds_write_b128 v12, v[40:43] offset:{START}")
    for k in range(2):
        e(f"ds_read_b32 v{26+k}, v{22+k} offset:{START}")
    e("s_cmp_lg_u32 s3, 9", "s_cbranch_scc1 K1_notab")
    for k in range(4):
        e(f"v_lshl_or_b32 v{32+k}, v{32+k}, 16, v{40+k}")
    e(f"global_store_dwordx4 v12, v[32:35], s[20:21] {st}")
    e.label("K1_notab")
    e("s_waitcnt vmcnt(4) lgkmcnt(0)")
    for k in range(2):
        e(f"v_add_u32 v{26+k}, v{26+k}, v{24+k}")
        e(f"v_lshlrev_b32 v{28+k}, 2, v{26+k}", f"v_mul_u32_u24 v{26+k}, 12, v{26+k}")
        e(f"ds_write_b32 v{28+k}, v{44+k} offset:{INV}")
        e(f"v_add_u32 v{26+k}, {SKS}, v{26+k}")
        e(f"ds_write2_b32 v{26+k}, v{8+2*k}, v{9+2*k} offset0:0 offset1:1")
        e(f"ds_write_b32 v{26+k}, v{30+k} offset:8")
    e("v_lshrrev_b32 v20, 1, v3", "v_lshlrev_b32 v20, 2, v20", "s_lshl_b32 s14, s3, 9", "v_add_u32 v20, s14, v20")
    e("v_and_b32 v21, 1, v3", "v_lshlrev_b32 v21, 4, v21", f"v_add_u32 v21, {EAST}, v21")
    e("s_waitcnt vmcnt(0) lgkmcnt(0)")
    ts.stamp()
    e("s_barrier")
    for i in range(4):
        e(f"ds_read_b32 v{22+i}, v20 offset:{INV + i*128}")
    e(f"ds_read_b128 v[48:51], v2 offset:{SKS}")
    e(f"ds_read_b128 v[52:55], v2 offset:{SKS + 10240}")
    e("s_waitcnt lgkmcnt(2)")
    for i in range(4):
        e(f"v_add_u32 v{22+i}, v21, v{22+i}")
        e(f"ds_read_b128 v[{56+4*i}:{59+4*i}], v{22+i}")
    e("s_waitcnt lgkmcnt(4)")
    e(f"global_store_dwordx4 v2, v[48:51], s[22:23] {st}")
    e("s_cmp_ge_u32 s3, 5", "s_cbranch_scc1 K1_nosk2")
    e("v_add_u32 v1, 10240, v2")
    e(f"global_store_dwordx4 v1, v[52:55], s[22:23] {st}")
    e.label("K1_nosk2")
    for i in range(4):
        e(f"s_waitcnt lgkmcnt({3-i})")
        e(f"global_store_dwordx4 v16, v[{56+4*i}:{59+4*i}], s[24:25] offset:{i*1024} {st}")
    ts.flush(12, 3, 4)
    e.label("K1_done")
    e("s_endpgm")
    return e.text(), LDS, 72, 64


def gen_k2(P):
    e = Emitter()
    D = P["D"]
    R = 8
    MAP, CNT2, WR, WO, DEG, NBR, TOT, ALLOC, LIST = 0, 6144, 11264, 15360, 48128, 48384, 48640, 48644, 48896
    EAST = LIST + (CAP + 8 * GAP + 48) * 16
    LDS = EAST + CAP * 32
    AGL = 0
    LANE, X16, RLEN, RBASE, RG0, ONE = 1, 2, 3, 4, 5, 6
    T = 8
    ACC, RW, XR, TP, AGN, PQ, EA0, EA1, WRF, CGF, ENT = 16, 64, 96, 128, 144, 160, 164, 168, 172, 188, 192
    K, KN, MP, MQ, LA, LB, EAC, LAC, LBC, RKA = 196, 197, 198, 199, 200, 201, 202, 203, 204, 205
    WOF = 208
    e.idx_range = {("v", i) for i in range(ACC, ACC + 48)}
    sX, sTAB, sSK, sEA, sWO, sWR, sOUT = 16, 20, 24, 28, 32, 36, 40
    sB, sNB, sNCNT, sN, sROFF, sNR, sNV, sBASE, sRK, sCNT, sT, sT2 = 44, 45, 46, 47, 48, 49, 50, 51, 52, 53, 54, 55
    sNODE = 56
    sOFF = 61
    sM = 62
    SK = 64
    sV = 80
    sM0, sM1 = 86, 88
    ts = TS(e, P["TS"], [90, 92, 94, 96, 98, 100, 4, 8, 10, 12], 1)

    e("s_cmp_ge_u32 s2, 256", "s_cbranch_scc1 K2_done")
    e("s_load_dwordx2 s[14:15], s[0:1], 80")
    e("s_load_dwordx2 s[4:5], s[0:1], 0")
    e("s_load_dwordx4 s[8:11], s[0:1], 48")
    e("s_load_dwordx2 s[6:7], s[0:1], 40")
    e("s_load_dwordx2 s[12:13], s[0:1], 64")
    ts.stamp()
    e(f"v_lshrrev_b32 v{T}, 6, v0", f"v_and_b32 v{LANE}, 63, v0")
    e(f"v_readfirstlane_b32 s3, v{T}")
    e(f"s_and_b32 s{sB}, s2, 7", f"s_lshl_b32 s{sB}, s{sB}, 5", f"s_lshr_b32 s{sT}, s2, 3", f"s_add_u32 s{sB}, s{sB}, s{sT}")
    e(f"v_lshrrev_b32 v{T+1}, 1, v0", f"v_lshlrev_b32 v{T+2}, 10, v{T+1}", f"s_lshl_b32 s{sT}, s{sB}, 2")
    e(f"v_lshlrev_b32 v{X16}, 4, v{LANE}")
    e("s_waitcnt lgkmcnt(0)")
    e(f"s_mov_b32 s{sTAB}, s14", f"s_mov_b32 s{sTAB+1}, s15", f"s_mov_b32 s{sTAB+2}, {NCH*1024}", f"s_mov_b32 s{sTAB+3}, 0x20000")
    e(f"buffer_load_dword v{RLEN}, v{T+2}, s[{sTAB}:{sTAB+3}], s{sT} offen {P['TABPOL']}")
    e(f"s_mov_b32 s{sWO}, s10", f"s_mov_b32 s{sWO+1}, s11", f"s_mov_b32 s{sWO+2}, 32768", f"s_mov_b32 s{sWO+3}, 0x20000")
    e(f"s_lshl_b32 s{sT}, s3, 12", f"s_add_u32 m0, s{sT}, {WO}")
    for i in range(4):
        e(f"buffer_load_dwordx4 v{X16}, s[{sWO}:{sWO+3}], s{sT} offen offset:{i*1024} lds")
    e(f"s_mov_b32 s{sWR}, s8", f"s_mov_b32 s{sWR+1}, s9", f"s_mov_b32 s{sWR+2}, 4096", f"s_mov_b32 s{sWR+3}, 0x20000")
    e(f"s_and_b32 s{sT}, s3, 3", f"s_lshl_b32 s{sT}, s{sT}, 10", f"s_add_u32 m0, s{sT}, {WR}")
    e(f"buffer_load_dwordx4 v{X16}, s[{sWR}:{sWR+3}], s{sT} offen lds")
    e(f"v_lshrrev_b32 v{T+3}, 4, v{LANE}", f"v_lshlrev_b32 v{T+3}, 5, v{T+3}", f"v_and_b32 v{T+4}, 3, v{LANE}", f"v_lshl_add_u32 v{T+3}, v{T+4}, 1, v{T+3}")
    for v in range(4):
        e(f"global_load_ushort v{TP+v}, v{T+3}, s[6:7] offset:{8*v}")
    NPRE = 9
    e(f"s_mov_b32 s{sX}, s4", f"s_mov_b32 s{sX+1}, s5", f"s_mov_b32 s{sX+2}, {N*1024}", f"s_mov_b32 s{sX+3}, 0x20000")
    e(f"s_add_u32 s{sSK}, s14, {WS_SK}", f"s_addc_u32 s{sSK+1}, s15, 0", f"s_mov_b32 s{sSK+2}, {E*12}", f"s_mov_b32 s{sSK+3}, 0x20000")
    e(f"s_add_u32 s{sEA}, s14, {WS_EA}", f"s_addc_u32 s{sEA+1}, s15, 0", f"s_mov_b32 s{sEA+2}, {E*32}", f"s_mov_b32 s{sEA+3}, 0x20000")
    e(f"s_mul_i32 s{sNB}, s{sB}, 625", f"s_add_u32 s{sNCNT}, s{sNB}, 640", f"s_add_u32 s{sNB}, s{sNB}, 15",
      f"s_lshr_b32 s{sNB}, s{sNB}, 4", f"s_lshr_b32 s{sNCNT}, s{sNCNT}, 4", f"s_sub_u32 s{sNCNT}, s{sNCNT}, s{sNB}")
    e(f"s_lshl_b32 s{sT}, s{sNB}, 10", f"s_add_u32 s{sOUT}, s12, s{sT}", f"s_addc_u32 s{sOUT+1}, s13, 0",
      f"s_lshl_b32 s{sOUT+2}, s{sNCNT}, 10", f"s_mov_b32 s{sOUT+3}, 0x20000")
    e(f"s_mov_b32 s{sM0}, 0x0f0f0f0f", f"s_mov_b32 s{sM0+1}, 0x0f0f0f0f", f"s_mov_b32 s{sM1}, 0xf0f0f0f0", f"s_mov_b32 s{sM1+1}, 0xf0f0f0f0")
    e(f"s_mov_b32 s{sROFF}, 0")
    e(f"s_cmp_eq_u32 s{sNCNT}, 40", f"s_cselect_b32 s{sT}, 8, 0", f"s_add_u32 s{sT}, s{sT}, s3", f"s_mov_b32 s{sRK}, 0")
    for k, p in enumerate(PART39 + PART40):
        val = sum(r << (6 * i) for i, r in enumerate(p))
        e(f"s_cmp_eq_u32 s{sT}, {k}", f"s_cselect_b32 s{sRK}, {val}, s{sRK}")
    e(f"v_mul_u32_u24 v{RKA}, 6, v{LANE}", f"v_lshrrev_b32 v{RKA}, v{RKA}, s{sRK}", f"v_and_b32 v{RKA}, 63, v{RKA}", f"v_lshlrev_b32 v{RKA}, 2, v{RKA}")
    e(f"v_mov_b32 v{ONE}, 1")
    for i in range(48):
        e(f"v_mov_b32 v{ACC+i}, 0")
    for i in range(8):
        e(f"v_mov_b32 v{EA0+i}, 0")
    e(f"v_and_b32 v{T+3}, 4, v{LANE}", f"v_lshlrev_b32 v{T+3}, 2, v{T+3}", f"v_mov_b32 v{T+4}, 0xffff", f"v_lshlrev_b32 v{T+4}, v{T+3}, v{T+4}")
    e(f"v_bfe_i32 v{T+3}, v{LANE}, 3, 1", f"v_and_b32 v{MQ}, v{T+3}, v{T+4}", f"v_xor_b32 v{MP}, v{MQ}, v{T+4}")
    e(f"v_lshrrev_b32 v{EAC}, 5, v{LANE}", f"v_lshlrev_b32 v{EAC}, 4, v{EAC}", f"v_add_u32 v{EAC}, {EAST}, v{EAC}")
    e(f"v_and_b32 v{LAC}, 15, v{LANE}", f"v_lshlrev_b32 v{LAC}, 4, v{LAC}", f"v_add_u32 v{LAC}, {LIST+8}, v{LAC}")
    e(f"v_bfe_u32 v{T+3}, v{LANE}, 3, 2", f"v_and_b32 v{T+4}, 3, v{LANE}", f"v_lshl_add_u32 v{T+3}, v{T+3}, 2, v{T+4}",
      f"v_lshlrev_b32 v{LBC}, 4, v{T+3}", f"v_add_u32 v{LBC}, {LIST}, v{LBC}")
    e(f"v_mul_u32_u24 v{RG0}, {CH}, v{T+1}")

    def init_round(first):
        e(f"v_lshlrev_b32 v{T+3}, 2, v0", f"v_mov_b32 v{T+4}, 0x00ffffff", f"v_mov_b32 v{T+5}, 0")
        for i in range(3):
            e(f"ds_write_b32 v{T+3}, v{T+4} offset:{MAP + i*2048}")
        e(f"ds_write_b32 v{T+3}, v{T+5} offset:{CNT2}", f"ds_write_b32 v{T+3}, v{T+5} offset:{CNT2+2048}")
        e(f"v_and_b32 v{T+6}, 1023, v{T+3}", f"ds_write_b32 v{T+6}, v{T+5} offset:{CNT2+4096}")
        e(f"v_and_b32 v{T+6}, 255, v{T+3}", f"ds_write_b32 v{T+6}, v{T+5} offset:{DEG}")
        e(f"ds_write_b32 v{T+5}, v{T+5} offset:{ALLOC}")
        if first:
            e(f"ds_write_b32 v{T+5}, v{T+5} offset:{TOT}")
        e("s_waitcnt lgkmcnt(0)", "s_barrier")

    init_round(True)
    e(f"s_waitcnt vmcnt({NPRE})")
    ts.stamp()
    e(f"v_and_b32 v{T+3}, 0xffff, v{RLEN}", f"v_lshrrev_b32 v{RLEN}, 16, v{RLEN}")
    e("s_mov_b32 exec_lo, 0x55555555", "s_mov_b32 exec_hi, 0x55555555")
    e(f"ds_add_rtn_u32 v{RBASE}, v{T+5}, v{RLEN} offset:{TOT}")
    e("s_mov_b64 exec, -1")
    e(f"v_add_u32 v{RG0}, v{RG0}, v{T+3}")
    e("s_waitcnt lgkmcnt(0)")
    e(f"v_mov_b32_dpp v{RBASE}, v{RBASE} quad_perm:[0,0,2,2] row_mask:0xf bank_mask:0xf")
    e.label("K2_round")
    e(f"v_subrev_u32 v{T}, s{sROFF}, v{RBASE}")
    e(f"v_sub_u32 v{T+1}, 0, v{T}", f"v_max_i32 v{T+1}, 0, v{T+1}")
    e(f"v_sub_u32 v{T+2}, {CAP}, v{T}", f"v_min_i32 v{T+2}, v{T+2}, v{RLEN}")
    e(f"v_and_b32 v{T+3}, 1, v0", f"v_add_u32 v{T+1}, v{T+1}, v{T+3}")
    e(f"v_sub_u32 v{T+2}, v{T+2}, v{T+1}")
    e(f"v_add_lshl_u32 v{T}, v{T}, v{T+1}, 2")
    e(f"v_add_u32 v{T+1}, v{RG0}, v{T+1}")
    e.label("K2_map")
    for i in range(8):
        e(f"v_cmpx_lt_i32 vcc, {2*i}, v{T+2}")
        e(f"ds_write_b32 v{T}, v{T+1} offset:{MAP + 8*i}")
        e(f"v_add_u32 v{T+1}, 2, v{T+1}")
    e(f"v_cmpx_lt_i32 vcc, 16, v{T+2}")
    e(f"v_add_u32 v{T}, 64, v{T}", f"v_subrev_u32 v{T+2}, 16, v{T+2}")
    e("s_cbranch_execnz K2_map")
    e("s_mov_b64 exec, -1")
    e(f"v_lshlrev_b32 v{T}, 2, v0")
    e(f"v_lshrrev_b32 v{T+1}, 1, v{LANE}", f"s_lshl_b32 s{sT}, s3, 5", f"v_add_lshl_u32 v{T+1}, v{T+1}, s{sT}, 2")
    e(f"v_and_b32 v{T+2}, 1, v{LANE}", f"v_lshlrev_b32 v{T+2}, 4, v{T+2}", f"v_mov_b32 v{T+5}, 0")
    e("s_waitcnt lgkmcnt(0)", "s_barrier")
    G1, G2, SKR, RNK, CA = RW, RW + 4, RW + 12, RW + 24, RW + 28
    for i in range(3):
        e(f"ds_read_b32 v{G1+i}, v{T} offset:{MAP + 2048*i}")
    for i in range(6):
        e(f"ds_read_b32 v{G2+i}, v{T+1} offset:{MAP + 1024*i}")
    e(f"ds_read_b32 v{T+3}, v{T+5} offset:{TOT}")
    e(f"s_lshl_b32 s{sT}, s3, 10", f"s_add_u32 s{sT}, s{sT}, {EAST}")
    e("s_waitcnt lgkmcnt(7)")
    for i in range(3):
        e(f"v_mul_u32_u24 v{G1+i}, 12, v{G1+i}")
        e(f"buffer_load_dwordx3 v[{SKR+4*i}:{SKR+4*i+2}], v{G1+i}, s[{sSK}:{sSK+3}], 0 offen {P['SKPOL']}")
    e("s_waitcnt lgkmcnt(0)")
    for i in range(6):
        e(f"v_lshl_add_u32 v{G2+i}, v{G2+i}, 5, v{T+2}")
        e(f"s_add_u32 m0, s{sT}, {8192*i}")
        e(f"buffer_load_dwordx4 v{G2+i}, s[{sEA}:{sEA+3}], 0 offen {P['EAPOL']} lds")
    e(f"v_readfirstlane_b32 s{sN}, v{T+3}")
    e(f"s_sub_u32 s{sNR}, s{sN}, s{sROFF}", f"s_min_u32 s{sNR}, s{sNR}, {CAP}")
    for i in range(3):
        e(f"v_add_u32 v{G1+i}, {512*i}, v0")
        e(f"v_cmp_gt_u32 s[{sV+2*i}:{sV+2*i+1}], s{sNR}, v{G1+i}")
        e(f"v_lshlrev_b32 v{G1+i}, 21, v{G1+i}")
    e(f"s_mov_b32 s{sT2}, 0x1fff80")
    for i in range(3):
        e(f"s_waitcnt vmcnt({8-i})")
        if i == 0:
            ts.stamp()
        key = SKR + 4 * i + 2
        e(f"v_lshrrev_b32 v{CA+i}, 21, v{key}", f"v_lshlrev_b32 v{CA+i}, 2, v{CA+i}")
        e(f"v_lshrrev_b32 v{T+3}, 26, v{key}", f"v_lshlrev_b32 v{T+3}, 2, v{T+3}")
        e(f"s_mov_b64 exec, s[{sV+2*i}:{sV+2*i+1}]")
        e(f"ds_add_rtn_u32 v{RNK+i}, v{CA+i}, v{ONE} offset:{CNT2}")
        e(f"ds_add_u32 v{T+3}, v{ONE} offset:{DEG}")
        e("s_mov_b64 exec, -1")
        e(f"v_and_or_b32 v{key}, v{key}, s{sT2}, v{G1+i}")
    e(f"v_lshlrev_b32 v{T}, 2, v{LANE}")
    e("s_waitcnt lgkmcnt(0)", "s_barrier")
    e(f"s_cmp_lg_u32 s{sROFF}, 0", "s_cbranch_scc1 K2_ranked")
    e(f"ds_read_b32 v{T+1}, v{T} offset:{DEG}")
    e(f"v_sub_u32 v{T+2}, 63, v{LANE}", f"s_mul_i32 s{sT}, s3, 5")
    e(f"v_add_lshl_u32 v{T+4}, v{LANE}, s{sT}, 7")
    e("s_waitcnt lgkmcnt(0)")
    e(f"v_lshl_or_b32 v{T+1}, v{T+1}, 6, v{T+2}")
    for j in range(5):
        e(f"v_readlane_b32 s{SK+j}, v{T+1}, s{sT}")
        e(f"s_add_u32 s{sT}, s{sT}, 1")
    for j in range(5):
        e(f"v_cmp_lt_u32 s[{SK+6+2*j}:{SK+7+2*j}], s{SK+j}, v{T+1}")
    for j in range(5):
        e(f"s_bcnt1_i32_b64 s{SK+j}, s[{SK+6+2*j}:{SK+7+2*j}]", f"s_lshl_b32 s{SK+j}, s{SK+j}, 2")
        e(f"v_writelane_b32 v{T+3}, s{SK+j}, {j}")
    e("s_mov_b64 exec, 31")
    e(f"ds_write_b32 v{T+3}, v{T+4} offset:{NBR}")
    e("s_mov_b64 exec, -1")
    e("s_waitcnt lgkmcnt(0)", "s_barrier")
    e(f"ds_read_b32 v{T+1}, v{RKA} offset:{NBR}")
    e("s_waitcnt lgkmcnt(0)")
    for j in range(5):
        e(f"v_readlane_b32 s{sNODE+j}, v{T+1}, {j}")
    e.label("K2_ranked")
    CN, CAD = XR, XR + 8
    e(f"v_and_b32 v{T}, 124, v{T}")
    for j in range(5):
        e(f"v_add_u32 v{CAD+j}, s{sNODE+j}, v{T}")
        e(f"ds_read_b32 v{CN+j}, v{CAD+j} offset:{CNT2}")
    e("s_waitcnt lgkmcnt(0)")
    for j in range(1, 5):
        e(f"v_add_u32 v{CN+j}, v{CN+j}, v{CN+j-1}")
    e(f"v_mov_b32 v{T+1}, v{CN+4}")
    scan_dpp(e, T + 1, False)
    e(f"v_readlane_b32 s{sNV}, v{T+1}, 31")
    e(f"v_sub_u32 v{T+1}, v{T+1}, v{CN+4}")
    e(f"s_add_u32 s{sT}, s{sNV}, {GAP}", f"v_mov_b32 v{T+2}, s{sT}")
    e("s_mov_b64 exec, 1")
    e(f"ds_add_rtn_u32 v{T+3}, v{T+5}, v{T+2} offset:{ALLOC}")
    e("s_mov_b64 exec, -1")
    for j in range(4, 0, -1):
        e(f"v_add_u32 v{CN+j}, v{CN+j-1}, v{T+1}", f"v_lshl_or_b32 v{CN+j}, v{CN+j}, 4, {j}")
    e(f"v_lshlrev_b32 v{CN}, 4, v{T+1}")
    e(f"v_mov_b32 v{T+4}, {(0x3fff << 7) | 5}")
    e("s_waitcnt lgkmcnt(0)")
    e(f"v_readfirstlane_b32 s{sBASE}, v{T+3}")
    e(f"s_lshl_b32 s{sBASE}, s{sBASE}, 4", f"s_lshl_b32 s{sT}, s{sNV}, 4")
    for j in range(5):
        e(f"v_add_u32 v{CN+j}, s{sBASE}, v{CN+j}")
        e(f"ds_write_b32 v{CAD+j}, v{CN+j} offset:{CNT2}")
    e(f"v_add_u32 v{LA}, s{sBASE}, v{LAC}", f"v_add_u32 v{LB}, s{sBASE}, v{LBC}", f"v_add_u32 v{T+3}, s{sT}, v{LA}")
    e(f"ds_write_b32 v{T+3}, v{T+4}")
    e("s_waitcnt lgkmcnt(0)", "s_barrier")
    for i in range(3):
        e(f"ds_read_b32 v{CA+i}, v{CA+i} offset:{CNT2}")
    for i in range(3):
        key = SKR + 4 * i + 2
        e(f"s_waitcnt lgkmcnt(2)")
        e(f"v_and_or_b32 v{key}, v{CA+i}, 7, v{key}")
        e(f"v_lshl_add_u32 v{CA+i}, v{RNK+i}, 4, v{CA+i}", f"v_and_b32 v{CA+i}, -16, v{CA+i}")
        e(f"s_mov_b64 exec, s[{sV+2*i}:{sV+2*i+1}]")
        e(f"ds_write_b96 v{CA+i}, v[{SKR+4*i}:{SKR+4*i+2}] offset:{LIST}")
        e("s_mov_b64 exec, -1")
    e("s_waitcnt lgkmcnt(0)", "s_barrier")
    ts.stamp()
    e(f"ds_read_b32 v{K}, v{LA}", f"ds_read_b32 v{KN}, v{LA} offset:{16*D}", f"ds_read_b128 {vr(ENT,4)}, v{LB}")
    e(f"s_mov_b32 s{sT2}, 0x00fffc38")
    e("s_waitcnt lgkmcnt(2)")
    e(f"v_lshlrev_b32 v{K}, 3, v{K}", f"v_and_b32 v{K}, s{sT2}, v{K}")

    def xload(j):
        e(f"s_and_b32 s{sOFF}, s{SK + j % 16}, 0xffffff00")
        s = XR + 4 * (j % R)
        e(f"buffer_load_dwordx4 {vr(s,4)}, v{X16}, s[{sX}:{sX+3}], s{sOFF} offen")

    for j in range(D):
        e(f"v_readlane_b32 s{SK+j}, v{K}, {j}")
    for j in range(D):
        xload(j)
    e(f"s_cmp_lg_u32 s{sROFF}, 0", "s_cbranch_scc1 K2_nofrag")
    e(f"v_lshl_or_b32 v{CGF}, v{TP+1}, 16, v{TP}", f"v_lshl_or_b32 v{CGF+1}, v{TP+3}, 16, v{TP+2}")
    e(f"v_lshrrev_b32 v{T}, 5, v{LANE}", f"v_lshlrev_b32 v{T}, 11, v{T}", f"v_and_b32 v{T+1}, 15, v{LANE}", f"v_lshl_add_u32 v{T}, v{T+1}, 4, v{T}")
    for i in range(8):
        e(f"ds_read_b128 {vr(RW+4*i,4)}, v{T} offset:{WR + 256*i}")
    e(f"v_bfe_u32 v{T+2}, v{LANE}, 4, 1", f"v_mov_b32 v{T+3}, 0x02020202", f"v_mul_lo_u32 v{T+2}, v{T+2}, v{T+3}", f"v_add_u32 v{T+2}, 0x05040100, v{T+2}")
    e(f"v_lshrrev_b32 v{T}, 4, v{LANE}", f"v_lshlrev_b32 v{T}, 13, v{T}", f"v_lshl_add_u32 v{T}, v{T+1}, 2, v{T}",
      f"s_and_b32 s{sT}, s3, 3", f"s_lshl_b32 s{sT}, s{sT}, 6", f"s_add_u32 s{sT}, s{sT}, {WO}", f"v_add_u32 v{T}, s{sT}, v{T}")
    e("s_waitcnt lgkmcnt(0)")
    for h in range(2):
        for t in range(2):
            for ip in range(4):
                e(f"v_perm_b32 v{WRF+8*h+4*t+ip}, v{RW+4*(2*ip+1)+t+2*h}, v{RW+4*(2*ip)+t+2*h}, v{T+2}")
    for s in range(4):
        for ip in range(4):
            e(f"ds_read2st64_b32 {vr(RW+8*s+2*ip,2)}, v{T} offset0:{8*ip+s} offset1:{8*ip+4+s}")
    e(f"s_mov_b32 s{sM}, 0x05040100", f"s_mov_b32 s{sM+1}, 0x07060302")
    e("s_waitcnt lgkmcnt(0)")
    for s in range(4):
        for t in range(2):
            for ip in range(4):
                e(f"v_perm_b32 v{WOF+8*s+4*t+ip}, v{RW+8*s+2*ip+1}, v{RW+8*s+2*ip}, s{sM+t}")
    e.label("K2_nofrag")

    def ea_reads():
        e(f"v_lshrrev_b32 v{T}, 21, v{ENT+2}", f"v_lshl_add_u32 v{T}, v{T}, 5, v{EAC}")
        e(f"s_mov_b64 exec, s[{sM0}:{sM0+1}]", f"ds_read_b128 {vr(EA0,4)}, v{T}")
        e(f"s_mov_b64 exec, s[{sM1}:{sM1+1}]", f"ds_read_b128 {vr(EA1,4)}, v{T}")
        e("s_mov_b64 exec, -1")

    e(f"s_waitcnt vmcnt({D}) lgkmcnt(0)", "s_barrier")
    ts.stamp()
    e(f"s_cmp_eq_u32 s{sNV}, 0", "s_cbranch_scc1 K2_swept")
    ea_reads()
    e(f"s_mov_b32 s{sCNT}, s{sNV}")
    e(".p2align 3")
    e.label("K2_loop")
    e("s_waitcnt lgkmcnt(0)")
    for q in range(4):
        e(f"v_mfma_f32_4x4x4_16b_bf16 {vr(AGN+4*q,4)}, {vr(ENT,2)}, {vr(CGF,2)}, 0 cbsz:4 abid:{2*q}")
    fill = [f"v_lshlrev_b32 v{K}, 3, v{KN}", f"v_and_b32 v{K}, s{sT2}, v{K}", f"v_add_u32 v{LA}, 256, v{LA}", f"v_add_u32 v{LB}, 256, v{LB}",
            f"ds_read_b32 v{KN}, v{LA} offset:{16*D}", f"ds_read_b128 {vr(ENT,4)}, v{LB}"]

    def pq(j):
        p = PQ + 2 * (j % 2)
        return [f"v_cvt_pk_bf16_f32 v{T+1+j%2}, v{AGN+j}, v{AGN+j}", f"v_and_b32 v{p}, v{MP}, v{T+1+j%2}", f"v_and_b32 v{p+1}, v{MQ}, v{T+1+j%2}"]

    fill += pq(0)
    for h in range(2):
        e(f"v_mfma_f32_32x32x16_bf16 {vr(RW+16*h,16)}, {vr(EA0,4)}, {vr(WRF+8*h,4)}, 0")
        e(*fill[:3]); fill = fill[3:]
    for h in range(2):
        e(f"v_mfma_f32_32x32x16_bf16 {vr(RW+16*h,16)}, {vr(EA1,4)}, {vr(WRF+8*h+4,4)}, {vr(RW+16*h,16)}")
        e(*fill[:3]); fill = fill[3:]

    def fmas(j):
        t = TP + 8 * (j % 2)
        e(f"s_set_gpr_idx_on s{SK + j % 16}, gpr_idx(SRC2,DST)")
        for h in range(2):
            r = RW + 16 * h + j
            rp = r & ~1
            sel = "op_sel:[0,1,0] op_sel_hi:[1,1,1]" if r & 1 else "op_sel_hi:[1,0,1]"
            for q in range(2):
                a = ACC + 4 * h + 2 * q
                e(f"v_pk_fma_f32 {vr(a,2)}, {vr(t+4*h+2*q,2)}, {vr(rp,2)}, {vr(a,2)} {sel}")
        e("s_set_gpr_idx_off")

    for j in range(16):
        t = TP + 8 * (j % 2)
        p = PQ + 2 * (j % 2)
        s = XR + 4 * (j % R)
        nx = pq(j + 1) if j < 15 else []
        e(f"s_waitcnt vmcnt({D-1})")
        e(f"v_mfma_f32_16x16x16_bf16 {vr(t,4)}, {vr(p,2)}, {vr(s,2)}, 0")
        e(f"v_readlane_b32 s{SK + (j + D) % 16}, v{K}, {j}")
        e(*nx[:1])
        e(f"v_mfma_f32_16x16x16_bf16 {vr(t+4,4)}, {vr(p,2)}, {vr(s+2,2)}, 0")
        e(*nx[1:])
        xload(j + D)
        if j == 2:
            e("s_waitcnt lgkmcnt(0)")
            ea_reads()
        if j > 0:
            fmas(j - 1)
        if j in (4, 8, 12):
            e(f"s_cmp_le_u32 s{sCNT}, {j}", "s_cbranch_scc1 K2_swept")
    fmas(15)
    e(f"s_sub_i32 s{sCNT}, s{sCNT}, 16", f"s_cmp_gt_i32 s{sCNT}, 0", "s_cbranch_scc1 K2_loop")
    e.label("K2_swept", pad=8)
    ts.stamp()
    e(f"s_add_u32 s{sROFF}, s{sROFF}, {CAP}", f"s_cmp_ge_u32 s{sROFF}, s{sN}", "s_cbranch_scc1 K2_epi")
    e("s_waitcnt vmcnt(0) lgkmcnt(0)", "s_barrier")
    init_round(False)
    e("s_branch K2_round")
    e.label("K2_epi")
    e(f"v_lshlrev_b32 v{T}, 2, v{LANE}")
    for s in range(5):
        e(f"s_lshr_b32 s{sT}, s{sNODE+s}, 1", f"s_and_b32 s{sT}, s{sT}, 0xc0", f"s_lshl_b32 s{sT2}, s{sNODE+s}, 3", f"s_or_b32 s{sT}, s{sT}, s{sT2}")
        for w in range(4):
            e(f"s_xor_b32 s{sT2}, s{sT}, {w << 4}")
            e(f"v_cvt_pk_bf16_f32 v{RW+8*s%32+w}, v{ACC+8*s+w}, v{ACC+8*s+4+w}")
            e(f"v_xor_b32 v{RW+8*s%32+4+w}, s{sT2}, v{T}")
            e(f"ds_write_b32 v{RW+8*s%32+4+w}, v{RW+8*s%32+w} offset:{AGL + 256*w}")
    e(f"v_and_b32 v{T}, 15, v{LANE}", f"v_lshrrev_b32 v{T+1}, 4, v{LANE}", f"v_xor_b32 v{T+2}, v{T}, v{T+1}", f"v_lshlrev_b32 v{T+2}, 4, v{T+2}",
      f"v_lshl_add_u32 v{T+2}, v{T}, 8, v{T+2}", f"s_lshr_b32 s{sT}, s3, 2", f"s_mul_i32 s{sT}, s{sT}, 20480", f"v_add_u32 v{T+2}, s{sT}, v{T+2}")
    for s in range(1, 4):
        e(f"v_xor_b32 v{T+2+s}, {64*s}, v{T+2}")
    e(f"v_lshlrev_b32 v{T+1}, 10, v{T+1}", f"v_lshl_add_u32 v{T+1}, v{T}, 2, v{T+1}",
      f"s_and_b32 s{sT2}, s3, 3", f"s_lshl_b32 s{sT2}, s{sT2}, 6", f"s_add_u32 s{sT}, s{sT}, s{sT2}")
    e("s_waitcnt vmcnt(0) lgkmcnt(0)", "s_barrier")
    AF, DD = ACC, 128
    for tl in range(5):
        for s in range(4):
            e(f"ds_read_b128 {vr(AF+16*tl+4*s,4)}, v{T+2+s} offset:{AGL + 4096*tl}")
    PK = 96

    def stores(tl):
        for i in range(4):
            e(f"v_cvt_pk_bf16_f32 v{PK+4*tl+i}, v{DD+8*tl+i}, v{DD+8*tl+4+i}")
            e(f"buffer_store_dword v{PK+4*tl+i}, v{T+1}, s[{sOUT}:{sOUT+3}], s{sT} offen offset:{256*i} {P['OUTPOL']}")
        e(f"s_add_u32 s{sT}, s{sT}, 4096")

    for tl in range(5):
        e(f"s_waitcnt lgkmcnt({min(16 - 4 * tl, 15)})")
        for s in range(4):
            for t in range(2):
                c = "0" if s == 0 else vr(DD + 8 * tl + 4 * t, 4)
                e(f"v_mfma_f32_16x16x32_bf16 {vr(DD+8*tl+4*t,4)}, {vr(AF+16*tl+4*s,4)}, {vr(WOF+8*s+4*t,4)}, {c}")
        if tl > 0:
            stores(tl - 1)
    stores(4)
    ts.flush(14, 3, 4)
    e.label("K2_done")
    e("s_endpgm")
    return e.text(), LDS, 240, 102


HEADER = """; Kernarg layout for this problem (88 bytes, ptrs only, base s[0:1]):
"""


def desc(name, vgpr, sgpr):
    return (f".p2align 6\n.amdhsa_kernel {name}\n  .amdhsa_next_free_vgpr {vgpr}\n  .amdhsa_next_free_sgpr {sgpr}\n"
            f"  .amdhsa_accum_offset {(vgpr+3)//4*4}\n  .amdhsa_group_segment_fixed_size 0\n  .amdhsa_kernarg_size 88\n"
            f"  .amdhsa_user_sgpr_count 2\n  .amdhsa_user_sgpr_kernarg_segment_ptr 1\n  .amdhsa_system_sgpr_workgroup_id_x 1\n"
            f"  .amdhsa_float_denorm_mode_32 3\n.end_amdhsa_kernel\n")


def generate(**kw):
    P = dict(DEF)
    P.update(kw)
    k1, lds1, v1, s1 = gen_k1(P)
    k2, lds2, v2, s2 = gen_k2(P)
    n1, n2 = "part_kernel", NAME + "_kernel"
    out = HEADER
    out += f"; @launch kernel={n1} grid=({NCH},1,1) block=(640,1,1) lds={lds1}\n"
    out += f"; @launch kernel={n2} grid=(256,1,1) block=(512,1,1) lds={lds2}\n"
    for i in range(P["EXTRA"]):
        out += "; @launch kernel=nop_kernel grid=(256,1,1) block=(64,1,1) lds=0\n"
    out += '.amdgcn_target "amdgcn-amd-amdhsa--gfx950"\n.text\n'
    ks = [(n1, k1, v1, s1), (n2, k2, v2, s2)]
    if P["EXTRA"]:
        ks.append(("nop_kernel", "    s_endpgm\n", 8, 16))
    for n, k, _, _ in ks:
        out += f".globl {n}\n.p2align 8\n.type {n},@function\n{n}:\n{k}"
    out += '.section .rodata,"a"\n'
    for n, _, v, s in ks:
        out += desc(n, v, s)
    return out


if __name__ == "__main__":
    kw = {}
    for a in sys.argv[1:]:
        k, v = a.split("=", 1)
        kw[k] = int(v) if v.lstrip("-").isdigit() else v
    sys.stdout.write(generate(**kw))
```

```python
import sys, os
sys.path.insert(0, os.path.dirname(os.path.abspath(__file__)))
from emit import Emitter

NAME = "gather_scatter__tensor_product_equiv_mace__graph"
N, E = 10000, 320000
CH, NCH = 1280, 250
WS_TAB, WS_SK, WS_EA, WS_FRAG, WS_TS = 0, 0x40000, 0x400000, 0x3F0000, 0x2000000
CAP, GAP = 1536, 16

DEF = dict(K2EA="001122", SKBAR=1, XPF=0, MU=7, D=6, TS=0, K1POL="nt", K1ST="sc1", K1EA="0011", TABPOL="", SKPOL="", EAPOL="", OUTPOL="", EXTRA=0, PRE=0, MID=0, DUP=0, DUP2=0)

PART39 = [[3, 11, 21, 31, 36], [5, 8, 20, 27, 38], [0, 6, 7, 13, 39], [9, 14, 18, 25, 34], [10, 16, 19, 24, 32], [4, 12, 26, 29, 33], [1, 17, 23, 28, 37], [2, 15, 22, 30, 35]]
PART40 = [[1, 10, 15, 30, 39], [2, 9, 21, 28, 37], [4, 14, 22, 27, 31], [6, 12, 18, 24, 35], [3, 8, 16, 29, 38], [5, 13, 17, 26, 34], [0, 20, 23, 32, 36], [7, 11, 19, 25, 33]]


def vr(a, n):
    return f"v[{a}:{a+n-1}]" if n > 1 else f"v{a}"


def scan_dpp(e, v, full):
    for k in (1, 2, 4, 8):
        e(f"v_add_u32_dpp v{v}, v{v}, v{v} row_shr:{k} row_mask:0xf bank_mask:0xf")
    e(f"v_add_u32_dpp v{v}, v{v}, v{v} row_bcast:15 row_mask:0xa bank_mask:0xf")
    if full:
        e(f"v_add_u32_dpp v{v}, v{v}, v{v} row_bcast:31 row_mask:0xc bank_mask:0xf")


class TS:
    last = {}

    def __init__(self, e, on, regs, kidx):
        self.e, self.on, self.regs, self.n, self.kidx, self.names = e, on, regs, 0, kidx, []
        TS.last[kidx] = self

    def stamp(self, name=""):
        if self.on and (self.on == 1 or name in str(self.on).split(",") or name == ""):
            r = self.regs[self.n]
            self.e(f"s_memrealtime s[{r}:{r+1}]")
            self.n += 1
            self.names.append(name)

    def flush(self, ws, wave, v):
        if not self.on:
            return
        e = self.e
        e("s_waitcnt vmcnt(0) lgkmcnt(0)")
        self.stamp()
        e("s_waitcnt lgkmcnt(0)")
        e(f"s_lshl_b32 s2, s2, 4", f"s_add_u32 s2, s2, s{wave}", f"s_lshl_b32 s2, s2, 6", f"s_add_u32 s2, s2, {WS_TS + self.kidx * 0x80000}")
        e(f"v_mov_b32 v{v}, s2")
        for i in range(self.n):
            e(f"v_mov_b32 v{v+1}, s{self.regs[i]}")
            e(f"global_store_dword v{v}, v{v+1}, s[{ws}:{ws+1}] offset:{4*i}")


class VQ:
    def __init__(self, e):
        self.e, self.q = e, []

    def op(self, tag, text):
        self.e(text)
        self.q.append(tag)

    def n(self, tag):
        idx = max(i for i, t in enumerate(self.q) if t == tag)
        return len(self.q) - 1 - idx

    def wait(self, tag, extra=""):
        self.e(f"s_waitcnt vmcnt({self.n(tag)}) {extra}".strip())


def gen_k1(P):
    e = Emitter()
    vq = VQ(e)
    CNT, START, INV, SKS, EAST = 0, 1024, 2048, 7168, 22528
    LDS = EAST + CH * 32
    pol, st = P["K1POL"], P["K1ST"]
    stage = [int(c) for c in str(P["K1EA"]).zfill(4)]
    ts = TS(e, 1 if P["TS"] else 0, list(range(40, 64, 2)), 0)

    def ea(p):
        for i in range(4):
            if stage[i] == p:
                vq.op("ea", f"buffer_load_dwordx4 v16, s[16:19], 0 offen offset:{i*1024} {pol} lds")

    e(f"s_cmp_ge_u32 s2, {NCH}", "s_cbranch_scc1 K1_frag")
    e("s_load_dwordx4 s[4:7], s[0:1], 8")
    e("s_load_dwordx4 s[8:11], s[0:1], 24")
    e("s_load_dwordx2 s[12:13], s[0:1], 80")
    ts.stamp("")
    e("v_lshrrev_b32 v12, 6, v0", "v_lshlrev_b32 v1, 3, v0", "v_lshlrev_b32 v2, 4, v0", "v_and_b32 v3, 63, v0")
    e("v_readfirstlane_b32 s3, v12")
    e("v_lshlrev_b32 v13, 2, v0", "v_mov_b32 v14, 0", "v_mov_b32 v15, 1")
    e("ds_write_b32 v13, v14")
    e(f"s_mul_i32 s14, s2, {CH*4}", f"s_mul_i32 s15, s2, {CH*8}", f"s_mul_i32 s26, s2, {CH*32}")
    e("s_lshl_b32 s27, s3, 12")
    e("v_lshl_add_u32 v16, v3, 4, s27")
    e(f"s_add_u32 m0, s27, {EAST}")
    e("s_waitcnt lgkmcnt(0)")
    ts.stamp("karg")
    e("s_add_u32 s6, s6, s14", "s_addc_u32 s7, s7, 0")
    vq.op("dst", f"global_load_dwordx2 v[4:5], v1, s[6:7] {pol}")
    e("s_add_u32 s4, s4, s14", "s_addc_u32 s5, s5, 0")
    vq.op("src", f"global_load_dwordx2 v[6:7], v1, s[4:5] {pol}")
    e("s_add_u32 s8, s8, s15", "s_addc_u32 s9, s9, 0")
    e("s_add_u32 s16, s10, s26", "s_addc_u32 s17, s11, 0", f"s_mov_b32 s18, {CH*32}", "s_mov_b32 s19, 0x20000")
    e("s_barrier")
    vq.op("sh", f"global_load_dwordx4 v[8:11], v2, s[8:9] {pol}")
    ea(0)
    e("s_lshl_b32 s14, s2, 10", "s_add_u32 s20, s12, s14", "s_addc_u32 s21, s13, 0")
    e(f"s_mul_i32 s14, s2, {CH*12}", f"s_add_u32 s14, s14, {WS_SK}", "s_add_u32 s22, s12, s14", "s_addc_u32 s23, s13, 0")
    e(f"s_add_u32 s26, s26, {WS_EA}", "s_add_u32 s24, s12, s26", "s_addc_u32 s25, s13, 0")
    e("s_mov_b32 s28, 109951168", "s_movk_i32 s29, 625", "s_movk_i32 s30, 838")
    vq.wait("dst")
    ts.stamp("dst")
    for k in range(2):
        e(f"v_mul_hi_u32 v{20+k}, v{4+k}, s28")
    for k in range(2):
        e(f"v_lshlrev_b32 v{22+k}, 2, v{20+k}")
        e(f"ds_add_rtn_u32 v{24+k}, v{22+k}, v15 offset:{CNT}")
    e("v_lshlrev_b32 v12, 4, v3")
    e("s_waitcnt lgkmcnt(0)", "s_barrier")
    ts.stamp("hist")
    e(f"ds_read_b128 v[32:35], v12 offset:{CNT}")
    ea(1)
    for k in range(2):
        e(f"v_mad_u32_u24 v{26+k}, v{20+k}, s29, 15", f"v_lshrrev_b32 v{26+k}, 4, v{26+k}", f"v_sub_u32 v{26+k}, v{4+k}, v{26+k}")
        e(f"v_lshrrev_b32 v{28+k}, 3, v{20+k}", f"v_and_b32 v{28+k}, 28, v{28+k}")
    e("s_waitcnt lgkmcnt(0)")
    e("v_add_u32 v36, v32, v33", "v_add3_u32 v36, v36, v34, v35", "v_mov_b32 v37, v36")
    scan_dpp(e, 37, True)
    e("v_sub_u32 v40, v37, v36", "v_add_u32 v41, v40, v32", "v_add_u32 v42, v41, v33", "v_add_u32 v43, v42, v34")
    e(f"ds_write_b128 v12, v[40:43] offset:{START}")
    for k in range(2):
        e(f"ds_read_b32 v{38+k}, v{22+k} offset:{START}")
    vq.wait("src")
    for k in range(2):
        e(f"v_mul_u32_u24 v{30+k}, s30, v{6+k}", f"v_lshrrev_b32 v{30+k}, 18, v{30+k}", f"v_sub_u32 v{30+k}, v{30+k}, v{28+k}",
          f"v_and_b32 v{30+k}, 31, v{30+k}", f"v_lshl_or_b32 v{30+k}, v{26+k}, 5, v{30+k}",
          f"v_lshlrev_b32 v{30+k}, 21, v{30+k}", f"v_lshl_or_b32 v{30+k}, v{6+k}, 7, v{30+k}")
    e("v_lshlrev_b32 v44, 6, v0", "v_add_u32 v45, 32, v44")
    vq.wait("sh", "lgkmcnt(0)")
    for k in range(2):
        e(f"v_add_u32 v{26+k}, v{38+k}, v{24+k}")
        e(f"v_lshlrev_b32 v{28+k}, 2, v{26+k}", f"v_mul_u32_u24 v{26+k}, 12, v{26+k}")
        e(f"ds_write_b32 v{28+k}, v{44+k} offset:{INV}")
        e(f"v_add_u32 v{26+k}, {SKS}, v{26+k}")
        e(f"ds_write2_b32 v{26+k}, v{8+2*k}, v{9+2*k} offset0:0 offset1:1")
        e(f"ds_write_b32 v{26+k}, v{30+k} offset:8")
    ea(2)
    for k in range(4):
        e(f"v_lshl_or_b32 v{32+k}, v{32+k}, 16, v{40+k}")
    e("v_lshrrev_b32 v20, 1, v3", "v_lshlrev_b32 v20, 2, v20", "s_lshl_b32 s14, s3, 9", "v_add_u32 v20, s14, v20")
    e("v_and_b32 v21, 1, v3", "v_lshlrev_b32 v21, 4, v21", f"v_add_u32 v21, {EAST}, v21")
    e("s_mul_i32 s14, s3, 1536", "v_add_u32 v1, s14, v12")
    e("s_waitcnt lgkmcnt(0)", "s_barrier")
    ts.stamp("scat")
    e(f"ds_read_b128 v[48:51], v1 offset:{SKS}")
    e(f"ds_read_b128 v[52:55], v1 offset:{SKS + 1024}")
    for i in range(4):
        e(f"ds_read_b32 v{22+i}, v20 offset:{INV + i*128}")
    ea(3)
    e("s_waitcnt lgkmcnt(4)")
    vq.op("st", f"global_store_dwordx4 v1, v[48:51], s[22:23] {st}")
    e("s_mov_b32 exec_hi, 0")
    vq.op("st", f"global_store_dwordx4 v1, v[52:55], s[22:23] offset:1024 {st}")
    e("s_mov_b32 exec_hi, -1")
    e("s_waitcnt lgkmcnt(0)")
    for i in range(4):
        e(f"v_add_u32 v{22+i}, v21, v{22+i}")
    vq.wait("ea")
    e("s_barrier")
    ts.stamp("land")
    for i in range(4):
        e(f"ds_read_b128 v[{56+4*i}:{59+4*i}], v{22+i}")
    for i in range(4):
        e(f"s_waitcnt lgkmcnt({3-i})")
        e(f"global_store_dwordx4 v16, v[{56+4*i}:{59+4*i}], s[24:25] offset:{i*1024} {st}")
    e("s_cmp_lg_u32 s3, 9", "s_cbranch_scc1 K1_notab")
    e(f"global_store_dwordx4 v12, v[32:35], s[20:21] {st}")
    e.label("K1_notab")
    ts.stamp("stored")
    ts.flush(12, 3, 4)
    e.label("K1_done")
    e("s_endpgm")
    e.label("K1_frag")
    e(f"s_cmp_ge_u32 s2, {NCH+5}", "s_cbranch_scc1 K1_done")
    e("s_load_dwordx2 s[4:5], s[0:1], 40")
    e("s_load_dwordx4 s[8:11], s[0:1], 48")
    e("s_load_dwordx2 s[12:13], s[0:1], 80")
    e("v_lshrrev_b32 v12, 6, v0", "v_and_b32 v3, 63, v0", "v_and_b32 v4, 15, v0")
    e("v_readfirstlane_b32 s3, v12")
    e(f"s_sub_u32 s14, s2, {NCH}")
    e("s_cmp_ge_u32 s3, 8", "s_cbranch_scc1 K1_done")
    e("s_waitcnt lgkmcnt(0)")
    e(f"s_add_u32 s12, s12, {WS_FRAG}", "s_addc_u32 s13, s13, 0")
    e("v_lshlrev_b32 v2, 4, v0")
    e("s_cmp_eq_u32 s14, 4", "s_cbranch_scc1 K1_fragc")
    e("v_lshrrev_b32 v5, 4, v3", "v_lshlrev_b32 v5, 13, v5", "v_lshl_add_u32 v5, v4, 2, v5")
    e("s_lshr_b32 s15, s3, 1", "s_lshl_b32 s15, s15, 8", "s_and_b32 s16, s3, 1", "s_lshl_b32 s16, s16, 1", "s_add_u32 s15, s15, s16",
      "s_lshl_b32 s16, s14, 6", "s_add_u32 s15, s15, s16", "v_add_u32 v5, s15, v5", "v_add_u32 v6, 4096, v5")
    for i in range(8):
        e(f"global_load_ushort v{8+i}, v{5+i//4}, s[10:11] offset:{1024*(i%4)}")
    e("s_lshl_b32 s15, s14, 13", "s_add_u32 s15, s15, 8192", "v_add_u32 v2, s15, v2")
    e.label("K1_fragst")
    e("s_waitcnt vmcnt(0)")
    for i in range(4):
        e(f"v_lshl_or_b32 v{16+i}, v{9+2*i}, 16, v{8+2*i}")
    e.label("K1_fragst2")
    e(f"global_store_dwordx4 v2, v[16:19], s[12:13] {st}")
    e("s_endpgm")
    e.label("K1_fragc")
    e("s_cmp_ge_u32 s3, 4", "s_cbranch_scc1 K1_fragc2")
    e("v_lshrrev_b32 v5, 5, v3", "v_lshlrev_b32 v5, 11, v5", "v_lshl_add_u32 v5, v4, 4, v5", "v_bfe_u32 v6, v3, 4, 1", "v_lshl_add_u32 v5, v6, 1, v5",
      "s_lshl_b32 s15, s3, 2", "v_add_u32 v5, s15, v5")
    for i in range(8):
        e(f"global_load_ushort v{8+i}, v5, s[8:9] offset:{256*i}")
    e("s_branch K1_fragst")
    e.label("K1_fragc2")
    e("s_cmp_eq_u32 s3, 4", "s_cbranch_scc0 K1_fragc3")
    e("v_lshrrev_b32 v5, 4, v3", "v_lshlrev_b32 v5, 5, v5", "v_and_b32 v6, 3, v3", "v_lshl_add_u32 v5, v6, 1, v5")
    for v in range(4):
        e(f"global_load_ushort v{8+v}, v5, s[4:5] offset:{8*v}")
    e("v_and_b32 v6, 4, v3", "v_lshlrev_b32 v6, 2, v6", "v_mov_b32 v7, 0xffff", "v_lshlrev_b32 v7, v6, v7",
      "v_bfe_i32 v6, v3, 3, 1", "v_and_b32 v19, v6, v7", "v_xor_b32 v18, v19, v7")
    e("s_waitcnt vmcnt(0)")
    e("v_lshl_or_b32 v16, v9, 16, v8", "v_lshl_or_b32 v17, v11, 16, v10")
    e("s_branch K1_fragst2")
    e.label("K1_fragc3")
    for i in range(4):
        e(f"v_mov_b32 v{16+i}, 0")
    for k, part in enumerate((PART39, PART40)):
        for w, p in enumerate(part):
            for sl, r in enumerate(p):
                e(f"v_writelane_b32 v{16+k}, {w*8+sl}, {r}")
    for k in range(2):
        e(f"v_and_b32 v8, 7, v{16+k}", f"v_lshrrev_b32 v{16+k}, 3, v{16+k}", "v_lshlrev_b32 v8, 12, v8", f"v_lshl_or_b32 v{16+k}, v{16+k}, 7, v8")
    e("s_branch K1_fragst2")
    return e.text(), LDS, 72, 64


def gen_k2(P):
    e = Emitter()
    vq = VQ(e)
    D = P["D"]
    R = 8
    MAP, CNT2, WB, DEG, TOT, NODEOF, START, CB, WO = 0, 6144, 11264, 12288, 13312, 13568, 14336, 32768, 40960
    LIST = WO + 32768
    EAST = LIST + (CAP + 8 * GAP + 48) * 16
    LDS = EAST + CAP * 32
    AGL = 0
    LANE, X16, RLEN, RBASE, RG0, ONE = 1, 2, 3, 4, 5, 6
    T = 8
    ACC, RW, XR, TP, AGN, PQ, EA0, EA1, WRF, CGF, ENT = 16, 64, 96, 128, 144, 160, 164, 168, 172, 188, 192
    MP, MQ = CGF + 2, CGF + 3
    K, KN, LA, LB, EAC, LAC, LBC, RT = 196, 197, 198, 199, 200, 201, 202, 203
    WOF = 172
    e.idx_range = {("v", i) for i in range(ACC, ACC + 48)}
    sX, sTAB, sSK, sEA, sFR, sOUT = 16, 20, 24, 28, 32, 40
    sB, sNB, sNCNT, sN, sROFF, sNR, sNV, sBASE, sEM, sCNT, sT, sT2 = 44, 45, 46, 47, 48, 49, 50, 51, 52, 53, 54, 55
    sNODE = 56
    sOFF = 61
    SK = 64
    sV = 80
    sM0, sM1 = 86, 88
    sASG = [36, 37, 38, 39, 62]
    ts = TS(e, P["TS"], [90, 92, 94, 96, 98, 100, 6, 8, 10, 4], 1)
    stage = [int(c) for c in str(P["K2EA"]).zfill(6)]
    G1, G2, SKR, RNK, CA = RW, RW + 4, RW + 12, RW + 24, RW + 28

    def init_round(first):
        e(f"v_lshlrev_b32 v{T+3}, 2, v0", f"v_mov_b32 v{T+4}, 0x00700000", f"v_mov_b32 v{T+5}, 0")
        for i in range(3):
            e(f"ds_write_b32 v{T+3}, v{T+4} offset:{MAP + i*2048}")
        for i in range(4 if first else 3):
            e(f"ds_write_b32 v{T+3}, v{T+5} offset:{CNT2 + i*2048}")

    def ea(p):
        for i in range(6):
            if stage[i] == p:
                e(f"s_add_u32 m0, s{sEM}, {8192*i}")
                vq.op("ea", f"buffer_load_dwordx4 v{G2+i}, s[{sEA}:{sEA+3}], 0 offen {P['EAPOL']} lds")

    def frag_dma():
        e(f"s_add_u32 s{sFR}, s14, {WS_FRAG}", f"s_addc_u32 s{sFR+1}, s15, 0", f"s_mov_b32 s{sFR+2}, 40960", f"s_mov_b32 s{sFR+3}, 0x20000")
        e(f"s_lshl_b32 s{sT}, s3, 10", f"s_add_u32 m0, s{sT}, {CB}")
        vq.op("fr", f"buffer_load_dwordx4 v{X16}, s[{sFR}:{sFR+3}], s{sT} offen lds")
        e(f"s_lshl_b32 s{sT}, s3, 12", f"s_add_u32 s{sT}, s{sT}, 8192", f"s_add_u32 m0, s{sT}, {CB}")
        for i in range(4):
            vq.op("fr", f"buffer_load_dwordx4 v{X16}, s[{sFR}:{sFR+3}], s{sT} offen offset:{i*1024} lds")

    e("s_cmp_ge_u32 s2, 256", "s_cbranch_scc1 K2_done")
    e("s_load_dwordx2 s[14:15], s[0:1], 80")
    e("s_load_dwordx2 s[4:5], s[0:1], 0")
    e("s_load_dwordx2 s[12:13], s[0:1], 64")
    ts.stamp("")
    e(f"v_lshrrev_b32 v{T}, 6, v0", f"v_and_b32 v{LANE}, 63, v0")
    e(f"v_readfirstlane_b32 s3, v{T}")
    e(f"s_and_b32 s{sB}, s2, 7", f"s_lshl_b32 s{sB}, s{sB}, 5", f"s_lshr_b32 s{sT}, s2, 3", f"s_add_u32 s{sB}, s{sB}, s{sT}")
    e(f"v_lshrrev_b32 v{T+1}, 1, v0", f"v_lshlrev_b32 v{T+2}, 10, v{T+1}", f"s_lshl_b32 s{sT}, s{sB}, 2")
    e(f"s_mov_b32 s{sTAB+2}, {NCH*1024}", f"s_mov_b32 s{sTAB+3}, 0x20000")
    init_round(True)
    e(f"v_lshlrev_b32 v{X16}, 4, v{LANE}")
    e("s_waitcnt lgkmcnt(0)")
    ts.stamp("karg")
    e(f"s_mov_b32 s{sTAB}, s14", f"s_mov_b32 s{sTAB+1}, s15")
    vq.op("tab", f"buffer_load_dword v{RLEN}, v{T+2}, s[{sTAB}:{sTAB+3}], s{sT} offen {P['TABPOL']}")
    e(f"s_mov_b32 s{sX}, s4", f"s_mov_b32 s{sX+1}, s5", f"s_mov_b32 s{sX+2}, {N*1024}", f"s_mov_b32 s{sX+3}, 0x20000")
    e("s_barrier")
    frag_dma()
    if P["XPF"]:
        e(f"s_and_b32 s{sT}, s2, 7", f"s_mul_i32 s{sT}, s{sT}, {1252*1024}", f"s_lshr_b32 s{sT2}, s2, 3", f"s_lshl_b32 s{sT2}, s{sT2}, 3",
          f"s_add_u32 s{sT2}, s{sT2}, s3", f"s_mul_i32 s{sT2}, s{sT2}, {P['XPF']*128}", f"s_add_u32 s{sT}, s{sT}, s{sT2}")
        e(f"v_min_u32 v{T+6}, {P['XPF']-1}, v{LANE}", f"v_lshlrev_b32 v{T+6}, 7, v{T+6}")
        vq.op("pf", f"buffer_load_dword v7, v{T+6}, s[{sX}:{sX+3}], s{sT} offen")
    e(f"s_add_u32 s{sSK}, s14, {WS_SK}", f"s_addc_u32 s{sSK+1}, s15, 0", f"s_mov_b32 s{sSK+2}, {E*12}", f"s_mov_b32 s{sSK+3}, 0x20000")
    e(f"s_add_u32 s{sEA}, s14, {WS_EA}", f"s_addc_u32 s{sEA+1}, s15, 0", f"s_mov_b32 s{sEA+2}, {E*32}", f"s_mov_b32 s{sEA+3}, 0x20000")
    e(f"s_mov_b32 s{sROFF}, 0", f"s_lshl_b32 s{sEM}, s3, 10", f"s_add_u32 s{sEM}, s{sEM}, {EAST}")
    e(f"v_mul_u32_u24 v{RG0}, {CH}, v{T+1}", f"v_mov_b32 v{ONE}, 1", f"v_bfe_i32 v{T+6}, v0, 0, 1")
    for i in range(48):
        e(f"v_mov_b32 v{ACC+i}, 0")
    ts.stamp("consts")
    vq.wait("tab")
    ts.stamp("tab")
    e(f"v_and_b32 v{T+3}, 0xffff, v{RLEN}", f"v_lshrrev_b32 v{RLEN}, 16, v{RLEN}")
    e(f"v_and_b32 v{RBASE}, v{RLEN}, v{T+6}")
    e(f"v_add_u32 v{RG0}, v{RG0}, v{T+3}")
    scan_dpp(e, RBASE, True)
    e("s_mov_b32 exec_lo, 0", "s_brev_b32 exec_hi, 1")
    e(f"ds_add_rtn_u32 v{T+4}, v{T+5}, v{RBASE} offset:{TOT}")
    e("s_mov_b64 exec, -1")
    e(f"v_mov_b32_dpp v{RBASE}, v{RBASE} quad_perm:[0,0,2,2] row_mask:0xf bank_mask:0xf")
    e("s_waitcnt lgkmcnt(0)")
    e(f"v_readlane_b32 s{sT}, v{T+4}, 63")
    e(f"v_add_u32 v{RBASE}, s{sT}, v{RBASE}")
    e(f"v_sub_u32 v{RG0}, v{RG0}, v{RBASE}")
    e.label("K2_round")
    MU = P["MU"]
    e(f"v_subrev_u32 v{T}, s{sROFF}, v{RBASE}")
    e(f"v_and_b32 v{T+3}, 1, v0")
    e(f"v_add_u32 v{T+2}, v{T}, v{RLEN}", f"v_max_i32 v{T}, 0, v{T}", f"v_min_i32 v{T+2}, {CAP}, v{T+2}")
    e(f"v_add_u32 v{T}, v{T}, v{T+3}")
    e(f"v_sub_u32 v{T+2}, v{T+2}, v{T}")
    e(f"v_lshlrev_b32 v{T}, 2, v{T}", f"v_add_u32 v{T+1}, s{sROFF}, v{RG0}")
    e.label("K2_map")
    for i in range(MU + 1):
        e(f"v_cmp_lt_i32 s[{SK+2*i}:{SK+2*i+1}], {2*i}, v{T+2}")
    for i in range(MU):
        e(f"s_mov_b64 exec, s[{SK+2*i}:{SK+2*i+1}]")
        e(f"ds_write_b32 v{T}, v{T+1} offset:{MAP + 8*i}")
    e("s_mov_b64 exec, -1")
    e(f"s_cmp_lg_u64 s[{SK+2*MU}:{SK+2*MU+1}], 0", "s_cbranch_scc1 K2_map2")
    e(f"v_lshlrev_b32 v{T}, 2, v0")
    e(f"v_lshrrev_b32 v{T+4}, 1, v0", f"v_lshlrev_b32 v{T+1}, 2, v{T+4}")
    e(f"v_lshlrev_b32 v{T+2}, 4, v0", f"v_mov_b32 v{T+5}, 0", f"v_mul_u32_u24 v{T+6}, 12, v0")
    e("s_waitcnt lgkmcnt(0)", "s_barrier")
    ts.stamp("map")
    for i in range(3):
        e(f"ds_read_b32 v{G1+i}, v{T} offset:{MAP + 2048*i}")
    for i in range(6):
        e(f"ds_read_b32 v{G2+i}, v{T+1} offset:{MAP + 1024*i}")
    e(f"ds_read_b32 v{T+3}, v{T+5} offset:{TOT}")
    e("s_waitcnt lgkmcnt(7)")
    for i in range(3):
        e(f"v_add_u32 v{G1+i}, {512*i}, v{G1+i}") if i else None
        e(f"v_mad_i32_i24 v{G1+i}, v{G1+i}, 12, v{T+6}")
        vq.op(f"sk{i}", f"buffer_load_dwordx3 v[{SKR+4*i}:{SKR+4*i+2}], v{G1+i}, s[{sSK}:{sSK+3}], 0 offen {P['SKPOL']}")
    e("s_waitcnt lgkmcnt(0)")
    if P["SKBAR"]:
        e("s_barrier")
    for i in range(6):
        e(f"v_lshl_add_u32 v{G2+i}, v{G2+i}, 5, v{T+2}")
        e(f"v_add_u32 v{G2+i}, {8192*i}, v{G2+i}") if i else None
    ea(0)
    ts.stamp("issued")
    e(f"v_readfirstlane_b32 s{sN}, v{T+3}")
    e(f"s_sub_u32 s{sNR}, s{sN}, s{sROFF}", f"s_min_u32 s{sNR}, s{sNR}, {CAP}")
    for i in range(3):
        e(f"v_add_u32 v{G1+i}, {512*i}, v0")
        e(f"v_cmp_gt_u32 s[{sV+2*i}:{sV+2*i+1}], s{sNR}, v{G1+i}")
        e(f"v_lshlrev_b32 v{G1+i}, 21, v{G1+i}")
    e(f"s_mul_i32 s{sNB}, s{sB}, 625", f"s_add_u32 s{sNCNT}, s{sNB}, 640", f"s_add_u32 s{sNB}, s{sNB}, 15",
      f"s_lshr_b32 s{sNB}, s{sNB}, 4", f"s_lshr_b32 s{sNCNT}, s{sNCNT}, 4", f"s_sub_u32 s{sNCNT}, s{sNCNT}, s{sNB}")
    e(f"s_mov_b32 s{sM0}, 0x0f0f0f0f", f"s_mov_b32 s{sM0+1}, 0x0f0f0f0f", f"s_mov_b32 s{sM1}, 0xf0f0f0f0", f"s_mov_b32 s{sM1+1}, 0xf0f0f0f0")
    for i in range(8):
        e(f"v_mov_b32 v{EA0+i}, 0")
    e(f"v_lshrrev_b32 v{EAC}, 5, v{LANE}", f"v_lshlrev_b32 v{EAC}, 4, v{EAC}", f"v_add_u32 v{EAC}, {EAST}, v{EAC}")
    e(f"v_and_b32 v{LAC}, 15, v{LANE}", f"v_lshl_or_b32 v{LAC}, v{LAC}, 4, 8")
    e(f"v_bfe_u32 v{T+3}, v{LANE}, 3, 2", f"v_and_b32 v{T+4}, 3, v{LANE}", f"v_lshl_add_u32 v{T+3}, v{T+3}, 2, v{T+4}", f"v_lshlrev_b32 v{LBC}, 4, v{T+3}")
    e(f"s_cmp_eq_u32 s{sNCNT}, 40", f"s_cselect_b32 s{sT}, 4, 0", f"v_add_u32 v{RT}, s{sT}, v{X16}")
    e(f"v_lshlrev_b32 v{T}, 2, v{LANE}", f"v_and_b32 v{T+6}, 124, v{T}", f"s_mul_i32 s{sT}, s3, 640", f"v_add_u32 v{T+7}, s{sT}, v{T+6}")
    e(f"s_mov_b32 s{sT2}, 0x1fff80", f"v_and_b32 v{T+4}, 12, v{T}")
    e(f"v_sub_u32 v{T+2}, 63, v{LANE}", f"s_mul_i32 s{sOFF}, s3, 5")
    for i in range(3):
        vq.wait(f"sk{i}")
        if i == 0:
            ts.stamp("sk")
        key = SKR + 4 * i + 2
        e(f"v_lshrrev_b32 v{CA+i}, 21, v{key}", f"v_lshlrev_b32 v{CA+i}, 2, v{CA+i}")
        e(f"v_lshrrev_b32 v{T+3}, 26, v{key}", f"v_lshl_or_b32 v{T+3}, v{T+3}, 4, v{T+4}")
        e(f"s_mov_b64 exec, s[{sV+2*i}:{sV+2*i+1}]")
        e(f"ds_add_rtn_u32 v{RNK+i}, v{CA+i}, v{ONE} offset:{CNT2}")
        e(f"ds_add_u32 v{T+3}, v{ONE} offset:{DEG}")
        e("s_mov_b64 exec, -1")
        e(f"v_and_or_b32 v{key}, v{key}, s{sT2}, v{G1+i}")
    ea(1)
    e("s_waitcnt lgkmcnt(0)", "s_barrier")
    ts.stamp("b1")
    CN, CAD = XR, XR + 8
    e(f"s_cmp_lg_u32 s{sROFF}, 0", "s_cbranch_scc1 K2_rank2")
    e(f"ds_read_b128 {vr(CAD,4)}, v{X16} offset:{DEG}")
    e(f"ds_read_b32 v{RT}, v{RT} offset:{CB + 5*1024}")
    for j in range(5):
        e(f"ds_read_b32 v{CN+j}, v{T+7} offset:{CNT2 + 128*j}")
    for j in range(1, 5):
        e(f"s_add_u32 s{SK+j}, s{sOFF}, {j}")
    e("s_waitcnt lgkmcnt(6)")
    e(f"v_add_u32 v{T+1}, v{CAD}, v{CAD+1}", f"v_add3_u32 v{T+1}, v{T+1}, v{CAD+2}, v{CAD+3}")
    e(f"v_lshl_or_b32 v{T+1}, v{T+1}, 6, v{T+2}")
    for j in range(5):
        e(f"v_readlane_b32 s{SK+j}, v{T+1}, s{SK+j if j else sOFF}")
    for j in range(5):
        e(f"v_cmp_lt_u32 s[{SK+6+2*j}:{SK+7+2*j}], s{SK+j}, v{T+1}")
    for j in range(5):
        e(f"s_bcnt1_i32_b64 s{SK+j}, s[{SK+6+2*j}:{SK+7+2*j}]")
    e("s_waitcnt lgkmcnt(0)")
    for j in range(5):
        e(f"v_readlane_b32 s{sASG[j]}, v{RT}, s{SK+j}")
    e.label("K2_ranked")
    e("s_mov_b32 exec_hi, 0")
    for j in range(5):
        e(f"s_and_b32 s{sT}, s{sASG[j]}, 0x380")
        e(f"v_add_u32 v{CAD+j}, s{sT}, v{T+6}")
        e(f"ds_add_rtn_u32 v{CN+j}, v{CAD+j}, v{CN+j} offset:{WB}")
    for j in range(5):
        e(f"v_or_b32 v{CAD+j}, s{sASG[j]}, v{CAD+j}")
    for j in range(5):
        e(f"s_waitcnt lgkmcnt(4)")
        e(f"v_lshl_or_b32 v{CN+j}, v{CN+j}, 16, v{CAD+j}")
        e(f"ds_write_b32 v{T+7}, v{CN+j} offset:{CNT2 + 128*j}")
    for j in range(5):
        e(f"v_writelane_b32 v{T+3}, s{sASG[j]}, {j}")
    e(f"v_add_lshl_u32 v{T+4}, v{LANE}, s{sOFF}, 7")
    e(f"v_lshrrev_b32 v{T+1}, 10, v{T+3}", f"v_bfe_u32 v{T+3}, v{T+3}, 2, 8", f"v_or_b32 v{T+3}, v{T+3}, v{T+1}")
    e("s_mov_b32 exec_lo, 31")
    e(f"ds_write_b32 v{T+3}, v{T+4} offset:{NODEOF}")
    e("s_mov_b64 exec, -1")
    ea(2)
    e(f"v_lshrrev_b32 v{T+4}, 3, v{LANE}", f"v_mul_u32_u24 v{T+4}, {GAP*16}, v{T+4}", f"v_add_u32 v{T+4}, {LIST}, v{T+4}")
    e(f"s_lshl_b32 s{sT}, s3, 5", f"v_add_u32 v{T+3}, s{sT}, v{T}")
    e("s_waitcnt lgkmcnt(0)", "s_barrier")
    ts.stamp("b2")
    e(f"ds_read_b128 {vr(CN,4)}, v{X16} offset:{WB}")
    for i in range(3):
        e(f"ds_read_b32 v{CA+i}, v{CA+i} offset:{CNT2}")
    e(f"ds_read_b32 v{T+3}, v{T+3} offset:{NODEOF}")
    e(f"s_lshl_b32 s{sT}, s3, 3", f"s_add_u32 s{sT2}, s{sT}, 7")
    e("s_waitcnt lgkmcnt(4)")
    e(f"v_add_u32 v{T+1}, v{CN}, v{CN+1}", f"v_add3_u32 v{T+1}, v{T+1}, v{CN+2}, v{CN+3}", f"v_mov_b32 v{T+2}, v{T+1}")
    scan_dpp(e, T + 2, True)
    e(f"v_sub_u32 v{T+1}, v{T+2}, v{T+1}")
    e(f"v_lshl_add_u32 v{CAD}, v{T+1}, 4, v{T+4}")
    for k in range(3):
        e(f"v_lshl_add_u32 v{CAD+1+k}, v{CN+k}, 4, v{CAD+k}")
    e(f"ds_write_b128 v{X16}, {vr(CAD,4)} offset:{START}")
    e("s_waitcnt lgkmcnt(2)")
    for i in range(3):
        e(f"v_and_b32 v{G1+i}, 0x3ff, v{CA+i}")
        e(f"ds_read_b32 v{G1+i}, v{G1+i} offset:{START}")
    e(f"v_readlane_b32 s{sNV}, v{T+2}, s{sT2}", f"v_readlane_b32 s{sCNT}, v{T+1}, s{sT}", f"v_readlane_b32 s{sBASE}, v{CAD}, s{sT}")
    for i in range(3):
        key = SKR + 4 * i + 2
        e(f"v_bfe_u32 v{T+7}, v{CA+i}, 12, 3", f"v_or_b32 v{key}, v{T+7}, v{key}")
        e(f"v_lshrrev_b32 v{CA+i}, 16, v{CA+i}", f"v_add_u32 v{CA+i}, v{CA+i}, v{RNK+i}")
    e(f"s_sub_u32 s{sNV}, s{sNV}, s{sCNT}", f"s_lshl_b32 s{sT}, s{sNV}, 4")
    e(f"v_add_u32 v{LA}, s{sBASE}, v{LAC}", f"v_add_u32 v{LB}, s{sBASE}, v{LBC}")
    for i in range(3):
        e(f"s_waitcnt lgkmcnt(2)")
        e(f"v_lshl_add_u32 v{CA+i}, v{CA+i}, 4, v{G1+i}")
        e(f"s_mov_b64 exec, s[{sV+2*i}:{sV+2*i+1}]")
        e(f"ds_write_b96 v{CA+i}, v[{SKR+4*i}:{SKR+4*i+2}]")
        e("s_mov_b64 exec, -1")
    e(f"v_add_u32 v{T+1}, s{sT}, v{LA}", f"v_mov_b32 v{T+4}, {(0x3fff << 7) | 5}")
    e(f"ds_write_b32 v{T+1}, v{T+4}")
    ea(3)
    for j in range(5):
        e(f"v_readlane_b32 s{sNODE+j}, v{T+3}, {j}")
    e("s_waitcnt lgkmcnt(0)", "s_barrier")
    ts.stamp("b4")
    e(f"ds_read_b32 v{K}, v{LA}", f"ds_read_b32 v{KN}, v{LA} offset:{16*D}", f"ds_read_b128 {vr(ENT,4)}, v{LB}")
    e(f"s_mov_b32 s{sT2}, 0x00fffc38")
    e("s_waitcnt lgkmcnt(2)")
    e(f"v_lshlrev_b32 v{K}, 3, v{K}", f"v_and_b32 v{K}, s{sT2}, v{K}")

    def xload(j):
        e(f"s_and_b32 s{sOFF}, s{SK + j % 16}, 0xffffff00")
        s = XR + 4 * (j % R)
        e(f"buffer_load_dwordx4 {vr(s,4)}, v{X16}, s[{sX}:{sX+3}], s{sOFF} offen")

    for j in range(D):
        e(f"v_readlane_b32 s{SK+j}, v{K}, {j}")
    for q in range(5):
        e(f"ds_read_b128 {vr(WRF+4*q,4)}, v{X16} offset:{CB + 1024*q}")
    for j in range(D):
        xload(j)

    def ea_reads():
        e(f"v_lshrrev_b32 v{T}, 21, v{ENT+2}", f"v_lshl_add_u32 v{T}, v{T}, 5, v{EAC}")
        e(f"s_mov_b64 exec, s[{sM0}:{sM0+1}]", f"ds_read_b128 {vr(EA0,4)}, v{T}")
        e(f"s_mov_b64 exec, s[{sM1}:{sM1+1}]", f"ds_read_b128 {vr(EA1,4)}, v{T}")
        e("s_mov_b64 exec, -1")

    e(f"s_waitcnt vmcnt({D}) lgkmcnt(0)", "s_barrier")
    ts.stamp("b5")
    e(f"s_cmp_eq_u32 s{sNV}, 0", "s_cbranch_scc1 K2_swept")
    ea_reads()
    e(f"s_mov_b32 s{sCNT}, s{sNV}")
    e(".p2align 3")
    e.label("K2_loop")
    e("s_waitcnt lgkmcnt(0)")
    for q in range(4):
        e(f"v_mfma_f32_4x4x4_16b_bf16 {vr(AGN+4*q,4)}, {vr(ENT,2)}, {vr(CGF,2)}, 0 cbsz:4 abid:{2*q}")
    fill = [f"v_lshlrev_b32 v{K}, 3, v{KN}", f"v_and_b32 v{K}, s{sT2}, v{K}", f"v_add_u32 v{LA}, 256, v{LA}", f"v_add_u32 v{LB}, 256, v{LB}",
            f"ds_read_b32 v{KN}, v{LA} offset:{16*D}", f"ds_read_b128 {vr(ENT,4)}, v{LB}"]

    def pq(j):
        p = PQ + 2 * (j % 2)
        return [f"v_cvt_pk_bf16_f32 v{T+1+j%2}, v{AGN+j}, v{AGN+j}", f"v_and_b32 v{p}, v{MP}, v{T+1+j%2}", f"v_and_b32 v{p+1}, v{MQ}, v{T+1+j%2}"]

    fill += pq(0)
    for h in range(2):
        e(f"v_mfma_f32_32x32x16_bf16 {vr(RW+16*h,16)}, {vr(EA0,4)}, {vr(WRF+8*h,4)}, 0")
        e(*fill[:3]); fill = fill[3:]
    for h in range(2):
        e(f"v_mfma_f32_32x32x16_bf16 {vr(RW+16*h,16)}, {vr(EA1,4)}, {vr(WRF+8*h+4,4)}, {vr(RW+16*h,16)}")
        e(*fill[:3]); fill = fill[3:]

    def fmas(j):
        t = TP + 8 * (j % 2)
        e(f"s_set_gpr_idx_on s{SK + j % 16}, gpr_idx(SRC2,DST)")
        for h in range(2):
            r = RW + 16 * h + j
            rp = r & ~1
            sel = "op_sel:[0,1,0] op_sel_hi:[1,1,1]" if r & 1 else "op_sel_hi:[1,0,1]"
            for q in range(2):
                a = ACC + 4 * h + 2 * q
                e(f"v_pk_fma_f32 {vr(a,2)}, {vr(t+4*h+2*q,2)}, {vr(rp,2)}, {vr(a,2)} {sel}")
        e("s_set_gpr_idx_off")

    for j in range(16):
        t = TP + 8 * (j % 2)
        p = PQ + 2 * (j % 2)
        s = XR + 4 * (j % R)
        nx = pq(j + 1) if j < 15 else []
        e(f"s_waitcnt vmcnt({D-1})")
        e(f"v_mfma_f32_16x16x16_bf16 {vr(t,4)}, {vr(p,2)}, {vr(s,2)}, 0")
        e(f"v_readlane_b32 s{SK + (j + D) % 16}, v{K}, {j}")
        e(*nx[:1])
        e(f"v_mfma_f32_16x16x16_bf16 {vr(t+4,4)}, {vr(p,2)}, {vr(s+2,2)}, 0")
        e(*nx[1:])
        xload(j + D)
        if j == 2:
            e("s_waitcnt lgkmcnt(0)")
            ea_reads()
        if j > 0:
            fmas(j - 1)
        if j in (4, 8, 12):
            e(f"s_cmp_le_u32 s{sCNT}, {j}", "s_cbranch_scc1 K2_swept")
    fmas(15)
    e(f"s_sub_i32 s{sCNT}, s{sCNT}, 16", f"s_cmp_gt_i32 s{sCNT}, 0", "s_cbranch_scc1 K2_loop")
    e.label("K2_swept", pad=8)
    ts.stamp("swept")
    e(f"s_add_u32 s{sROFF}, s{sROFF}, {CAP}", f"s_cmp_ge_u32 s{sROFF}, s{sN}", "s_cbranch_scc1 K2_epi")
    e("s_waitcnt vmcnt(0) lgkmcnt(0)", "s_barrier")
    init_round(False)
    e("s_waitcnt lgkmcnt(0)", "s_barrier")
    e("s_branch K2_round")
    e.label("K2_map2")
    e(f"v_add_u32 v{T}, {8*MU}, v{T}", f"v_subrev_u32 v{T+2}, {2*MU}, v{T+2}")
    e("s_branch K2_map")
    e.label("K2_rank2")
    for j in range(5):
        e(f"ds_read_b32 v{CN+j}, v{T+7} offset:{CNT2 + 128*j}")
    e("s_waitcnt lgkmcnt(0)")
    e("s_branch K2_ranked")
    e.label("K2_epi")
    e(f"s_and_b32 s{sT}, s3, 3", f"s_lshl_b32 s{sT}, s{sT}, 13", f"s_add_u32 s{sT}, s{sT}, {WO}", f"v_add_u32 v{T+1}, s{sT}, v{X16}")
    e("s_waitcnt lgkmcnt(0)")
    for q in range(8):
        e(f"ds_read_b128 {vr(WOF+4*q,4)}, v{T+1} offset:{1024*q}")
    e(f"s_lshl_b32 s{sT}, s{sNB}, 10", f"s_add_u32 s{sOUT}, s12, s{sT}", f"s_addc_u32 s{sOUT+1}, s13, 0",
      f"s_lshl_b32 s{sOUT+2}, s{sNCNT}, 10", f"s_mov_b32 s{sOUT+3}, 0x20000")
    e(f"v_lshlrev_b32 v{T}, 2, v{LANE}")
    for s in range(5):
        e(f"s_lshr_b32 s{sT}, s{sNODE+s}, 1", f"s_and_b32 s{sT}, s{sT}, 0xc0", f"s_lshl_b32 s{sT2}, s{sNODE+s}, 3", f"s_or_b32 s{sT}, s{sT}, s{sT2}")
        for w in range(4):
            e(f"s_xor_b32 s{sT2}, s{sT}, {w << 4}")
            e(f"v_cvt_pk_bf16_f32 v{RW+8*s%32+w}, v{ACC+8*s+w}, v{ACC+8*s+4+w}")
            e(f"v_xor_b32 v{RW+8*s%32+4+w}, s{sT2}, v{T}")
            e(f"ds_write_b32 v{RW+8*s%32+4+w}, v{RW+8*s%32+w} offset:{AGL + 256*w}")
    e(f"v_and_b32 v{T}, 15, v{LANE}", f"v_lshrrev_b32 v{T+1}, 4, v{LANE}", f"v_xor_b32 v{T+2}, v{T}, v{T+1}", f"v_lshlrev_b32 v{T+2}, 4, v{T+2}",
      f"v_lshl_add_u32 v{T+2}, v{T}, 8, v{T+2}", f"s_lshr_b32 s{sT}, s3, 2", f"s_mul_i32 s{sT}, s{sT}, 20480", f"v_add_u32 v{T+2}, s{sT}, v{T+2}")
    for s in range(1, 4):
        e(f"v_xor_b32 v{T+2+s}, {64*s}, v{T+2}")
    e(f"v_lshlrev_b32 v{T+1}, 10, v{T+1}", f"v_lshl_add_u32 v{T+1}, v{T}, 2, v{T+1}",
      f"s_and_b32 s{sT2}, s3, 3", f"s_lshl_b32 s{sT2}, s{sT2}, 6", f"s_add_u32 s{sT}, s{sT}, s{sT2}")
    e("s_waitcnt vmcnt(0) lgkmcnt(0)", "s_barrier")
    ts.stamp("agb")
    AF, DD = ACC, 128
    for tl in range(5):
        for s in range(4):
            e(f"ds_read_b128 {vr(AF+16*tl+4*s,4)}, v{T+2+s} offset:{AGL + 4096*tl}")
    PK = 96

    def stores(tl):
        for i in range(4):
            e(f"v_cvt_pk_bf16_f32 v{PK+4*tl+i}, v{DD+8*tl+i}, v{DD+8*tl+4+i}")
            e(f"buffer_store_dword v{PK+4*tl+i}, v{T+1}, s[{sOUT}:{sOUT+3}], s{sT} offen offset:{256*i} {P['OUTPOL']}")
        e(f"s_add_u32 s{sT}, s{sT}, 4096")

    for tl in range(5):
        e(f"s_waitcnt lgkmcnt({min(16 - 4 * tl, 15)})")
        for s in range(4):
            for t in range(2):
                c = "0" if s == 0 else vr(DD + 8 * tl + 4 * t, 4)
                e(f"v_mfma_f32_16x16x32_bf16 {vr(DD+8*tl+4*t,4)}, {vr(AF+16*tl+4*s,4)}, {vr(WOF+8*s+4*t,4)}, {c}")
        if tl > 0:
            stores(tl - 1)
    stores(4)
    ts.stamp("stored")
    ts.flush(14, 3, 4)
    e.label("K2_done")
    e("s_endpgm")
    return e.text(), LDS, 208, 102


HEADER = """; Kernarg layout for this problem (88 bytes, ptrs only, base s[0:1]):
"""


def desc(name, vgpr, sgpr):
    return (f".p2align 6\n.amdhsa_kernel {name}\n  .amdhsa_next_free_vgpr {vgpr}\n  .amdhsa_next_free_sgpr {sgpr}\n"
            f"  .amdhsa_accum_offset {(vgpr+3)//4*4}\n  .amdhsa_group_segment_fixed_size 0\n  .amdhsa_kernarg_size 88\n"
            f"  .amdhsa_user_sgpr_count 2\n  .amdhsa_user_sgpr_kernarg_segment_ptr 1\n  .amdhsa_system_sgpr_workgroup_id_x 1\n"
            f"  .amdhsa_float_denorm_mode_32 3\n.end_amdhsa_kernel\n")


def generate(**kw):
    P = dict(DEF)
    P.update(kw)
    k1, lds1, v1, s1 = gen_k1(P)
    k2, lds2, v2, s2 = gen_k2(P)
    n1, n2 = "part_kernel", NAME + "_kernel"
    out = HEADER
    NOP = "; @launch kernel=nop_kernel grid=(256,1,1) block=(64,1,1) lds=0\n"
    out += NOP * P["PRE"]
    out += f"; @launch kernel={n1} grid=({NCH+5},1,1) block=(640,1,1) lds={lds1}\n" * (1 + P["DUP"])
    out += NOP * P["MID"]
    out += f"; @launch kernel={n2} grid=(256,1,1) block=(512,1,1) lds={lds2}\n" * (1 + P["DUP2"])
    for i in range(P["EXTRA"]):
        out += "; @launch kernel=nop_kernel grid=(256,1,1) block=(64,1,1) lds=0\n"
    out += '.amdgcn_target "amdgcn-amd-amdhsa--gfx950"\n.text\n'
    ks = [(n1, k1, v1, s1), (n2, k2, v2, s2)]
    if P["EXTRA"] or P["PRE"] or P["MID"]:
        ks.append(("nop_kernel", "    s_endpgm\n", 8, 16))
    for n, k, _, _ in ks:
        out += f".globl {n}\n.p2align 8\n.type {n},@function\n{n}:\n{k}"
    out += '.section .rodata,"a"\n'
    for n, _, v, s in ks:
        out += desc(n, v, s)
    return out


if __name__ == "__main__":
    kw = {}
    for a in sys.argv[1:]:
        k, v = a.split("=", 1)
        kw[k] = int(v) if v.lstrip("-").isdigit() else v
    sys.stdout.write(generate(**kw))
```

```python
import sys, os
sys.path.insert(0, os.path.dirname(os.path.abspath(__file__)))
from emit import Emitter

NAME = "gather_scatter__tensor_product_equiv_mace__graph"
N, E = 10000, 320000
CH, NCH, CS = 1250, 256, 1280
WS_TAB, WS_W, WS_SK, WS_EA, WS_TS = 0, 0x80000, 0x100000, 0x500000, 0x2000000
CAP, GAP = 1536, 16
SPIN = 200000

DEF = dict(D=6, TS=0, DBG=0, APOL="nt", AEA="00011", BEA="001122", SKBAR=1, ABAR=1, SKEARLY=0, XPF=0, CPF=1, MU=7, OUTPOL="sc1", LDPOL="sc1", WST=3)

PART39 = [[3, 11, 21, 31, 36], [5, 8, 20, 27, 38], [0, 6, 7, 13, 39], [9, 14, 18, 25, 34], [10, 16, 19, 24, 32], [4, 12, 26, 29, 33], [1, 17, 23, 28, 37], [2, 15, 22, 30, 35]]
PART40 = [[1, 10, 15, 30, 39], [2, 9, 21, 28, 37], [4, 14, 22, 27, 31], [6, 12, 18, 24, 35], [3, 8, 16, 29, 38], [5, 13, 17, 26, 34], [0, 20, 23, 32, 36], [7, 11, 19, 25, 33]]


def vr(a, n):
    return f"v[{a}:{a+n-1}]" if n > 1 else f"v{a}"


def sr(a, n=4):
    return f"s[{a}:{a+n-1}]"


def scan_dpp(e, v, full):
    for k in (1, 2, 4, 8):
        e(f"v_add_u32_dpp v{v}, v{v}, v{v} row_shr:{k} row_mask:0xf bank_mask:0xf")
    e(f"v_add_u32_dpp v{v}, v{v}, v{v} row_bcast:15 row_mask:0xa bank_mask:0xf")
    if full:
        e(f"v_add_u32_dpp v{v}, v{v}, v{v} row_bcast:31 row_mask:0xc bank_mask:0xf")


class TS:
    last = None

    def __init__(self, e, on, pair, vreg):
        self.e, self.on, self.pair, self.v, self.names = e, on, pair, vreg, []
        TS.last = self

    def stamp(self, name):
        if self.on and (self.on == 1 or name in str(self.on).split(",") or name in ("start", "end")):
            e, p = self.e, self.pair
            e(f"s_memrealtime s[{p}:{p+1}]", "s_waitcnt lgkmcnt(0)", f"v_writelane_b32 v{self.v}, s{p}, {len(self.names)}")
            self.names.append(name)


class VQ:
    def __init__(self, e):
        self.e, self.q = e, []

    def op(self, tag, text):
        self.e(text)
        self.q.append(tag)

    def n(self, tag):
        idx = max(i for i, t in enumerate(self.q) if t == tag)
        return len(self.q) - 1 - idx

    def wait(self, tag, extra=""):
        self.e(f"s_waitcnt vmcnt({self.n(tag)}) {extra}".strip())


def gen(P):
    e = Emitter()
    vq = VQ(e)
    D = P["D"]
    R = 8
    MAP, CNT2, WB, DEG, TOT, NODEOF, START, WR, WO = 0, 6144, 11264, 12288, 13312, 13568, 14336, 15360, 19456
    LIST = WO + 32768
    EAST = LIST + (CAP + 8 * GAP + 48) * 16
    LDS = EAST + CAP * 32
    AGL = 0
    ACNT, ASTART, AINV, ASKS = LIST, LIST + 1024, LIST + 2048, LIST + 7168
    assert ASKS + 16384 <= EAST
    LANE, X16, RLEN, RBASE, RG0, ONE, PFV = 1, 2, 3, 4, 5, 6, 7
    T = 8
    ACC, RW, XR, TP, AGN, PQ, EA0, EA1, WRF, CGF, ENT = 16, 64, 96, 128, 144, 160, 164, 168, 172, 188, 192
    MP, MQ = CGF + 2, CGF + 3
    K, KN, LA, LB, EAC, LAC, LBC, RT, TSV = 196, 197, 198, 199, 200, 201, 202, 203, 204
    WOF = 208
    e.idx_range = {("v", i) for i in range(ACC, ACC + 48)}
    sX, sTAB, sSK, sEA, sA0, sA1, sOUT = 16, 20, 24, 28, 32, 36, 40
    sB, sNB, sNCNT, sN, sROFF, sNR, sNV, sBASE, sEM, sCNT, sT, sT2 = 44, 45, 46, 47, 48, 49, 50, 51, 52, 53, 54, 55
    sNODE = 56
    sOFF = 61
    sTAG, sTAG2 = 62, 63
    SK = 64
    sV = 80
    sM0, sM1 = 86, 88
    sASG = [90, 91, 92, 93, 94]
    sA2, sTSP = 96, 100
    ts = TS(e, P["TS"], sTSP, TSV)
    apol, ldpol = P["APOL"], P["LDPOL"]
    astage = [int(c) for c in str(P["AEA"]).zfill(5)]
    bstage = [int(c) for c in str(P["BEA"]).zfill(6)]

    def srd(s, lo, hi, off, size):
        if off is None:
            e(f"s_mov_b32 s{s}, s{lo}", f"s_mov_b32 s{s+1}, s{hi}")
        else:
            e(f"s_add_u32 s{s}, s{lo}, {off}", f"s_addc_u32 s{s+1}, s{hi}, 0")
        e(f"s_mov_b32 s{s+2}, {size}", f"s_mov_b32 s{s+3}, 0x20000")

    def init_round(first):
        e(f"v_lshlrev_b32 v{T+3}, 2, v0", f"v_mov_b32 v{T+4}, 0x00700000", f"v_mov_b32 v{T+5}, 0")
        for i in range(3):
            e(f"ds_write_b32 v{T+3}, v{T+4} offset:{MAP + i*2048}")
        for i in range(4 if first else 3):
            e(f"ds_write_b32 v{T+3}, v{T+5} offset:{CNT2 + i*2048}")

    DSTV, SRCV, SHV, BK, BA, RK, NL, KEY, CT, ST, PS = 64, 68, 72, 80, 84, 88, 92, 96, 100, 104, 108
    TABV = 112
    OUTV = 128
    IV = 156
    CGR = 120
    e("s_cmp_ge_u32 s2, 256", "s_cbranch_scc1 L_done")
    e("s_load_dwordx4 s[4:7], s[0:1], 8")
    e("s_load_dwordx4 s[8:11], s[0:1], 24")
    e("s_load_dwordx2 s[14:15], s[0:1], 80")
    e(f"s_load_dwordx2 s[{SK}:{SK+1}], s[0:1], 0")
    e(f"s_load_dwordx2 s[{SK+2}:{SK+3}], s[0:1], 40")
    e(f"s_load_dwordx4 s[{SK+4}:{SK+7}], s[0:1], 48")
    e("s_load_dwordx2 s[12:13], s[0:1], 64")
    e(f"v_lshrrev_b32 v{T}, 6, v0", f"v_and_b32 v{LANE}, 63, v0", f"v_lshlrev_b32 v{T+1}, 2, v0", f"v_mov_b32 v{T+5}, 0")
    e(f"v_readfirstlane_b32 s3, v{T}")
    e(f"ds_write_b32 v{T+1}, v{T+5} offset:{ACNT}", f"ds_write_b32 v{T+1}, v{T+5} offset:{AINV+3072}")
    e(f"s_mul_i32 s{sT}, s2, {CH*4}", f"s_mul_i32 s{sT2}, s2, {CH*8}", f"s_mul_i32 s{sOFF}, s2, {CH*32}")
    e(f"v_lshlrev_b32 v{X16}, 4, v{LANE}", f"v_lshlrev_b32 v{T+2}, 3, v0", f"v_lshlrev_b32 v{T+7}, 4, v0", f"v_mov_b32 v{ONE}, 1")
    e(f"s_lshl_b32 s{sEM}, s3, 10", f"s_add_u32 s{sEM}, s{sEM}, {EAST}", f"s_movk_i32 s{sCNT}, 4096", f"s_movk_i32 s{sNV}, 8192")
    e("s_waitcnt lgkmcnt(0)")
    ts.stamp("start")
    srd(sA0, 6, 7, f"s{sT}", CH * 4)
    for i in range(3):
        o = f"0 offen offset:{2048*i}" if i < 2 else f"s{sCNT} offen"
        vq.op("dst", f"buffer_load_dword v{DSTV+i}, v{T+1}, {sr(sA0)}, {o} {apol}")
    srd(sA1, 4, 5, f"s{sT}", CH * 4)
    for i in range(3):
        o = f"0 offen offset:{2048*i}" if i < 2 else f"s{sCNT} offen"
        vq.op("src", f"buffer_load_dword v{SRCV+i}, v{T+1}, {sr(sA1)}, {o} {apol}")
    e(f"s_load_dword s{sTAG}, s[14:15], {WS_W}")
    if P["CPF"]:
        e(f"s_getpc_b64 s[{sV}:{sV+1}]", f"s_and_b32 s{sT}, s2, 0xf8", f"s_lshl_b32 s{sT}, s{sT}, 6")
        e(f"v_and_b32 v{T+3}, 0x180, v{T+2}", f"v_add_u32 v{T+3}, s{sT}, v{T+3}", f"v_min_u32 v{T+3}, L_end-L_pc, v{T+3}")
        e.lines.insert(len(e.lines) - 5, "L_pc:")
        e(f"v_mov_b32 v{TABV+1}, s{sV+1}", f"v_add_co_u32 v{TABV}, vcc, s{sV}, v{T+3}", f"v_addc_co_u32 v{TABV+1}, vcc, 0, v{TABV+1}, vcc")
        vq.op("cpf", f"global_load_dword v{TSV+1}, {vr(TABV,2)}, off")
    srd(sA2, 8, 9, f"s{sT2}", CH * 8)
    srd(sEA, 10, 11, f"s{sOFF}", CH * 32)
    if P["ABAR"]:
        e("s_barrier")
    for i, o in enumerate(("0", f"s{sCNT}", f"s{sNV}")):
        vq.op("sh", f"buffer_load_dwordx2 {vr(SHV+2*i,2)}, v{T+2}, {sr(sA2)}, {o} offen {apol}")

    def aea(p):
        for i in range(5):
            if astage[i] == p:
                e(f"s_add_u32 m0, s{sEM}, {8192*i}", f"s_mov_b32 s{sT}, {8192*i}")
                vq.op("ea", f"buffer_load_dwordx4 v{T+7}, {sr(sEA)}, s{sT} offen {apol} lds")
        if P["WST"] == p:
            weights()

    def weights():
        srd(sOUT, SK + 6, SK + 7, None, 32768)
        e(f"s_lshl_b32 s{sT}, s3, 12", f"s_add_u32 m0, s{sT}, {WO}")
        for i in range(4):
            vq.op("w", f"buffer_load_dwordx4 v{X16}, {sr(sOUT)}, s{sT} offen offset:{i*1024} lds")
        srd(sX, SK + 4, SK + 5, None, 4096)
        e(f"s_and_b32 s{sT}, s3, 3", f"s_lshl_b32 s{sT}, s{sT}, 10", f"s_add_u32 m0, s{sT}, {WR}")
        vq.op("w", f"buffer_load_dwordx4 v{X16}, {sr(sX)}, s{sT} offen lds")
        e(f"v_lshrrev_b32 v{PFV}, 4, v{LANE}", f"v_lshlrev_b32 v{PFV}, 5, v{PFV}", f"v_and_b32 v{CGR}, 3, v{LANE}", f"v_lshl_add_u32 v{PFV}, v{CGR}, 1, v{PFV}")
        for v in range(4):
            vq.op("w", f"global_load_ushort v{CGR+v}, v{PFV}, s[{SK+2}:{SK+3}] offset:{8*v}")

    aea(0)
    if not P["ABAR"]:
        e("s_barrier")
    e(f"s_mov_b32 s{SK+8}, 109951168", f"s_movk_i32 s{SK+9}, 625", f"s_movk_i32 s{SK+10}, 838")
    e(f"v_cmp_gt_u32 s[{sV+4}:{sV+5}], {CH-1024}, v0") if CH - 1024 <= 64 else e(f"s_movk_i32 s{sT}, {CH-1024}", f"v_cmp_gt_u32 s[{sV+4}:{sV+5}], s{sT}, v0")
    init_round(True)
    for i in range(48):
        e(f"v_mov_b32 v{ACC+i}, 0")
    vq.wait("dst")
    ts.stamp("dst")
    for k in range(3):
        e(f"v_mul_hi_u32 v{BK+k}, v{DSTV+k}, s{SK+8}")
    for k in range(3):
        e(f"v_lshlrev_b32 v{BA+k}, 2, v{BK+k}")
        if k == 2:
            e(f"s_mov_b64 exec, s[{sV+4}:{sV+5}]")
        e(f"ds_add_rtn_u32 v{RK+k}, v{BA+k}, v{ONE} offset:{ACNT}")
    e("s_mov_b64 exec, -1")
    e("s_waitcnt lgkmcnt(0)", "s_barrier")
    ts.stamp("hist")
    e(f"ds_read_b128 {vr(CT,4)}, v{X16} offset:{ACNT}")
    aea(1)
    for k in range(3):
        e(f"v_mad_u32_u24 v{NL+k}, v{BK+k}, s{SK+9}, 15", f"v_lshrrev_b32 v{NL+k}, 4, v{NL+k}", f"v_sub_u32 v{NL+k}, v{DSTV+k}, v{NL+k}")
        e(f"v_lshrrev_b32 v{BK+k}, 3, v{BK+k}", f"v_and_b32 v{BK+k}, 28, v{BK+k}")
    e("s_waitcnt lgkmcnt(0)")
    e(f"v_add_u32 v{T+3}, v{CT}, v{CT+1}", f"v_add3_u32 v{T+3}, v{T+3}, v{CT+2}, v{CT+3}", f"v_mov_b32 v{T+4}, v{T+3}")
    scan_dpp(e, T + 4, True)
    e(f"v_sub_u32 v{ST}, v{T+4}, v{T+3}")
    for k in range(3):
        e(f"v_add_u32 v{ST+1+k}, v{ST+k}, v{CT+k}")
    e(f"ds_write_b128 v{X16}, {vr(ST,4)} offset:{ASTART}")
    for k in range(3):
        e(f"ds_read_b32 v{PS+k}, v{BA+k} offset:{ASTART}")
    vq.wait("src")
    for k in range(3):
        e(f"v_mul_u32_u24 v{KEY+k}, s{SK+10}, v{SRCV+k}", f"v_lshrrev_b32 v{KEY+k}, 18, v{KEY+k}", f"v_sub_u32 v{KEY+k}, v{KEY+k}, v{BK+k}",
          f"v_and_b32 v{KEY+k}, 31, v{KEY+k}", f"v_lshl_or_b32 v{KEY+k}, v{NL+k}, 5, v{KEY+k}",
          f"v_lshlrev_b32 v{KEY+k}, 21, v{KEY+k}", f"v_lshl_or_b32 v{KEY+k}, v{SRCV+k}, 7, v{KEY+k}")
    e(f"v_lshlrev_b32 v{NL}, 5, v0", f"v_add_u32 v{NL+1}, {512*32}, v{NL}", f"v_add_u32 v{NL+2}, {1024*32}, v{NL}")
    e(f"s_mov_b32 s{sT2}, {ASKS}")
    vq.wait("sh", "lgkmcnt(0)")
    for k in range(3):
        e(f"v_add_u32 v{PS+k}, v{PS+k}, v{RK+k}")
        e(f"v_lshlrev_b32 v{BA+k}, 2, v{PS+k}", f"v_mad_u32_u24 v{PS+k}, v{PS+k}, 12, s{sT2}")
        if k == 2:
            e(f"s_mov_b64 exec, s[{sV+4}:{sV+5}]")
        e(f"ds_write_b32 v{BA+k}, v{NL+k} offset:{AINV}")
        e(f"ds_write2_b32 v{PS+k}, v{SHV+2*k}, v{SHV+2*k+1} offset0:0 offset1:1")
        e(f"ds_write_b32 v{PS+k}, v{KEY+k} offset:8")
    e("s_mov_b64 exec, -1")
    aea(2)
    e(f"s_mul_i32 s{sTAG}, s{sTAG}, 0x9e3779b1", f"s_add_u32 s{sTAG}, s{sTAG}, 0x7f4a7c15")
    e(f"s_mul_i32 s{sTAG2}, s{sTAG}, 0x85ebca6b", f"s_and_b32 s{sTAG2}, s{sTAG2}, 0xffc00000")
    e(f"ds_read_b64 {vr(CT,2)}, v{T+2} offset:{ACNT}", f"ds_read_b64 {vr(ST,2)}, v{T+2} offset:{ASTART}")
    e(f"s_mul_i32 s{sT}, s2, {CS*12}", f"s_add_u32 s{sT}, s{sT}, {WS_SK}")
    srd(sA0, 14, 15, f"s{sT}", CS * 12)
    e(f"s_mul_i32 s{sT}, s2, {CS*32}", f"s_add_u32 s{sT}, s{sT}, {WS_EA}")
    srd(sA1, 14, 15, f"s{sT}", CH * 32)
    e(f"v_lshrrev_b32 v{T+3}, 1, v0", f"v_lshlrev_b32 v{T+3}, 2, v{T+3}")
    e(f"v_and_b32 v{T+4}, 1, v0", f"v_lshlrev_b32 v{T+4}, 4, v{T+4}", f"v_add_u32 v{T+4}, {EAST}, v{T+4}", f"v_add_u32 v{T+6}, {ASKS}, v{T+7}")
    e("s_waitcnt lgkmcnt(0)", "s_barrier")
    ts.stamp("scat")
    e(f"ds_read_b128 {vr(OUTV,4)}, v{T+6}", f"ds_read_b128 {vr(OUTV+4,4)}, v{T+6} offset:8192")
    for i in range(5):
        e(f"ds_read_b32 v{IV+i}, v{T+3} offset:{AINV + i*1024}")
    aea(3)

    def skst():
        vq.op("st", f"buffer_store_dwordx4 {vr(OUTV,4)}, v{T+7}, {sr(sA0)}, 0 offen sc1")
        vq.op("st", f"buffer_store_dwordx4 {vr(OUTV+4,4)}, v{T+7}, {sr(sA0)}, s{sNV} offen sc1")

    e("s_waitcnt lgkmcnt(0)")
    if P["SKEARLY"]:
        skst()
    for i in range(5):
        e(f"v_add_u32 v{IV+i}, v{T+4}, v{IV+i}")
    for k in range(2):
        e(f"v_lshl_or_b32 v{TABV+2*k}, v{CT+k}, 11, v{ST+k}", f"v_or_b32 v{TABV+2*k}, s{sTAG2}, v{TABV+2*k}", f"v_mov_b32 v{TABV+2*k+1}, s{sTAG}")
    e(f"s_and_b32 s{sB}, s2, 7", f"s_lshl_b32 s{sB}, s{sB}, 5", f"s_lshr_b32 s{sT}, s2, 3", f"s_add_u32 s{sB}, s{sB}, s{sT}")
    e(f"s_mul_i32 s{sNB}, s{sB}, 625", f"s_add_u32 s{sNCNT}, s{sNB}, 640", f"s_add_u32 s{sNB}, s{sNB}, 15",
      f"s_lshr_b32 s{sNB}, s{sNB}, 4", f"s_lshr_b32 s{sNCNT}, s{sNCNT}, 4", f"s_sub_u32 s{sNCNT}, s{sNCNT}, s{sNB}")
    e(f"s_mov_b32 s{sM0}, 0x0f0f0f0f", f"s_mov_b32 s{sM0+1}, 0x0f0f0f0f", f"s_mov_b32 s{sM1}, 0xf0f0f0f0", f"s_mov_b32 s{sM1+1}, 0xf0f0f0f0")
    vq.wait("ea")
    e("s_barrier")
    ts.stamp("land")
    for i in range(5):
        e(f"ds_read_b128 {vr(OUTV+8+4*i,4)}, v{IV+i}")
    if not P["SKEARLY"]:
        skst()
    for i in range(5):
        e(f"s_mov_b32 s{sT}, {8192*i}", f"s_waitcnt lgkmcnt({4-i})")
        vq.op("st", f"buffer_store_dwordx4 {vr(OUTV+8+4*i,4)}, v{T+7}, {sr(sA1)}, s{sT} offen sc1")
    aea(4)
    ts.stamp("issued")
    for i in range(8):
        e(f"v_mov_b32 v{EA0+i}, 0")
    e(f"v_and_b32 v{T+3}, 4, v{LANE}", f"v_lshlrev_b32 v{T+3}, 2, v{T+3}", f"v_mov_b32 v{T+4}, 0xffff", f"v_lshlrev_b32 v{T+4}, v{T+3}, v{T+4}")
    e(f"v_bfe_i32 v{T+3}, v{LANE}, 3, 1", f"v_and_b32 v{MQ}, v{T+3}, v{T+4}", f"v_xor_b32 v{MP}, v{MQ}, v{T+4}")
    e(f"v_lshrrev_b32 v{EAC}, 5, v{LANE}", f"v_lshlrev_b32 v{EAC}, 4, v{EAC}", f"v_add_u32 v{EAC}, {EAST}, v{EAC}")
    e(f"v_and_b32 v{LAC}, 15, v{LANE}", f"v_lshl_or_b32 v{LAC}, v{LAC}, 4, 8")
    e(f"v_bfe_u32 v{T+3}, v{LANE}, 3, 2", f"v_and_b32 v{T+4}, 3, v{LANE}", f"v_lshl_add_u32 v{T+3}, v{T+3}, 2, v{T+4}", f"v_lshlrev_b32 v{LBC}, 4, v{T+3}")
    e(f"s_cmp_eq_u32 s{sNCNT}, 40")
    tabs = []
    for part in (PART39, PART40):
        t = [0] * 40
        for w, p in enumerate(part):
            for sl, r in enumerate(p):
                t[r] = w * 8 + sl
        tabs.append([sum(t[5 * q + i] << (6 * i) for i in range(5)) for q in range(8)])
    e(f"v_mov_b32 v{RT}, 0")
    for q in range(8):
        e(f"s_mov_b32 s{sT}, {tabs[0][q]}", f"s_cselect_b32 s{sT}, {tabs[1][q]}, s{sT}")
        m = 31 << (5 * q)
        e(f"s_mov_b32 exec_lo, {m & 0xffffffff}", f"s_mov_b32 exec_hi, {m >> 32}", f"v_mov_b32 v{RT}, s{sT}")
    e("s_mov_b64 exec, -1")
    e(f"v_mul_u32_u24 v{T+3}, 52, v{LANE}", f"v_lshrrev_b32 v{T+3}, 8, v{T+3}", f"v_mad_i32_i24 v{T+3}, v{T+3}, -5, v{LANE}",
      f"v_mul_u32_u24 v{T+3}, 6, v{T+3}", f"v_lshrrev_b32 v{RT}, v{T+3}, v{RT}")
    e(f"v_and_b32 v{T+3}, 7, v{RT}", f"v_bfe_u32 v{RT}, v{RT}, 3, 3", f"v_lshlrev_b32 v{T+3}, 12, v{T+3}", f"v_lshl_or_b32 v{RT}, v{RT}, 7, v{T+3}")
    srd(sTAB, 14, 15, None, WS_W + 64)
    srd(sSK, 14, 15, WS_SK, NCH * CS * 12)
    e(f"s_lshl_b32 s{sT}, s2, 11")
    e("s_waitcnt vmcnt(0)", "s_barrier")
    ts.stamp("drained")
    e("s_cmp_ge_u32 s3, 2", "s_cbranch_scc1 L_nopub")
    e(f"buffer_store_dwordx4 {vr(TABV,4)}, v{T+7}, {sr(sTAB)}, s{sT} offen sc1")
    e.label("L_nopub")
    srd(sX, SK, SK + 1, None, N * 1024)
    srd(sEA, 14, 15, WS_EA, NCH * CS * 32)
    if P["XPF"]:
        e(f"s_and_b32 s{sT}, s2, 7", f"s_mul_i32 s{sT}, s{sT}, {1252*1024}", f"s_lshr_b32 s{sT2}, s2, 3", f"s_lshl_b32 s{sT2}, s{sT2}, 3",
          f"s_add_u32 s{sT2}, s{sT2}, s3", f"s_mul_i32 s{sT2}, s{sT2}, {P['XPF']*128}", f"s_add_u32 s{sT}, s{sT}, s{sT2}")
        e(f"v_min_u32 v{T+6}, {P['XPF']-1}, v{LANE}", f"v_lshlrev_b32 v{T+6}, 7, v{T+6}")
        e(f"buffer_load_dword v{PFV}, v{T+6}, {sr(sX)}, s{sT} offen")
    sM = SK + 8
    e(f"v_lshl_or_b32 v{CGF}, v{CGR+1}, 16, v{CGR}", f"v_lshl_or_b32 v{CGF+1}, v{CGR+3}, 16, v{CGR+2}")
    e(f"v_lshrrev_b32 v{T}, 5, v{LANE}", f"v_lshlrev_b32 v{T}, 11, v{T}", f"v_and_b32 v{T+1}, 15, v{LANE}", f"v_lshl_add_u32 v{T}, v{T+1}, 4, v{T}")
    for i in range(8):
        e(f"ds_read_b128 {vr(RW+4*i,4)}, v{T} offset:{WR + 256*i}")
    e(f"v_bfe_i32 v{T+2}, v{LANE}, 4, 1", f"v_and_b32 v{T+2}, 0x02020202, v{T+2}", f"v_add_u32 v{T+2}, 0x05040100, v{T+2}")
    e(f"v_lshrrev_b32 v{T}, 4, v{LANE}", f"v_lshlrev_b32 v{T}, 13, v{T}", f"v_lshl_add_u32 v{T}, v{T+1}, 2, v{T}",
      f"s_and_b32 s{sT}, s3, 3", f"s_lshl_b32 s{sT}, s{sT}, 6", f"s_add_u32 s{sT}, s{sT}, {WO}", f"v_add_u32 v{T}, s{sT}, v{T}")
    WT = 128
    for s in range(4):
        for ip in range(4):
            e(f"ds_read2st64_b32 {vr(WT+8*s+2*ip,2)}, v{T} offset0:{8*ip+s} offset1:{8*ip+4+s}")
    e(f"s_mov_b32 s{sM}, 0x05040100", f"s_mov_b32 s{sM+1}, 0x07060302")
    e("s_waitcnt lgkmcnt(15)")
    for h in range(2):
        for t in range(2):
            for ip in range(4):
                e(f"v_perm_b32 v{WRF+8*h+4*t+ip}, v{RW+4*(2*ip+1)+t+2*h}, v{RW+4*(2*ip)+t+2*h}, v{T+2}")
    e("s_waitcnt lgkmcnt(0)")
    for s in range(4):
        for t in range(2):
            for ip in range(4):
                e(f"v_perm_b32 v{WOF+8*s+4*t+ip}, v{WT+8*s+2*ip+1}, v{WT+8*s+2*ip}, s{sM+t}")
    e(f"s_lshl_b32 s{sT}, s{sNB}, 10", f"s_add_u32 s{sOUT}, s12, s{sT}", f"s_addc_u32 s{sOUT+1}, s13, 0",
      f"s_lshl_b32 s{sOUT+2}, s{sNCNT}, 10", f"s_mov_b32 s{sOUT+3}, 0x20000")
    e(f"v_lshrrev_b32 v{T+1}, 1, v0", f"v_lshlrev_b32 v{T+2}, 11, v{T+1}", f"s_lshl_b32 s{sT}, s{sB}, 3")
    e(f"v_mul_u32_u24 v{RG0}, {CS}, v{T+1}", f"s_mov_b32 s{sROFF}, 0", f"s_mov_b32 s{sCNT}, {SPIN}", f"s_mov_b32 s{sT2}, 0xffc00000")
    ts.stamp("frag")
    e.label("L_poll")
    e(f"buffer_load_dwordx2 {vr(T+6,2)}, v{T+2}, {sr(sTAB)}, s{sT} offen sc1")
    e(f"s_sub_u32 s{sCNT}, s{sCNT}, 1", "s_cbranch_scc1 L_done")
    e("s_waitcnt vmcnt(0)")
    e(f"v_xor_b32 v{T+3}, s{sTAG2}, v{T+6}", f"v_xor_b32 v{T+4}, s{sTAG}, v{T+7}", f"v_and_or_b32 v{T+3}, v{T+3}, s{sT2}, v{T+4}")
    e(f"v_cmpx_ne_u32 vcc, 0, v{T+3}", "s_cbranch_execnz L_poll")
    e("s_mov_b64 exec, -1")
    ts.stamp("tab")
    G1, G2, SKR, RNK, CA = RW, RW + 4, RW + 12, RW + 24, RW + 28

    def bea(p):
        for i in range(6):
            if bstage[i] == p:
                e(f"s_add_u32 m0, s{sEM}, {8192*i}")
                vq.op("ea", f"buffer_load_dwordx4 v{G2+i}, {sr(sEA)}, 0 offen {ldpol} lds")

    e(f"v_bfe_u32 v{RLEN}, v{T+6}, 11, 11", f"v_bfe_i32 v{T+4}, v0, 0, 1", f"v_and_b32 v{T+3}, 0x7ff, v{T+6}")
    e(f"v_and_b32 v{RBASE}, v{RLEN}, v{T+4}")
    e(f"v_add_u32 v{RG0}, v{RG0}, v{T+3}")
    scan_dpp(e, RBASE, True)
    e("s_mov_b32 exec_lo, 0", "s_brev_b32 exec_hi, 1")
    e(f"ds_add_rtn_u32 v{T+4}, v{T+5}, v{RBASE} offset:{TOT}")
    e("s_mov_b64 exec, -1")
    e(f"v_mov_b32_dpp v{RBASE}, v{RBASE} quad_perm:[0,0,2,2] row_mask:0xf bank_mask:0xf")
    e("s_waitcnt lgkmcnt(0)")
    e(f"v_readlane_b32 s{sT}, v{T+4}, 63")
    e(f"v_add_u32 v{RBASE}, s{sT}, v{RBASE}")
    e(f"v_sub_u32 v{RG0}, v{RG0}, v{RBASE}")
    e.label("L_round")
    MU = P["MU"]
    e(f"v_subrev_u32 v{T}, s{sROFF}, v{RBASE}")
    e(f"v_and_b32 v{T+3}, 1, v0")
    e(f"v_add_u32 v{T+2}, v{T}, v{RLEN}", f"v_max_i32 v{T}, 0, v{T}", f"v_min_i32 v{T+2}, {CAP}, v{T+2}")
    e(f"v_add_u32 v{T}, v{T}, v{T+3}")
    e(f"v_sub_u32 v{T+2}, v{T+2}, v{T}")
    e(f"v_lshlrev_b32 v{T}, 2, v{T}", f"v_add_u32 v{T+1}, s{sROFF}, v{RG0}")
    e.label("L_map")
    for i in range(MU + 1):
        e(f"v_cmp_lt_i32 s[{SK+2*i}:{SK+2*i+1}], {2*i}, v{T+2}")
    for i in range(MU):
        e(f"s_mov_b64 exec, s[{SK+2*i}:{SK+2*i+1}]")
        e(f"ds_write_b32 v{T}, v{T+1} offset:{MAP + 8*i}")
    e("s_mov_b64 exec, -1")
    e(f"s_cmp_lg_u64 s[{SK+2*MU}:{SK+2*MU+1}], 0", "s_cbranch_scc1 L_map2")
    e(f"v_lshlrev_b32 v{T}, 2, v0")
    e(f"v_lshrrev_b32 v{T+4}, 1, v0", f"v_lshlrev_b32 v{T+1}, 2, v{T+4}")
    e(f"v_lshlrev_b32 v{T+2}, 4, v0", f"v_mul_u32_u24 v{T+6}, 12, v0")
    e("s_waitcnt lgkmcnt(0)", "s_barrier")
    ts.stamp("map")
    for i in range(3):
        e(f"ds_read_b32 v{G1+i}, v{T} offset:{MAP + 2048*i}")
    for i in range(6):
        e(f"ds_read_b32 v{G2+i}, v{T+1} offset:{MAP + 1024*i}")
    e(f"ds_read_b32 v{T+3}, v{T+5} offset:{TOT}")
    e("s_waitcnt lgkmcnt(7)")
    for i in range(3):
        if i:
            e(f"v_add_u32 v{G1+i}, {512*i}, v{G1+i}")
        e(f"v_mad_i32_i24 v{G1+i}, v{G1+i}, 12, v{T+6}")
        vq.op(f"sk{i}", f"buffer_load_dwordx3 {vr(SKR+4*i,3)}, v{G1+i}, {sr(sSK)}, 0 offen {ldpol}")
    e("s_waitcnt lgkmcnt(0)")
    if P["SKBAR"]:
        e("s_barrier")
    for i in range(6):
        e(f"v_lshl_add_u32 v{G2+i}, v{G2+i}, 5, v{T+2}")
        if i:
            e(f"v_add_u32 v{G2+i}, {8192*i}, v{G2+i}")
    bea(0)
    e(f"v_readfirstlane_b32 s{sN}, v{T+3}")
    e(f"s_sub_u32 s{sNR}, s{sN}, s{sROFF}", f"s_min_u32 s{sNR}, s{sNR}, {CAP}")
    for i in range(3):
        e(f"v_add_u32 v{G1+i}, {512*i}, v0")
        e(f"v_cmp_gt_u32 s[{sV+2*i}:{sV+2*i+1}], s{sNR}, v{G1+i}")
        e(f"v_lshlrev_b32 v{G1+i}, 21, v{G1+i}")
    e(f"v_lshlrev_b32 v{T}, 2, v{LANE}", f"v_and_b32 v{T+6}, 124, v{T}", f"s_mul_i32 s{sT}, s3, 640", f"v_add_u32 v{T+7}, s{sT}, v{T+6}")
    e(f"s_mov_b32 s{sT2}, 0x1fff80", f"v_and_b32 v{T+4}, 12, v{T}")
    e(f"v_sub_u32 v{T+2}, 63, v{LANE}", f"s_mul_i32 s{sOFF}, s3, 5")
    for i in range(3):
        vq.wait(f"sk{i}")
        if i == 0:
            ts.stamp("sk")
        key = SKR + 4 * i + 2
        e(f"v_lshrrev_b32 v{CA+i}, 21, v{key}", f"v_lshlrev_b32 v{CA+i}, 2, v{CA+i}")
        e(f"v_lshrrev_b32 v{T+3}, 26, v{key}", f"v_lshl_or_b32 v{T+3}, v{T+3}, 4, v{T+4}")
        e(f"s_mov_b64 exec, s[{sV+2*i}:{sV+2*i+1}]")
        e(f"ds_add_rtn_u32 v{RNK+i}, v{CA+i}, v{ONE} offset:{CNT2}")
        e(f"ds_add_u32 v{T+3}, v{ONE} offset:{DEG}")
        e("s_mov_b64 exec, -1")
        e(f"v_and_or_b32 v{key}, v{key}, s{sT2}, v{G1+i}")
    bea(1)
    e("s_waitcnt lgkmcnt(0)", "s_barrier")
    ts.stamp("b1")
    CN, CAD = XR, XR + 8
    e(f"s_cmp_lg_u32 s{sROFF}, 0", "s_cbranch_scc1 L_rank2")
    e(f"ds_read_b128 {vr(CAD,4)}, v{X16} offset:{DEG}")
    for j in range(5):
        e(f"ds_read_b32 v{CN+j}, v{T+7} offset:{CNT2 + 128*j}")
    for j in range(1, 5):
        e(f"s_add_u32 s{SK+j}, s{sOFF}, {j}")
    e("s_waitcnt lgkmcnt(5)")
    e(f"v_add_u32 v{T+1}, v{CAD}, v{CAD+1}", f"v_add3_u32 v{T+1}, v{T+1}, v{CAD+2}, v{CAD+3}")
    e(f"v_lshl_or_b32 v{T+1}, v{T+1}, 6, v{T+2}")
    for j in range(5):
        e(f"v_readlane_b32 s{SK+j}, v{T+1}, s{SK+j if j else sOFF}")
    for j in range(5):
        e(f"v_cmp_lt_u32 s[{SK+6+2*j}:{SK+7+2*j}], s{SK+j}, v{T+1}")
    for j in range(5):
        e(f"s_bcnt1_i32_b64 s{SK+j}, s[{SK+6+2*j}:{SK+7+2*j}]")
    e("s_waitcnt lgkmcnt(0)")
    for j in range(5):
        e(f"v_readlane_b32 s{sASG[j]}, v{RT}, s{SK+j}")
    e.label("L_ranked")
    e("s_mov_b32 exec_hi, 0")
    for j in range(5):
        e(f"s_and_b32 s{sT}, s{sASG[j]}, 0x380")
        e(f"v_add_u32 v{CAD+j}, s{sT}, v{T+6}")
        e(f"ds_add_rtn_u32 v{CN+j}, v{CAD+j}, v{CN+j} offset:{WB}")
    for j in range(5):
        e(f"v_or_b32 v{CAD+j}, s{sASG[j]}, v{CAD+j}")
    for j in range(5):
        e("s_waitcnt lgkmcnt(4)")
        e(f"v_lshl_or_b32 v{CN+j}, v{CN+j}, 16, v{CAD+j}")
        e(f"ds_write_b32 v{T+7}, v{CN+j} offset:{CNT2 + 128*j}")
    for j in range(5):
        e(f"v_writelane_b32 v{T+3}, s{sASG[j]}, {j}")
    e(f"v_add_lshl_u32 v{T+4}, v{LANE}, s{sOFF}, 7")
    e(f"v_lshrrev_b32 v{T+1}, 10, v{T+3}", f"v_bfe_u32 v{T+3}, v{T+3}, 2, 8", f"v_or_b32 v{T+3}, v{T+3}, v{T+1}")
    e("s_mov_b32 exec_lo, 31")
    e(f"ds_write_b32 v{T+3}, v{T+4} offset:{NODEOF}")
    e("s_mov_b64 exec, -1")
    bea(2)
    e(f"v_lshrrev_b32 v{T+4}, 3, v{LANE}", f"v_mul_u32_u24 v{T+4}, {GAP*16}, v{T+4}", f"v_add_u32 v{T+4}, {LIST}, v{T+4}")
    e(f"s_lshl_b32 s{sT}, s3, 5", f"v_add_u32 v{T+3}, s{sT}, v{T}")
    e("s_waitcnt lgkmcnt(0)", "s_barrier")
    ts.stamp("b2")
    e(f"ds_read_b128 {vr(CN,4)}, v{X16} offset:{WB}")
    for i in range(3):
        e(f"ds_read_b32 v{CA+i}, v{CA+i} offset:{CNT2}")
    e(f"ds_read_b32 v{T+3}, v{T+3} offset:{NODEOF}")
    e(f"s_lshl_b32 s{sT}, s3, 3", f"s_add_u32 s{sT2}, s{sT}, 7")
    e("s_waitcnt lgkmcnt(4)")
    e(f"v_add_u32 v{T+1}, v{CN}, v{CN+1}", f"v_add3_u32 v{T+1}, v{T+1}, v{CN+2}, v{CN+3}", f"v_mov_b32 v{T+2}, v{T+1}")
    scan_dpp(e, T + 2, True)
    e(f"v_sub_u32 v{T+1}, v{T+2}, v{T+1}")
    e(f"v_lshl_add_u32 v{CAD}, v{T+1}, 4, v{T+4}")
    for k in range(3):
        e(f"v_lshl_add_u32 v{CAD+1+k}, v{CN+k}, 4, v{CAD+k}")
    e(f"ds_write_b128 v{X16}, {vr(CAD,4)} offset:{START}")
    e("s_waitcnt lgkmcnt(2)")
    for i in range(3):
        e(f"v_and_b32 v{G1+i}, 0x3ff, v{CA+i}")
        e(f"ds_read_b32 v{G1+i}, v{G1+i} offset:{START}")
    e(f"v_readlane_b32 s{sNV}, v{T+2}, s{sT2}", f"v_readlane_b32 s{sCNT}, v{T+1}, s{sT}", f"v_readlane_b32 s{sBASE}, v{CAD}, s{sT}")
    for i in range(3):
        key = SKR + 4 * i + 2
        e(f"v_bfe_u32 v{T+7}, v{CA+i}, 12, 3", f"v_or_b32 v{key}, v{T+7}, v{key}")
        e(f"v_lshrrev_b32 v{CA+i}, 16, v{CA+i}", f"v_add_u32 v{CA+i}, v{CA+i}, v{RNK+i}")
    e(f"s_sub_u32 s{sNV}, s{sNV}, s{sCNT}", f"s_lshl_b32 s{sT}, s{sNV}, 4")
    e(f"v_add_u32 v{LA}, s{sBASE}, v{LAC}", f"v_add_u32 v{LB}, s{sBASE}, v{LBC}")
    for i in range(3):
        e("s_waitcnt lgkmcnt(2)")
        e(f"v_lshl_add_u32 v{CA+i}, v{CA+i}, 4, v{G1+i}")
        e(f"s_mov_b64 exec, s[{sV+2*i}:{sV+2*i+1}]")
        e(f"ds_write_b96 v{CA+i}, {vr(SKR+4*i,3)}")
        e("s_mov_b64 exec, -1")
    e(f"v_add_u32 v{T+1}, s{sT}, v{LA}", f"v_mov_b32 v{T+4}, {(0x3fff << 7) | 5}")
    e(f"ds_write_b32 v{T+1}, v{T+4}")
    bea(3)
    for j in range(5):
        e(f"v_readlane_b32 s{sNODE+j}, v{T+3}, {j}")
    e("s_waitcnt lgkmcnt(0)", "s_barrier")
    ts.stamp("b4")
    e(f"ds_read_b32 v{K}, v{LA}", f"ds_read_b32 v{KN}, v{LA} offset:{16*D}", f"ds_read_b128 {vr(ENT,4)}, v{LB}")
    e(f"s_mov_b32 s{sT2}, 0x00fffc38")
    e("s_waitcnt lgkmcnt(2)")
    e(f"v_lshlrev_b32 v{K}, 3, v{K}", f"v_and_b32 v{K}, s{sT2}, v{K}")

    def xload(j):
        e(f"s_and_b32 s{sOFF}, s{SK + j % 16}, 0xffffff00")
        s = XR + 4 * (j % R)
        e(f"buffer_load_dwordx4 {vr(s,4)}, v{X16}, {sr(sX)}, s{sOFF} offen")

    for j in range(D):
        e(f"v_readlane_b32 s{SK+j}, v{K}, {j}")
    for j in range(D):
        xload(j)

    def ea_reads():
        e(f"v_lshrrev_b32 v{T}, 21, v{ENT+2}", f"v_lshl_add_u32 v{T}, v{T}, 5, v{EAC}")
        e(f"s_mov_b64 exec, s[{sM0}:{sM0+1}]", f"ds_read_b128 {vr(EA0,4)}, v{T}")
        e(f"s_mov_b64 exec, s[{sM1}:{sM1+1}]", f"ds_read_b128 {vr(EA1,4)}, v{T}")
        e("s_mov_b64 exec, -1")

    e(f"s_waitcnt vmcnt({D}) lgkmcnt(0)", "s_barrier")
    ts.stamp("b5")
    e(f"s_cmp_eq_u32 s{sNV}, 0", "s_cbranch_scc1 L_swept")
    ea_reads()
    e(f"s_mov_b32 s{sCNT}, s{sNV}")
    e(".p2align 3")
    e.label("L_loop")
    e("s_waitcnt lgkmcnt(0)")
    for q in range(4):
        e(f"v_mfma_f32_4x4x4_16b_bf16 {vr(AGN+4*q,4)}, {vr(ENT,2)}, {vr(CGF,2)}, 0 cbsz:4 abid:{2*q}")
    fill = [f"v_lshlrev_b32 v{K}, 3, v{KN}", f"v_and_b32 v{K}, s{sT2}, v{K}", f"v_add_u32 v{LA}, 256, v{LA}", f"v_add_u32 v{LB}, 256, v{LB}",
            f"ds_read_b32 v{KN}, v{LA} offset:{16*D}", f"ds_read_b128 {vr(ENT,4)}, v{LB}"]

    def pq(j):
        p = PQ + 2 * (j % 2)
        return [f"v_cvt_pk_bf16_f32 v{T+1+j%2}, v{AGN+j}, v{AGN+j}", f"v_and_b32 v{p}, v{MP}, v{T+1+j%2}", f"v_and_b32 v{p+1}, v{MQ}, v{T+1+j%2}"]

    fill += pq(0)
    for h in range(2):
        e(f"v_mfma_f32_32x32x16_bf16 {vr(RW+16*h,16)}, {vr(EA0,4)}, {vr(WRF+8*h,4)}, 0")
        e(*fill[:3]); fill = fill[3:]
    for h in range(2):
        e(f"v_mfma_f32_32x32x16_bf16 {vr(RW+16*h,16)}, {vr(EA1,4)}, {vr(WRF+8*h+4,4)}, {vr(RW+16*h,16)}")
        e(*fill[:3]); fill = fill[3:]

    def fmas(j):
        t = TP + 8 * (j % 2)
        e(f"s_set_gpr_idx_on s{SK + j % 16}, gpr_idx(SRC2,DST)")
        for h in range(2):
            r = RW + 16 * h + j
            rp = r & ~1
            sel = "op_sel:[0,1,0] op_sel_hi:[1,1,1]" if r & 1 else "op_sel_hi:[1,0,1]"
            for q in range(2):
                a = ACC + 4 * h + 2 * q
                e(f"v_pk_fma_f32 {vr(a,2)}, {vr(t+4*h+2*q,2)}, {vr(rp,2)}, {vr(a,2)} {sel}")
        e("s_set_gpr_idx_off")

    for j in range(16):
        t = TP + 8 * (j % 2)
        p = PQ + 2 * (j % 2)
        s = XR + 4 * (j % R)
        nx = pq(j + 1) if j < 15 else []
        e(f"s_waitcnt vmcnt({D-1})")
        e(f"v_mfma_f32_16x16x16_bf16 {vr(t,4)}, {vr(p,2)}, {vr(s,2)}, 0")
        e(f"v_readlane_b32 s{SK + (j + D) % 16}, v{K}, {j}")
        e(*nx[:1])
        e(f"v_mfma_f32_16x16x16_bf16 {vr(t+4,4)}, {vr(p,2)}, {vr(s+2,2)}, 0")
        e(*nx[1:])
        xload(j + D)
        if j == 2:
            e("s_waitcnt lgkmcnt(0)")
            ea_reads()
        if j > 0:
            fmas(j - 1)
        if j in (4, 8, 12):
            e(f"s_cmp_le_u32 s{sCNT}, {j}", "s_cbranch_scc1 L_swept")
    fmas(15)
    e(f"s_sub_i32 s{sCNT}, s{sCNT}, 16", f"s_cmp_gt_i32 s{sCNT}, 0", "s_cbranch_scc1 L_loop")
    e.label("L_swept", pad=8)
    ts.stamp("swept")
    e(f"s_add_u32 s{sROFF}, s{sROFF}, {CAP}", f"s_cmp_lt_u32 s{sROFF}, s{sN}", "s_cbranch_scc1 L_again")
    e(f"v_lshlrev_b32 v{T}, 2, v{LANE}")
    for s in range(5):
        e(f"s_lshr_b32 s{sT}, s{sNODE+s}, 1", f"s_and_b32 s{sT}, s{sT}, 0xc0", f"s_lshl_b32 s{sT2}, s{sNODE+s}, 3", f"s_or_b32 s{sT}, s{sT}, s{sT2}")
        for w in range(4):
            e(f"s_xor_b32 s{sT2}, s{sT}, {w << 4}")
            e(f"v_cvt_pk_bf16_f32 v{RW+8*s%32+w}, v{ACC+8*s+w}, v{ACC+8*s+4+w}")
            e(f"v_xor_b32 v{RW+8*s%32+4+w}, s{sT2}, v{T}")
            e(f"ds_write_b32 v{RW+8*s%32+4+w}, v{RW+8*s%32+w} offset:{AGL + 256*w}")
    e(f"v_and_b32 v{T}, 15, v{LANE}", f"v_lshrrev_b32 v{T+1}, 4, v{LANE}", f"v_xor_b32 v{T+2}, v{T}, v{T+1}", f"v_lshlrev_b32 v{T+2}, 4, v{T+2}",
      f"v_lshl_add_u32 v{T+2}, v{T}, 8, v{T+2}", f"s_lshr_b32 s{sT}, s3, 2", f"s_mul_i32 s{sT}, s{sT}, 20480", f"v_add_u32 v{T+2}, s{sT}, v{T+2}")
    for s in range(1, 4):
        e(f"v_xor_b32 v{T+2+s}, {64*s}, v{T+2}")
    e(f"v_lshlrev_b32 v{T+1}, 10, v{T+1}", f"v_lshl_add_u32 v{T+1}, v{T}, 2, v{T+1}",
      f"s_and_b32 s{sT2}, s3, 3", f"s_lshl_b32 s{sT2}, s{sT2}, 6", f"s_add_u32 s{sT}, s{sT}, s{sT2}")
    e("s_waitcnt vmcnt(0) lgkmcnt(0)", "s_barrier")
    ts.stamp("agb")
    AF, DD, PK = ACC, 128, 96
    for tl in range(5):
        for s in range(4):
            e(f"ds_read_b128 {vr(AF+16*tl+4*s,4)}, v{T+2+s} offset:{AGL + 4096*tl}")

    def stores(tl):
        for i in range(4):
            e(f"v_cvt_pk_bf16_f32 v{PK+4*tl+i}, v{DD+8*tl+i}, v{DD+8*tl+4+i}")
            e(f"buffer_store_dword v{PK+4*tl+i}, v{T+1}, {sr(sOUT)}, s{sT} offen offset:{256*i} {P['OUTPOL']}")
        e(f"s_add_u32 s{sT}, s{sT}, 4096")

    for tl in range(5):
        e(f"s_waitcnt lgkmcnt({min(16 - 4 * tl, 15)})")
        for s in range(4):
            for t in range(2):
                c = "0" if s == 0 else vr(DD + 8 * tl + 4 * t, 4)
                e(f"v_mfma_f32_16x16x32_bf16 {vr(DD+8*tl+4*t,4)}, {vr(AF+16*tl+4*s,4)}, {vr(WOF+8*s+4*t,4)}, {c}")
        if tl > 0:
            stores(tl - 1)
    stores(4)
    ts.stamp("stored")
    e("s_or_b32 s4, s2, s3", "s_cbranch_scc1 L_notag")
    e(f"v_mov_b32 v{T}, s{sTAG}", f"v_lshlrev_b32 v{T+2}, 2, v{LANE}", f"s_mov_b32 s{sT}, {WS_W}")
    e(f"buffer_store_dword v{T}, v{T+2}, {sr(sTAB)}, s{sT} offen sc1")
    e.label("L_notag")
    if P["TS"]:
        e("s_waitcnt vmcnt(0)")
        ts.stamp("end")
        e(f"s_lshl_b32 s{sT}, s2, 3", f"s_add_u32 s{sT}, s{sT}, s3", f"s_lshl_b32 s{sT}, s{sT}, 8", f"s_add_u32 s{sT}, s{sT}, {WS_TS}")
        e(f"v_lshl_add_u32 v{T}, v{LANE}, 2, s{sT}", f"global_store_dword v{T}, v{TSV}, s[14:15]")
        if P["DBG"]:
            e(f"s_cmp_lg_u32 s2, {P['DBG']}", "s_cbranch_scc1 L_done", "s_cmp_lg_u32 s3, 0", "s_cbranch_scc1 L_done")
            e("s_load_dwordx2 s[4:5], s[0:1], 72", f"v_readlane_b32 s{sT}, v{TSV}, 0", f"v_lshlrev_b32 v{T}, 2, v{LANE}")
            e(f"v_subrev_u32 v{TSV}, s{sT}, v{TSV}", "s_waitcnt lgkmcnt(0)", f"global_store_dword v{T}, v{TSV}, s[4:5]")
    e.label("L_done")
    e("s_endpgm")
    e.label("L_again")
    e("s_waitcnt vmcnt(0) lgkmcnt(0)", "s_barrier")
    init_round(False)
    e("s_waitcnt lgkmcnt(0)", "s_barrier")
    e("s_branch L_round")
    e.label("L_map2")
    e(f"v_add_u32 v{T}, {8*MU}, v{T}", f"v_subrev_u32 v{T+2}, {2*MU}, v{T+2}")
    e("s_branch L_map")
    e.label("L_rank2")
    for j in range(5):
        e(f"ds_read_b32 v{CN+j}, v{T+7} offset:{CNT2 + 128*j}")
    e("s_waitcnt lgkmcnt(0)")
    e.label("L_end")
    e("s_branch L_ranked")
    return e.text(), LDS, 240, 102


HEADER = """; Kernarg layout for this problem (88 bytes, ptrs only, base s[0:1]):
"""


def generate(**kw):
    P = dict(DEF)
    P.update(kw)
    k, lds, v, s = gen(P)
    n = NAME + "_kernel"
    out = HEADER
    out += f"; @launch grid=(256,1,1) block=(512,1,1) lds={lds}\n"
    out += '.amdgcn_target "amdgcn-amd-amdhsa--gfx950"\n.text\n'
    out += f".globl {n}\n.p2align 8\n.type {n},@function\n{n}:\n{k}"
    out += '.section .rodata,"a"\n'
    out += (f".p2align 6\n.amdhsa_kernel {n}\n  .amdhsa_next_free_vgpr {v}\n  .amdhsa_next_free_sgpr {s}\n"
            f"  .amdhsa_accum_offset {(v+3)//4*4}\n  .amdhsa_group_segment_fixed_size 0\n  .amdhsa_kernarg_size 88\n"
            f"  .amdhsa_user_sgpr_count 2\n  .amdhsa_user_sgpr_kernarg_segment_ptr 1\n  .amdhsa_system_sgpr_workgroup_id_x 1\n"
            f"  .amdhsa_float_denorm_mode_32 3\n.end_amdhsa_kernel\n")
    return out


if __name__ == "__main__":
    kw = {}
    for a in sys.argv[1:]:
        k, v = a.split("=", 1)
        kw[k] = int(v) if v.lstrip("-").isdigit() else v
    sys.stdout.write(generate(**kw))
```

```python
import sys, os
sys.path.insert(0, os.path.dirname(os.path.abspath(__file__)))
from emit import Emitter

NAME = "gather_scatter__tensor_product_equiv_mace__graph"
N, E = 10000, 320000
CH, NCH, CS = 1250, 256, 1280
WS_TAB, WS_W, WS_FL, WS_SK, WS_EA, WS_TS = 0, 0x80000, 0x90000, 0x100000, 0x500000, 0x2000000
CAPW, GAP = 256, 16
CAP = 8 * CAPW
SPIN = 200000

DEF = dict(EPI=2, SCH=2, XDUM=0, NOVM=1, PWAIT=2, ALIGN=1, PRIO=1, PSTEP=16, DIAGW=0, DIAGC=0, D=6, TS=0, DBG=0, APOL="nt", AEA="00011", BEA="011222", SKBAR=1, ABAR=1, SKEARLY=0, XPF=20, CPF=1, MU=7, OUTPOL="sc1", LDPOL="sc1", WST=3, WOST=3, ACCZ=2, CPOS=1, FRG=0, STH=0, STHN=5, ASTPOL='sc1')

PART39 = [[3, 11, 21, 31, 36], [5, 8, 20, 27, 38], [0, 6, 7, 13, 39], [9, 14, 18, 25, 34], [10, 16, 19, 24, 32], [4, 12, 26, 29, 33], [1, 17, 23, 28, 37], [2, 15, 22, 30, 35]]
PART40 = [[1, 10, 15, 30, 39], [2, 9, 21, 28, 37], [4, 14, 22, 27, 31], [6, 12, 18, 24, 35], [3, 8, 16, 29, 38], [5, 13, 17, 26, 34], [0, 20, 23, 32, 36], [7, 11, 19, 25, 33]]


def vr(a, n):
    return f"v[{a}:{a+n-1}]" if n > 1 else f"v{a}"


def sr(a, n=4):
    return f"s[{a}:{a+n-1}]"


def scan_dpp(e, v, full):
    for k in (1, 2, 4, 8):
        e(f"v_add_u32_dpp v{v}, v{v}, v{v} row_shr:{k} row_mask:0xf bank_mask:0xf")
    e(f"v_add_u32_dpp v{v}, v{v}, v{v} row_bcast:15 row_mask:0xa bank_mask:0xf")
    if full:
        e(f"v_add_u32_dpp v{v}, v{v}, v{v} row_bcast:31 row_mask:0xc bank_mask:0xf")


class TS:
    last = None

    def __init__(self, e, on, pair, vreg):
        self.e, self.on, self.pair, self.v, self.names = e, on, pair, vreg, []
        TS.last = self

    def stamp(self, name):
        if self.on and (self.on == 1 or name in str(self.on).split(",") or name in ("start", "end")):
            e, p = self.e, self.pair
            e(f"s_memrealtime s[{p}:{p+1}]", "s_waitcnt lgkmcnt(0)", f"v_writelane_b32 v{self.v}, s{p}, {len(self.names)}")
            self.names.append(name)


class VQ:
    def __init__(self, e):
        self.e, self.q = e, []

    def op(self, tag, text):
        self.e(text)
        self.q.append(tag)

    def n(self, tag):
        idx = max(i for i, t in enumerate(self.q) if t == tag)
        return len(self.q) - 1 - idx

    def wait(self, tag, extra=""):
        self.e(f"s_waitcnt vmcnt({self.n(tag)}) {extra}".strip())


def gen(P):
    e = Emitter()
    vq = VQ(e)
    D = P["D"]
    R = 8
    MAP, CNT2, WB, DEG, TOT, NODEOF, START, WR, WO = 0, 8192, 13312, 14336, 15360, 15616, 16384, 17408, 23552
    LIST = WO + 32768
    SHST = LIST + (CAP + 8 * GAP + 128) * 4
    EAST = SHST + CAP * 8
    assert SHST + CAP * 8 <= EAST
    LDS = EAST + CAP * 32
    AGL = 0
    ACNT, ASTART, AINV, ASKS = LIST, LIST + 1024, LIST + 2048, LIST + 7168
    assert ASKS + 16384 <= EAST
    LANE, X16, RLEN, RBASE, RG0, ONE, PFV = 1, 2, 3, 4, 5, 6, 7
    T = 8
    ACC, RW, XR, TP, AGN, PQ, EA0, EA1, WRF, CGF, ENT = 16, 64, 96, 128, 144, 160, 164, 168, 172, 188, 192
    MP, MQ = CGF + 2, CGF + 3
    K, KN, LA, LB, EAC, LAC, LBC, RT, TSV = 196, 197, 198, 199, 200, 201, 202, 203, 204
    WOF = 208
    cODD, cMAPW, cMAP1, cMAP2, cL12, cDEG, cSH, cR21, cROW, cTIE, cBIN, cNOD, cLST = range(240, 253)
    e.idx_range = {("v", i) for i in range(ACC, ACC + 48)}
    sX, sTAB, sSK, sEA, sA0, sA1, sOUT = 16, 20, 24, 28, 32, 36, 40
    sB, sNB, sNCNT, sN, sROFF, sNR, sNV, sBASE, sEM, sCNT, sT, sT2 = 44, 45, 46, 47, 48, 49, 50, 51, 52, 53, 54, 55
    sNODE = 56
    sOFF = 61
    sTAG, sTAG2 = 62, 63
    SK = 64
    sV = 80
    sM0, sM1 = 86, 88
    sASG = [90, 91, 92, 93, 94]
    sNW, sK4 = 95, 98
    sA2, sTSP = 96, 100
    ts = TS(e, P["TS"], sTSP, TSV)
    apol, ldpol = P["APOL"], P["LDPOL"]
    astage = [int(c) for c in str(P["AEA"]).zfill(5)]
    bstage = [int(c) for c in str(P["BEA"]).zfill(6)]

    def srd(s, lo, hi, off, size):
        if off is None:
            e(f"s_mov_b32 s{s}, s{lo}", f"s_mov_b32 s{s+1}, s{hi}")
        else:
            e(f"s_add_u32 s{s}, s{lo}, {off}", f"s_addc_u32 s{s+1}, s{hi}, 0")
        e(f"s_mov_b32 s{s+2}, {size}", f"s_mov_b32 s{s+3}, 0x20000")

    def init_round(first):
        e(f"v_lshlrev_b32 v{T+3}, 2, v0", f"v_mov_b32 v{T+4}, 0x00700000", f"v_mov_b32 v{T+5}, 0")
        for i in range(4):
            e(f"ds_write_b32 v{T+3}, v{T+4} offset:{MAP + i*2048}")
        for i in range(4 if first else 3):
            e(f"ds_write_b32 v{T+3}, v{T+5} offset:{CNT2 + i*2048}")

    DSTV, SRCV, SHV, BK, BA, RK, NL, KEY, CT, ST, PS = 64, 68, 72, 80, 84, 88, 92, 96, 100, 104, 108
    TABV = 112
    OUTV = 128
    IV = 156
    CGR = 120
    if P["TS"]:
        e("s_memrealtime s[92:93]")
    e("s_cmp_ge_u32 s2, 256", "s_cbranch_scc1 L_done")
    e("s_load_dwordx4 s[4:7], s[0:1], 8")
    e("s_load_dwordx4 s[8:11], s[0:1], 24")
    e("s_load_dwordx2 s[14:15], s[0:1], 80")
    e(f"s_load_dwordx2 s[{SK}:{SK+1}], s[0:1], 0")
    e(f"s_load_dwordx2 s[{SK+2}:{SK+3}], s[0:1], 40")
    e(f"s_load_dwordx4 s[{SK+4}:{SK+7}], s[0:1], 48")
    e("s_load_dwordx2 s[12:13], s[0:1], 64")
    e(f"v_lshrrev_b32 v{T}, 6, v0", f"v_and_b32 v{LANE}, 63, v0", f"v_lshlrev_b32 v{T+1}, 2, v0", f"v_mov_b32 v{T+5}, 0")
    e(f"v_readfirstlane_b32 s3, v{T}")
    e(f"ds_write_b32 v{T+1}, v{T+5} offset:{ACNT}", f"ds_write_b32 v{T+1}, v{T+5} offset:{AINV+3072}")
    e(f"s_mul_i32 s{sT}, s2, {CH*4}", f"s_mul_i32 s{sT2}, s2, {CH*8}", f"s_mul_i32 s{sOFF}, s2, {CH*32}")
    e(f"v_lshlrev_b32 v{X16}, 4, v{LANE}", f"v_lshlrev_b32 v{T+2}, 3, v0", f"v_lshlrev_b32 v{T+7}, 4, v0", f"v_mov_b32 v{ONE}, 1")
    e(f"s_lshl_b32 s{sEM}, s3, 10", f"s_add_u32 s{sEM}, s{sEM}, {EAST}", f"s_movk_i32 s{sCNT}, 4096", f"s_movk_i32 s{sNV}, 8192")
    if P["DIAGW"]:
        e(f"s_memrealtime s[{sTSP}:{sTSP+1}]")
    e("s_waitcnt lgkmcnt(0)")
    if P["TS"]:
        e(f"v_writelane_b32 v{TSV}, s92, 0")
        ts.names.append("first")
    ts.stamp("start")
    srd(sA0, 6, 7, f"s{sT}", CH * 4)
    for i in range(3):
        o = f"0 offen offset:{2048*i}" if i < 2 else f"s{sCNT} offen"
        vq.op("dst", f"buffer_load_dword v{DSTV+i}, v{T+1}, {sr(sA0)}, {o} {apol}")
    srd(sA1, 4, 5, f"s{sT}", CH * 4)
    for i in range(3):
        o = f"0 offen offset:{2048*i}" if i < 2 else f"s{sCNT} offen"
        vq.op("src", f"buffer_load_dword v{SRCV+i}, v{T+1}, {sr(sA1)}, {o} {apol}")
    e(f"s_load_dword s{sTAG}, s[14:15], {WS_W}")
    if P["CPF"]:
        e(f"s_getpc_b64 s[{sV}:{sV+1}]", f"s_and_b32 s{sT}, s2, 0xf8", f"s_lshl_b32 s{sT}, s{sT}, 6")
        e(f"v_and_b32 v{T+3}, 0x180, v{T+2}", f"v_add_u32 v{T+3}, s{sT}, v{T+3}", f"v_min_u32 v{T+3}, L_end-L_pc, v{T+3}")
        e.lines.insert(len(e.lines) - 5, "L_pc:")
        e(f"v_mov_b32 v{TABV+1}, s{sV+1}", f"v_add_co_u32 v{TABV}, vcc, s{sV}, v{T+3}", f"v_addc_co_u32 v{TABV+1}, vcc, 0, v{TABV+1}, vcc")
        vq.op("cpf", f"global_load_dword v{TSV+1}, {vr(TABV,2)}, off")
    srd(sA2, 8, 9, f"s{sT2}", CH * 8)
    srd(sEA, 10, 11, f"s{sOFF}", CH * 32)
    if P["ABAR"]:
        e("s_barrier")
    for i, o in enumerate(("0", f"s{sCNT}", f"s{sNV}")):
        vq.op("sh", f"buffer_load_dwordx2 {vr(SHV+2*i,2)}, v{T+2}, {sr(sA2)}, {o} offen {apol}")

    def aea(p):
        for i in range(5):
            if astage[i] == p:
                e(f"s_add_u32 m0, s{sEM}, {8192*i}", f"s_mov_b32 s{sT}, {8192*i}")
                vq.op("ea", f"buffer_load_dwordx4 v{T+7}, {sr(sEA)}, s{sT} offen {apol} lds")
        if P["WST"] == p:
            weights()
        if P["WOST"] == p:
            wout()

    def weights():
        e("s_cmp_lt_u32 s3, 4")
        e(f"s_cselect_b32 s{sX}, s{SK+4}, s{SK+2}", f"s_cselect_b32 s{sX+1}, s{SK+5}, s{SK+3}", f"s_movk_i32 s{sT}, 128",
          f"s_cselect_b32 s{sX+2}, s{sCNT}, s{sT}", f"s_mov_b32 s{sX+3}, 0x20000")
        e(f"s_min_u32 s{sT}, s3, 5", f"s_lshl_b32 s{sT}, s{sT}, 10", f"s_add_u32 m0, s{sT}, {WR}", f"s_and_b32 s{sT}, s{sT}, 0xc00")
        vq.op("w", f"buffer_load_dwordx4 v{X16}, {sr(sX)}, s{sT} offen lds")

    def wout():
        srd(sOUT, SK + 6, SK + 7, None, 32768)
        e(f"s_lshl_b32 s{sT2}, s3, 12", f"s_add_u32 m0, s{sT2}, {WO}")
        for i in range(4):
            vq.op("w", f"buffer_load_dwordx4 v{X16}, {sr(sOUT)}, s{sT2} offen offset:{i*1024} lds")

    aea(0)
    if not P["ABAR"]:
        e("s_barrier")
    e(f"s_mov_b32 s{SK+8}, 109951168", f"s_movk_i32 s{SK+9}, 625", f"s_movk_i32 s{SK+10}, 838")
    e(f"v_cmp_gt_u32 s[{sV+4}:{sV+5}], {CH-1024}, v0") if CH - 1024 <= 64 else e(f"s_movk_i32 s{sT}, {CH-1024}", f"v_cmp_gt_u32 s[{sV+4}:{sV+5}], s{sT}, v0")
    init_round(True)
    if P["ACCZ"] == 9:
        for i in range(48):
            e(f"v_mov_b32 v{ACC+i}, 0")
    vq.wait("dst")
    ts.stamp("dst")
    for k in range(3):
        e(f"v_mul_hi_u32 v{BK+k}, v{DSTV+k}, s{SK+8}")
    for k in range(3):
        e(f"v_lshlrev_b32 v{BA+k}, 2, v{BK+k}")
        if k == 2:
            e(f"s_mov_b64 exec, s[{sV+4}:{sV+5}]")
        e(f"ds_add_rtn_u32 v{RK+k}, v{BA+k}, v{ONE} offset:{ACNT}")
    e("s_mov_b64 exec, -1")
    e("s_waitcnt lgkmcnt(0)", "s_barrier")
    ts.stamp("hist")
    e(f"ds_read_b128 {vr(CT,4)}, v{X16} offset:{ACNT}")
    aea(1)
    for k in range(3):
        e(f"v_mad_u32_u24 v{NL+k}, v{BK+k}, s{SK+9}, 15", f"v_lshrrev_b32 v{NL+k}, 4, v{NL+k}", f"v_sub_u32 v{NL+k}, v{DSTV+k}, v{NL+k}")
        e(f"v_lshrrev_b32 v{BK+k}, 3, v{BK+k}", f"v_and_b32 v{BK+k}, 28, v{BK+k}")
    e("s_waitcnt lgkmcnt(0)")
    e(f"v_add_u32 v{T+3}, v{CT}, v{CT+1}", f"v_add3_u32 v{T+3}, v{T+3}, v{CT+2}, v{CT+3}", f"v_mov_b32 v{T+4}, v{T+3}")
    scan_dpp(e, T + 4, True)
    e(f"v_sub_u32 v{ST}, v{T+4}, v{T+3}")
    for k in range(3):
        e(f"v_add_u32 v{ST+1+k}, v{ST+k}, v{CT+k}")
    e(f"ds_write_b128 v{X16}, {vr(ST,4)} offset:{ASTART}")
    for k in range(3):
        e(f"ds_read_b32 v{PS+k}, v{BA+k} offset:{ASTART}")
    vq.wait("src")
    for k in range(3):
        e(f"v_mul_u32_u24 v{KEY+k}, s{SK+10}, v{SRCV+k}", f"v_lshrrev_b32 v{KEY+k}, 18, v{KEY+k}", f"v_sub_u32 v{KEY+k}, v{KEY+k}, v{BK+k}",
          f"v_and_b32 v{KEY+k}, 31, v{KEY+k}", f"v_lshl_or_b32 v{KEY+k}, v{NL+k}, 5, v{KEY+k}",
          f"v_lshlrev_b32 v{KEY+k}, 21, v{KEY+k}", f"v_lshl_or_b32 v{KEY+k}, v{SRCV+k}, 7, v{KEY+k}")
    e(f"v_lshlrev_b32 v{NL}, 5, v0", f"v_add_u32 v{NL+1}, {512*32}, v{NL}", f"v_add_u32 v{NL+2}, {1024*32}, v{NL}")
    e(f"s_mov_b32 s{sT2}, {ASKS}")
    vq.wait("sh", "lgkmcnt(0)")
    for k in range(3):
        e(f"v_add_u32 v{PS+k}, v{PS+k}, v{RK+k}")
        e(f"v_lshlrev_b32 v{BA+k}, 2, v{PS+k}", f"v_mad_u32_u24 v{PS+k}, v{PS+k}, 12, s{sT2}")
        if k == 2:
            e(f"s_mov_b64 exec, s[{sV+4}:{sV+5}]")
        e(f"ds_write_b32 v{BA+k}, v{NL+k} offset:{AINV}")
        e(f"ds_write2_b32 v{PS+k}, v{SHV+2*k}, v{SHV+2*k+1} offset0:0 offset1:1")
        e(f"ds_write_b32 v{PS+k}, v{KEY+k} offset:8")
    e("s_mov_b64 exec, -1")
    aea(2)
    e(f"s_mul_i32 s{sTAG}, s{sTAG}, 0x9e3779b1", f"s_add_u32 s{sTAG}, s{sTAG}, 0x7f4a7c15")
    e(f"s_mul_i32 s{sTAG2}, s{sTAG}, 0x85ebca6b", f"s_and_b32 s{sTAG2}, s{sTAG2}, 0xffc00000")
    e(f"s_lshl_b32 s{sT}, s3, 7", f"v_lshl_add_u32 v{T+3}, v{LANE}, 3, s{sT}")
    e(f"ds_read_b64 {vr(CT,2)}, v{T+3} offset:{ACNT}", f"ds_read_b64 {vr(ST,2)}, v{T+3} offset:{ASTART}")
    e(f"s_mul_i32 s{sT}, s2, {CS*12}", f"s_add_u32 s{sT}, s{sT}, {WS_SK}")
    srd(sA0, 14, 15, f"s{sT}", CS * 12)
    e(f"s_mul_i32 s{sT}, s2, {CS*32}", f"s_add_u32 s{sT}, s{sT}, {WS_EA}")
    srd(sA1, 14, 15, f"s{sT}", CH * 32)
    e(f"v_lshrrev_b32 v{T+3}, 1, v0", f"v_lshlrev_b32 v{T+3}, 2, v{T+3}")
    e(f"v_and_b32 v{T+4}, 1, v0", f"v_lshlrev_b32 v{T+4}, 4, v{T+4}", f"v_add_u32 v{T+4}, {EAST}, v{T+4}", f"v_add_u32 v{T+6}, {ASKS}, v{T+7}")
    e("s_waitcnt lgkmcnt(0)", "s_barrier")
    ts.stamp("scat")
    e(f"ds_read_b128 {vr(OUTV,4)}, v{T+6}", f"ds_read_b128 {vr(OUTV+4,4)}, v{T+6} offset:8192")
    for i in range(5):
        e(f"ds_read_b32 v{IV+i}, v{T+3} offset:{AINV + i*1024}")
    aea(3)

    def skst():
        vq.op("skst", f"buffer_store_dwordx4 {vr(OUTV,4)}, v{T+7}, {sr(sA0)}, 0 offen {P['ASTPOL']}")
        if P["STH"] == 1 and not P["SKEARLY"]:
            e("s_waitcnt vmcnt(0)")
        vq.op("skst", f"buffer_store_dwordx4 {vr(OUTV+4,4)}, v{T+7}, {sr(sA0)}, s{sNV} offen {P['ASTPOL']}")

    def frag_r(F0, t0, t1, t2):
        e(f"v_lshrrev_b32 v{t0}, 5, v{LANE}", f"v_lshlrev_b32 v{t0}, 11, v{t0}", f"v_and_b32 v{t1}, 15, v{LANE}", f"v_lshl_add_u32 v{t0}, v{t1}, 4, v{t0}")
        for i in range(8):
            e(f"ds_read_b128 {vr(F0+4*i,4)}, v{t0} offset:{WR + 256*i}")
        e(f"v_lshrrev_b32 v{t0}, 4, v{LANE}", f"v_lshlrev_b32 v{t0}, 5, v{t0}", f"v_and_b32 v{t1}, 3, v{LANE}", f"v_lshl_add_u32 v{t0}, v{t1}, 1, v{t0}")
        for v in range(4):
            e(f"ds_read_u16 v{F0+32+v}, v{t0} offset:{WR + 4096 + 8*v}")
        e(f"v_bfe_i32 v{t2}, v{LANE}, 4, 1", f"v_and_b32 v{t2}, 0x02020202, v{t2}", f"v_add_u32 v{t2}, 0x05040100, v{t2}")
        e("s_waitcnt lgkmcnt(0)")
        for h in range(2):
            for t in range(2):
                for ip in range(4):
                    e(f"v_perm_b32 v{WRF+8*h+4*t+ip}, v{F0+4*(2*ip+1)+t+2*h}, v{F0+4*(2*ip)+t+2*h}, v{t2}")
        e(f"v_lshl_or_b32 v{CGF}, v{F0+33}, 16, v{F0+32}", f"v_lshl_or_b32 v{CGF+1}, v{F0+35}, 16, v{F0+34}")

    def frag_o(F0, t0, t1, sM):
        e(f"v_and_b32 v{t1}, 15, v{LANE}", f"v_lshrrev_b32 v{t0}, 4, v{LANE}", f"v_lshlrev_b32 v{t0}, 13, v{t0}", f"v_lshl_add_u32 v{t0}, v{t1}, 2, v{t0}",
          f"s_and_b32 s{sM}, s3, 3", f"s_lshl_b32 s{sM}, s{sM}, 6", f"s_add_u32 s{sM}, s{sM}, {WO}", f"v_add_u32 v{t0}, s{sM}, v{t0}")
        for s in range(4):
            for ip in range(4):
                e(f"ds_read2st64_b32 {vr(F0+8*s+2*ip,2)}, v{t0} offset0:{8*ip+s} offset1:{8*ip+4+s}")
        e(f"s_mov_b32 s{sM}, 0x05040100", f"s_mov_b32 s{sM+1}, 0x07060302")
        for s in range(4):
            e(f"s_waitcnt lgkmcnt({12-4*s})")
            for t in range(2):
                for ip in range(4):
                    e(f"v_perm_b32 v{WOF+8*s+4*t+ip}, v{F0+8*s+2*ip+1}, v{F0+8*s+2*ip}, s{sM+t}")

    def consts():
        e(f"s_and_b32 s{sB}, s2, 7", f"s_lshl_b32 s{sB}, s{sB}, 5", f"s_lshr_b32 s{sT}, s2, 3", f"s_add_u32 s{sB}, s{sB}, s{sT}")
        e(f"s_mul_i32 s{sNB}, s{sB}, 625", f"s_add_u32 s{sNCNT}, s{sNB}, 640", f"s_add_u32 s{sNB}, s{sNB}, 15",
          f"s_lshr_b32 s{sNB}, s{sNB}, 4", f"s_lshr_b32 s{sNCNT}, s{sNCNT}, 4", f"s_sub_u32 s{sNCNT}, s{sNCNT}, s{sNB}")
        e(f"s_mov_b32 s{sM0}, 0x0f0f0f0f", f"s_mov_b32 s{sM0+1}, 0x0f0f0f0f", f"s_mov_b32 s{sM1}, 0xf0f0f0f0", f"s_mov_b32 s{sM1+1}, 0xf0f0f0f0")
        for i in range(8):
            e(f"v_mov_b32 v{EA0+i}, 0")
        e(f"v_and_b32 v{T+3}, 4, v{LANE}", f"v_lshlrev_b32 v{T+3}, 2, v{T+3}", f"v_mov_b32 v{T+4}, 0xffff", f"v_lshlrev_b32 v{T+4}, v{T+3}, v{T+4}")
        e(f"v_bfe_i32 v{T+3}, v{LANE}, 3, 1", f"v_and_b32 v{MQ}, v{T+3}, v{T+4}", f"v_xor_b32 v{MP}, v{MQ}, v{T+4}")
        e(f"v_lshrrev_b32 v{EAC}, 5, v{LANE}", f"v_lshlrev_b32 v{EAC}, 4, v{EAC}", f"v_add_u32 v{EAC}, {EAST}, v{EAC}")
        e(f"v_and_b32 v{LAC}, 15, v{LANE}", f"v_lshlrev_b32 v{LAC}, 2, v{LAC}")
        e(f"v_bfe_u32 v{T+3}, v{LANE}, 3, 2", f"v_and_b32 v{T+4}, 3, v{LANE}", f"v_lshl_add_u32 v{T+3}, v{T+3}, 2, v{T+4}", f"v_lshlrev_b32 v{LBC}, 2, v{T+3}")
        e(f"v_bfe_i32 v{cODD}, v0, 0, 1", f"s_lshl_b32 s{sT}, s3, 10", f"v_and_b32 v{cMAPW}, 4, v{cODD}", f"v_add_u32 v{cMAPW}, s{sT}, v{cMAPW}")
        e(f"v_lshl_add_u32 v{cMAP1}, v{LANE}, 2, s{sT}", f"v_lshrrev_b32 v{cMAP2}, 1, v{LANE}", f"v_lshl_add_u32 v{cMAP2}, v{cMAP2}, 2, s{sT}")
        e(f"v_mul_u32_u24 v{cL12}, 12, v{LANE}", f"v_and_b32 v{cDEG}, 12, v{cMAP1}", f"v_and_b32 v{cBIN}, 124, v{cMAP1}")
        e(f"v_lshlrev_b32 v{cSH}, 1, v{cMAP1}", f"v_add_u32 v{cSH}, {SHST}, v{cSH}", f"v_lshlrev_b32 v{cR21}, 19, v{cMAP1}")
        e(f"s_mul_i32 s{sT}, s3, 640", f"v_add_u32 v{cROW}, s{sT}, v{cBIN}", f"v_sub_u32 v{cTIE}, 63, v{LANE}")
        e(f"s_lshl_b32 s{sT}, s3, 5", f"v_lshl_add_u32 v{cNOD}, v{LANE}, 2, s{sT}")
        e(f"v_lshrrev_b32 v{cLST}, 3, v{LANE}", f"v_mul_u32_u24 v{cLST}, {GAP*4}, v{cLST}", f"v_add_u32 v{cLST}, {LIST}, v{cLST}")
        e(f"s_cmp_eq_u32 s{sNCNT}, 40")
        tabs = []
        for part in (PART39, PART40):
            t = [0] * 40
            for w, p in enumerate(part):
                for sl, r in enumerate(p):
                    t[r] = w * 8 + sl
            tabs.append([sum(t[5 * q + i] << (6 * i) for i in range(5)) for q in range(8)])
        e(f"v_mov_b32 v{RT}, 0")
        for q in range(8):
            e(f"s_mov_b32 s{sT}, {tabs[0][q]}", f"s_cselect_b32 s{sT}, {tabs[1][q]}, s{sT}")
            m = 31 << (5 * q)
            e(f"s_mov_b32 exec_lo, {m & 0xffffffff}", f"s_mov_b32 exec_hi, {m >> 32}", f"v_mov_b32 v{RT}, s{sT}")
        e("s_mov_b64 exec, -1")
        e(f"v_mul_u32_u24 v{T+3}, 52, v{LANE}", f"v_lshrrev_b32 v{T+3}, 8, v{T+3}", f"v_mad_i32_i24 v{T+3}, v{T+3}, -5, v{LANE}",
          f"v_mul_u32_u24 v{T+3}, 6, v{T+3}", f"v_lshrrev_b32 v{RT}, v{T+3}, v{RT}")
        e(f"v_and_b32 v{T+3}, 7, v{RT}", f"v_bfe_u32 v{RT}, v{RT}, 3, 3", f"v_lshlrev_b32 v{T+3}, 12, v{T+3}", f"v_lshl_or_b32 v{RT}, v{RT}, 7, v{T+3}")
        srd(sTAB, 14, 15, None, WS_W + 64)
        srd(sSK, 14, 15, WS_SK, NCH * CS * 12)

    def extra(pos):
        if P["CPOS"] == pos:
            consts()
        if P["ACCZ"] == pos:
            for i in range(48):
                e(f"v_mov_b32 v{ACC+i}, 0")

    e("s_waitcnt lgkmcnt(0)")
    if P["SKEARLY"]:
        skst()
    for i in range(5):
        e(f"v_add_u32 v{IV+i}, v{T+4}, v{IV+i}")
    for k in range(2):
        e(f"v_lshl_or_b32 v{TABV+2*k}, v{CT+k}, 11, v{ST+k}", f"v_or_b32 v{TABV+2*k}, s{sTAG2}, v{TABV+2*k}", f"v_mov_b32 v{TABV+2*k+1}, s{sTAG}")
    extra(0)
    vq.wait("w" if P["FRG"] else "ea")
    e("s_barrier")
    ts.stamp("land")
    for i in range(5):
        e(f"ds_read_b128 {vr(OUTV+8+4*i,4)}, v{IV+i}")
    extra(1)
    if P["FRG"] & 1:
        frag_r(RW, T, T + 1, T + 2)
    if P["FRG"] & 2:
        frag_o(RW, T, T + 1, SK + 8)
    ts.stamp("guard")
    if not P["SKEARLY"]:
        skst()
    for i in range(5):
        thr = f"vmcnt({P['STH']-1}) " if P["STH"] and i < P["STHN"] else ""
        e(f"s_mov_b32 s{sT}, {8192*i}", f"s_waitcnt {thr}lgkmcnt({4-i})")
        vq.op("st", f"buffer_store_dwordx4 {vr(OUTV+8+4*i,4)}, v{T+7}, {sr(sA1)}, s{sT} offen {P['ASTPOL']}")
    aea(4)
    ts.stamp("issued")

    extra(2)
    e(f"s_lshl_b32 s{sT}, s2, 3", f"s_add_u32 s{sT}, s{sT}, s3", f"s_lshl_b32 s{sT}, s{sT}, 8")
    srd(sX, SK, SK + 1, None, N * 1024)
    srd(sEA, 14, 15, WS_EA, NCH * CS * 32)
    if P["XPF"]:
        n = P["XPF"]
        e(f"s_and_b32 s{sBASE}, s2, 7", f"s_mul_i32 s{sBASE}, s{sBASE}, {1252*1024}", f"s_and_b32 s{sT2}, s2, 0xf8",
          f"s_add_u32 s{sT2}, s{sT2}, s3", f"s_mul_i32 s{sT2}, s{sT2}, {n*128}", f"s_add_u32 s{sBASE}, s{sBASE}, s{sT2}")
        e(f"v_min_u32 v{T+6}, {n-1}, v{LANE}", f"v_lshlrev_b32 v{T+6}, 7, v{T+6}")
    e("s_waitcnt vmcnt(0)", "s_barrier")
    ts.stamp("drained")
    e("s_mov_b64 exec, 0xffff")
    e(f"buffer_store_dwordx4 {vr(TABV,4)}, v{X16}, {sr(sTAB)}, s{sT} offen sc1")
    e("s_mov_b64 exec, -1")
    if P["XPF"]:
        e(f"buffer_load_dword v{PFV}, v{T+6}, {sr(sX)}, s{sBASE} offen")
    if P["WOST"] == 9:
        wout()
    e(f"s_lshl_b32 s{sT}, s{sNB}, 10", f"s_add_u32 s{sOUT}, s12, s{sT}", f"s_addc_u32 s{sOUT+1}, s13, 0",
      f"s_lshl_b32 s{sOUT+2}, s{sNCNT}, 10", f"s_mov_b32 s{sOUT+3}, 0x20000")
    if not P["FRG"] & 1:
        frag_r(RW, T, T + 1, T + 2)
    if P["WOST"] != 9 and not P["FRG"] & 2:
        frag_o(128, T, T + 1, SK + 8)
    extra(3)
    e(f"v_lshrrev_b32 v{T+1}, 1, v0", f"v_lshlrev_b32 v{T+2}, 11, v{T+1}", f"s_lshl_b32 s{sNR}, s{sB}, 3")
    e(f"v_mul_u32_u24 v{RG0}, {CS}, v{T+1}", f"s_mov_b32 s{sROFF}, 0", f"s_mov_b32 s{sCNT}, {SPIN}", f"s_mov_b32 s{sT2}, 0xffc00000")
    e(f"s_lshl_b32 s{sEM}, s3, 13", f"s_add_u32 s{sEM}, s{sEM}, {EAST}", f"s_movk_i32 s{sK4}, 4096")
    if P["PWAIT"]:
        e("s_waitcnt vmcnt(0)")
    if P["PWAIT"] == 2:
        e("s_barrier")
    ts.stamp("frag")
    PL = 206
    poll1 = f"buffer_load_dwordx2 {vr(PL,2)}, v{T+2}, {sr(sTAB)}, s{sNR} offen sc1"

    def tagcheck():
        e(f"v_xor_b32 v{T+3}, s{sTAG2}, v{PL}", f"v_xor_b32 v{T+4}, s{sTAG}, v{PL+1}", f"v_and_or_b32 v{T+3}, v{T+3}, s{sT2}, v{T+4}")
        e(f"v_cmpx_ne_u32 vcc, 0, v{T+3}")

    e(poll1, "s_waitcnt vmcnt(0)")
    tagcheck()
    e("s_cbranch_execnz L_poll")
    e.label("L_polled")
    e("s_mov_b64 exec, -1")
    ts.stamp("tab")
    G1, G2, SKR, RNK, CA = RW, RW + 4, RW + 12, TP, TP + 4
    MU = P["MU"]
    sVm = [sV, sV + 2, sV + 4, sA2]

    def bea1(i):
        e(f"s_add_u32 m0, s{sEM}, {4096*(i//4)}")
        vq.op("ea", f"buffer_load_dwordx4 v{G2+i}, {sr(sEA)}, {'0' if i < 4 else 's%d' % sK4} offen offset:{1024*(i%4)} {ldpol} lds")

    def bea(p):
        for i in range(6):
            if bstage[i] == p:
                bea1(i)

    def skld(i):
        e(f"v_mad_u32_u24 v{G1+i}, v{G1+i}, 12, v{cL12}")
        vq.op(f"sk{i}", f"buffer_load_dwordx3 {vr(SKR+4*i,3)}, v{G1+i}, {sr(sSK)}, 0 offen offset:{768*i} {ldpol}")

    cmps = [f"v_cmp_lt_i32 s[{SK+2*i}:{SK+2*i+1}], {2*i}, v{T+2}" for i in range(MU + 1)]
    e(f"v_bfe_u32 v{RLEN}, v{PL}, 11, 11", f"v_and_b32 v{RBASE}, v{RLEN}, v{cODD}", f"v_add_u32 v{T+2}, v{RLEN}, v{cODD}")
    fill = [f"v_and_b32 v{T+3}, 0x7ff, v{PL}"] + cmps + [f"v_add_u32 v{RG0}, v{RG0}, v{T+3}"]
    e(fill.pop(0))
    for mod in ("row_shr:1 row_mask:0xf", "row_shr:2 row_mask:0xf", "row_shr:4 row_mask:0xf", "row_shr:8 row_mask:0xf", "row_bcast:15 row_mask:0xa", "row_bcast:31 row_mask:0xc"):
        e(f"v_add_u32_dpp v{RBASE}, v{RBASE}, v{RBASE} {mod} bank_mask:0xf")
        e(*fill[:2]); fill = fill[2:]
    e(f"v_readlane_b32 s{sNW}, v{RBASE}, 63")
    e(f"v_mov_b32_dpp v{RBASE}, v{RBASE} quad_perm:[0,0,2,2] row_mask:0xf bank_mask:0xf")
    e(f"v_sub_u32 v{RG0}, v{RG0}, v{RBASE}")
    e(f"v_lshl_add_u32 v{T}, v{RBASE}, 2, v{cMAPW}")
    e(f"s_cmp_gt_u32 s{sNW}, {CAPW}", "s_cbranch_scc1 L_clip")
    e.label("L_mapw")
    for i in range(MU):
        e(f"s_mov_b64 exec, s[{SK+2*i}:{SK+2*i+1}]")
        e(f"ds_write_b32 v{T}, v{RG0} offset:{8*i}")
    e("s_mov_b64 exec, -1")
    e(f"s_cmp_lg_u64 s[{SK+2*MU}:{SK+2*MU+1}], 0", "s_cbranch_scc1 L_map2")
    for i in range(3):
        e(f"ds_read_b32 v{G1+i}, v{cMAP1} offset:{256*i}")
    for i in range(6):
        e(f"ds_read_b32 v{G2+i}, v{cMAP2} offset:{128*i}")
    e(f"s_cmp_gt_i32 s{sNW}, 192", "s_cbranch_scc1 L_r1")
    e.label("L_r1b")
    e("s_waitcnt lgkmcnt(6)")
    ts.stamp("map")
    for i in range(3):
        skld(i)
    e(f"v_mov_b32 v{T+3}, s{sNW}", "s_mov_b64 exec, 1", f"ds_max_i32 v{T+5}, v{T+3} offset:{TOT}", "s_mov_b64 exec, -1")
    e("s_waitcnt lgkmcnt(1)")
    for i in range(6):
        e(f"v_lshl_add_u32 v{G2+i}, v{G2+i}, 5, v{X16}")
    if P["SKBAR"]:
        e("s_barrier")
    ts.stamp("skiss")
    bea(0)
    for i in range(4):
        e(f"v_add_u32 v{T+3}, {64*i}, v{LANE}", f"v_cmp_gt_i32 s[{sVm[i]}:{sVm[i]+1}], s{sNW}, v{T+3}")
    e(f"s_mov_b32 s{sT2}, 0x1fff80", f"s_mul_i32 s{sOFF}, s3, 5")

    def count(i):
        key = SKR + 4 * i + 2
        e(f"v_lshrrev_b32 v{CA+i}, 21, v{key}", f"v_lshlrev_b32 v{CA+i}, 2, v{CA+i}")
        e(f"v_lshrrev_b32 v{T+3}, 26, v{key}", f"v_lshl_or_b32 v{T+3}, v{T+3}, 4, v{cDEG}")
        e(f"s_mov_b64 exec, s[{sVm[i]}:{sVm[i]+1}]")
        e(f"ds_add_rtn_u32 v{RNK+i}, v{CA+i}, v{ONE} offset:{CNT2}")
        e(f"ds_add_u32 v{T+3}, v{ONE} offset:{DEG}")
        e("s_mov_b64 exec, -1")

    def entry(i):
        key = SKR + 4 * i + 2
        e(f"ds_write_b64 v{cSH}, {vr(SKR+4*i,2)} offset:{512*i}")
        e(f"v_and_or_b32 v{key}, v{key}, s{sT2}, v{cR21}")
        if i:
            e(f"v_add_u32 v{key}, {64*i << 21}, v{key}")

    for i in range(3):
        vq.wait(f"sk{i}")
        if i == 0:
            ts.stamp("sk")
        count(i)
    e(f"s_cmp_gt_i32 s{sNW}, 192", "s_cbranch_scc1 L_r2")
    e.label("L_r2b")
    for i in range(3):
        entry(i)
    ts.stamp("atom")
    bea(1)
    e("s_waitcnt lgkmcnt(3)", "s_barrier")
    ts.stamp("b1")
    CN, CAD = XR, XR + 8
    e(f"s_cmp_lg_u32 s{sROFF}, 0", "s_cbranch_scc1 L_rank2")
    e(f"ds_read_b128 {vr(CAD,4)}, v{X16} offset:{DEG}")
    for j in range(5):
        e(f"ds_read_b32 v{CN+j}, v{cROW} offset:{CNT2 + 128*j}")
    e(f"ds_read_b32 v{T+6}, v{T+5} offset:{TOT}")
    bea(5)
    for j in range(1, 5):
        e(f"s_add_u32 s{SK+j}, s{sOFF}, {j}")
    e("s_waitcnt lgkmcnt(6)")
    e(f"v_add_u32 v{T+1}, v{CAD}, v{CAD+1}", f"v_add3_u32 v{T+1}, v{T+1}, v{CAD+2}, v{CAD+3}")
    e(f"v_lshl_or_b32 v{T+1}, v{T+1}, 6, v{cTIE}")
    for j in range(5):
        e(f"v_readlane_b32 s{SK+j}, v{T+1}, s{SK+j if j else sOFF}")
    for j in range(5):
        e(f"v_cmp_lt_u32 s[{SK+6+2*j}:{SK+7+2*j}], s{SK+j}, v{T+1}")
    for j in range(5):
        e(f"s_bcnt1_i32_b64 s{SK+j}, s[{SK+6+2*j}:{SK+7+2*j}]")
    e("s_waitcnt lgkmcnt(0)")
    for j in range(5):
        e(f"v_readlane_b32 s{sASG[j]}, v{RT}, s{SK+j}")
    e(f"v_readfirstlane_b32 s{sN}, v{T+6}")
    e.label("L_ranked")
    e("s_mov_b32 exec_hi, 0")
    for j in range(5):
        e(f"s_and_b32 s{sT}, s{sASG[j]}, 0x380")
        e(f"v_add_u32 v{CAD+j}, s{sT}, v{cBIN}")
        e(f"ds_add_rtn_u32 v{CN+j}, v{CAD+j}, v{CN+j} offset:{WB}")
    for j in range(5):
        e(f"v_or_b32 v{CAD+j}, s{sASG[j]}, v{CAD+j}")
    for j in range(5):
        e(f"v_writelane_b32 v{T+3}, s{sASG[j]}, {j}")
    for j in range(5):
        e("s_waitcnt lgkmcnt(4)")
        e(f"v_lshl_or_b32 v{CN+j}, v{CN+j}, 16, v{CAD+j}")
        e(f"ds_write_b32 v{cROW}, v{CN+j} offset:{CNT2 + 128*j}")
    e(f"v_add_lshl_u32 v{T+4}, v{LANE}, s{sOFF}, 7")
    e(f"v_lshrrev_b32 v{T+1}, 10, v{T+3}", f"v_bfe_u32 v{T+3}, v{T+3}, 2, 8", f"v_or_b32 v{T+3}, v{T+3}, v{T+1}")
    e("s_mov_b32 exec_lo, 31")
    e(f"ds_write_b32 v{T+3}, v{T+4} offset:{NODEOF}")
    e("s_mov_b64 exec, -1")
    ts.stamp("rank")
    bea(2)
    e(f"s_lshl_b32 s{sT}, s3, 3", f"s_add_u32 s{sT2}, s{sT}, 7")
    e("s_waitcnt lgkmcnt(0)", "s_barrier")
    ts.stamp("b2")
    e(f"ds_read_b128 {vr(CN,4)}, v{X16} offset:{WB}")
    for i in range(3):
        e(f"ds_read_b32 v{CA+i}, v{CA+i} offset:{CNT2}")
    e(f"ds_read_b32 v{T+3}, v{cNOD} offset:{NODEOF}")
    bea(6)
    e("s_waitcnt lgkmcnt(4)")
    e(f"v_add_u32 v{T+1}, v{CN}, v{CN+1}", f"v_add3_u32 v{T+1}, v{T+1}, v{CN+2}, v{CN+3}", f"v_mov_b32 v{T+2}, v{T+1}")
    e("s_waitcnt lgkmcnt(1)")

    def place(i):
        key = SKR + 4 * i + 2
        return [f"v_bfe_u32 v{T+7}, v{CA+i}, 12, 3", f"v_or_b32 v{key}, v{T+7}, v{key}", f"v_and_b32 v{G1+i}, 0x3ff, v{CA+i}",
                f"v_lshrrev_b32 v{CA+i}, 16, v{CA+i}", f"v_add_u32 v{CA+i}, v{CA+i}, v{RNK+i}"]

    fill = place(0) + place(1) + place(2)
    e(fill.pop(0))
    for mod in ("row_shr:1 row_mask:0xf", "row_shr:2 row_mask:0xf", "row_shr:4 row_mask:0xf", "row_shr:8 row_mask:0xf", "row_bcast:15 row_mask:0xa", "row_bcast:31 row_mask:0xc"):
        e(f"v_add_u32_dpp v{T+2}, v{T+2}, v{T+2} {mod} bank_mask:0xf")
        e(*fill[:2]); fill = fill[2:]
    e(f"v_sub_u32 v{T+1}, v{T+2}, v{T+1}")
    e(f"v_lshl_add_u32 v{CAD}, v{T+1}, 2, v{cLST}")
    for k in range(3):
        e(f"v_lshl_add_u32 v{CAD+1+k}, v{CN+k}, 2, v{CAD+k}")
    e(f"ds_write_b128 v{X16}, {vr(CAD,4)} offset:{START}")
    for i in range(3):
        e(f"ds_read_b32 v{G1+i}, v{G1+i} offset:{START}")
    e(*fill)
    e(f"v_readlane_b32 s{sNV}, v{T+2}, s{sT2}", f"v_readlane_b32 s{sCNT}, v{T+1}, s{sT}", f"v_readlane_b32 s{sBASE}, v{CAD}, s{sT}")
    e(f"v_mov_b32 v{T+4}, {(0x3fff << 7) | 5}")
    e(f"s_sub_u32 s{sNV}, s{sNV}, s{sCNT}", f"s_lshl_b32 s{sT}, s{sNV}, 2")
    e(f"v_add_u32 v{LA}, s{sBASE}, v{LAC}", f"v_add_u32 v{LB}, s{sBASE}, v{LBC}", f"v_add_u32 v{T+1}, s{sT}, v{LA}")

    def scatter(i):
        e(f"v_lshl_add_u32 v{CA+i}, v{CA+i}, 2, v{G1+i}")
        e(f"s_mov_b64 exec, s[{sVm[i]}:{sVm[i]+1}]")
        e(f"ds_write_b32 v{CA+i}, v{SKR+4*i+2}")
        e("s_mov_b64 exec, -1")

    for i in range(3):
        e("s_waitcnt lgkmcnt(2)")
        scatter(i)
    e(f"ds_write_b32 v{T+1}, v{T+4}")
    e(f"s_cmp_gt_i32 s{sNW}, 192", "s_cbranch_scc1 L_r3")
    e.label("L_r3b")
    bea(3)
    for j in range(5):
        e(f"v_readlane_b32 s{sNODE+j}, v{T+3}, {j}")
    ts.stamp("list")
    if P["WOST"] == 9:
        frag_o(XR, PQ, PQ + 1, SK + 8)
    e(f"s_mov_b32 s{sT2}, 0x00fffc38", f"s_mov_b32 s{sCNT}, s{sNV}", f"s_mov_b32 s{sNR}, 0xffffff00", f"s_mov_b32 s{sBASE}, {SHST}")
    e("s_waitcnt vmcnt(0) lgkmcnt(0)", "s_barrier")
    ts.stamp("b4")
    e(f"ds_read_b32 v{K}, v{LA}", f"ds_read_b32 v{ENT+2}, v{LB}", f"ds_read_b32 v{KN}, v{LA} offset:{4*D}")
    e(f"s_cmp_eq_u32 s{sNV}, 0", "s_cbranch_scc1 L_swept")

    def ea_reads():
        e(f"v_lshrrev_b32 v{T}, 21, v{ENT+2}", f"v_lshl_add_u32 v{T+3}, v{T}, 3, s{sBASE}", f"v_lshl_add_u32 v{T}, v{T}, 5, v{EAC}")
        e(f"ds_read_b64 {vr(ENT,2)}, v{T+3}")
        e(f"s_mov_b64 exec, s[{sM0}:{sM0+1}]", f"ds_read_b128 {vr(EA0,4)}, v{T}")
        e(f"s_mov_b64 exec, s[{sM1}:{sM1+1}]", f"ds_read_b128 {vr(EA1,4)}, v{T}")
        e("s_mov_b64 exec, -1")

    e("s_waitcnt lgkmcnt(1)")
    e(f"v_lshlrev_b32 v{K}, 3, v{K}", f"v_and_b32 v{K}, s{sT2}, v{K}")
    for j in range(2):
        e(f"v_readlane_b32 s{SK+j}, v{K}, {j}")
    for j in range(D):
        if j + 2 < D:
            e(f"v_readlane_b32 s{SK+j+2}, v{K}, {j+2}")
        e(f"s_and_b32 s{sOFF}, s{SK+j}, s{sNR}")
        e(f"buffer_load_dwordx4 {vr(XR+4*j,4)}, v{X16}, {sr(sX)}, s{sOFF} offen")
        if j == 1:
            ea_reads()
    ts.stamp("b5")
    if P["PRIO"] == 1:
        e("s_cmp_lt_u32 s3, 4", "s_cbranch_scc1 L_np", "s_setprio 1")
        e.label("L_np")
    if P["PRIO"] == 2:
        e("s_setprio 3")
    e(".p2align 3")
    e.label("L_loop")
    if P["PRIO"] == 2:
        e(f"s_cmp_le_u32 s{sCNT}, {3*P['PSTEP']}", "s_cbranch_scc1 L_prio")
        e.label("L_prio_back")
    e("s_waitcnt lgkmcnt(0)")
    if P["ALIGN"]:
        e(".p2align 3")
    for q in range(4):
        e(f"v_mfma_f32_4x4x4_16b_bf16 {vr(AGN+4*q,4)}, {vr(ENT,2)}, {vr(CGF,2)}, 0 cbsz:4 abid:{2*q}")
    fill = [f"v_lshlrev_b32 v{K}, 3, v{KN}", f"v_and_b32 v{K}, s{sT2}, v{K}", f"v_add_u32 v{LA}, 64, v{LA}", f"v_add_u32 v{LB}, 64, v{LB}",
            f"ds_read_b32 v{KN}, v{LA} offset:{4*D}", f"ds_read_b32 v{ENT+2}, v{LB}"]

    def pq(j):
        p = PQ + 2 * (j % 2)
        return [f"v_cvt_pk_bf16_f32 v{T+1+j%2}, v{AGN+j}, v{AGN+j}", f"v_and_b32 v{p}, v{MP}, v{T+1+j%2}", f"v_and_b32 v{p+1}, v{MQ}, v{T+1+j%2}"]

    fill += pq(0)
    for h in range(2):
        e(f"v_mfma_f32_32x32x16_bf16 {vr(RW+16*h,16)}, {vr(EA0,4)}, {vr(WRF+8*h,4)}, 0")
        e(*fill[:3]); fill = fill[3:]
    for h in range(2):
        e(f"v_mfma_f32_32x32x16_bf16 {vr(RW+16*h,16)}, {vr(EA1,4)}, {vr(WRF+8*h+4,4)}, {vr(RW+16*h,16)}")
        e(*fill[:3]); fill = fill[3:]

    NTP = 2

    def pks(j):
        t = TP + 8 * (j % NTP)
        for h in range(2):
            r = RW + 16 * h + j
            rp = r & ~1
            sel = "op_sel:[0,1,0] op_sel_hi:[1,1,1]" if r & 1 else "op_sel_hi:[1,0,1]"
            for q in range(2):
                a = ACC + 4 * h + 2 * q
                e(f"v_pk_fma_f32 {vr(a,2)}, {vr(t+4*h+2*q,2)}, {vr(rp,2)}, {vr(a,2)} {sel}")

    AL = P["ALIGN"]
    SCH = P["SCH"]

    def al():
        if AL:
            e(".p2align 3")

    def mf(j, h):
        t, p, s = TP + 8 * (j % NTP), PQ + 2 * (j % 2), XR + 4 * (j % R)
        e(f"v_mfma_f32_16x16x16_bf16 {vr(t+4*h,4)}, {vr(p,2)}, {vr(s+2*h,2)}, 0")

    def rl(j):
        e(f"v_readlane_b32 s{SK + (j + D) % 16}, v{K}, {j}")

    def sand(j):
        e(f"s_and_b32 s{sOFF}, s{SK + (j + D) % 16}, s{sNR}")

    def xl(j):
        e(f"buffer_load_dwordx4 {vr(XR + 4 * ((j + D) % R),4)}, v{X16}, {sr(sX)}, s{sOFF} offen")

    def on(j):
        e(f"s_set_gpr_idx_on s{SK + j % 16}, gpr_idx(SRC2,DST)")

    def nxt():
        e("s_waitcnt lgkmcnt(0)")
        ea_reads()
        al()

    if SCH == 0:
        for j in range(16):
            nx = pq(j + 1) if j < 15 else []
            e(f"s_waitcnt vmcnt({D-1})"); al()
            mf(j, 0); rl(j); e(*nx[:1]); mf(j, 1); e(*nx[1:])
            if j == 2:
                nxt()
            sand(j)
            on(j - 1) if j > 0 else al()
            xl(j)
            if j > 0:
                pks(j - 1)
                if j < 15:
                    e("s_set_gpr_idx_off")
            if j in (4, 8, 12):
                e(f"s_cmp_le_u32 s{sCNT}, {j}", "s_cbranch_scc1 L_swept")
        e(f"s_set_gpr_idx_idx s{SK + 15}", f"s_sub_i32 s{sCNT}, s{sCNT}, 16")
        pks(15)
        e("s_set_gpr_idx_off")
    if SCH == 1:
        for j in range(16):
            nx = pq(j + 1) if j < 15 else []
            e(f"s_waitcnt vmcnt({D-1})"); al()
            mf(j, 0); rl(j); e(*nx[:1]); mf(j, 1); e(*nx[1:])
            if j == 2:
                nxt()
            sand(j)
            if j > 0:
                on(j - 1); pks(j - 1)
            else:
                al()
            xl(j)
            if 0 < j < 15:
                e("s_set_gpr_idx_off")
            if j in (4, 8, 12):
                e(f"s_cmp_le_u32 s{sCNT}, {j}", "s_cbranch_scc1 L_swept")
        e(f"s_set_gpr_idx_idx s{SK + 15}", f"s_sub_i32 s{sCNT}, s{sCNT}, 16")
        pks(15)
        e("s_set_gpr_idx_off")
    if SCH == 2:
        for j in range(0, 16, 2):
            nx = pq(j + 1)
            e(f"s_waitcnt vmcnt({D-1})"); al()
            mf(j, 0); rl(j); e(*nx[:1]); mf(j, 1); e(*nx[1:])
            sand(j); e(f"s_waitcnt vmcnt({D-2})"); xl(j)
            nx = pq(j + 2) if j < 14 else []
            mf(j + 1, 0); rl(j + 1); e(*nx[:1]); mf(j + 1, 1); e(*nx[1:])
            if j == 2:
                nxt()
            sand(j + 1); on(j); xl(j + 1)
            pks(j)
            e(f"s_set_gpr_idx_idx s{SK + j + 1}")
            if j == 14:
                e(f"s_sub_i32 s{sCNT}, s{sCNT}, 16")
            al()
            pks(j + 1)
            e("s_set_gpr_idx_off")
            if j in (2, 6, 10):
                e(f"s_cmp_le_u32 s{sCNT}, {j+2}", "s_cbranch_scc1 L_swept")
    if SCH == 3:
        for j in range(16):
            nx = pq(j + 1) if j < 15 else []
            if j == 0:
                rl(0)
            sand(j); al(); xl(j)
            e(f"s_waitcnt vmcnt({D})"); al()
            mf(j, 0)
            if j < 15:
                rl(j + 1)
            e(*nx[:1]); mf(j, 1); e(*nx[1:])
            if j == 2:
                nxt()
            if j > 0:
                on(j - 1); al(); pks(j - 1)
                if j < 15:
                    e("s_set_gpr_idx_off")
            if j in (4, 8, 12):
                e(f"s_cmp_le_u32 s{sCNT}, {j}", "s_cbranch_scc1 L_swept")
        e(f"s_set_gpr_idx_idx s{SK + 15}", f"s_sub_i32 s{sCNT}, s{sCNT}, 16")
        pks(15)
        e("s_set_gpr_idx_off")
    e(f"s_cmp_gt_i32 s{sCNT}, 0", "s_cbranch_scc1 L_loop")
    e.label("L_swept", pad=8)
    for q in range(P["XDUM"]):
        e(f"s_mov_b32 s{sOFF}, 0xfffc00", f"buffer_load_dwordx4 {vr(XR,4)}, v{X16}, {sr(sX)}, s{sOFF} offen")
    ts.stamp("swept")
    e(f"s_add_u32 s{sROFF}, s{sROFF}, {CAPW}", f"s_cmp_lt_u32 s{sROFF}, s{sN}", "s_cbranch_scc1 L_again")
    e(f"v_lshlrev_b32 v{T}, 2, v{LANE}")
    for s in range(5):
        e(f"s_mul_i32 s{sT}, s{sNODE+s}, 9")
        for w in range(4):
            e(f"v_cvt_pk_bf16_f32 v{RW+4*s+w}, v{ACC+8*s+w}, v{ACC+8*s+4+w}")
        e(f"v_add_u32 v{RW+20+s}, s{sT}, v{T}")
        for w in (0, 2):
            e(f"ds_write2_b32 v{RW+20+s}, v{RW+4*s+w}, v{RW+4*s+w+1} offset0:{72*w} offset1:{72*w+72}")
    e(f"v_and_b32 v{T}, 15, v{LANE}", f"v_lshrrev_b32 v{T+1}, 4, v{LANE}", f"s_lshr_b32 s{sT}, s3, 2", f"s_mul_i32 s{sT2}, s{sT}, {5*4608}")
    e(f"v_mul_u32_u24 v{T+2}, 288, v{T}", f"v_lshl_add_u32 v{T+2}, v{T+1}, 4, v{T+2}", f"v_add_u32 v{T+2}, s{sT2}, v{T+2}")
    e(f"v_lshlrev_b32 v{T+1}, 10, v{T+1}", f"v_lshl_add_u32 v{T+1}, v{T}, 2, v{T+1}",
      f"s_mul_i32 s{sT}, s{sT}, 20480", f"s_and_b32 s{sT2}, s3, 3", f"s_lshl_b32 s{sT2}, s{sT2}, 6", f"s_add_u32 s{sT}, s{sT}, s{sT2}")
    e("s_waitcnt lgkmcnt(0)" if P["NOVM"] else "s_waitcnt vmcnt(0) lgkmcnt(0)", "s_barrier")
    ts.stamp("agb")
    AF, DD, PK = ACC, 128, 168

    def afrag(tl):
        for s in range(4):
            e(f"ds_read_b128 {vr(AF+16*tl+4*s,4)}, v{T+2} offset:{AGL + 4608*tl + 64*s}")

    afrag(0); afrag(1)

    def stores(tl):
        o = []
        for i in range(4):
            o.append(f"v_cvt_pk_bf16_f32 v{PK+4*tl+i}, v{DD+8*tl+i}, v{DD+8*tl+4+i}")
            if P["EPI"] != 8 or tl == 4:
                o.append(f"buffer_store_dword v{PK+4*tl+i}, v{T+1}, {sr(sOUT)}, s{sT} offen offset:{256*i} {P['OUTPOL']}")
        o.append(f"s_add_u32 s{sT}, s{sT}, 4096")
        return o

    for tl in range(5):
        if tl + 2 < 5:
            afrag(tl + 2)
        pend = stores(tl - 1) if tl > 0 else []
        for s in range(4):
            if P["EPI"] == 0 or tl == 0:
                e(f"s_waitcnt lgkmcnt({4 * min(2, 4 - tl) + 3 - s})")
            elif s == 0:
                e(f"s_waitcnt lgkmcnt({4 * min(2, 4 - tl)})")
            for t in range(2):
                c = "0" if s == 0 else vr(DD + 8 * tl + 4 * t, 4)
                if P["EPI"] != 9 or s == 0:
                    e(f"v_mfma_f32_16x16x32_bf16 {vr(DD+8*tl+4*t,4)}, {vr(AF+16*tl+4*s,4)}, {vr(WOF+8*s+4*t,4)}, {c}")
                if P["EPI"] == 1 and 2 * s + t >= 3:
                    e(*pend[:2]); pend = pend[2:]
        e(*pend)
    e(*stores(4))
    ts.stamp("stored")
    e("s_or_b32 s4, s2, s3", "s_cbranch_scc1 L_notag")
    e(f"v_mov_b32 v{T}, s{sTAG}", f"v_lshlrev_b32 v{T+2}, 2, v{LANE}", f"s_mov_b32 s{sT}, {WS_W}")
    e(f"buffer_store_dword v{T}, v{T+2}, {sr(sTAB)}, s{sT} offen sc1")
    e.label("L_notag")
    if P["DIAGW"]:
        e.label("L_diag")
        e("s_memrealtime s[4:5]", "s_waitcnt lgkmcnt(0)", f"s_sub_u32 s4, s4, s{sTSP}", f"s_cmp_lt_u32 s4, {P['DIAGW']}", "s_cbranch_scc1 L_diag")
    if P["DIAGC"]:
        e("s_memtime s[6:7]", "s_waitcnt lgkmcnt(0)")
        e.label("L_diag")
        e("s_memtime s[4:5]", "s_waitcnt lgkmcnt(0)", "s_sub_u32 s4, s4, s6", f"s_cmp_lt_u32 s4, {P['DIAGC']}", "s_cbranch_scc1 L_diag")
    if P["TS"]:
        e("s_waitcnt vmcnt(0)")
        ts.stamp("end")
        e(f"s_lshl_b32 s{sT}, s2, 3", f"s_add_u32 s{sT}, s{sT}, s3", f"s_lshl_b32 s{sT}, s{sT}, 8", f"s_add_u32 s{sT}, s{sT}, {WS_TS}")
        e(f"v_lshl_add_u32 v{T}, v{LANE}, 2, s{sT}", f"global_store_dword v{T}, v{TSV}, s[14:15]")
        if P["DBG"]:
            e(f"s_cmp_lg_u32 s2, {P['DBG']}", "s_cbranch_scc1 L_done", "s_cmp_lg_u32 s3, 0", "s_cbranch_scc1 L_done")
            e("s_load_dwordx2 s[4:5], s[0:1], 72", f"v_readlane_b32 s{sT}, v{TSV}, 0", f"v_lshlrev_b32 v{T}, 2, v{LANE}")
            e(f"v_subrev_u32 v{TSV}, s{sT}, v{TSV}", "s_waitcnt lgkmcnt(0)", f"global_store_dword v{T}, v{TSV}, s[4:5]")
    e.label("L_done")
    e("s_endpgm")
    e.label("L_again")
    e("s_waitcnt vmcnt(0) lgkmcnt(0)", "s_barrier")
    init_round(False)
    e(f"v_add_u32 v{RLEN}, v{RLEN}, v{RBASE}", f"v_subrev_u32 v{RLEN}, {CAPW}, v{RLEN}", f"v_max_i32 v{RLEN}, 0, v{RLEN}")
    e(f"v_subrev_u32 v{RBASE}, {CAPW}, v{RBASE}", f"v_max_i32 v{RBASE}, 0, v{RBASE}", f"v_sub_u32 v{RLEN}, v{RLEN}, v{RBASE}")
    e(f"v_add_u32 v{RG0}, {CAPW}, v{RG0}", f"s_sub_i32 s{sNW}, s{sNW}, {CAPW}", f"v_lshl_add_u32 v{T}, v{RBASE}, 2, v{cMAPW}")
    e("s_waitcnt lgkmcnt(0)", "s_barrier")
    e.label("L_clip")
    e(f"v_add_u32 v{T+2}, v{RBASE}, v{RLEN}", f"v_min_i32 v{T+2}, {CAPW}, v{T+2}", f"v_sub_u32 v{T+2}, v{T+2}, v{RBASE}", f"v_add_u32 v{T+2}, v{T+2}, v{cODD}")
    e.label("L_masks")
    e(*cmps)
    e("s_nop 0", "s_branch L_mapw")
    e.label("L_map2")
    e(f"v_add_u32 v{T}, {8*MU}, v{T}", f"v_subrev_u32 v{T+2}, {2*MU}, v{T+2}")
    e("s_branch L_masks")
    e.label("L_r1")
    e(f"ds_read_b32 v{G1+3}, v{cMAP1} offset:768", f"ds_read_b32 v{G2+6}, v{cMAP2} offset:768", f"ds_read_b32 v{G2+7}, v{cMAP2} offset:896")
    e("s_waitcnt lgkmcnt(0)")
    skld(3)
    for i in (6, 7):
        e(f"v_lshl_add_u32 v{G2+i}, v{G2+i}, 5, v{X16}")
        bea1(i)
    e("s_branch L_r1b")
    e.label("L_r2")
    count(3)
    entry(3)
    e("s_branch L_r2b")
    e.label("L_r3")
    e(f"ds_read_b32 v{CA+3}, v{CA+3} offset:{CNT2}", "s_waitcnt lgkmcnt(0)")
    e(*place(3))
    e(f"ds_read_b32 v{G1+3}, v{G1+3} offset:{START}", "s_waitcnt lgkmcnt(0)")
    scatter(3)
    e("s_branch L_r3b")
    if P["PRIO"] == 2:
        e.label("L_prio")
        e("s_setprio 2", f"s_cmp_gt_u32 s{sCNT}, {2*P['PSTEP']}", "s_cbranch_scc1 L_prio_back")
        e("s_setprio 1", f"s_cmp_gt_u32 s{sCNT}, {P['PSTEP']}", "s_cbranch_scc1 L_prio_back")
        e("s_setprio 0", "s_branch L_prio_back")
    e.label("L_poll")
    e(poll1, f"s_sub_u32 s{sCNT}, s{sCNT}, 1", "s_cbranch_scc1 L_done", "s_waitcnt vmcnt(0)")
    tagcheck()
    e("s_cbranch_execnz L_poll", "s_branch L_polled")
    e.label("L_rank2")
    for j in range(5):
        e(f"ds_read_b32 v{CN+j}, v{cROW} offset:{CNT2 + 128*j}")
    bea(5)
    e("s_waitcnt lgkmcnt(0)")
    e.label("L_end")
    e("s_branch L_ranked")
    return e.text(), LDS, 256, 102


HEADER = """; Kernarg layout for this problem (88 bytes, ptrs only, base s[0:1]):
"""


def generate(**kw):
    P = dict(DEF)
    P.update(kw)
    k, lds, v, s = gen(P)
    n = NAME + "_kernel"
    out = HEADER
    out += f"; @launch grid=(256,1,1) block=(512,1,1) lds={lds}\n"
    out += '.amdgcn_target "amdgcn-amd-amdhsa--gfx950"\n.text\n'
    out += f".globl {n}\n.p2align 8\n.type {n},@function\n{n}:\n{k}"
    out += '.section .rodata,"a"\n'
    out += (f".p2align 6\n.amdhsa_kernel {n}\n  .amdhsa_next_free_vgpr {v}\n  .amdhsa_next_free_sgpr {s}\n"
            f"  .amdhsa_accum_offset {(v+3)//4*4}\n  .amdhsa_group_segment_fixed_size 0\n  .amdhsa_kernarg_size 88\n"
            f"  .amdhsa_user_sgpr_count 2\n  .amdhsa_user_sgpr_kernarg_segment_ptr 1\n  .amdhsa_system_sgpr_workgroup_id_x 1\n"
            f"  .amdhsa_float_denorm_mode_32 3\n.end_amdhsa_kernel\n")
    return out


if __name__ == "__main__":
    kw = {}
    for a in sys.argv[1:]:
        k, v = a.split("=", 1)
        kw[k] = int(v) if v.lstrip("-").isdigit() else v
    sys.stdout.write(generate(**kw))
```

```python
import sys, os
sys.path.insert(0, os.path.dirname(os.path.abspath(__file__)))
from emit import Emitter

NAME = "gather_scatter__tensor_product_equiv_mace__graph"
N, E = 10000, 320000
CH, NCH, CS = 1250, 256, 1280
WS_TAB, WS_W, WS_FL, WS_SK, WS_EA, WS_TS = 0, 0x80000, 0x90000, 0x100000, 0x500000, 0x2000000
CAPW, GAP = 256, 16
CAP = 8 * CAPW
SPIN = 200000

DEF = dict(EPI=2, SCH=2, XDUM=0, NOVM=1, PWAIT=2, ALIGN=1, PRIO=1, PSTEP=16, DIAGW=0, DIAGK=0, DIAGAT='tab', DIAGC=0, D=6, TS=0, DBG=0, APOL="nt", AEA="00011", BEA="011222", SKBAR=1, ABAR=1, SKEARLY=0, XPF=20, CPF=1, MU=7, OUTPOL="sc1", LDPOL="sc1", WST=3, WOST=3, ACCZ=2, CPOS=1, FRG=0, STH=0, STHN=5, ASTPOL='sc1')

PART39 = [[3, 11, 21, 31, 36], [5, 8, 20, 27, 38], [0, 6, 7, 13, 39], [9, 14, 18, 25, 34], [10, 16, 19, 24, 32], [4, 12, 26, 29, 33], [1, 17, 23, 28, 37], [2, 15, 22, 30, 35]]
PART40 = [[1, 10, 15, 30, 39], [2, 9, 21, 28, 37], [4, 14, 22, 27, 31], [6, 12, 18, 24, 35], [3, 8, 16, 29, 38], [5, 13, 17, 26, 34], [0, 20, 23, 32, 36], [7, 11, 19, 25, 33]]


def vr(a, n):
    return f"v[{a}:{a+n-1}]" if n > 1 else f"v{a}"


def sr(a, n=4):
    return f"s[{a}:{a+n-1}]"


def scan_dpp(e, v, full):
    for k in (1, 2, 4, 8):
        e(f"v_add_u32_dpp v{v}, v{v}, v{v} row_shr:{k} row_mask:0xf bank_mask:0xf")
    e(f"v_add_u32_dpp v{v}, v{v}, v{v} row_bcast:15 row_mask:0xa bank_mask:0xf")
    if full:
        e(f"v_add_u32_dpp v{v}, v{v}, v{v} row_bcast:31 row_mask:0xc bank_mask:0xf")


class TS:
    last = None

    def __init__(self, e, on, pair, vreg):
        self.e, self.on, self.pair, self.v, self.names = e, on, pair, vreg, []
        TS.last = self

    diag = None

    def stamp(self, name):
        if self.diag and self.diag[0] == name:
            self.e("s_memrealtime s[4:5]", "s_waitcnt lgkmcnt(0)", f"s_sub_u32 s4, s4, s{self.pair}", f"s_mul_i32 s{self.pair+1}, s4, {self.diag[1]}")
        if self.on and (self.on == 1 or name in str(self.on).split(",") or name in ("start", "end")):
            e, p = self.e, self.pair
            e(f"s_memrealtime s[{p}:{p+1}]", "s_waitcnt lgkmcnt(0)", f"v_writelane_b32 v{self.v}, s{p}, {len(self.names)}")
            self.names.append(name)


class VQ:
    def __init__(self, e):
        self.e, self.q = e, []

    def op(self, tag, text):
        self.e(text)
        self.q.append(tag)

    def n(self, tag):
        idx = max(i for i, t in enumerate(self.q) if t == tag)
        return len(self.q) - 1 - idx

    def wait(self, tag, extra=""):
        self.e(f"s_waitcnt vmcnt({self.n(tag)}) {extra}".strip())


def gen(P):
    e = Emitter()
    vq = VQ(e)
    D = P["D"]
    R = 8
    MAP, CNT2, WB, DEG, TOT, NODEOF, START, WR, WO = 0, 8192, 13312, 14336, 15360, 15616, 16384, 17408, 23552
    LIST = WO + 32768
    SHST = LIST + (CAP + 8 * GAP + 128) * 4
    EAST = SHST + CAP * 8
    assert SHST + CAP * 8 <= EAST
    LDS = EAST + CAP * 32
    AGL = 0
    ACNT, ASTART, AINV, ASKS = LIST, LIST + 1024, LIST + 2048, LIST + 7168
    assert ASKS + 16384 <= EAST
    LANE, X16, RLEN, RBASE, RG0, ONE, PFV = 1, 2, 3, 4, 5, 6, 7
    T = 8
    ACC, RW, XR, TP, AGN, PQ, EA0, EA1, WRF, CGF, ENT = 16, 64, 96, 128, 144, 160, 164, 168, 172, 188, 192
    MP, MQ = CGF + 2, CGF + 3
    K, KN, LA, LB, EAC, LAC, LBC, RT, TSV = 196, 197, 198, 199, 200, 201, 202, 203, 204
    WOF = 208
    cODD, cMAPW, cMAP1, cMAP2, cL12, cDEG, cSH, cR21, cROW, cTIE, cBIN, cNOD, cLST = range(240, 253)
    e.idx_range = {("v", i) for i in range(ACC, ACC + 48)}
    sX, sTAB, sSK, sEA, sA0, sA1, sOUT = 16, 20, 24, 28, 32, 36, 40
    sB, sNB, sNCNT, sN, sROFF, sNR, sNV, sBASE, sEM, sCNT, sT, sT2 = 44, 45, 46, 47, 48, 49, 50, 51, 52, 53, 54, 55
    sNODE = 56
    sOFF = 61
    sTAG, sTAG2 = 62, 63
    SK = 64
    sV = 80
    sM0, sM1 = 86, 88
    sASG = [90, 91, 92, 93, 94]
    sNW, sK4 = 95, 98
    sA2, sTSP = 96, 100
    ts = TS(e, P["TS"], sTSP, TSV)
    if P["DIAGW"]:
        ts.diag = (P["DIAGAT"], P["DIAGK"])
    apol, ldpol = P["APOL"], P["LDPOL"]
    astage = [int(c) for c in str(P["AEA"]).zfill(5)]
    bstage = [int(c) for c in str(P["BEA"]).zfill(6)]

    def srd(s, lo, hi, off, size):
        if off is None:
            e(f"s_mov_b32 s{s}, s{lo}", f"s_mov_b32 s{s+1}, s{hi}")
        else:
            e(f"s_add_u32 s{s}, s{lo}, {off}", f"s_addc_u32 s{s+1}, s{hi}, 0")
        e(f"s_mov_b32 s{s+2}, {size}", f"s_mov_b32 s{s+3}, 0x20000")

    def init_round(first):
        e(f"v_lshlrev_b32 v{T+3}, 2, v0", f"v_mov_b32 v{T+4}, 0x00700000", f"v_mov_b32 v{T+5}, 0")
        for i in range(4):
            e(f"ds_write_b32 v{T+3}, v{T+4} offset:{MAP + i*2048}")
        for i in range(4 if first else 3):
            e(f"ds_write_b32 v{T+3}, v{T+5} offset:{CNT2 + i*2048}")

    DSTV, SRCV, SHV, BK, BA, RK, NL, KEY, CT, ST, PS = 64, 68, 72, 80, 84, 88, 92, 96, 100, 104, 108
    TABV = 112
    OUTV = 128
    IV = 156
    CGR = 120
    if P["TS"]:
        e("s_memrealtime s[92:93]")
    e("s_cmp_ge_u32 s2, 256", "s_cbranch_scc1 L_done")
    e("s_load_dwordx4 s[4:7], s[0:1], 8")
    e("s_load_dwordx4 s[8:11], s[0:1], 24")
    e("s_load_dwordx2 s[14:15], s[0:1], 80")
    e(f"s_load_dwordx2 s[{SK}:{SK+1}], s[0:1], 0")
    e(f"s_load_dwordx2 s[{SK+2}:{SK+3}], s[0:1], 40")
    e(f"s_load_dwordx4 s[{SK+4}:{SK+7}], s[0:1], 48")
    e("s_load_dwordx2 s[12:13], s[0:1], 64")
    e(f"v_lshrrev_b32 v{T}, 6, v0", f"v_and_b32 v{LANE}, 63, v0", f"v_lshlrev_b32 v{T+1}, 2, v0", f"v_mov_b32 v{T+5}, 0")
    e(f"v_readfirstlane_b32 s3, v{T}")
    e(f"ds_write_b32 v{T+1}, v{T+5} offset:{ACNT}", f"ds_write_b32 v{T+1}, v{T+5} offset:{AINV+3072}")
    e(f"s_mul_i32 s{sT}, s2, {CH*4}", f"s_mul_i32 s{sT2}, s2, {CH*8}", f"s_mul_i32 s{sOFF}, s2, {CH*32}")
    e(f"v_lshlrev_b32 v{X16}, 4, v{LANE}", f"v_lshlrev_b32 v{T+2}, 3, v0", f"v_lshlrev_b32 v{T+7}, 4, v0", f"v_mov_b32 v{ONE}, 1")
    e(f"s_lshl_b32 s{sEM}, s3, 10", f"s_add_u32 s{sEM}, s{sEM}, {EAST}", f"s_movk_i32 s{sCNT}, 4096", f"s_movk_i32 s{sNV}, 8192")
    if P["DIAGW"]:
        e(f"s_memrealtime s[{sTSP}:{sTSP+1}]")
    e("s_waitcnt lgkmcnt(0)")
    if P["TS"]:
        e(f"v_writelane_b32 v{TSV}, s92, 0")
        ts.names.append("first")
    ts.stamp("start")
    srd(sA0, 6, 7, f"s{sT}", CH * 4)
    for i in range(3):
        o = f"0 offen offset:{2048*i}" if i < 2 else f"s{sCNT} offen"
        vq.op("dst", f"buffer_load_dword v{DSTV+i}, v{T+1}, {sr(sA0)}, {o} {apol}")
    srd(sA1, 4, 5, f"s{sT}", CH * 4)
    for i in range(3):
        o = f"0 offen offset:{2048*i}" if i < 2 else f"s{sCNT} offen"
        vq.op("src", f"buffer_load_dword v{SRCV+i}, v{T+1}, {sr(sA1)}, {o} {apol}")
    e(f"s_load_dword s{sTAG}, s[14:15], {WS_W}")
    if P["CPF"]:
        e(f"s_getpc_b64 s[{sV}:{sV+1}]", f"s_and_b32 s{sT}, s2, 0xf8", f"s_lshl_b32 s{sT}, s{sT}, 6")
        e(f"v_and_b32 v{T+3}, 0x180, v{T+2}", f"v_add_u32 v{T+3}, s{sT}, v{T+3}", f"v_min_u32 v{T+3}, L_end-L_pc, v{T+3}")
        e.lines.insert(len(e.lines) - 5, "L_pc:")
        e(f"v_mov_b32 v{TABV+1}, s{sV+1}", f"v_add_co_u32 v{TABV}, vcc, s{sV}, v{T+3}", f"v_addc_co_u32 v{TABV+1}, vcc, 0, v{TABV+1}, vcc")
        vq.op("cpf", f"global_load_dword v{TSV+1}, {vr(TABV,2)}, off")
    srd(sA2, 8, 9, f"s{sT2}", CH * 8)
    srd(sEA, 10, 11, f"s{sOFF}", CH * 32)
    if P["ABAR"]:
        e("s_barrier")
    for i, o in enumerate(("0", f"s{sCNT}", f"s{sNV}")):
        vq.op("sh", f"buffer_load_dwordx2 {vr(SHV+2*i,2)}, v{T+2}, {sr(sA2)}, {o} offen {apol}")

    def aea(p):
        for i in range(5):
            if astage[i] == p:
                e(f"s_add_u32 m0, s{sEM}, {8192*i}", f"s_mov_b32 s{sT}, {8192*i}")
                vq.op("ea", f"buffer_load_dwordx4 v{T+7}, {sr(sEA)}, s{sT} offen {apol} lds")
        if P["WST"] == p:
            weights()
        if P["WOST"] == p:
            wout()

    def weights():
        e("s_cmp_lt_u32 s3, 4")
        e(f"s_cselect_b32 s{sX}, s{SK+4}, s{SK+2}", f"s_cselect_b32 s{sX+1}, s{SK+5}, s{SK+3}", f"s_movk_i32 s{sT}, 128",
          f"s_cselect_b32 s{sX+2}, s{sCNT}, s{sT}", f"s_mov_b32 s{sX+3}, 0x20000")
        e(f"s_min_u32 s{sT}, s3, 5", f"s_lshl_b32 s{sT}, s{sT}, 10", f"s_add_u32 m0, s{sT}, {WR}", f"s_and_b32 s{sT}, s{sT}, 0xc00")
        vq.op("w", f"buffer_load_dwordx4 v{X16}, {sr(sX)}, s{sT} offen lds")

    def wout():
        srd(sOUT, SK + 6, SK + 7, None, 32768)
        e(f"s_lshl_b32 s{sT2}, s3, 12", f"s_add_u32 m0, s{sT2}, {WO}")
        for i in range(4):
            vq.op("w", f"buffer_load_dwordx4 v{X16}, {sr(sOUT)}, s{sT2} offen offset:{i*1024} lds")

    aea(0)
    if not P["ABAR"]:
        e("s_barrier")
    e(f"s_mov_b32 s{SK+8}, 109951168", f"s_movk_i32 s{SK+9}, 625", f"s_movk_i32 s{SK+10}, 838")
    e(f"v_cmp_gt_u32 s[{sV+4}:{sV+5}], {CH-1024}, v0") if CH - 1024 <= 64 else e(f"s_movk_i32 s{sT}, {CH-1024}", f"v_cmp_gt_u32 s[{sV+4}:{sV+5}], s{sT}, v0")
    init_round(True)
    if P["ACCZ"] == 9:
        for i in range(48):
            e(f"v_mov_b32 v{ACC+i}, 0")
    vq.wait("dst")
    ts.stamp("dst")
    for k in range(3):
        e(f"v_mul_hi_u32 v{BK+k}, v{DSTV+k}, s{SK+8}")
    for k in range(3):
        e(f"v_lshlrev_b32 v{BA+k}, 2, v{BK+k}")
        if k == 2:
            e(f"s_mov_b64 exec, s[{sV+4}:{sV+5}]")
        e(f"ds_add_rtn_u32 v{RK+k}, v{BA+k}, v{ONE} offset:{ACNT}")
    e("s_mov_b64 exec, -1")
    e("s_waitcnt lgkmcnt(0)", "s_barrier")
    ts.stamp("hist")
    e(f"ds_read_b128 {vr(CT,4)}, v{X16} offset:{ACNT}")
    aea(1)
    for k in range(3):
        e(f"v_mad_u32_u24 v{NL+k}, v{BK+k}, s{SK+9}, 15", f"v_lshrrev_b32 v{NL+k}, 4, v{NL+k}", f"v_sub_u32 v{NL+k}, v{DSTV+k}, v{NL+k}")
        e(f"v_lshrrev_b32 v{BK+k}, 3, v{BK+k}", f"v_and_b32 v{BK+k}, 28, v{BK+k}")
    e("s_waitcnt lgkmcnt(0)")
    e(f"v_add_u32 v{T+3}, v{CT}, v{CT+1}", f"v_add3_u32 v{T+3}, v{T+3}, v{CT+2}, v{CT+3}", f"v_mov_b32 v{T+4}, v{T+3}")
    scan_dpp(e, T + 4, True)
    e(f"v_sub_u32 v{ST}, v{T+4}, v{T+3}")
    for k in range(3):
        e(f"v_add_u32 v{ST+1+k}, v{ST+k}, v{CT+k}")
    e(f"ds_write_b128 v{X16}, {vr(ST,4)} offset:{ASTART}")
    for k in range(3):
        e(f"ds_read_b32 v{PS+k}, v{BA+k} offset:{ASTART}")
    vq.wait("src")
    for k in range(3):
        e(f"v_mul_u32_u24 v{KEY+k}, s{SK+10}, v{SRCV+k}", f"v_lshrrev_b32 v{KEY+k}, 18, v{KEY+k}", f"v_sub_u32 v{KEY+k}, v{KEY+k}, v{BK+k}",
          f"v_and_b32 v{KEY+k}, 31, v{KEY+k}", f"v_lshl_or_b32 v{KEY+k}, v{NL+k}, 5, v{KEY+k}",
          f"v_lshlrev_b32 v{KEY+k}, 21, v{KEY+k}", f"v_lshl_or_b32 v{KEY+k}, v{SRCV+k}, 7, v{KEY+k}")
    e(f"v_lshlrev_b32 v{NL}, 5, v0", f"v_add_u32 v{NL+1}, {512*32}, v{NL}", f"v_add_u32 v{NL+2}, {1024*32}, v{NL}")
    e(f"s_mov_b32 s{sT2}, {ASKS}")
    vq.wait("sh", "lgkmcnt(0)")
    for k in range(3):
        e(f"v_add_u32 v{PS+k}, v{PS+k}, v{RK+k}")
        e(f"v_lshlrev_b32 v{BA+k}, 2, v{PS+k}", f"v_mad_u32_u24 v{PS+k}, v{PS+k}, 12, s{sT2}")
        if k == 2:
            e(f"s_mov_b64 exec, s[{sV+4}:{sV+5}]")
        e(f"ds_write_b32 v{BA+k}, v{NL+k} offset:{AINV}")
        e(f"ds_write2_b32 v{PS+k}, v{SHV+2*k}, v{SHV+2*k+1} offset0:0 offset1:1")
        e(f"ds_write_b32 v{PS+k}, v{KEY+k} offset:8")
    e("s_mov_b64 exec, -1")
    aea(2)
    e(f"s_mul_i32 s{sTAG}, s{sTAG}, 0x9e3779b1", f"s_add_u32 s{sTAG}, s{sTAG}, 0x7f4a7c15")
    e(f"s_mul_i32 s{sTAG2}, s{sTAG}, 0x85ebca6b", f"s_and_b32 s{sTAG2}, s{sTAG2}, 0xffc00000")
    e(f"s_lshl_b32 s{sT}, s3, 7", f"v_lshl_add_u32 v{T+3}, v{LANE}, 3, s{sT}")
    e(f"ds_read_b64 {vr(CT,2)}, v{T+3} offset:{ACNT}", f"ds_read_b64 {vr(ST,2)}, v{T+3} offset:{ASTART}")
    e(f"s_mul_i32 s{sT}, s2, {CS*12}", f"s_add_u32 s{sT}, s{sT}, {WS_SK}")
    srd(sA0, 14, 15, f"s{sT}", CS * 12)
    e(f"s_mul_i32 s{sT}, s2, {CS*32}", f"s_add_u32 s{sT}, s{sT}, {WS_EA}")
    srd(sA1, 14, 15, f"s{sT}", CH * 32)
    e(f"v_lshrrev_b32 v{T+3}, 1, v0", f"v_lshlrev_b32 v{T+3}, 2, v{T+3}")
    e(f"v_and_b32 v{T+4}, 1, v0", f"v_lshlrev_b32 v{T+4}, 4, v{T+4}", f"v_add_u32 v{T+4}, {EAST}, v{T+4}", f"v_add_u32 v{T+6}, {ASKS}, v{T+7}")
    e("s_waitcnt lgkmcnt(0)", "s_barrier")
    ts.stamp("scat")
    e(f"ds_read_b128 {vr(OUTV,4)}, v{T+6}", f"ds_read_b128 {vr(OUTV+4,4)}, v{T+6} offset:8192")
    for i in range(5):
        e(f"ds_read_b32 v{IV+i}, v{T+3} offset:{AINV + i*1024}")
    aea(3)

    def skst():
        vq.op("skst", f"buffer_store_dwordx4 {vr(OUTV,4)}, v{T+7}, {sr(sA0)}, 0 offen {P['ASTPOL']}")
        if P["STH"] == 1 and not P["SKEARLY"]:
            e("s_waitcnt vmcnt(0)")
        vq.op("skst", f"buffer_store_dwordx4 {vr(OUTV+4,4)}, v{T+7}, {sr(sA0)}, s{sNV} offen {P['ASTPOL']}")

    def frag_r(F0, t0, t1, t2):
        e(f"v_lshrrev_b32 v{t0}, 5, v{LANE}", f"v_lshlrev_b32 v{t0}, 11, v{t0}", f"v_and_b32 v{t1}, 15, v{LANE}", f"v_lshl_add_u32 v{t0}, v{t1}, 4, v{t0}")
        for i in range(8):
            e(f"ds_read_b128 {vr(F0+4*i,4)}, v{t0} offset:{WR + 256*i}")
        e(f"v_lshrrev_b32 v{t0}, 4, v{LANE}", f"v_lshlrev_b32 v{t0}, 5, v{t0}", f"v_and_b32 v{t1}, 3, v{LANE}", f"v_lshl_add_u32 v{t0}, v{t1}, 1, v{t0}")
        for v in range(4):
            e(f"ds_read_u16 v{F0+32+v}, v{t0} offset:{WR + 4096 + 8*v}")
        e(f"v_bfe_i32 v{t2}, v{LANE}, 4, 1", f"v_and_b32 v{t2}, 0x02020202, v{t2}", f"v_add_u32 v{t2}, 0x05040100, v{t2}")
        e("s_waitcnt lgkmcnt(0)")
        for h in range(2):
            for t in range(2):
                for ip in range(4):
                    e(f"v_perm_b32 v{WRF+8*h+4*t+ip}, v{F0+4*(2*ip+1)+t+2*h}, v{F0+4*(2*ip)+t+2*h}, v{t2}")
        e(f"v_lshl_or_b32 v{CGF}, v{F0+33}, 16, v{F0+32}", f"v_lshl_or_b32 v{CGF+1}, v{F0+35}, 16, v{F0+34}")

    def frag_o(F0, t0, t1, sM):
        e(f"v_and_b32 v{t1}, 15, v{LANE}", f"v_lshrrev_b32 v{t0}, 4, v{LANE}", f"v_lshlrev_b32 v{t0}, 13, v{t0}", f"v_lshl_add_u32 v{t0}, v{t1}, 2, v{t0}",
          f"s_and_b32 s{sM}, s3, 3", f"s_lshl_b32 s{sM}, s{sM}, 6", f"s_add_u32 s{sM}, s{sM}, {WO}", f"v_add_u32 v{t0}, s{sM}, v{t0}")
        for s in range(4):
            for ip in range(4):
                e(f"ds_read2st64_b32 {vr(F0+8*s+2*ip,2)}, v{t0} offset0:{8*ip+s} offset1:{8*ip+4+s}")
        e(f"s_mov_b32 s{sM}, 0x05040100", f"s_mov_b32 s{sM+1}, 0x07060302")
        for s in range(4):
            e(f"s_waitcnt lgkmcnt({12-4*s})")
            for t in range(2):
                for ip in range(4):
                    e(f"v_perm_b32 v{WOF+8*s+4*t+ip}, v{F0+8*s+2*ip+1}, v{F0+8*s+2*ip}, s{sM+t}")

    def consts():
        e(f"s_and_b32 s{sB}, s2, 7", f"s_lshl_b32 s{sB}, s{sB}, 5", f"s_lshr_b32 s{sT}, s2, 3", f"s_add_u32 s{sB}, s{sB}, s{sT}")
        e(f"s_mul_i32 s{sNB}, s{sB}, 625", f"s_add_u32 s{sNCNT}, s{sNB}, 640", f"s_add_u32 s{sNB}, s{sNB}, 15",
          f"s_lshr_b32 s{sNB}, s{sNB}, 4", f"s_lshr_b32 s{sNCNT}, s{sNCNT}, 4", f"s_sub_u32 s{sNCNT}, s{sNCNT}, s{sNB}")
        e(f"s_mov_b32 s{sM0}, 0x0f0f0f0f", f"s_mov_b32 s{sM0+1}, 0x0f0f0f0f", f"s_mov_b32 s{sM1}, 0xf0f0f0f0", f"s_mov_b32 s{sM1+1}, 0xf0f0f0f0")
        for i in range(8):
            e(f"v_mov_b32 v{EA0+i}, 0")
        e(f"v_and_b32 v{T+3}, 4, v{LANE}", f"v_lshlrev_b32 v{T+3}, 2, v{T+3}", f"v_mov_b32 v{T+4}, 0xffff", f"v_lshlrev_b32 v{T+4}, v{T+3}, v{T+4}")
        e(f"v_bfe_i32 v{T+3}, v{LANE}, 3, 1", f"v_and_b32 v{MQ}, v{T+3}, v{T+4}", f"v_xor_b32 v{MP}, v{MQ}, v{T+4}")
        e(f"v_lshrrev_b32 v{EAC}, 5, v{LANE}", f"v_lshlrev_b32 v{EAC}, 4, v{EAC}", f"v_add_u32 v{EAC}, {EAST}, v{EAC}")
        e(f"v_and_b32 v{LAC}, 15, v{LANE}", f"v_lshlrev_b32 v{LAC}, 2, v{LAC}")
        e(f"v_bfe_u32 v{T+3}, v{LANE}, 3, 2", f"v_and_b32 v{T+4}, 3, v{LANE}", f"v_lshl_add_u32 v{T+3}, v{T+3}, 2, v{T+4}", f"v_lshlrev_b32 v{LBC}, 2, v{T+3}")
        e(f"v_bfe_i32 v{cODD}, v0, 0, 1", f"s_lshl_b32 s{sT}, s3, 10", f"v_and_b32 v{cMAPW}, 4, v{cODD}", f"v_add_u32 v{cMAPW}, s{sT}, v{cMAPW}")
        e(f"v_lshl_add_u32 v{cMAP1}, v{LANE}, 2, s{sT}", f"v_lshrrev_b32 v{cMAP2}, 1, v{LANE}", f"v_lshl_add_u32 v{cMAP2}, v{cMAP2}, 2, s{sT}")
        e(f"v_mul_u32_u24 v{cL12}, 12, v{LANE}", f"v_and_b32 v{cDEG}, 12, v{cMAP1}", f"v_and_b32 v{cBIN}, 124, v{cMAP1}")
        e(f"v_lshlrev_b32 v{cSH}, 1, v{cMAP1}", f"v_add_u32 v{cSH}, {SHST}, v{cSH}", f"v_lshlrev_b32 v{cR21}, 19, v{cMAP1}")
        e(f"s_mul_i32 s{sT}, s3, 640", f"v_add_u32 v{cROW}, s{sT}, v{cBIN}", f"v_sub_u32 v{cTIE}, 63, v{LANE}")
        e(f"s_lshl_b32 s{sT}, s3, 5", f"v_lshl_add_u32 v{cNOD}, v{LANE}, 2, s{sT}")
        e(f"v_lshrrev_b32 v{cLST}, 3, v{LANE}", f"v_mul_u32_u24 v{cLST}, {GAP*4}, v{cLST}", f"v_add_u32 v{cLST}, {LIST}, v{cLST}")
        e(f"s_cmp_eq_u32 s{sNCNT}, 40")
        tabs = []
        for part in (PART39, PART40):
            t = [0] * 40
            for w, p in enumerate(part):
                for sl, r in enumerate(p):
                    t[r] = w * 8 + sl
            tabs.append([sum(t[5 * q + i] << (6 * i) for i in range(5)) for q in range(8)])
        e(f"v_mov_b32 v{RT}, 0")
        for q in range(8):
            e(f"s_mov_b32 s{sT}, {tabs[0][q]}", f"s_cselect_b32 s{sT}, {tabs[1][q]}, s{sT}")
            m = 31 << (5 * q)
            e(f"s_mov_b32 exec_lo, {m & 0xffffffff}", f"s_mov_b32 exec_hi, {m >> 32}", f"v_mov_b32 v{RT}, s{sT}")
        e("s_mov_b64 exec, -1")
        e(f"v_mul_u32_u24 v{T+3}, 52, v{LANE}", f"v_lshrrev_b32 v{T+3}, 8, v{T+3}", f"v_mad_i32_i24 v{T+3}, v{T+3}, -5, v{LANE}",
          f"v_mul_u32_u24 v{T+3}, 6, v{T+3}", f"v_lshrrev_b32 v{RT}, v{T+3}, v{RT}")
        e(f"v_and_b32 v{T+3}, 7, v{RT}", f"v_bfe_u32 v{RT}, v{RT}, 3, 3", f"v_lshlrev_b32 v{T+3}, 12, v{T+3}", f"v_lshl_or_b32 v{RT}, v{RT}, 7, v{T+3}")
        srd(sTAB, 14, 15, None, WS_W + 64)
        srd(sSK, 14, 15, WS_SK, NCH * CS * 12)

    def extra(pos):
        if P["CPOS"] == pos:
            consts()
        if P["ACCZ"] == pos:
            for i in range(48):
                e(f"v_mov_b32 v{ACC+i}, 0")

    e("s_waitcnt lgkmcnt(0)")
    if P["SKEARLY"]:
        skst()
    for i in range(5):
        e(f"v_add_u32 v{IV+i}, v{T+4}, v{IV+i}")
    for k in range(2):
        e(f"v_lshl_or_b32 v{TABV+2*k}, v{CT+k}, 11, v{ST+k}", f"v_or_b32 v{TABV+2*k}, s{sTAG2}, v{TABV+2*k}", f"v_mov_b32 v{TABV+2*k+1}, s{sTAG}")
    extra(0)
    vq.wait("w" if P["FRG"] else "ea")
    e("s_barrier")
    ts.stamp("land")
    for i in range(5):
        e(f"ds_read_b128 {vr(OUTV+8+4*i,4)}, v{IV+i}")
    extra(1)
    if P["FRG"] & 1:
        frag_r(RW, T, T + 1, T + 2)
    if P["FRG"] & 2:
        frag_o(RW, T, T + 1, SK + 8)
    ts.stamp("guard")
    if not P["SKEARLY"]:
        skst()
    for i in range(5):
        thr = f"vmcnt({P['STH']-1}) " if P["STH"] and i < P["STHN"] else ""
        e(f"s_mov_b32 s{sT}, {8192*i}", f"s_waitcnt {thr}lgkmcnt({4-i})")
        vq.op("st", f"buffer_store_dwordx4 {vr(OUTV+8+4*i,4)}, v{T+7}, {sr(sA1)}, s{sT} offen {P['ASTPOL']}")
    aea(4)
    ts.stamp("issued")

    extra(2)
    e(f"s_lshl_b32 s{sT}, s2, 3", f"s_add_u32 s{sT}, s{sT}, s3", f"s_lshl_b32 s{sT}, s{sT}, 8")
    srd(sX, SK, SK + 1, None, N * 1024)
    srd(sEA, 14, 15, WS_EA, NCH * CS * 32)
    if P["XPF"]:
        n = P["XPF"]
        e(f"s_and_b32 s{sBASE}, s2, 7", f"s_mul_i32 s{sBASE}, s{sBASE}, {1252*1024}", f"s_and_b32 s{sT2}, s2, 0xf8",
          f"s_add_u32 s{sT2}, s{sT2}, s3", f"s_mul_i32 s{sT2}, s{sT2}, {n*128}", f"s_add_u32 s{sBASE}, s{sBASE}, s{sT2}")
        e(f"v_min_u32 v{T+6}, {n-1}, v{LANE}", f"v_lshlrev_b32 v{T+6}, 7, v{T+6}")
    e("s_waitcnt vmcnt(0)", "s_barrier")
    ts.stamp("drained")
    e("s_mov_b64 exec, 0xffff")
    e(f"buffer_store_dwordx4 {vr(TABV,4)}, v{X16}, {sr(sTAB)}, s{sT} offen sc1")
    e("s_mov_b64 exec, -1")
    if P["XPF"]:
        e(f"buffer_load_dword v{PFV}, v{T+6}, {sr(sX)}, s{sBASE} offen")
    if P["WOST"] == 9:
        wout()
    e(f"s_lshl_b32 s{sT}, s{sNB}, 10", f"s_add_u32 s{sOUT}, s12, s{sT}", f"s_addc_u32 s{sOUT+1}, s13, 0",
      f"s_lshl_b32 s{sOUT+2}, s{sNCNT}, 10", f"s_mov_b32 s{sOUT+3}, 0x20000")
    if not P["FRG"] & 1:
        frag_r(RW, T, T + 1, T + 2)
    if P["WOST"] != 9 and not P["FRG"] & 2:
        frag_o(128, T, T + 1, SK + 8)
    extra(3)
    e(f"v_lshrrev_b32 v{T+1}, 1, v0", f"v_lshlrev_b32 v{T+2}, 11, v{T+1}", f"s_lshl_b32 s{sNR}, s{sB}, 3")
    e(f"v_mul_u32_u24 v{RG0}, {CS}, v{T+1}", f"s_mov_b32 s{sROFF}, 0", f"s_mov_b32 s{sCNT}, {SPIN}", f"s_mov_b32 s{sT2}, 0xffc00000")
    e(f"s_lshl_b32 s{sEM}, s3, 13", f"s_add_u32 s{sEM}, s{sEM}, {EAST}", f"s_movk_i32 s{sK4}, 4096")
    if P["PWAIT"]:
        e("s_waitcnt vmcnt(0)")
    if P["PWAIT"] == 2:
        e("s_barrier")
    ts.stamp("frag")
    PL = 206
    poll1 = f"buffer_load_dwordx2 {vr(PL,2)}, v{T+2}, {sr(sTAB)}, s{sNR} offen sc1"

    def tagcheck():
        e(f"v_xor_b32 v{T+3}, s{sTAG2}, v{PL}", f"v_xor_b32 v{T+4}, s{sTAG}, v{PL+1}", f"v_and_or_b32 v{T+3}, v{T+3}, s{sT2}, v{T+4}")
        e(f"v_cmpx_ne_u32 vcc, 0, v{T+3}")

    e(poll1, "s_waitcnt vmcnt(0)")
    tagcheck()
    e("s_cbranch_execnz L_poll")
    e.label("L_polled")
    e("s_mov_b64 exec, -1")
    ts.stamp("tab")
    G1, G2, SKR, RNK, CA = RW, RW + 4, RW + 12, TP, TP + 4
    MU = P["MU"]
    sVm = [sV, sV + 2, sV + 4, sA2]

    def bea1(i):
        e(f"s_add_u32 m0, s{sEM}, {4096*(i//4)}")
        vq.op("ea", f"buffer_load_dwordx4 v{G2+i}, {sr(sEA)}, {'0' if i < 4 else 's%d' % sK4} offen offset:{1024*(i%4)} {ldpol} lds")

    def bea(p):
        for i in range(6):
            if bstage[i] == p:
                bea1(i)

    def skld(i):
        e(f"v_mad_u32_u24 v{G1+i}, v{G1+i}, 12, v{cL12}")
        vq.op(f"sk{i}", f"buffer_load_dwordx3 {vr(SKR+4*i,3)}, v{G1+i}, {sr(sSK)}, 0 offen offset:{768*i} {ldpol}")

    cmps = [f"v_cmp_lt_i32 s[{SK+2*i}:{SK+2*i+1}], {2*i}, v{T+2}" for i in range(MU + 1)]
    e(f"v_bfe_u32 v{RLEN}, v{PL}, 11, 11", f"v_and_b32 v{RBASE}, v{RLEN}, v{cODD}", f"v_add_u32 v{T+2}, v{RLEN}, v{cODD}")
    fill = [f"v_and_b32 v{T+3}, 0x7ff, v{PL}"] + cmps + [f"v_add_u32 v{RG0}, v{RG0}, v{T+3}"]
    e(fill.pop(0))
    for mod in ("row_shr:1 row_mask:0xf", "row_shr:2 row_mask:0xf", "row_shr:4 row_mask:0xf", "row_shr:8 row_mask:0xf", "row_bcast:15 row_mask:0xa", "row_bcast:31 row_mask:0xc"):
        e(f"v_add_u32_dpp v{RBASE}, v{RBASE}, v{RBASE} {mod} bank_mask:0xf")
        e(*fill[:2]); fill = fill[2:]
    e(f"v_readlane_b32 s{sNW}, v{RBASE}, 63")
    e(f"v_mov_b32_dpp v{RBASE}, v{RBASE} quad_perm:[0,0,2,2] row_mask:0xf bank_mask:0xf")
    e(f"v_sub_u32 v{RG0}, v{RG0}, v{RBASE}")
    e(f"v_lshl_add_u32 v{T}, v{RBASE}, 2, v{cMAPW}")
    e(f"s_cmp_gt_u32 s{sNW}, {CAPW}", "s_cbranch_scc1 L_clip")
    e.label("L_mapw")
    for i in range(MU):
        e(f"s_mov_b64 exec, s[{SK+2*i}:{SK+2*i+1}]")
        e(f"ds_write_b32 v{T}, v{RG0} offset:{8*i}")
    e("s_mov_b64 exec, -1")
    e(f"s_cmp_lg_u64 s[{SK+2*MU}:{SK+2*MU+1}], 0", "s_cbranch_scc1 L_map2")
    for i in range(3):
        e(f"ds_read_b32 v{G1+i}, v{cMAP1} offset:{256*i}")
    for i in range(6):
        e(f"ds_read_b32 v{G2+i}, v{cMAP2} offset:{128*i}")
    e(f"s_cmp_gt_i32 s{sNW}, 192", "s_cbranch_scc1 L_r1")
    e.label("L_r1b")
    e("s_waitcnt lgkmcnt(6)")
    ts.stamp("map")
    for i in range(3):
        skld(i)
    e(f"v_mov_b32 v{T+3}, s{sNW}", "s_mov_b64 exec, 1", f"ds_max_i32 v{T+5}, v{T+3} offset:{TOT}", "s_mov_b64 exec, -1")
    e("s_waitcnt lgkmcnt(1)")
    for i in range(6):
        e(f"v_lshl_add_u32 v{G2+i}, v{G2+i}, 5, v{X16}")
    if P["SKBAR"]:
        e("s_barrier")
    ts.stamp("skiss")
    bea(0)
    for i in range(4):
        e(f"v_add_u32 v{T+3}, {64*i}, v{LANE}", f"v_cmp_gt_i32 s[{sVm[i]}:{sVm[i]+1}], s{sNW}, v{T+3}")
    e(f"s_mov_b32 s{sT2}, 0x1fff80", f"s_mul_i32 s{sOFF}, s3, 5")

    def count(i):
        key = SKR + 4 * i + 2
        e(f"v_lshrrev_b32 v{CA+i}, 21, v{key}", f"v_lshlrev_b32 v{CA+i}, 2, v{CA+i}")
        e(f"v_lshrrev_b32 v{T+3}, 26, v{key}", f"v_lshl_or_b32 v{T+3}, v{T+3}, 4, v{cDEG}")
        e(f"s_mov_b64 exec, s[{sVm[i]}:{sVm[i]+1}]")
        e(f"ds_add_rtn_u32 v{RNK+i}, v{CA+i}, v{ONE} offset:{CNT2}")
        e(f"ds_add_u32 v{T+3}, v{ONE} offset:{DEG}")
        e("s_mov_b64 exec, -1")

    def entry(i):
        key = SKR + 4 * i + 2
        e(f"ds_write_b64 v{cSH}, {vr(SKR+4*i,2)} offset:{512*i}")
        e(f"v_and_or_b32 v{key}, v{key}, s{sT2}, v{cR21}")
        if i:
            e(f"v_add_u32 v{key}, {64*i << 21}, v{key}")

    for i in range(3):
        vq.wait(f"sk{i}")
        if i == 0:
            ts.stamp("sk")
        count(i)
    e(f"s_cmp_gt_i32 s{sNW}, 192", "s_cbranch_scc1 L_r2")
    e.label("L_r2b")
    for i in range(3):
        entry(i)
    ts.stamp("atom")
    bea(1)
    e("s_waitcnt lgkmcnt(3)", "s_barrier")
    ts.stamp("b1")
    CN, CAD = XR, XR + 8
    e(f"s_cmp_lg_u32 s{sROFF}, 0", "s_cbranch_scc1 L_rank2")
    e(f"ds_read_b128 {vr(CAD,4)}, v{X16} offset:{DEG}")
    for j in range(5):
        e(f"ds_read_b32 v{CN+j}, v{cROW} offset:{CNT2 + 128*j}")
    e(f"ds_read_b32 v{T+6}, v{T+5} offset:{TOT}")
    bea(5)
    for j in range(1, 5):
        e(f"s_add_u32 s{SK+j}, s{sOFF}, {j}")
    e("s_waitcnt lgkmcnt(6)")
    e(f"v_add_u32 v{T+1}, v{CAD}, v{CAD+1}", f"v_add3_u32 v{T+1}, v{T+1}, v{CAD+2}, v{CAD+3}")
    e(f"v_lshl_or_b32 v{T+1}, v{T+1}, 6, v{cTIE}")
    for j in range(5):
        e(f"v_readlane_b32 s{SK+j}, v{T+1}, s{SK+j if j else sOFF}")
    for j in range(5):
        e(f"v_cmp_lt_u32 s[{SK+6+2*j}:{SK+7+2*j}], s{SK+j}, v{T+1}")
    for j in range(5):
        e(f"s_bcnt1_i32_b64 s{SK+j}, s[{SK+6+2*j}:{SK+7+2*j}]")
    e("s_waitcnt lgkmcnt(0)")
    for j in range(5):
        e(f"v_readlane_b32 s{sASG[j]}, v{RT}, s{SK+j}")
    e(f"v_readfirstlane_b32 s{sN}, v{T+6}")
    e.label("L_ranked")
    e("s_mov_b32 exec_hi, 0")
    for j in range(5):
        e(f"s_and_b32 s{sT}, s{sASG[j]}, 0x380")
        e(f"v_add_u32 v{CAD+j}, s{sT}, v{cBIN}")
        e(f"ds_add_rtn_u32 v{CN+j}, v{CAD+j}, v{CN+j} offset:{WB}")
    for j in range(5):
        e(f"v_or_b32 v{CAD+j}, s{sASG[j]}, v{CAD+j}")
    for j in range(5):
        e(f"v_writelane_b32 v{T+3}, s{sASG[j]}, {j}")
    for j in range(5):
        e("s_waitcnt lgkmcnt(4)")
        e(f"v_lshl_or_b32 v{CN+j}, v{CN+j}, 16, v{CAD+j}")
        e(f"ds_write_b32 v{cROW}, v{CN+j} offset:{CNT2 + 128*j}")
    e(f"v_add_lshl_u32 v{T+4}, v{LANE}, s{sOFF}, 7")
    e(f"v_lshrrev_b32 v{T+1}, 10, v{T+3}", f"v_bfe_u32 v{T+3}, v{T+3}, 2, 8", f"v_or_b32 v{T+3}, v{T+3}, v{T+1}")
    e("s_mov_b32 exec_lo, 31")
    e(f"ds_write_b32 v{T+3}, v{T+4} offset:{NODEOF}")
    e("s_mov_b64 exec, -1")
    ts.stamp("rank")
    bea(2)
    e(f"s_lshl_b32 s{sT}, s3, 3", f"s_add_u32 s{sT2}, s{sT}, 7")
    e("s_waitcnt lgkmcnt(0)", "s_barrier")
    ts.stamp("b2")
    e(f"ds_read_b128 {vr(CN,4)}, v{X16} offset:{WB}")
    for i in range(3):
        e(f"ds_read_b32 v{CA+i}, v{CA+i} offset:{CNT2}")
    e(f"ds_read_b32 v{T+3}, v{cNOD} offset:{NODEOF}")
    bea(6)
    e("s_waitcnt lgkmcnt(4)")
    e(f"v_add_u32 v{T+1}, v{CN}, v{CN+1}", f"v_add3_u32 v{T+1}, v{T+1}, v{CN+2}, v{CN+3}", f"v_mov_b32 v{T+2}, v{T+1}")
    e("s_waitcnt lgkmcnt(1)")

    def place(i):
        key = SKR + 4 * i + 2
        return [f"v_bfe_u32 v{T+7}, v{CA+i}, 12, 3", f"v_or_b32 v{key}, v{T+7}, v{key}", f"v_and_b32 v{G1+i}, 0x3ff, v{CA+i}",
                f"v_lshrrev_b32 v{CA+i}, 16, v{CA+i}", f"v_add_u32 v{CA+i}, v{CA+i}, v{RNK+i}"]

    fill = place(0) + place(1) + place(2)
    e(fill.pop(0))
    for mod in ("row_shr:1 row_mask:0xf", "row_shr:2 row_mask:0xf", "row_shr:4 row_mask:0xf", "row_shr:8 row_mask:0xf", "row_bcast:15 row_mask:0xa", "row_bcast:31 row_mask:0xc"):
        e(f"v_add_u32_dpp v{T+2}, v{T+2}, v{T+2} {mod} bank_mask:0xf")
        e(*fill[:2]); fill = fill[2:]
    e(f"v_sub_u32 v{T+1}, v{T+2}, v{T+1}")
    e(f"v_lshl_add_u32 v{CAD}, v{T+1}, 2, v{cLST}")
    for k in range(3):
        e(f"v_lshl_add_u32 v{CAD+1+k}, v{CN+k}, 2, v{CAD+k}")
    e(f"ds_write_b128 v{X16}, {vr(CAD,4)} offset:{START}")
    for i in range(3):
        e(f"ds_read_b32 v{G1+i}, v{G1+i} offset:{START}")
    e(*fill)
    e(f"v_readlane_b32 s{sNV}, v{T+2}, s{sT2}", f"v_readlane_b32 s{sCNT}, v{T+1}, s{sT}", f"v_readlane_b32 s{sBASE}, v{CAD}, s{sT}")
    e(f"v_mov_b32 v{T+4}, {(0x3fff << 7) | 5}")
    e(f"s_sub_u32 s{sNV}, s{sNV}, s{sCNT}", f"s_lshl_b32 s{sT}, s{sNV}, 2")
    e(f"v_add_u32 v{LA}, s{sBASE}, v{LAC}", f"v_add_u32 v{LB}, s{sBASE}, v{LBC}", f"v_add_u32 v{T+1}, s{sT}, v{LA}")

    def scatter(i):
        e(f"v_lshl_add_u32 v{CA+i}, v{CA+i}, 2, v{G1+i}")
        e(f"s_mov_b64 exec, s[{sVm[i]}:{sVm[i]+1}]")
        e(f"ds_write_b32 v{CA+i}, v{SKR+4*i+2}")
        e("s_mov_b64 exec, -1")

    for i in range(3):
        e("s_waitcnt lgkmcnt(2)")
        scatter(i)
    e(f"ds_write_b32 v{T+1}, v{T+4}")
    e(f"s_cmp_gt_i32 s{sNW}, 192", "s_cbranch_scc1 L_r3")
    e.label("L_r3b")
    bea(3)
    for j in range(5):
        e(f"v_readlane_b32 s{sNODE+j}, v{T+3}, {j}")
    ts.stamp("list")
    if P["WOST"] == 9:
        frag_o(XR, PQ, PQ + 1, SK + 8)
    e(f"s_mov_b32 s{sT2}, 0x00fffc38", f"s_mov_b32 s{sCNT}, s{sNV}", f"s_mov_b32 s{sNR}, 0xffffff00", f"s_mov_b32 s{sBASE}, {SHST}")
    e("s_waitcnt vmcnt(0) lgkmcnt(0)", "s_barrier")
    ts.stamp("b4")
    e(f"ds_read_b32 v{K}, v{LA}", f"ds_read_b32 v{ENT+2}, v{LB}", f"ds_read_b32 v{KN}, v{LA} offset:{4*D}")
    e(f"s_cmp_eq_u32 s{sNV}, 0", "s_cbranch_scc1 L_swept")

    def ea_reads():
        e(f"v_lshrrev_b32 v{T}, 21, v{ENT+2}", f"v_lshl_add_u32 v{T+3}, v{T}, 3, s{sBASE}", f"v_lshl_add_u32 v{T}, v{T}, 5, v{EAC}")
        e(f"ds_read_b64 {vr(ENT,2)}, v{T+3}")
        e(f"s_mov_b64 exec, s[{sM0}:{sM0+1}]", f"ds_read_b128 {vr(EA0,4)}, v{T}")
        e(f"s_mov_b64 exec, s[{sM1}:{sM1+1}]", f"ds_read_b128 {vr(EA1,4)}, v{T}")
        e("s_mov_b64 exec, -1")

    e("s_waitcnt lgkmcnt(1)")
    e(f"v_lshlrev_b32 v{K}, 3, v{K}", f"v_and_b32 v{K}, s{sT2}, v{K}")
    for j in range(2):
        e(f"v_readlane_b32 s{SK+j}, v{K}, {j}")
    for j in range(D):
        if j + 2 < D:
            e(f"v_readlane_b32 s{SK+j+2}, v{K}, {j+2}")
        e(f"s_and_b32 s{sOFF}, s{SK+j}, s{sNR}")
        e(f"buffer_load_dwordx4 {vr(XR+4*j,4)}, v{X16}, {sr(sX)}, s{sOFF} offen")
        if j == 1:
            ea_reads()
    ts.stamp("b5")
    if P["PRIO"] == 1:
        e("s_cmp_lt_u32 s3, 4", "s_cbranch_scc1 L_np", "s_setprio 1")
        e.label("L_np")
    if P["PRIO"] == 2:
        e("s_setprio 3")
    e(".p2align 3")
    e.label("L_loop")
    if P["PRIO"] == 2:
        e(f"s_cmp_le_u32 s{sCNT}, {3*P['PSTEP']}", "s_cbranch_scc1 L_prio")
        e.label("L_prio_back")
    e("s_waitcnt lgkmcnt(0)")
    if P["ALIGN"]:
        e(".p2align 3")
    for q in range(4):
        e(f"v_mfma_f32_4x4x4_16b_bf16 {vr(AGN+4*q,4)}, {vr(ENT,2)}, {vr(CGF,2)}, 0 cbsz:4 abid:{2*q}")
    fill = [f"v_lshlrev_b32 v{K}, 3, v{KN}", f"v_and_b32 v{K}, s{sT2}, v{K}", f"v_add_u32 v{LA}, 64, v{LA}", f"v_add_u32 v{LB}, 64, v{LB}",
            f"ds_read_b32 v{KN}, v{LA} offset:{4*D}", f"ds_read_b32 v{ENT+2}, v{LB}"]

    def pq(j):
        p = PQ + 2 * (j % 2)
        return [f"v_cvt_pk_bf16_f32 v{T+1+j%2}, v{AGN+j}, v{AGN+j}", f"v_and_b32 v{p}, v{MP}, v{T+1+j%2}", f"v_and_b32 v{p+1}, v{MQ}, v{T+1+j%2}"]

    fill += pq(0)
    for h in range(2):
        e(f"v_mfma_f32_32x32x16_bf16 {vr(RW+16*h,16)}, {vr(EA0,4)}, {vr(WRF+8*h,4)}, 0")
        e(*fill[:3]); fill = fill[3:]
    for h in range(2):
        e(f"v_mfma_f32_32x32x16_bf16 {vr(RW+16*h,16)}, {vr(EA1,4)}, {vr(WRF+8*h+4,4)}, {vr(RW+16*h,16)}")
        e(*fill[:3]); fill = fill[3:]

    NTP = 2

    def pks(j):
        t = TP + 8 * (j % NTP)
        for h in range(2):
            r = RW + 16 * h + j
            rp = r & ~1
            sel = "op_sel:[0,1,0] op_sel_hi:[1,1,1]" if r & 1 else "op_sel_hi:[1,0,1]"
            for q in range(2):
                a = ACC + 4 * h + 2 * q
                e(f"v_pk_fma_f32 {vr(a,2)}, {vr(t+4*h+2*q,2)}, {vr(rp,2)}, {vr(a,2)} {sel}")

    AL = P["ALIGN"]
    SCH = P["SCH"]

    def al():
        if AL:
            e(".p2align 3")

    def mf(j, h):
        t, p, s = TP + 8 * (j % NTP), PQ + 2 * (j % 2), XR + 4 * (j % R)
        e(f"v_mfma_f32_16x16x16_bf16 {vr(t+4*h,4)}, {vr(p,2)}, {vr(s+2*h,2)}, 0")

    def rl(j):
        e(f"v_readlane_b32 s{SK + (j + D) % 16}, v{K}, {j}")

    def sand(j):
        e(f"s_and_b32 s{sOFF}, s{SK + (j + D) % 16}, s{sNR}")

    def xl(j):
        e(f"buffer_load_dwordx4 {vr(XR + 4 * ((j + D) % R),4)}, v{X16}, {sr(sX)}, s{sOFF} offen")

    def on(j):
        e(f"s_set_gpr_idx_on s{SK + j % 16}, gpr_idx(SRC2,DST)")

    def nxt():
        e("s_waitcnt lgkmcnt(0)")
        ea_reads()
        al()

    if SCH == 0:
        for j in range(16):
            nx = pq(j + 1) if j < 15 else []
            e(f"s_waitcnt vmcnt({D-1})"); al()
            mf(j, 0); rl(j); e(*nx[:1]); mf(j, 1); e(*nx[1:])
            if j == 2:
                nxt()
            sand(j)
            on(j - 1) if j > 0 else al()
            xl(j)
            if j > 0:
                pks(j - 1)
                if j < 15:
                    e("s_set_gpr_idx_off")
            if j in (4, 8, 12):
                e(f"s_cmp_le_u32 s{sCNT}, {j}", "s_cbranch_scc1 L_swept")
        e(f"s_set_gpr_idx_idx s{SK + 15}", f"s_sub_i32 s{sCNT}, s{sCNT}, 16")
        pks(15)
        e("s_set_gpr_idx_off")
    if SCH == 1:
        for j in range(16):
            nx = pq(j + 1) if j < 15 else []
            e(f"s_waitcnt vmcnt({D-1})"); al()
            mf(j, 0); rl(j); e(*nx[:1]); mf(j, 1); e(*nx[1:])
            if j == 2:
                nxt()
            sand(j)
            if j > 0:
                on(j - 1); pks(j - 1)
            else:
                al()
            xl(j)
            if 0 < j < 15:
                e("s_set_gpr_idx_off")
            if j in (4, 8, 12):
                e(f"s_cmp_le_u32 s{sCNT}, {j}", "s_cbranch_scc1 L_swept")
        e(f"s_set_gpr_idx_idx s{SK + 15}", f"s_sub_i32 s{sCNT}, s{sCNT}, 16")
        pks(15)
        e("s_set_gpr_idx_off")
    if SCH == 2:
        for j in range(0, 16, 2):
            nx = pq(j + 1)
            e(f"s_waitcnt vmcnt({D-1})"); al()
            mf(j, 0); rl(j); e(*nx[:1]); mf(j, 1); e(*nx[1:])
            sand(j); e(f"s_waitcnt vmcnt({D-2})"); xl(j)
            nx = pq(j + 2) if j < 14 else []
            mf(j + 1, 0); rl(j + 1); e(*nx[:1]); mf(j + 1, 1); e(*nx[1:])
            if j == 2:
                nxt()
            sand(j + 1); on(j); xl(j + 1)
            pks(j)
            e(f"s_set_gpr_idx_idx s{SK + j + 1}")
            if j == 14:
                e(f"s_sub_i32 s{sCNT}, s{sCNT}, 16")
            al()
            pks(j + 1)
            e("s_set_gpr_idx_off")
            if j in (2, 6, 10):
                e(f"s_cmp_le_u32 s{sCNT}, {j+2}", "s_cbranch_scc1 L_swept")
    if SCH == 3:
        for j in range(16):
            nx = pq(j + 1) if j < 15 else []
            if j == 0:
                rl(0)
            sand(j); al(); xl(j)
            e(f"s_waitcnt vmcnt({D})"); al()
            mf(j, 0)
            if j < 15:
                rl(j + 1)
            e(*nx[:1]); mf(j, 1); e(*nx[1:])
            if j == 2:
                nxt()
            if j > 0:
                on(j - 1); al(); pks(j - 1)
                if j < 15:
                    e("s_set_gpr_idx_off")
            if j in (4, 8, 12):
                e(f"s_cmp_le_u32 s{sCNT}, {j}", "s_cbranch_scc1 L_swept")
        e(f"s_set_gpr_idx_idx s{SK + 15}", f"s_sub_i32 s{sCNT}, s{sCNT}, 16")
        pks(15)
        e("s_set_gpr_idx_off")
    e(f"s_cmp_gt_i32 s{sCNT}, 0", "s_cbranch_scc1 L_loop")
    e.label("L_swept", pad=8)
    for q in range(P["XDUM"]):
        e(f"s_mov_b32 s{sOFF}, 0xfffc00", f"buffer_load_dwordx4 {vr(XR,4)}, v{X16}, {sr(sX)}, s{sOFF} offen")
    ts.stamp("swept")
    e(f"s_add_u32 s{sROFF}, s{sROFF}, {CAPW}", f"s_cmp_lt_u32 s{sROFF}, s{sN}", "s_cbranch_scc1 L_again")
    e(f"v_lshlrev_b32 v{T}, 2, v{LANE}")
    for s in range(5):
        e(f"s_mul_i32 s{sT}, s{sNODE+s}, 9")
        for w in range(4):
            e(f"v_cvt_pk_bf16_f32 v{RW+4*s+w}, v{ACC+8*s+w}, v{ACC+8*s+4+w}")
        e(f"v_add_u32 v{RW+20+s}, s{sT}, v{T}")
        for w in (0, 2):
            e(f"ds_write2_b32 v{RW+20+s}, v{RW+4*s+w}, v{RW+4*s+w+1} offset0:{72*w} offset1:{72*w+72}")
    e(f"v_and_b32 v{T}, 15, v{LANE}", f"v_lshrrev_b32 v{T+1}, 4, v{LANE}", f"s_lshr_b32 s{sT}, s3, 2", f"s_mul_i32 s{sT2}, s{sT}, {5*4608}")
    e(f"v_mul_u32_u24 v{T+2}, 288, v{T}", f"v_lshl_add_u32 v{T+2}, v{T+1}, 4, v{T+2}", f"v_add_u32 v{T+2}, s{sT2}, v{T+2}")
    e(f"v_lshlrev_b32 v{T+1}, 10, v{T+1}", f"v_lshl_add_u32 v{T+1}, v{T}, 2, v{T+1}",
      f"s_mul_i32 s{sT}, s{sT}, 20480", f"s_and_b32 s{sT2}, s3, 3", f"s_lshl_b32 s{sT2}, s{sT2}, 6", f"s_add_u32 s{sT}, s{sT}, s{sT2}")
    e("s_waitcnt lgkmcnt(0)" if P["NOVM"] else "s_waitcnt vmcnt(0) lgkmcnt(0)", "s_barrier")
    ts.stamp("agb")
    AF, DD, PK = ACC, 128, 168

    def afrag(tl):
        for s in range(4):
            e(f"ds_read_b128 {vr(AF+16*tl+4*s,4)}, v{T+2} offset:{AGL + 4608*tl + 64*s}")

    afrag(0); afrag(1)

    def stores(tl):
        o = []
        for i in range(4):
            o.append(f"v_cvt_pk_bf16_f32 v{PK+4*tl+i}, v{DD+8*tl+i}, v{DD+8*tl+4+i}")
            if P["EPI"] != 8 or tl == 4:
                o.append(f"buffer_store_dword v{PK+4*tl+i}, v{T+1}, {sr(sOUT)}, s{sT} offen offset:{256*i} {P['OUTPOL']}")
        o.append(f"s_add_u32 s{sT}, s{sT}, 4096")
        return o

    for tl in range(5):
        if tl + 2 < 5:
            afrag(tl + 2)
        pend = stores(tl - 1) if tl > 0 else []
        for s in range(4):
            if P["EPI"] == 0 or tl == 0:
                e(f"s_waitcnt lgkmcnt({4 * min(2, 4 - tl) + 3 - s})")
            elif s == 0:
                e(f"s_waitcnt lgkmcnt({4 * min(2, 4 - tl)})")
            for t in range(2):
                c = "0" if s == 0 else vr(DD + 8 * tl + 4 * t, 4)
                if P["EPI"] != 9 or s == 0:
                    e(f"v_mfma_f32_16x16x32_bf16 {vr(DD+8*tl+4*t,4)}, {vr(AF+16*tl+4*s,4)}, {vr(WOF+8*s+4*t,4)}, {c}")
                if P["EPI"] == 1 and 2 * s + t >= 3:
                    e(*pend[:2]); pend = pend[2:]
        e(*pend)
    e(*stores(4))
    ts.stamp("stored")
    e("s_or_b32 s4, s2, s3", "s_cbranch_scc1 L_notag")
    e(f"v_mov_b32 v{T}, s{sTAG}", f"v_lshlrev_b32 v{T+2}, 2, v{LANE}", f"s_mov_b32 s{sT}, {WS_W}")
    e(f"buffer_store_dword v{T}, v{T+2}, {sr(sTAB)}, s{sT} offen sc1")
    e.label("L_notag")
    if P["DIAGW"]:
        e(f"s_add_u32 s6, s{sTSP+1}, {P['DIAGW']}", "s_min_u32 s6, s6, 30000")
        e.label("L_diag")
        e("s_memrealtime s[4:5]", "s_waitcnt lgkmcnt(0)", f"s_sub_u32 s4, s4, s{sTSP}", "s_cmp_lt_u32 s4, s6", "s_cbranch_scc1 L_diag")
    if P["DIAGC"]:
        e("s_memtime s[6:7]", "s_waitcnt lgkmcnt(0)")
        e.label("L_diag")
        e("s_memtime s[4:5]", "s_waitcnt lgkmcnt(0)", "s_sub_u32 s4, s4, s6", f"s_cmp_lt_u32 s4, {P['DIAGC']}", "s_cbranch_scc1 L_diag")
    if P["TS"]:
        e("s_waitcnt vmcnt(0)")
        ts.stamp("end")
        e(f"s_lshl_b32 s{sT}, s2, 3", f"s_add_u32 s{sT}, s{sT}, s3", f"s_lshl_b32 s{sT}, s{sT}, 8", f"s_add_u32 s{sT}, s{sT}, {WS_TS}")
        e(f"v_lshl_add_u32 v{T}, v{LANE}, 2, s{sT}", f"global_store_dword v{T}, v{TSV}, s[14:15]")
        if P["DBG"]:
            e(f"s_cmp_lg_u32 s2, {P['DBG']}", "s_cbranch_scc1 L_done", "s_cmp_lg_u32 s3, 0", "s_cbranch_scc1 L_done")
            e("s_load_dwordx2 s[4:5], s[0:1], 72", f"v_readlane_b32 s{sT}, v{TSV}, 0", f"v_lshlrev_b32 v{T}, 2, v{LANE}")
            e(f"v_subrev_u32 v{TSV}, s{sT}, v{TSV}", "s_waitcnt lgkmcnt(0)", f"global_store_dword v{T}, v{TSV}, s[4:5]")
    e.label("L_done")
    e("s_endpgm")
    e.label("L_again")
    e("s_waitcnt vmcnt(0) lgkmcnt(0)", "s_barrier")
    init_round(False)
    e(f"v_add_u32 v{RLEN}, v{RLEN}, v{RBASE}", f"v_subrev_u32 v{RLEN}, {CAPW}, v{RLEN}", f"v_max_i32 v{RLEN}, 0, v{RLEN}")
    e(f"v_subrev_u32 v{RBASE}, {CAPW}, v{RBASE}", f"v_max_i32 v{RBASE}, 0, v{RBASE}", f"v_sub_u32 v{RLEN}, v{RLEN}, v{RBASE}")
    e(f"v_add_u32 v{RG0}, {CAPW}, v{RG0}", f"s_sub_i32 s{sNW}, s{sNW}, {CAPW}", f"v_lshl_add_u32 v{T}, v{RBASE}, 2, v{cMAPW}")
    e("s_waitcnt lgkmcnt(0)", "s_barrier")
    e.label("L_clip")
    e(f"v_add_u32 v{T+2}, v{RBASE}, v{RLEN}", f"v_min_i32 v{T+2}, {CAPW}, v{T+2}", f"v_sub_u32 v{T+2}, v{T+2}, v{RBASE}", f"v_add_u32 v{T+2}, v{T+2}, v{cODD}")
    e.label("L_masks")
    e(*cmps)
    e("s_nop 0", "s_branch L_mapw")
    e.label("L_map2")
    e(f"v_add_u32 v{T}, {8*MU}, v{T}", f"v_subrev_u32 v{T+2}, {2*MU}, v{T+2}")
    e("s_branch L_masks")
    e.label("L_r1")
    e(f"ds_read_b32 v{G1+3}, v{cMAP1} offset:768", f"ds_read_b32 v{G2+6}, v{cMAP2} offset:768", f"ds_read_b32 v{G2+7}, v{cMAP2} offset:896")
    e("s_waitcnt lgkmcnt(0)")
    skld(3)
    for i in (6, 7):
        e(f"v_lshl_add_u32 v{G2+i}, v{G2+i}, 5, v{X16}")
        bea1(i)
    e("s_branch L_r1b")
    e.label("L_r2")
    count(3)
    entry(3)
    e("s_branch L_r2b")
    e.label("L_r3")
    e(f"ds_read_b32 v{CA+3}, v{CA+3} offset:{CNT2}", "s_waitcnt lgkmcnt(0)")
    e(*place(3))
    e(f"ds_read_b32 v{G1+3}, v{G1+3} offset:{START}", "s_waitcnt lgkmcnt(0)")
    scatter(3)
    e("s_branch L_r3b")
    if P["PRIO"] == 2:
        e.label("L_prio")
        e("s_setprio 2", f"s_cmp_gt_u32 s{sCNT}, {2*P['PSTEP']}", "s_cbranch_scc1 L_prio_back")
        e("s_setprio 1", f"s_cmp_gt_u32 s{sCNT}, {P['PSTEP']}", "s_cbranch_scc1 L_prio_back")
        e("s_setprio 0", "s_branch L_prio_back")
    e.label("L_poll")
    e(poll1, f"s_sub_u32 s{sCNT}, s{sCNT}, 1", "s_cbranch_scc1 L_done", "s_waitcnt vmcnt(0)")
    tagcheck()
    e("s_cbranch_execnz L_poll", "s_branch L_polled")
    e.label("L_rank2")
    for j in range(5):
        e(f"ds_read_b32 v{CN+j}, v{cROW} offset:{CNT2 + 128*j}")
    bea(5)
    e("s_waitcnt lgkmcnt(0)")
    e.label("L_end")
    e("s_branch L_ranked")
    return e.text(), LDS, 256, 102


HEADER = """; Kernarg layout for this problem (88 bytes, ptrs only, base s[0:1]):
"""


def generate(**kw):
    P = dict(DEF)
    P.update(kw)
    k, lds, v, s = gen(P)
    n = NAME + "_kernel"
    out = HEADER
    out += f"; @launch grid=(256,1,1) block=(512,1,1) lds={lds}\n"
    out += '.amdgcn_target "amdgcn-amd-amdhsa--gfx950"\n.text\n'
    out += f".globl {n}\n.p2align 8\n.type {n},@function\n{n}:\n{k}"
    out += '.section .rodata,"a"\n'
    out += (f".p2align 6\n.amdhsa_kernel {n}\n  .amdhsa_next_free_vgpr {v}\n  .amdhsa_next_free_sgpr {s}\n"
            f"  .amdhsa_accum_offset {(v+3)//4*4}\n  .amdhsa_group_segment_fixed_size 0\n  .amdhsa_kernarg_size 88\n"
            f"  .amdhsa_user_sgpr_count 2\n  .amdhsa_user_sgpr_kernarg_segment_ptr 1\n  .amdhsa_system_sgpr_workgroup_id_x 1\n"
            f"  .amdhsa_float_denorm_mode_32 3\n.end_amdhsa_kernel\n")
    return out


if __name__ == "__main__":
    kw = {}
    for a in sys.argv[1:]:
        k, v = a.split("=", 1)
        kw[k] = int(v) if v.lstrip("-").isdigit() else v
    sys.stdout.write(generate(**kw))
```

```python
import sys, os
sys.path.insert(0, os.path.dirname(os.path.abspath(__file__)))
from emit import Emitter

NAME = "gather_scatter__tensor_product_equiv_mace__graph"
N, E = 10000, 320000
CH, NCH, CS = 1250, 256, 1280
WS_TAB, WS_W, WS_FL, WS_SK, WS_EA, WS_TS = 0, 0x80000, 0x90000, 0x100000, 0x500000, 0x2000000
CAPW, GAP = 256, 16
CAP = 8 * CAPW
SPIN = 200000

DEF = dict(EAF=1, EPI=2, SCH=2, XDUM=0, NOVM=1, PWAIT=2, ALIGN=1, PRIO=1, PSTEP=16, DIAGW=0, DIAGK=0, DIAGAT='tab', DIAGC=0, D=6, TS=0, DBG=0, APOL="nt", AEA="00222", BEA="011222", SKBAR=1, ABAR=2, SKEARLY=0, XPF=26, CPF=2, MU=7, OUTPOL="sc1", LDPOL="sc1", WST=3, WOST=3, ACCZ=2, CPOS=2, FRG=0, WGN=0, STH=0, STHN=5, ASTPOL='sc1')

PART39 = [[3, 11, 21, 31, 36], [5, 8, 20, 27, 38], [0, 6, 7, 13, 39], [9, 14, 18, 25, 34], [10, 16, 19, 24, 32], [4, 12, 26, 29, 33], [1, 17, 23, 28, 37], [2, 15, 22, 30, 35]]
PART40 = [[1, 10, 15, 30, 39], [2, 9, 21, 28, 37], [4, 14, 22, 27, 31], [6, 12, 18, 24, 35], [3, 8, 16, 29, 38], [5, 13, 17, 26, 34], [0, 20, 23, 32, 36], [7, 11, 19, 25, 33]]


def vr(a, n):
    return f"v[{a}:{a+n-1}]" if n > 1 else f"v{a}"


def sr(a, n=4):
    return f"s[{a}:{a+n-1}]"


def scan_dpp(e, v, full):
    for k in (1, 2, 4, 8):
        e(f"v_add_u32_dpp v{v}, v{v}, v{v} row_shr:{k} row_mask:0xf bank_mask:0xf")
    e(f"v_add_u32_dpp v{v}, v{v}, v{v} row_bcast:15 row_mask:0xa bank_mask:0xf")
    if full:
        e(f"v_add_u32_dpp v{v}, v{v}, v{v} row_bcast:31 row_mask:0xc bank_mask:0xf")


class TS:
    last = None

    def __init__(self, e, on, pair, vreg):
        self.e, self.on, self.pair, self.v, self.names = e, on, pair, vreg, []
        TS.last = self

    diag = None

    def stamp(self, name):
        if self.diag and self.diag[0] == name:
            self.e("s_memrealtime s[4:5]", "s_waitcnt lgkmcnt(0)", f"s_sub_u32 s4, s4, s{self.pair}", f"s_mul_i32 s{self.pair+1}, s4, {self.diag[1]}")
        if self.on and (self.on == 1 or name in str(self.on).split(",") or name in ("start", "end")):
            e, p = self.e, self.pair
            e(f"s_memrealtime s[{p}:{p+1}]", "s_waitcnt lgkmcnt(0)", f"v_writelane_b32 v{self.v}, s{p}, {len(self.names)}")
            self.names.append(name)


class VQ:
    def __init__(self, e):
        self.e, self.q = e, []

    def op(self, tag, text):
        self.e(text)
        self.q.append(tag)

    def n(self, tag):
        idx = max(i for i, t in enumerate(self.q) if t == tag)
        return len(self.q) - 1 - idx

    def wait(self, tag, extra=""):
        self.e(f"s_waitcnt vmcnt({self.n(tag)}) {extra}".strip())


def gen(P):
    e = Emitter()
    vq = VQ(e)
    D = P["D"]
    R = 8
    MAP, CNT2, WB, DEG, TOT, NODEOF, START, WR, WO = 0, 8192, 13312, 14336, 15360, 15616, 16384, 17408, 23552
    LIST = WO + 32768
    SHST = LIST + (CAP + 8 * GAP + 128) * 4
    EAST = SHST + CAP * 8
    assert SHST + CAP * 8 <= EAST
    LDS = EAST + CAP * 32
    AGL = 0
    ACNT, ASTART, AINV, ASKS = LIST, LIST + 1024, LIST + 2048, LIST + 7168
    assert ASKS + 16384 <= EAST
    LANE, X16, RLEN, RBASE, RG0, ONE, PFV = 1, 2, 3, 4, 5, 6, 7
    T = 8
    ACC, RW, XR, TP, AGN, PQ, EA0, EA1, WRF, CGF, ENT = 16, 64, 96, 128, 144, 160, 164, 168, 172, 188, 192
    MP, MQ = CGF + 2, CGF + 3
    K, KN, LA, LB, EAC, LAC, LBC, RT, TSV = 196, 197, 198, 199, 200, 201, 202, 203, 204
    WOF = 208
    cODD, cMAPW, cMAP1, cMAP2, cL12, cDEG, cSH, cR21, cROW, cTIE, cBIN, cNOD, cLST = range(240, 253)
    e.idx_range = {("v", i) for i in range(ACC, ACC + 48)}
    sX, sTAB, sSK, sEA, sA0, sA1, sOUT = 16, 20, 24, 28, 32, 36, 40
    sB, sNB, sNCNT, sN, sROFF, sNR, sNV, sBASE, sEM, sCNT, sT, sT2 = 44, 45, 46, 47, 48, 49, 50, 51, 52, 53, 54, 55
    sNODE = 56
    sOFF = 61
    sTAG, sTAG2 = 62, 63
    SK = 64
    sV = 80
    sM0, sM1 = 86, 88
    sASG = [90, 91, 92, 93, 94]
    sNW, sK4 = 95, 98
    sA2, sTSP = 96, 100
    ts = TS(e, P["TS"], sTSP, TSV)
    if P["DIAGW"]:
        ts.diag = (P["DIAGAT"], P["DIAGK"])
    apol, ldpol = P["APOL"], P["LDPOL"]
    astage = [int(c) for c in str(P["AEA"]).zfill(5)]
    bstage = [int(c) for c in str(P["BEA"]).zfill(6)]

    def srd(s, lo, hi, off, size):
        if off is None:
            e(f"s_mov_b32 s{s}, s{lo}", f"s_mov_b32 s{s+1}, s{hi}")
        else:
            e(f"s_add_u32 s{s}, s{lo}, {off}", f"s_addc_u32 s{s+1}, s{hi}, 0")
        e(f"s_mov_b32 s{s+2}, {size}", f"s_mov_b32 s{s+3}, 0x20000")

    def init_round(first):
        e(f"v_lshlrev_b32 v{T+3}, 2, v0", f"v_mov_b32 v{T+4}, 0x00700000", f"v_mov_b32 v{T+5}, 0")
        for i in range(4):
            e(f"ds_write_b32 v{T+3}, v{T+4} offset:{MAP + i*2048}")
        for i in range(4 if first else 3):
            e(f"ds_write_b32 v{T+3}, v{T+5} offset:{CNT2 + i*2048}")

    DSTV, SRCV, SHV, BK, BA, RK, NL, KEY, CT, ST, PS = 64, 68, 72, 80, 84, 88, 92, 96, 100, 104, 108
    TABV = 112
    OUTV = 128
    IV = 156
    CGR = 120
    if P["TS"]:
        e("s_memrealtime s[92:93]")
    e("s_cmp_ge_u32 s2, 256", "s_cbranch_scc1 L_done")
    e("s_load_dwordx4 s[4:7], s[0:1], 8")
    e("s_load_dwordx4 s[8:11], s[0:1], 24")
    e("s_load_dwordx2 s[14:15], s[0:1], 80")
    e(f"s_load_dwordx2 s[{SK}:{SK+1}], s[0:1], 0")
    e(f"s_load_dwordx2 s[{SK+2}:{SK+3}], s[0:1], 40")
    e(f"s_load_dwordx4 s[{SK+4}:{SK+7}], s[0:1], 48")
    e("s_load_dwordx2 s[12:13], s[0:1], 64")

    def cpf():
        e(f"s_getpc_b64 s[{sV}:{sV+1}]")
        e.label("L_pc")
        e(f"s_and_b32 s{sB}, s2, 0xf8", f"s_lshl_b32 s{sB}, s{sB}, 6")
        e(f"v_and_b32 v{T+3}, 0x180, v{T+2}", f"v_add_u32 v{T+3}, s{sB}, v{T+3}", f"v_min_u32 v{T+3}, L_end-L_pc, v{T+3}")
        e(f"v_mov_b32 v{TABV+1}, s{sV+1}", f"v_add_co_u32 v{TABV}, vcc, s{sV}, v{T+3}", f"v_addc_co_u32 v{TABV+1}, vcc, 0, v{TABV+1}, vcc")
        vq.op("cpf", f"global_load_dword v{TSV+1}, {vr(TABV,2)}, off")

    def srd_hi(s, size):
        e(f"s_mov_b32 s{s+2}, {size}", f"s_mov_b32 s{s+3}, 0x20000")

    def srd_lo(s, lo, off):
        e(f"s_add_u32 s{s}, s{lo}, {off}", f"s_addc_u32 s{s+1}, s{lo+1}, 0")

    e(f"v_lshlrev_b32 v{T+2}, 3, v0")
    if P["CPF"] == 2:
        cpf()
    e(f"v_lshrrev_b32 v{T}, 6, v0", f"v_and_b32 v{LANE}, 63, v0", f"v_lshlrev_b32 v{T+1}, 2, v0", f"v_mov_b32 v{T+5}, 0")
    e(f"v_readfirstlane_b32 s3, v{T}")
    e(f"ds_write_b32 v{T+1}, v{T+5} offset:{ACNT}", f"ds_write_b32 v{T+1}, v{T+5} offset:{AINV+3072}")
    e(f"s_mul_i32 s{sT}, s2, {CH*4}", f"s_mul_i32 s{sT2}, s2, {CH*8}", f"s_mul_i32 s{sOFF}, s2, {CH*32}")
    e(f"v_lshlrev_b32 v{X16}, 4, v{LANE}", f"v_lshlrev_b32 v{T+7}, 4, v0", f"v_mov_b32 v{ONE}, 1")
    e(f"s_lshl_b32 s{sEM}, s3, 10", f"s_add_u32 s{sEM}, s{sEM}, {EAST}", f"s_movk_i32 s{sCNT}, 4096", f"s_movk_i32 s{sNV}, 8192")
    srd_hi(sA0, CH * 4); srd_hi(sA1, CH * 4); srd_hi(sA2, CH * 8); srd_hi(sEA, CH * 32)
    if P["DIAGW"]:
        e(f"s_memrealtime s[{sTSP}:{sTSP+1}]")
    e("s_waitcnt lgkmcnt(0)")
    if P["TS"]:
        e(f"v_writelane_b32 v{TSV}, s92, 0")
        ts.names.append("first")
    ts.stamp("start")
    srd_lo(sA0, 6, f"s{sT}")
    for i in range(3):
        o = f"0 offen offset:{2048*i}" if i < 2 else f"s{sCNT} offen"
        vq.op("dst", f"buffer_load_dword v{DSTV+i}, v{T+1}, {sr(sA0)}, {o} {apol}")
    srd_lo(sA1, 4, f"s{sT}")
    if P["ABAR"] == 2:
        e("s_barrier")
    for i in range(3):
        o = f"0 offen offset:{2048*i}" if i < 2 else f"s{sCNT} offen"
        vq.op("src", f"buffer_load_dword v{SRCV+i}, v{T+1}, {sr(sA1)}, {o} {apol}")
    e(f"s_load_dword s{sTAG}, s[14:15], {WS_W}")
    if P["CPF"] == 1:
        cpf()
    srd_lo(sA2, 8, f"s{sT2}")
    srd_lo(sEA, 10, f"s{sOFF}")
    if P["ABAR"] == 1:
        e("s_barrier")
    for i, o in enumerate(("0", f"s{sCNT}", f"s{sNV}")):
        vq.op("sh", f"buffer_load_dwordx2 {vr(SHV+2*i,2)}, v{T+2}, {sr(sA2)}, {o} offen {apol}")

    def aea(p):
        for i in range(5):
            if astage[i] == p:
                e(f"s_add_u32 m0, s{sEM}, {8192*i}", f"s_mov_b32 s{sT}, {8192*i}")
                vq.op("ea", f"buffer_load_dwordx4 v{T+7}, {sr(sEA)}, s{sT} offen {apol} lds")
        if P["WST"] == p:
            weights()
        if P["WOST"] == p:
            wout()

    def weights():
        e("s_cmp_lt_u32 s3, 4")
        e(f"s_cselect_b32 s{sX}, s{SK+4}, s{SK+2}", f"s_cselect_b32 s{sX+1}, s{SK+5}, s{SK+3}", f"s_movk_i32 s{sT}, 128",
          f"s_cselect_b32 s{sX+2}, s{sCNT}, s{sT}", f"s_mov_b32 s{sX+3}, 0x20000")
        e(f"s_min_u32 s{sT}, s3, 5", f"s_lshl_b32 s{sT}, s{sT}, 10", f"s_add_u32 m0, s{sT}, {WR}", f"s_and_b32 s{sT}, s{sT}, 0xc00")
        vq.op("w", f"buffer_load_dwordx4 v{X16}, {sr(sX)}, s{sT} offen lds")

    def wout():
        srd(sOUT, SK + 6, SK + 7, None, 32768)
        e(f"s_lshl_b32 s{sT2}, s3, 12", f"s_add_u32 m0, s{sT2}, {WO}")
        for i in range(4):
            vq.op("w", f"buffer_load_dwordx4 v{X16}, {sr(sOUT)}, s{sT2} offen offset:{i*1024} lds")

    aea(0)
    if not P["ABAR"]:
        e("s_barrier")
    e(f"s_mov_b32 s{SK+8}, 109951168", f"s_movk_i32 s{SK+9}, 625", f"s_movk_i32 s{SK+10}, 838")
    e(f"v_cmp_gt_u32 s[{sV+4}:{sV+5}], {CH-1024}, v0") if CH - 1024 <= 64 else e(f"s_movk_i32 s{sT}, {CH-1024}", f"v_cmp_gt_u32 s[{sV+4}:{sV+5}], s{sT}, v0")
    init_round(True)
    if P["ACCZ"] == 9:
        for i in range(48):
            e(f"v_mov_b32 v{ACC+i}, 0")
    vq.wait("dst")
    ts.stamp("dst")
    for k in range(3):
        e(f"v_mul_hi_u32 v{BK+k}, v{DSTV+k}, s{SK+8}")
    for k in range(3):
        e(f"v_lshlrev_b32 v{BA+k}, 2, v{BK+k}")
        if k == 2:
            e(f"s_mov_b64 exec, s[{sV+4}:{sV+5}]")
        e(f"ds_add_rtn_u32 v{RK+k}, v{BA+k}, v{ONE} offset:{ACNT}")
    e("s_mov_b64 exec, -1")
    e("s_waitcnt lgkmcnt(0)", "s_barrier")
    ts.stamp("hist")
    e(f"ds_read_b128 {vr(CT,4)}, v{X16} offset:{ACNT}")
    aea(1)
    for k in range(3):
        e(f"v_mad_u32_u24 v{NL+k}, v{BK+k}, s{SK+9}, 15", f"v_lshrrev_b32 v{NL+k}, 4, v{NL+k}", f"v_sub_u32 v{NL+k}, v{DSTV+k}, v{NL+k}")
        e(f"v_lshrrev_b32 v{BK+k}, 3, v{BK+k}", f"v_and_b32 v{BK+k}, 28, v{BK+k}")
    e("s_waitcnt lgkmcnt(0)")
    e(f"v_add_u32 v{T+3}, v{CT}, v{CT+1}", f"v_add3_u32 v{T+3}, v{T+3}, v{CT+2}, v{CT+3}", f"v_mov_b32 v{T+4}, v{T+3}")
    scan_dpp(e, T + 4, True)
    e(f"v_sub_u32 v{ST}, v{T+4}, v{T+3}")
    for k in range(3):
        e(f"v_add_u32 v{ST+1+k}, v{ST+k}, v{CT+k}")
    e(f"ds_write_b128 v{X16}, {vr(ST,4)} offset:{ASTART}")
    for k in range(3):
        e(f"ds_read_b32 v{PS+k}, v{BA+k} offset:{ASTART}")
    vq.wait("src")
    for k in range(3):
        e(f"v_mul_u32_u24 v{KEY+k}, s{SK+10}, v{SRCV+k}", f"v_lshrrev_b32 v{KEY+k}, 18, v{KEY+k}", f"v_sub_u32 v{KEY+k}, v{KEY+k}, v{BK+k}",
          f"v_and_b32 v{KEY+k}, 31, v{KEY+k}", f"v_lshl_or_b32 v{KEY+k}, v{NL+k}, 5, v{KEY+k}",
          f"v_lshlrev_b32 v{KEY+k}, 21, v{KEY+k}", f"v_lshl_or_b32 v{KEY+k}, v{SRCV+k}, 7, v{KEY+k}")
    e(f"v_lshlrev_b32 v{NL}, 5, v0", f"v_add_u32 v{NL+1}, {512*32}, v{NL}", f"v_add_u32 v{NL+2}, {1024*32}, v{NL}")
    e(f"s_mov_b32 s{sT2}, {ASKS}")
    vq.wait("sh", "lgkmcnt(0)")
    for k in range(3):
        e(f"v_add_u32 v{PS+k}, v{PS+k}, v{RK+k}")
        e(f"v_lshlrev_b32 v{BA+k}, 2, v{PS+k}", f"v_mad_u32_u24 v{PS+k}, v{PS+k}, 12, s{sT2}")
        if k == 2:
            e(f"s_mov_b64 exec, s[{sV+4}:{sV+5}]")
        e(f"ds_write_b32 v{BA+k}, v{NL+k} offset:{AINV}")
        e(f"ds_write2_b32 v{PS+k}, v{SHV+2*k}, v{SHV+2*k+1} offset0:0 offset1:1")
        e(f"ds_write_b32 v{PS+k}, v{KEY+k} offset:8")
    e("s_mov_b64 exec, -1")
    aea(2)
    e(f"s_mul_i32 s{sTAG}, s{sTAG}, 0x9e3779b1", f"s_add_u32 s{sTAG}, s{sTAG}, 0x7f4a7c15")
    e(f"s_mul_i32 s{sTAG2}, s{sTAG}, 0x85ebca6b", f"s_and_b32 s{sTAG2}, s{sTAG2}, 0xffc00000")
    e(f"s_lshl_b32 s{sT}, s3, 7", f"v_lshl_add_u32 v{T+3}, v{LANE}, 3, s{sT}")
    e(f"ds_read_b64 {vr(CT,2)}, v{T+3} offset:{ACNT}", f"ds_read_b64 {vr(ST,2)}, v{T+3} offset:{ASTART}")
    e(f"s_mul_i32 s{sT}, s2, {CS*12}", f"s_add_u32 s{sT}, s{sT}, {WS_SK}")
    srd(sA0, 14, 15, f"s{sT}", CS * 12)
    e(f"s_mul_i32 s{sT}, s2, {CS*32}", f"s_add_u32 s{sT}, s{sT}, {WS_EA}")
    srd(sA1, 14, 15, f"s{sT}", CH * 32)
    e(f"v_lshrrev_b32 v{T+3}, 1, v0", f"v_lshlrev_b32 v{T+3}, 2, v{T+3}")
    e(f"v_and_b32 v{T+4}, 1, v0", f"v_lshlrev_b32 v{T+4}, 4, v{T+4}", f"v_add_u32 v{T+4}, {EAST}, v{T+4}", f"v_add_u32 v{T+6}, {ASKS}, v{T+7}")
    e("s_waitcnt lgkmcnt(0)", "s_barrier")
    ts.stamp("scat")
    e(f"ds_read_b128 {vr(OUTV,4)}, v{T+6}", f"ds_read_b128 {vr(OUTV+4,4)}, v{T+6} offset:8192")
    for i in range(5):
        e(f"ds_read_b32 v{IV+i}, v{T+3} offset:{AINV + i*1024}")
    aea(3)

    def skst():
        vq.op("skst", f"buffer_store_dwordx4 {vr(OUTV,4)}, v{T+7}, {sr(sA0)}, 0 offen {P['ASTPOL']}")
        if P["STH"] == 1 and not P["SKEARLY"]:
            e("s_waitcnt vmcnt(0)")
        vq.op("skst", f"buffer_store_dwordx4 {vr(OUTV+4,4)}, v{T+7}, {sr(sA0)}, s{sNV} offen {P['ASTPOL']}")

    def frag_r(F0, t0, t1, t2):
        e(f"v_lshrrev_b32 v{t0}, 5, v{LANE}", f"v_lshlrev_b32 v{t0}, 11, v{t0}", f"v_and_b32 v{t1}, 15, v{LANE}", f"v_lshl_add_u32 v{t0}, v{t1}, 4, v{t0}")
        for i in range(8):
            e(f"ds_read_b128 {vr(F0+4*i,4)}, v{t0} offset:{WR + 256*i}")
        e(f"v_lshrrev_b32 v{t0}, 4, v{LANE}", f"v_lshlrev_b32 v{t0}, 5, v{t0}", f"v_and_b32 v{t1}, 3, v{LANE}", f"v_lshl_add_u32 v{t0}, v{t1}, 1, v{t0}")
        for v in range(4):
            e(f"ds_read_u16 v{F0+32+v}, v{t0} offset:{WR + 4096 + 8*v}")
        e(f"v_bfe_i32 v{t2}, v{LANE}, 4, 1", f"v_and_b32 v{t2}, 0x02020202, v{t2}", f"v_add_u32 v{t2}, 0x05040100, v{t2}")
        e("s_waitcnt lgkmcnt(0)")
        for h in range(2):
            for t in range(2):
                for ip in range(4):
                    e(f"v_perm_b32 v{WRF+8*h+4*t+ip}, v{F0+4*(2*ip+1)+t+2*h}, v{F0+4*(2*ip)+t+2*h}, v{t2}")
        e(f"v_lshl_or_b32 v{CGF}, v{F0+33}, 16, v{F0+32}", f"v_lshl_or_b32 v{CGF+1}, v{F0+35}, 16, v{F0+34}")

    def frag_o(F0, t0, t1, sM):
        e(f"v_and_b32 v{t1}, 15, v{LANE}", f"v_lshrrev_b32 v{t0}, 4, v{LANE}", f"v_lshlrev_b32 v{t0}, 13, v{t0}", f"v_lshl_add_u32 v{t0}, v{t1}, 2, v{t0}",
          f"s_and_b32 s{sM}, s3, 3", f"s_lshl_b32 s{sM}, s{sM}, 6", f"s_add_u32 s{sM}, s{sM}, {WO}", f"v_add_u32 v{t0}, s{sM}, v{t0}")
        for s in range(4):
            for ip in range(4):
                e(f"ds_read2st64_b32 {vr(F0+8*s+2*ip,2)}, v{t0} offset0:{8*ip+s} offset1:{8*ip+4+s}")
        e(f"s_mov_b32 s{sM}, 0x05040100", f"s_mov_b32 s{sM+1}, 0x07060302")
        for s in range(4):
            e(f"s_waitcnt lgkmcnt({12-4*s})")
            for t in range(2):
                for ip in range(4):
                    e(f"v_perm_b32 v{WOF+8*s+4*t+ip}, v{F0+8*s+2*ip+1}, v{F0+8*s+2*ip}, s{sM+t}")

    def consts():
        e(f"s_and_b32 s{sB}, s2, 7", f"s_lshl_b32 s{sB}, s{sB}, 5", f"s_lshr_b32 s{sT}, s2, 3", f"s_add_u32 s{sB}, s{sB}, s{sT}")
        e(f"s_mul_i32 s{sNB}, s{sB}, 625", f"s_add_u32 s{sNCNT}, s{sNB}, 640", f"s_add_u32 s{sNB}, s{sNB}, 15",
          f"s_lshr_b32 s{sNB}, s{sNB}, 4", f"s_lshr_b32 s{sNCNT}, s{sNCNT}, 4", f"s_sub_u32 s{sNCNT}, s{sNCNT}, s{sNB}")
        e(f"s_mov_b32 s{sM0}, 0x0f0f0f0f", f"s_mov_b32 s{sM0+1}, 0x0f0f0f0f", f"s_mov_b32 s{sM1}, 0xf0f0f0f0", f"s_mov_b32 s{sM1+1}, 0xf0f0f0f0")
        for i in range(8):
            e(f"v_mov_b32 v{EA0+i}, 0")
        e(f"v_and_b32 v{T+3}, 4, v{LANE}", f"v_lshlrev_b32 v{T+3}, 2, v{T+3}", f"v_mov_b32 v{T+4}, 0xffff", f"v_lshlrev_b32 v{T+4}, v{T+3}, v{T+4}")
        e(f"v_bfe_i32 v{T+3}, v{LANE}, 3, 1", f"v_and_b32 v{MQ}, v{T+3}, v{T+4}", f"v_xor_b32 v{MP}, v{MQ}, v{T+4}")
        e(f"v_lshrrev_b32 v{EAC}, 5, v{LANE}", f"v_lshlrev_b32 v{EAC}, 4, v{EAC}", f"v_add_u32 v{EAC}, {EAST}, v{EAC}")
        e(f"v_and_b32 v{LAC}, 15, v{LANE}", f"v_lshlrev_b32 v{LAC}, 2, v{LAC}")
        e(f"v_bfe_u32 v{T+3}, v{LANE}, 3, 2", f"v_and_b32 v{T+4}, 3, v{LANE}", f"v_lshl_add_u32 v{T+3}, v{T+3}, 2, v{T+4}", f"v_lshlrev_b32 v{LBC}, 2, v{T+3}")
        e(f"v_bfe_i32 v{cODD}, v0, 0, 1", f"s_lshl_b32 s{sT}, s3, 10", f"v_and_b32 v{cMAPW}, 4, v{cODD}", f"v_add_u32 v{cMAPW}, s{sT}, v{cMAPW}")
        e(f"v_lshl_add_u32 v{cMAP1}, v{LANE}, 2, s{sT}", f"v_lshrrev_b32 v{cMAP2}, 1, v{LANE}", f"v_lshl_add_u32 v{cMAP2}, v{cMAP2}, 2, s{sT}")
        e(f"v_mul_u32_u24 v{cL12}, 12, v{LANE}", f"v_and_b32 v{cDEG}, 12, v{cMAP1}", f"v_and_b32 v{cBIN}, 124, v{cMAP1}")
        e(f"v_lshlrev_b32 v{cSH}, 1, v{cMAP1}", f"v_add_u32 v{cSH}, {SHST}, v{cSH}", f"v_lshlrev_b32 v{cR21}, 19, v{cMAP1}")
        e(f"s_mul_i32 s{sT}, s3, 640", f"v_add_u32 v{cROW}, s{sT}, v{cBIN}", f"v_sub_u32 v{cTIE}, 63, v{LANE}")
        e(f"s_lshl_b32 s{sT}, s3, 5", f"v_lshl_add_u32 v{cNOD}, v{LANE}, 2, s{sT}")
        e(f"v_lshrrev_b32 v{cLST}, 3, v{LANE}", f"v_mul_u32_u24 v{cLST}, {GAP*4}, v{cLST}", f"v_add_u32 v{cLST}, {LIST}, v{cLST}")
        e(f"s_cmp_eq_u32 s{sNCNT}, 40")
        tabs = []
        for part in (PART39, PART40):
            t = [0] * 40
            for w, p in enumerate(part):
                for sl, r in enumerate(p):
                    t[r] = w * 8 + sl
            tabs.append([sum(t[5 * q + i] << (6 * i) for i in range(5)) for q in range(8)])
        e(f"v_mov_b32 v{RT}, 0")
        for q in range(8):
            e(f"s_mov_b32 s{sT}, {tabs[0][q]}", f"s_cselect_b32 s{sT}, {tabs[1][q]}, s{sT}")
            m = 31 << (5 * q)
            e(f"s_mov_b32 exec_lo, {m & 0xffffffff}", f"s_mov_b32 exec_hi, {m >> 32}", f"v_mov_b32 v{RT}, s{sT}")
        e("s_mov_b64 exec, -1")
        e(f"v_mul_u32_u24 v{T+3}, 52, v{LANE}", f"v_lshrrev_b32 v{T+3}, 8, v{T+3}", f"v_mad_i32_i24 v{T+3}, v{T+3}, -5, v{LANE}",
          f"v_mul_u32_u24 v{T+3}, 6, v{T+3}", f"v_lshrrev_b32 v{RT}, v{T+3}, v{RT}")
        e(f"v_and_b32 v{T+3}, 7, v{RT}", f"v_bfe_u32 v{RT}, v{RT}, 3, 3", f"v_lshlrev_b32 v{T+3}, 12, v{T+3}", f"v_lshl_or_b32 v{RT}, v{RT}, 7, v{T+3}")
        srd(sTAB, 14, 15, None, WS_W + 64)
        srd(sSK, 14, 15, WS_SK, NCH * CS * 12)

    def extra(pos):
        if P["CPOS"] == pos:
            consts()
        if P["ACCZ"] == pos:
            for i in range(48):
                e(f"v_mov_b32 v{ACC+i}, 0")

    e("s_waitcnt lgkmcnt(0)")
    if P["SKEARLY"]:
        skst()
    for i in range(5):
        e(f"v_add_u32 v{IV+i}, v{T+4}, v{IV+i}")
    for k in range(2):
        e(f"v_lshl_or_b32 v{TABV+2*k}, v{CT+k}, 11, v{ST+k}", f"v_or_b32 v{TABV+2*k}, s{sTAG2}, v{TABV+2*k}", f"v_mov_b32 v{TABV+2*k+1}, s{sTAG}")
    extra(0)
    e(f"s_waitcnt vmcnt({min(vq.n('w') + P['WGN'], vq.n('ea'))})")
    e("s_barrier")
    ts.stamp("land")
    for i in range(5):
        e(f"ds_read_b128 {vr(OUTV+8+4*i,4)}, v{IV+i}")
    extra(1)
    if P["FRG"] & 1:
        frag_r(RW, T, T + 1, T + 2)
    if P["FRG"] & 2:
        frag_o(RW, T, T + 1, SK + 8)
    ts.stamp("guard")
    if not P["SKEARLY"]:
        skst()
    for i in range(5):
        thr = f"vmcnt({P['STH']-1}) " if P["STH"] and i < P["STHN"] else ""
        e(f"s_mov_b32 s{sT}, {8192*i}", f"s_waitcnt {thr}lgkmcnt({4-i})")
        vq.op("st", f"buffer_store_dwordx4 {vr(OUTV+8+4*i,4)}, v{T+7}, {sr(sA1)}, s{sT} offen {P['ASTPOL']}")
    aea(4)
    ts.stamp("issued")

    extra(2)
    e(f"s_lshl_b32 s{sT}, s2, 3", f"s_add_u32 s{sT}, s{sT}, s3", f"s_lshl_b32 s{sT}, s{sT}, 8")
    srd(sX, SK, SK + 1, None, N * 1024)
    srd(sEA, 14, 15, WS_EA, NCH * CS * 32)
    if P["XPF"]:
        n = P["XPF"]
        e(f"s_and_b32 s{sBASE}, s2, 7", f"s_mul_i32 s{sBASE}, s{sBASE}, {1252*1024}", f"s_and_b32 s{sT2}, s2, 0xf8",
          f"s_add_u32 s{sT2}, s{sT2}, s3", f"s_mul_i32 s{sT2}, s{sT2}, {n*128}", f"s_add_u32 s{sBASE}, s{sBASE}, s{sT2}")
        e(f"v_min_u32 v{T+6}, {n-1}, v{LANE}", f"v_lshlrev_b32 v{T+6}, 7, v{T+6}")
    e("s_waitcnt vmcnt(0)", "s_barrier")
    ts.stamp("drained")
    e("s_mov_b64 exec, 0xffff")
    e(f"buffer_store_dwordx4 {vr(TABV,4)}, v{X16}, {sr(sTAB)}, s{sT} offen sc1")
    e("s_mov_b64 exec, -1")
    if P["XPF"]:
        e(f"buffer_load_dword v{PFV}, v{T+6}, {sr(sX)}, s{sBASE} offen")
    if P["WOST"] == 9:
        wout()
    e(f"s_lshl_b32 s{sT}, s{sNB}, 10", f"s_add_u32 s{sOUT}, s12, s{sT}", f"s_addc_u32 s{sOUT+1}, s13, 0",
      f"s_lshl_b32 s{sOUT+2}, s{sNCNT}, 10", f"s_mov_b32 s{sOUT+3}, 0x20000")
    if not P["FRG"] & 1:
        frag_r(RW, T, T + 1, T + 2)
    if P["WOST"] != 9 and not P["FRG"] & 2:
        frag_o(128, T, T + 1, SK + 8)
    extra(3)
    e(f"v_lshrrev_b32 v{T+1}, 1, v0", f"v_lshlrev_b32 v{T+2}, 11, v{T+1}", f"s_lshl_b32 s{sNR}, s{sB}, 3")
    e(f"v_mul_u32_u24 v{RG0}, {CS}, v{T+1}", f"s_mov_b32 s{sROFF}, 0", f"s_mov_b32 s{sCNT}, {SPIN}", f"s_mov_b32 s{sT2}, 0xffc00000")
    e(f"s_lshl_b32 s{sEM}, s3, 13", f"s_add_u32 s{sEM}, s{sEM}, {EAST}", f"s_movk_i32 s{sK4}, 4096")
    if P["PWAIT"]:
        e("s_waitcnt vmcnt(0)")
    if P["PWAIT"] == 2:
        e("s_barrier")
    ts.stamp("frag")
    PL = 206
    poll1 = f"buffer_load_dwordx2 {vr(PL,2)}, v{T+2}, {sr(sTAB)}, s{sNR} offen sc1"

    def tagcheck():
        e(f"v_xor_b32 v{T+3}, s{sTAG2}, v{PL}", f"v_xor_b32 v{T+4}, s{sTAG}, v{PL+1}", f"v_and_or_b32 v{T+3}, v{T+3}, s{sT2}, v{T+4}")
        e(f"v_cmpx_ne_u32 vcc, 0, v{T+3}")

    e(poll1, "s_waitcnt vmcnt(0)")
    tagcheck()
    e("s_cbranch_execnz L_poll")
    e.label("L_polled")
    e("s_mov_b64 exec, -1")
    ts.stamp("tab")
    G1, G2, SKR, RNK, CA = RW, RW + 4, RW + 12, TP, TP + 4
    MU = P["MU"]
    sVm = [sV, sV + 2, sV + 4, sA2]

    def bea1(i):
        e(f"s_add_u32 m0, s{sEM}, {4096*(i//4)}")
        vq.op("ea", f"buffer_load_dwordx4 v{G2+i}, {sr(sEA)}, {'0' if i < 4 else 's%d' % sK4} offen offset:{1024*(i%4)} {ldpol} lds")

    def bea(p):
        for i in range(6):
            if bstage[i] == p:
                bea1(i)

    def skld(i):
        e(f"v_mad_u32_u24 v{G1+i}, v{G1+i}, 12, v{cL12}")
        vq.op(f"sk{i}", f"buffer_load_dwordx3 {vr(SKR+4*i,3)}, v{G1+i}, {sr(sSK)}, 0 offen offset:{768*i} {ldpol}")

    cmps = [f"v_cmp_lt_i32 s[{SK+2*i}:{SK+2*i+1}], {2*i}, v{T+2}" for i in range(MU + 1)]
    e(f"v_bfe_u32 v{RLEN}, v{PL}, 11, 11", f"v_and_b32 v{RBASE}, v{RLEN}, v{cODD}", f"v_add_u32 v{T+2}, v{RLEN}, v{cODD}")
    fill = [f"v_and_b32 v{T+3}, 0x7ff, v{PL}"] + cmps + [f"v_add_u32 v{RG0}, v{RG0}, v{T+3}"]
    e(fill.pop(0))
    for mod in ("row_shr:1 row_mask:0xf", "row_shr:2 row_mask:0xf", "row_shr:4 row_mask:0xf", "row_shr:8 row_mask:0xf", "row_bcast:15 row_mask:0xa", "row_bcast:31 row_mask:0xc"):
        e(f"v_add_u32_dpp v{RBASE}, v{RBASE}, v{RBASE} {mod} bank_mask:0xf")
        e(*fill[:2]); fill = fill[2:]
    e(f"v_readlane_b32 s{sNW}, v{RBASE}, 63")
    e(f"v_mov_b32_dpp v{RBASE}, v{RBASE} quad_perm:[0,0,2,2] row_mask:0xf bank_mask:0xf")
    e(f"v_sub_u32 v{RG0}, v{RG0}, v{RBASE}")
    e(f"v_lshl_add_u32 v{T}, v{RBASE}, 2, v{cMAPW}")
    e(f"s_cmp_gt_u32 s{sNW}, {CAPW}", "s_cbranch_scc1 L_clip")
    e.label("L_mapw")
    for i in range(MU):
        e(f"s_mov_b64 exec, s[{SK+2*i}:{SK+2*i+1}]")
        e(f"ds_write_b32 v{T}, v{RG0} offset:{8*i}")
    e("s_mov_b64 exec, -1")
    e(f"s_cmp_lg_u64 s[{SK+2*MU}:{SK+2*MU+1}], 0", "s_cbranch_scc1 L_map2")
    for i in range(3):
        e(f"ds_read_b32 v{G1+i}, v{cMAP1} offset:{256*i}")
    for i in range(6):
        e(f"ds_read_b32 v{G2+i}, v{cMAP2} offset:{128*i}")
    e(f"s_cmp_gt_i32 s{sNW}, 192", "s_cbranch_scc1 L_r1")
    e.label("L_r1b")
    e("s_waitcnt lgkmcnt(6)")
    ts.stamp("map")
    for i in range(3):
        skld(i)
    e(f"v_mov_b32 v{T+3}, s{sNW}", "s_mov_b64 exec, 1", f"ds_max_i32 v{T+5}, v{T+3} offset:{TOT}", "s_mov_b64 exec, -1")
    e("s_waitcnt lgkmcnt(1)")
    for i in range(6):
        e(f"v_lshl_add_u32 v{G2+i}, v{G2+i}, 5, v{X16}")
    if P["SKBAR"]:
        e("s_barrier")
    ts.stamp("skiss")
    bea(0)
    for i in range(4):
        e(f"v_add_u32 v{T+3}, {64*i}, v{LANE}", f"v_cmp_gt_i32 s[{sVm[i]}:{sVm[i]+1}], s{sNW}, v{T+3}")
    e(f"s_mov_b32 s{sT2}, 0x1fff80", f"s_mul_i32 s{sOFF}, s3, 5")

    def count(i):
        key = SKR + 4 * i + 2
        e(f"v_lshrrev_b32 v{CA+i}, 21, v{key}", f"v_lshlrev_b32 v{CA+i}, 2, v{CA+i}")
        e(f"v_lshrrev_b32 v{T+3}, 26, v{key}", f"v_lshl_or_b32 v{T+3}, v{T+3}, 4, v{cDEG}")
        e(f"s_mov_b64 exec, s[{sVm[i]}:{sVm[i]+1}]")
        e(f"ds_add_rtn_u32 v{RNK+i}, v{CA+i}, v{ONE} offset:{CNT2}")
        e(f"ds_add_u32 v{T+3}, v{ONE} offset:{DEG}")
        e("s_mov_b64 exec, -1")

    def entry(i):
        key = SKR + 4 * i + 2
        e(f"ds_write_b64 v{cSH}, {vr(SKR+4*i,2)} offset:{512*i}")
        e(f"v_and_or_b32 v{key}, v{key}, s{sT2}, v{cR21}")
        if i:
            e(f"v_add_u32 v{key}, {64*i << 21}, v{key}")

    for i in range(3):
        vq.wait(f"sk{i}")
        if i == 0:
            ts.stamp("sk")
        count(i)
    e(f"s_cmp_gt_i32 s{sNW}, 192", "s_cbranch_scc1 L_r2")
    e.label("L_r2b")
    for i in range(3):
        entry(i)
    ts.stamp("atom")
    bea(1)
    e("s_waitcnt lgkmcnt(3)", "s_barrier")
    ts.stamp("b1")
    CN, CAD = XR, XR + 8
    e(f"s_cmp_lg_u32 s{sROFF}, 0", "s_cbranch_scc1 L_rank2")
    e(f"ds_read_b128 {vr(CAD,4)}, v{X16} offset:{DEG}")
    for j in range(5):
        e(f"ds_read_b32 v{CN+j}, v{cROW} offset:{CNT2 + 128*j}")
    e(f"ds_read_b32 v{T+6}, v{T+5} offset:{TOT}")
    bea(5)
    for j in range(1, 5):
        e(f"s_add_u32 s{SK+j}, s{sOFF}, {j}")
    e("s_waitcnt lgkmcnt(6)")
    e(f"v_add_u32 v{T+1}, v{CAD}, v{CAD+1}", f"v_add3_u32 v{T+1}, v{T+1}, v{CAD+2}, v{CAD+3}")
    e(f"v_lshl_or_b32 v{T+1}, v{T+1}, 6, v{cTIE}")
    for j in range(5):
        e(f"v_readlane_b32 s{SK+j}, v{T+1}, s{SK+j if j else sOFF}")
    for j in range(5):
        e(f"v_cmp_lt_u32 s[{SK+6+2*j}:{SK+7+2*j}], s{SK+j}, v{T+1}")
    for j in range(5):
        e(f"s_bcnt1_i32_b64 s{SK+j}, s[{SK+6+2*j}:{SK+7+2*j}]")
    e("s_waitcnt lgkmcnt(0)")
    for j in range(5):
        e(f"v_readlane_b32 s{sASG[j]}, v{RT}, s{SK+j}")
    e(f"v_readfirstlane_b32 s{sN}, v{T+6}")
    e.label("L_ranked")
    e("s_mov_b32 exec_hi, 0")
    for j in range(5):
        e(f"s_and_b32 s{sT}, s{sASG[j]}, 0x380")
        e(f"v_add_u32 v{CAD+j}, s{sT}, v{cBIN}")
        e(f"ds_add_rtn_u32 v{CN+j}, v{CAD+j}, v{CN+j} offset:{WB}")
    for j in range(5):
        e(f"v_or_b32 v{CAD+j}, s{sASG[j]}, v{CAD+j}")
    for j in range(5):
        e(f"v_writelane_b32 v{T+3}, s{sASG[j]}, {j}")
    for j in range(5):
        e("s_waitcnt lgkmcnt(4)")
        e(f"v_lshl_or_b32 v{CN+j}, v{CN+j}, 16, v{CAD+j}")
        e(f"ds_write_b32 v{cROW}, v{CN+j} offset:{CNT2 + 128*j}")
    e(f"v_add_lshl_u32 v{T+4}, v{LANE}, s{sOFF}, 7")
    e(f"v_lshrrev_b32 v{T+1}, 10, v{T+3}", f"v_bfe_u32 v{T+3}, v{T+3}, 2, 8", f"v_or_b32 v{T+3}, v{T+3}, v{T+1}")
    e("s_mov_b32 exec_lo, 31")
    e(f"ds_write_b32 v{T+3}, v{T+4} offset:{NODEOF}")
    e("s_mov_b64 exec, -1")
    ts.stamp("rank")
    bea(2)
    e(f"s_lshl_b32 s{sT}, s3, 3", f"s_add_u32 s{sT2}, s{sT}, 7")
    e("s_waitcnt lgkmcnt(0)", "s_barrier")
    ts.stamp("b2")
    e(f"ds_read_b128 {vr(CN,4)}, v{X16} offset:{WB}")
    for i in range(3):
        e(f"ds_read_b32 v{CA+i}, v{CA+i} offset:{CNT2}")
    e(f"ds_read_b32 v{T+3}, v{cNOD} offset:{NODEOF}")
    bea(6)
    e("s_waitcnt lgkmcnt(4)")
    e(f"v_add_u32 v{T+1}, v{CN}, v{CN+1}", f"v_add3_u32 v{T+1}, v{T+1}, v{CN+2}, v{CN+3}", f"v_mov_b32 v{T+2}, v{T+1}")
    e("s_waitcnt lgkmcnt(1)")

    def place(i):
        key = SKR + 4 * i + 2
        return [f"v_bfe_u32 v{T+7}, v{CA+i}, 12, 3", f"v_or_b32 v{key}, v{T+7}, v{key}", f"v_and_b32 v{G1+i}, 0x3ff, v{CA+i}",
                f"v_lshrrev_b32 v{CA+i}, 16, v{CA+i}", f"v_add_u32 v{CA+i}, v{CA+i}, v{RNK+i}"]

    fill = place(0) + place(1) + place(2)
    e(fill.pop(0))
    for mod in ("row_shr:1 row_mask:0xf", "row_shr:2 row_mask:0xf", "row_shr:4 row_mask:0xf", "row_shr:8 row_mask:0xf", "row_bcast:15 row_mask:0xa", "row_bcast:31 row_mask:0xc"):
        e(f"v_add_u32_dpp v{T+2}, v{T+2}, v{T+2} {mod} bank_mask:0xf")
        e(*fill[:2]); fill = fill[2:]
    e(f"v_sub_u32 v{T+1}, v{T+2}, v{T+1}")
    e(f"v_lshl_add_u32 v{CAD}, v{T+1}, 2, v{cLST}")
    for k in range(3):
        e(f"v_lshl_add_u32 v{CAD+1+k}, v{CN+k}, 2, v{CAD+k}")
    e(f"ds_write_b128 v{X16}, {vr(CAD,4)} offset:{START}")
    for i in range(3):
        e(f"ds_read_b32 v{G1+i}, v{G1+i} offset:{START}")
    e(*fill)
    e(f"v_readlane_b32 s{sNV}, v{T+2}, s{sT2}", f"v_readlane_b32 s{sCNT}, v{T+1}, s{sT}", f"v_readlane_b32 s{sBASE}, v{CAD}, s{sT}")
    e(f"v_mov_b32 v{T+4}, {(0x3fff << 7) | 5}")
    e(f"s_sub_u32 s{sNV}, s{sNV}, s{sCNT}", f"s_lshl_b32 s{sT}, s{sNV}, 2")
    e(f"v_add_u32 v{LA}, s{sBASE}, v{LAC}", f"v_add_u32 v{LB}, s{sBASE}, v{LBC}", f"v_add_u32 v{T+1}, s{sT}, v{LA}")

    def scatter(i):
        e(f"v_lshl_add_u32 v{CA+i}, v{CA+i}, 2, v{G1+i}")
        e(f"s_mov_b64 exec, s[{sVm[i]}:{sVm[i]+1}]")
        e(f"ds_write_b32 v{CA+i}, v{SKR+4*i+2}")
        e("s_mov_b64 exec, -1")

    for i in range(3):
        e("s_waitcnt lgkmcnt(2)")
        scatter(i)
    e(f"ds_write_b32 v{T+1}, v{T+4}")
    e(f"s_cmp_gt_i32 s{sNW}, 192", "s_cbranch_scc1 L_r3")
    e.label("L_r3b")
    bea(3)
    for j in range(5):
        e(f"v_readlane_b32 s{sNODE+j}, v{T+3}, {j}")
    ts.stamp("list")
    if P["WOST"] == 9:
        frag_o(XR, PQ, PQ + 1, SK + 8)
    assert D == 6
    sP0 = sT
    e(f"s_add_u32 s{sP0}, s{sNV}, 1", f"s_and_b32 s{sP0}, s{sP0}, -2", f"s_add_u32 s{sCNT}, s{sP0}, 15", f"s_lshr_b32 s{sCNT}, s{sCNT}, 4",
      f"s_sub_u32 s{sP0}, 0, s{sP0}", f"s_and_b32 s{sP0}, s{sP0}, 15", f"s_sub_u32 s{sCNT}, s{sCNT}, 1", f"s_cmp_gt_i32 s{sCNT}, 0", f"s_cselect_b32 s{sP0}, s{sP0}, 0")
    e(f"s_lshl_b32 s{sOFF}, s{sP0}, 2", f"v_subrev_u32 v{LA}, s{sOFF}, v{LA}", f"v_subrev_u32 v{LB}, s{sOFF}, v{LB}",
      f"s_and_b32 s{sOFF}, s{sOFF}, 32", f"v_add_u32 v{T+4}, s{sOFF}, v{LA}", f"s_and_b32 s{SK+8}, s{sP0}, 6")
    e(f"s_mov_b32 s{sT2}, 0x00fffc38", f"s_mov_b32 s{sNR}, 0xffffff00", f"s_mov_b32 s{sBASE}, {SHST}")
    if P["PRIO"] == 1:
        e("s_cmp_lt_u32 s3, 4", "s_cbranch_scc1 L_np", "s_setprio 1")
        e.label("L_np")
    e("s_waitcnt vmcnt(0) lgkmcnt(0)", "s_barrier")
    ts.stamp("b4")
    e(f"ds_read_b32 v{K}, v{T+4}", f"ds_read_b32 v{ENT+2}, v{LB}", f"ds_read_b32 v{KN}, v{LA} offset:{4*D}")
    e(f"s_cmp_eq_u32 s{sNV}, 0", "s_cbranch_scc1 L_swept")
    AL = P["ALIGN"]

    def al():
        if AL:
            e(".p2align 3")

    def ea_reads():
        e(f"v_lshrrev_b32 v{T}, 21, v{ENT+2}", f"v_lshl_add_u32 v{T+3}, v{T}, 3, s{sBASE}", f"v_lshl_add_u32 v{T}, v{T}, 5, v{EAC}")
        e(f"ds_read_b64 {vr(ENT,2)}, v{T+3}")
        e(f"s_mov_b64 exec, s[{sM0}:{sM0+1}]", f"ds_read_b128 {vr(EA0,4)}, v{T}")
        e(f"s_mov_b64 exec, s[{sM1}:{sM1+1}]", f"ds_read_b128 {vr(EA1,4)}, v{T}")
        e("s_mov_b64 exec, -1")

    def pq(j):
        p = PQ + 2 * (j % 2)
        return [f"v_cvt_pk_bf16_f32 v{T+1+j%2}, v{AGN+j}, v{AGN+j}", f"v_and_b32 v{p}, v{MP}, v{T+1+j%2}", f"v_and_b32 v{p+1}, v{MQ}, v{T+1+j%2}"]

    def head(kind):
        e("s_waitcnt lgkmcnt(0)"); al()
        for q in range(4):
            e(f"v_mfma_f32_4x4x4_16b_bf16 {vr(AGN+4*q,4)}, {vr(ENT,2)}, {vr(CGF,2)}, 0 cbsz:4 abid:{2*q}")
        fill = [f"v_lshlrev_b32 v{K}, 3, v{KN}", f"v_and_b32 v{K}, s{sT2}, v{K}"]
        if kind != "last":
            fill += [f"v_add_u32 v{LA}, 64, v{LA}", f"v_add_u32 v{LB}, 64, v{LB}", f"ds_read_b32 v{KN}, v{LA} offset:{4*D}", f"ds_read_b32 v{ENT+2}, v{LB}"]
        groups = [fill[:4], fill[4:], pq(0) if kind != "first" else [], []]
        for q in range(4):
            h, t = q % 2, q // 2
            e(f"v_mfma_f32_32x32x16_bf16 {vr(RW+16*h,16)}, {vr(EA0+4*t,4)}, {vr(WRF+8*h+4*t,4)}, {vr(RW+16*h,16) if t else 0}")
            e(*groups[q])

    def pks(j):
        t = TP + 8 * (j % 2)
        for h in range(2):
            r = RW + 16 * h + j
            rp = r & ~1
            sel = "op_sel:[0,1,0] op_sel_hi:[1,1,1]" if r & 1 else "op_sel_hi:[1,0,1]"
            for q in range(2):
                a = ACC + 4 * h + 2 * q
                e(f"v_pk_fma_f32 {vr(a,2)}, {vr(t+4*h+2*q,2)}, {vr(rp,2)}, {vr(a,2)} {sel}")

    def mf(j, h):
        t, p, s = TP + 8 * (j % 2), PQ + 2 * (j % 2), XR + 4 * (j % R)
        e(f"v_mfma_f32_16x16x16_bf16 {vr(t+4*h,4)}, {vr(p,2)}, {vr(s+2*h,2)}, 0")

    def rl(q, lane):
        e(f"v_readlane_b32 s{SK + q % 8}, v{K}, {lane}")

    def sand(q):
        e(f"s_and_b32 s{sOFF}, s{SK + q % 8}, s{sNR}")

    def xl(q):
        e(f"buffer_load_dwordx4 {vr(XR + 4 * (q % R),4)}, v{X16}, {sr(sX)}, s{sOFF} offen")

    def body(last):
        for j in range(0, 16, 2):
            ld = not last or j + D < 16
            if not last or j == 0:
                e.label(f"L_{'f' if last else 'j'}{j}")
            nx = pq(j + 1)
            e(f"s_waitcnt vmcnt({D-1 if ld else 15-j})"); al()
            mf(j, 0)
            if ld:
                rl(j + D, j)
            e(*nx[:1]); mf(j, 1); e(*nx[1:])
            if ld and P["SCH"] == 2:
                sand(j + D); e(f"s_waitcnt vmcnt({D-2})"); xl(j + D)
            elif ld:
                sand(j + D); xl(j + D); e(f"s_waitcnt vmcnt({D-1})")
            else:
                e(f"s_waitcnt vmcnt({14-j})"); al()
            nx = pq(j + 2) if j < 14 else []
            mf(j + 1, 0)
            if ld:
                rl(j + 1 + D, j + 1)
            e(*nx[:1]); mf(j + 1, 1); e(*nx[1:])
            if j == 2 and not last:
                e("s_waitcnt lgkmcnt(0)")
                ea_reads(); al()
            if ld:
                sand(j + 1 + D)
            e(f"s_set_gpr_idx_on s{SK + j % 8}, gpr_idx(SRC2,DST)")
            xl(j + 1 + D) if ld else al()
            pks(j)
            e(f"s_set_gpr_idx_idx s{SK + (j + 1) % 8}")
            if j == 14 and not last:
                e(f"s_sub_u32 s{sCNT}, s{sCNT}, 1")
            al()
            pks(j + 1)
            e("s_set_gpr_idx_off")

    e("s_waitcnt lgkmcnt(1)")
    e(f"v_lshlrev_b32 v{K}, 3, v{K}", f"v_and_b32 v{K}, s{sT2}, v{K}")
    if P["EAF"]:
        ea_reads()
    for q in (2, 4, 6):
        e(f"s_cmp_eq_u32 s{SK+8}, {q}", f"s_cbranch_scc1 L_p{q}")
    for q in range(0, 12, 2):
        e.label(f"L_p{q}")
        rl(q, q); rl(q + 1, q + 1)
        sand(q); xl(q); sand(q + 1); xl(q + 1)
        if 4 <= q < 10:
            e(f"s_cmp_eq_u32 s{SK+8}, {q-4}", "s_cbranch_scc1 L_pd")
    e.label("L_pd")
    if not P["EAF"]:
        ea_reads()
    ts.stamp("b5")
    head("first")
    e(f"s_set_gpr_idx_on s{sP0}, gpr_idx(SRC0,SRC1)")
    e.idx_range, keep = {("v", i) for i in range(AGN, AGN + 16)}, e.idx_range
    e(pq(0)[0])
    e.idx_range = keep
    e("s_set_gpr_idx_off")
    e(*pq(0)[1:])
    e("s_waitcnt lgkmcnt(0)")
    ea_reads()
    e(f"s_cmp_eq_u32 s{sCNT}, 0", "s_cbranch_scc1 L_f0")
    for j in range(2, 16, 2):
        e(f"s_cmp_eq_u32 s{sP0}, {j}", f"s_cbranch_scc1 L_j{j}")
    e("s_branch L_j0")
    e(".p2align 3")
    e.label("L_loop")
    head("mid")
    body(False)
    e(f"s_cmp_lg_u32 s{sCNT}, 0", "s_cbranch_scc1 L_loop")
    head("last")
    body(True)
    e.label("L_swept")
    ts.stamp("swept")
    e(f"s_add_u32 s{sROFF}, s{sROFF}, {CAPW}", f"s_cmp_lt_u32 s{sROFF}, s{sN}", "s_cbranch_scc1 L_again")
    e(f"v_lshlrev_b32 v{T}, 2, v{LANE}")
    for s in range(5):
        e(f"s_mul_i32 s{sT}, s{sNODE+s}, 9")
        for w in range(4):
            e(f"v_cvt_pk_bf16_f32 v{RW+4*s+w}, v{ACC+8*s+w}, v{ACC+8*s+4+w}")
        e(f"v_add_u32 v{RW+20+s}, s{sT}, v{T}")
        for w in (0, 2):
            e(f"ds_write2_b32 v{RW+20+s}, v{RW+4*s+w}, v{RW+4*s+w+1} offset0:{72*w} offset1:{72*w+72}")
    e(f"v_and_b32 v{T}, 15, v{LANE}", f"v_lshrrev_b32 v{T+1}, 4, v{LANE}", f"s_lshr_b32 s{sT}, s3, 2", f"s_mul_i32 s{sT2}, s{sT}, {5*4608}")
    e(f"v_mul_u32_u24 v{T+2}, 288, v{T}", f"v_lshl_add_u32 v{T+2}, v{T+1}, 4, v{T+2}", f"v_add_u32 v{T+2}, s{sT2}, v{T+2}")
    if P["EPI"] >= 20:
        e(f"s_mul_i32 s{sT}, s{sT}, 20480", f"s_and_b32 s{sT2}, s3, 3", f"s_lshl_b32 s{sOFF}, s{sT2}, 2", f"s_add_u32 s{sCNT}, s{sT}, {EAST}")
        e(f"v_add_u32 v{T+1}, s{sOFF}, v{T+1}")
        e(f"v_and_b32 v{T+3}, 7, v{T}", f"v_xor_b32 v{T+3}, v{T+3}, v{T+1}", f"v_lshlrev_b32 v{T+3}, 4, v{T+3}",
          f"v_lshl_add_u32 v{T+3}, v{T}, 8, v{T+3}", f"v_add_u32 v{T+3}, s{sCNT}, v{T+3}")
        e(f"v_and_b32 v{T+4}, 7, v{T+1}", f"v_xor_b32 v{T+4}, v{T+4}, v{T}", f"v_lshlrev_b32 v{T+4}, 4, v{T+4}",
          f"v_lshl_add_u32 v{T+4}, v{T+1}, 8, v{T+4}", f"v_add_u32 v{T+4}, s{sCNT}, v{T+4}")
        e(f"s_lshl_b32 s{sT2}, s{sT2}, 10", f"s_add_u32 s{sT}, s{sT}, s{sT2}")
        e("s_waitcnt lgkmcnt(0)", "s_barrier")
        ts.stamp("agb")
        AF, DD, PK, RB = ACC, 128, 168, 176
        lq = []

        def lop(tag, text):
            e(text); lq.append(tag)

        def lwait(tag):
            n = len(lq) - 1 - max(i for i, t in enumerate(lq) if t == tag)
            e(f"s_waitcnt lgkmcnt({min(n, 15)})")

        def afrag(tl):
            for s in range(4):
                lop(f"a{tl}{s}", f"ds_read_b128 {vr(AF+16*tl+4*s,4)}, v{T+2} offset:{AGL + 4608*tl + 64*s}")

        def mm(tl, s):
            for t in range(2):
                c = "0" if s == 0 else vr(DD + 8 * tl + 4 * t, 4)
                e(f"v_mfma_f32_16x16x32_bf16 {vr(DD+8*tl+4*t,4)}, {vr(WOF+8*s+4*t,4)}, {vr(AF+16*tl+4*s,4)}, {c}")

        afrag(0); afrag(1)
        for tl in range(7):
            if tl < 5:
                if tl == 0:
                    lwait("a00"); mm(0, 0); lwait("a01"); mm(0, 1); lwait("a03")
                    afrag(2)
                else:
                    lwait(f"a{tl}3"); mm(tl, 0)
                    if tl + 2 < 5:
                        afrag(tl + 2)
                    mm(tl, 1)
            if 1 <= tl <= 5:
                p = PK + 4 * (tl % 2)
                for i in range(4):
                    e(f"v_cvt_pk_bf16_f32 v{p+i}, v{DD+8*(tl-1)+i}, v{DD+8*(tl-1)+4+i}")
                lop(f"w{tl-1}", f"ds_write_b128 v{T+3}, {vr(p,4)} offset:{4096*(tl-1)}")
            if tl < 5:
                mm(tl, 2)
            if tl >= 2:
                lwait(f"r{tl-2}")
                e(f"buffer_store_dwordx4 {vr(RB+4*(tl-2),4)}, v{X16}, {sr(sOUT)}, s{sT} offen {P['OUTPOL']}", f"s_add_u32 s{sT}, s{sT}, 4096")
            if 1 <= tl <= 5 and P["EPI"] == 21:
                lwait(f"w{tl-1}"); e("s_barrier")
                lop(f"r{tl-1}", f"ds_read_b128 {vr(RB+4*(tl-1),4)}, v{T+4} offset:{4096*(tl-1)}")
            if tl < 5:
                mm(tl, 3)
            if 1 <= tl <= 5 and P["EPI"] == 20:
                lwait(f"w{tl-1}"); e("s_barrier")
                lop(f"r{tl-1}", f"ds_read_b128 {vr(RB+4*(tl-1),4)}, v{T+4} offset:{4096*(tl-1)}")
    else:
        e(f"v_lshlrev_b32 v{T+1}, 10, v{T+1}", f"v_lshl_add_u32 v{T+1}, v{T}, 2, v{T+1}",
          f"s_mul_i32 s{sT}, s{sT}, 20480", f"s_and_b32 s{sT2}, s3, 3", f"s_lshl_b32 s{sT2}, s{sT2}, 6", f"s_add_u32 s{sT}, s{sT}, s{sT2}")
        e("s_waitcnt lgkmcnt(0)" if P["NOVM"] else "s_waitcnt vmcnt(0) lgkmcnt(0)", "s_barrier")
        ts.stamp("agb")
        AF, DD, PK = ACC, 128, 168

        def afrag(tl):
            for s in range(4):
                e(f"ds_read_b128 {vr(AF+16*tl+4*s,4)}, v{T+2} offset:{AGL + 4608*tl + 64*s}")

        afrag(0); afrag(1)

        def stores(tl):
            o = []
            for i in range(4):
                o.append(f"v_cvt_pk_bf16_f32 v{PK+4*tl+i}, v{DD+8*tl+i}, v{DD+8*tl+4+i}")
                if P["EPI"] != 8 or tl == 4:
                    o.append(f"buffer_store_dword v{PK+4*tl+i}, v{T+1}, {sr(sOUT)}, s{sT} offen offset:{256*i} {P['OUTPOL']}")
            o.append(f"s_add_u32 s{sT}, s{sT}, 4096")
            return o

        for tl in range(5):
            if tl + 2 < 5:
                afrag(tl + 2)
            pend = stores(tl - 1) if tl > 0 else []
            for s in range(4):
                if P["EPI"] == 0 or tl == 0:
                    e(f"s_waitcnt lgkmcnt({4 * min(2, 4 - tl) + 3 - s})")
                elif s == 0:
                    e(f"s_waitcnt lgkmcnt({4 * min(2, 4 - tl)})")
                for t in range(2):
                    c = "0" if s == 0 else vr(DD + 8 * tl + 4 * t, 4)
                    if P["EPI"] != 9 or s == 0:
                        e(f"v_mfma_f32_16x16x32_bf16 {vr(DD+8*tl+4*t,4)}, {vr(AF+16*tl+4*s,4)}, {vr(WOF+8*s+4*t,4)}, {c}")
                    if P["EPI"] == 1 and 2 * s + t >= 3:
                        e(*pend[:2]); pend = pend[2:]
            e(*pend)
        e(*stores(4))
    ts.stamp("stored")
    e("s_or_b32 s4, s2, s3", "s_cbranch_scc1 L_notag")
    e(f"v_mov_b32 v{T}, s{sTAG}", f"v_lshlrev_b32 v{T+2}, 2, v{LANE}", f"s_mov_b32 s{sT}, {WS_W}")
    e(f"buffer_store_dword v{T}, v{T+2}, {sr(sTAB)}, s{sT} offen sc1")
    e.label("L_notag")
    if P["DIAGW"]:
        e(f"s_add_u32 s6, s{sTSP+1}, {P['DIAGW']}", "s_min_u32 s6, s6, 30000")
        e.label("L_diag")
        e("s_memrealtime s[4:5]", "s_waitcnt lgkmcnt(0)", f"s_sub_u32 s4, s4, s{sTSP}", "s_cmp_lt_u32 s4, s6", "s_cbranch_scc1 L_diag")
    if P["DIAGC"]:
        e("s_memtime s[6:7]", "s_waitcnt lgkmcnt(0)")
        e.label("L_diag")
        e("s_memtime s[4:5]", "s_waitcnt lgkmcnt(0)", "s_sub_u32 s4, s4, s6", f"s_cmp_lt_u32 s4, {P['DIAGC']}", "s_cbranch_scc1 L_diag")
    if P["TS"]:
        e("s_waitcnt vmcnt(0)")
        ts.stamp("end")
        e(f"s_lshl_b32 s{sT}, s2, 3", f"s_add_u32 s{sT}, s{sT}, s3", f"s_lshl_b32 s{sT}, s{sT}, 8", f"s_add_u32 s{sT}, s{sT}, {WS_TS}")
        e(f"v_lshl_add_u32 v{T}, v{LANE}, 2, s{sT}", f"global_store_dword v{T}, v{TSV}, s[14:15]")
        if P["DBG"]:
            e(f"s_cmp_lg_u32 s2, {P['DBG']}", "s_cbranch_scc1 L_done", "s_cmp_lg_u32 s3, 0", "s_cbranch_scc1 L_done")
            e("s_load_dwordx2 s[4:5], s[0:1], 72", f"v_readlane_b32 s{sT}, v{TSV}, 0", f"v_lshlrev_b32 v{T}, 2, v{LANE}")
            e(f"v_subrev_u32 v{TSV}, s{sT}, v{TSV}", "s_waitcnt lgkmcnt(0)", f"global_store_dword v{T}, v{TSV}, s[4:5]")
    e.label("L_done")
    e("s_endpgm")
    e.label("L_again")
    e("s_waitcnt vmcnt(0) lgkmcnt(0)", "s_barrier")
    init_round(False)
    e(f"v_add_u32 v{RLEN}, v{RLEN}, v{RBASE}", f"v_subrev_u32 v{RLEN}, {CAPW}, v{RLEN}", f"v_max_i32 v{RLEN}, 0, v{RLEN}")
    e(f"v_subrev_u32 v{RBASE}, {CAPW}, v{RBASE}", f"v_max_i32 v{RBASE}, 0, v{RBASE}", f"v_sub_u32 v{RLEN}, v{RLEN}, v{RBASE}")
    e(f"v_add_u32 v{RG0}, {CAPW}, v{RG0}", f"s_sub_i32 s{sNW}, s{sNW}, {CAPW}", f"v_lshl_add_u32 v{T}, v{RBASE}, 2, v{cMAPW}")
    e("s_waitcnt lgkmcnt(0)", "s_barrier")
    e.label("L_clip")
    e(f"v_add_u32 v{T+2}, v{RBASE}, v{RLEN}", f"v_min_i32 v{T+2}, {CAPW}, v{T+2}", f"v_sub_u32 v{T+2}, v{T+2}, v{RBASE}", f"v_add_u32 v{T+2}, v{T+2}, v{cODD}")
    e.label("L_masks")
    e(*cmps)
    e("s_nop 0", "s_branch L_mapw")
    e.label("L_map2")
    e(f"v_add_u32 v{T}, {8*MU}, v{T}", f"v_subrev_u32 v{T+2}, {2*MU}, v{T+2}")
    e("s_branch L_masks")
    e.label("L_r1")
    e(f"ds_read_b32 v{G1+3}, v{cMAP1} offset:768", f"ds_read_b32 v{G2+6}, v{cMAP2} offset:768", f"ds_read_b32 v{G2+7}, v{cMAP2} offset:896")
    e("s_waitcnt lgkmcnt(0)")
    skld(3)
    for i in (6, 7):
        e(f"v_lshl_add_u32 v{G2+i}, v{G2+i}, 5, v{X16}")
        bea1(i)
    e("s_branch L_r1b")
    e.label("L_r2")
    count(3)
    entry(3)
    e("s_branch L_r2b")
    e.label("L_r3")
    e(f"ds_read_b32 v{CA+3}, v{CA+3} offset:{CNT2}", "s_waitcnt lgkmcnt(0)")
    e(*place(3))
    e(f"ds_read_b32 v{G1+3}, v{G1+3} offset:{START}", "s_waitcnt lgkmcnt(0)")
    scatter(3)
    e("s_branch L_r3b")
    e.label("L_poll")
    e(poll1, f"s_sub_u32 s{sCNT}, s{sCNT}, 1", "s_cbranch_scc1 L_done", "s_waitcnt vmcnt(0)")
    tagcheck()
    e("s_cbranch_execnz L_poll", "s_branch L_polled")
    e.label("L_rank2")
    for j in range(5):
        e(f"ds_read_b32 v{CN+j}, v{cROW} offset:{CNT2 + 128*j}")
    bea(5)
    e("s_waitcnt lgkmcnt(0)")
    e.label("L_end")
    e("s_branch L_ranked")
    return e.text(), LDS, 256, 102


HEADER = """; Kernarg layout for this problem (88 bytes, ptrs only, base s[0:1]):
"""


def generate(**kw):
    P = dict(DEF)
    P.update(kw)
    k, lds, v, s = gen(P)
    n = NAME + "_kernel"
    out = HEADER
    out += f"; @launch grid=(256,1,1) block=(512,1,1) lds={lds}\n"
    out += '.amdgcn_target "amdgcn-amd-amdhsa--gfx950"\n.text\n'
    out += f".globl {n}\n.p2align 8\n.type {n},@function\n{n}:\n{k}"
    out += '.section .rodata,"a"\n'
    out += (f".p2align 6\n.amdhsa_kernel {n}\n  .amdhsa_next_free_vgpr {v}\n  .amdhsa_next_free_sgpr {s}\n"
            f"  .amdhsa_accum_offset {(v+3)//4*4}\n  .amdhsa_group_segment_fixed_size 0\n  .amdhsa_kernarg_size 88\n"
            f"  .amdhsa_user_sgpr_count 2\n  .amdhsa_user_sgpr_kernarg_segment_ptr 1\n  .amdhsa_system_sgpr_workgroup_id_x 1\n"
            f"  .amdhsa_float_denorm_mode_32 3\n.end_amdhsa_kernel\n")
    return out


if __name__ == "__main__":
    kw = {}
    for a in sys.argv[1:]:
        k, v = a.split("=", 1)
        kw[k] = int(v) if v.lstrip("-").isdigit() else v
    sys.stdout.write(generate(**kw))
```

```python
import sys, os
sys.path.insert(0, os.path.dirname(os.path.abspath(__file__)))
from emit import Emitter

NAME = "gather_scatter__tensor_product_equiv_mace__graph"
N, E = 10000, 320000
CH, NCH, CS = 1250, 256, 1280
WS_TAB, WS_W, WS_FL, WS_SK, WS_EA, WS_TS = 0, 0x80000, 0x90000, 0x100000, 0x500000, 0x2000000
CAPW, GAP = 256, 16
CAP = 8 * CAPW
SPIN = 200000

DEF = dict(EAF=1, EPI=2, SCH=2, XDUM=0, NOVM=1, PWAIT=2, ALIGN=1, PRIO=1, PSTEP=16, DIAGL=0, DIAGW=0, DIAGK=0, DIAGAT='tab', DIAGC=0, D=6, TS=0, DBG=0, APOL="nt", AEA="00222", BEA="011222", SKBAR=1, ABAR=2, SKEARLY=0, XPF=26, CPF=2, MU=7, OUTPOL="sc1", LDPOL="sc1", WST=3, WOST=3, ACCZ=2, CPOS=2, FRG=0, WGN=0, STH=0, STHN=5, ASTPOL='sc1')

PART39 = [[3, 11, 21, 31, 36], [5, 8, 20, 27, 38], [0, 6, 7, 13, 39], [9, 14, 18, 25, 34], [10, 16, 19, 24, 32], [4, 12, 26, 29, 33], [1, 17, 23, 28, 37], [2, 15, 22, 30, 35]]
PART40 = [[1, 10, 15, 30, 39], [2, 9, 21, 28, 37], [4, 14, 22, 27, 31], [6, 12, 18, 24, 35], [3, 8, 16, 29, 38], [5, 13, 17, 26, 34], [0, 20, 23, 32, 36], [7, 11, 19, 25, 33]]


def vr(a, n):
    return f"v[{a}:{a+n-1}]" if n > 1 else f"v{a}"


def sr(a, n=4):
    return f"s[{a}:{a+n-1}]"


def scan_dpp(e, v, full):
    for k in (1, 2, 4, 8):
        e(f"v_add_u32_dpp v{v}, v{v}, v{v} row_shr:{k} row_mask:0xf bank_mask:0xf")
    e(f"v_add_u32_dpp v{v}, v{v}, v{v} row_bcast:15 row_mask:0xa bank_mask:0xf")
    if full:
        e(f"v_add_u32_dpp v{v}, v{v}, v{v} row_bcast:31 row_mask:0xc bank_mask:0xf")


class TS:
    last = None

    def __init__(self, e, on, pair, vreg):
        self.e, self.on, self.pair, self.v, self.names = e, on, pair, vreg, []
        TS.last = self

    diag = None

    def stamp(self, name):
        if self.diag and self.diag[0] == name:
            self.e("s_memrealtime s[4:5]", "s_waitcnt lgkmcnt(0)", f"s_sub_u32 s4, s4, s{self.pair}", f"s_mul_i32 s{self.pair+1}, s4, {self.diag[1]}")
        if self.on and (self.on == 1 or name in str(self.on).split(",") or name in ("start", "end")):
            e, p = self.e, self.pair
            e(f"s_memrealtime s[{p}:{p+1}]", "s_waitcnt lgkmcnt(0)", f"v_writelane_b32 v{self.v}, s{p}, {len(self.names)}")
            self.names.append(name)


class VQ:
    def __init__(self, e):
        self.e, self.q = e, []

    def op(self, tag, text):
        self.e(text)
        self.q.append(tag)

    def n(self, tag):
        idx = max(i for i, t in enumerate(self.q) if t == tag)
        return len(self.q) - 1 - idx

    def wait(self, tag, extra=""):
        self.e(f"s_waitcnt vmcnt({self.n(tag)}) {extra}".strip())


def gen(P):
    e = Emitter()
    vq = VQ(e)
    D = P["D"]
    R = 8
    MAP, CNT2, WB, DEG, TOT, NODEOF, START, WR, WO = 0, 8192, 13312, 14336, 15360, 15616, 16384, 17408, 23552
    LIST = WO + 32768
    SHST = LIST + (CAP + 8 * GAP + 128) * 4
    EAST = SHST + CAP * 8
    assert SHST + CAP * 8 <= EAST
    LDS = EAST + CAP * 32
    AGL = 0
    ACNT, ASTART, AINV, ASKS = LIST, LIST + 1024, LIST + 2048, LIST + 7168
    assert ASKS + 16384 <= EAST
    LANE, X16, RLEN, RBASE, RG0, ONE, PFV = 1, 2, 3, 4, 5, 6, 7
    T = 8
    ACC, RW, XR, TP, AGN, PQ, EA0, EA1, WRF, CGF, ENT = 16, 64, 96, 128, 144, 160, 164, 168, 172, 188, 192
    MP, MQ = CGF + 2, CGF + 3
    K, KN, LA, LB, EAC, LAC, LBC, RT, TSV = 196, 197, 198, 199, 200, 201, 202, 203, 204
    WOF = 208
    cODD, cMAPW, cMAP1, cMAP2, cL12, cDEG, cSH, cR21, cROW, cTIE, cBIN, cNOD, cLST = range(240, 253)
    e.idx_range = {("v", i) for i in range(ACC, ACC + 48)}
    sX, sTAB, sSK, sEA, sA0, sA1, sOUT = 16, 20, 24, 28, 32, 36, 40
    sB, sNB, sNCNT, sN, sROFF, sNR, sNV, sBASE, sEM, sCNT, sT, sT2 = 44, 45, 46, 47, 48, 49, 50, 51, 52, 53, 54, 55
    sNODE = 56
    sOFF = 61
    sTAG, sTAG2 = 62, 63
    SK = 64
    sV = 80
    sM0, sM1 = 86, 88
    sASG = [90, 91, 92, 93, 94]
    sNW, sK4 = 95, 98
    sA2, sTSP = 96, 100
    ts = TS(e, P["TS"], sTSP, TSV)
    if P["DIAGW"]:
        ts.diag = (P["DIAGAT"], P["DIAGK"])
    apol, ldpol = P["APOL"], P["LDPOL"]
    astage = [int(c) for c in str(P["AEA"]).zfill(5)]
    bstage = [int(c) for c in str(P["BEA"]).zfill(6)]

    def srd(s, lo, hi, off, size):
        if off is None:
            e(f"s_mov_b32 s{s}, s{lo}", f"s_mov_b32 s{s+1}, s{hi}")
        else:
            e(f"s_add_u32 s{s}, s{lo}, {off}", f"s_addc_u32 s{s+1}, s{hi}, 0")
        e(f"s_mov_b32 s{s+2}, {size}", f"s_mov_b32 s{s+3}, 0x20000")

    def init_round(first):
        e(f"v_lshlrev_b32 v{T+3}, 2, v0", f"v_mov_b32 v{T+4}, 0x00700000", f"v_mov_b32 v{T+5}, 0")
        for i in range(4):
            e(f"ds_write_b32 v{T+3}, v{T+4} offset:{MAP + i*2048}")
        for i in range(4 if first else 3):
            e(f"ds_write_b32 v{T+3}, v{T+5} offset:{CNT2 + i*2048}")

    DSTV, SRCV, SHV, BK, BA, RK, NL, KEY, CT, ST, PS = 64, 68, 72, 80, 84, 88, 92, 96, 100, 104, 108
    TABV = 112
    OUTV = 128
    IV = 156
    CGR = 120
    if P["TS"]:
        e("s_memrealtime s[92:93]")
    e("s_cmp_ge_u32 s2, 256", "s_cbranch_scc1 L_done")
    e("s_load_dwordx4 s[4:7], s[0:1], 8")
    e("s_load_dwordx4 s[8:11], s[0:1], 24")
    e("s_load_dwordx2 s[14:15], s[0:1], 80")
    e(f"s_load_dwordx2 s[{SK}:{SK+1}], s[0:1], 0")
    e(f"s_load_dwordx2 s[{SK+2}:{SK+3}], s[0:1], 40")
    e(f"s_load_dwordx4 s[{SK+4}:{SK+7}], s[0:1], 48")
    e("s_load_dwordx2 s[12:13], s[0:1], 64")

    def cpf():
        e(f"s_getpc_b64 s[{sV}:{sV+1}]")
        e.label("L_pc")
        e(f"s_and_b32 s{sB}, s2, 0xf8", f"s_lshl_b32 s{sB}, s{sB}, 6")
        e(f"v_and_b32 v{T+3}, 0x180, v{T+2}", f"v_add_u32 v{T+3}, s{sB}, v{T+3}", f"v_min_u32 v{T+3}, L_end-L_pc, v{T+3}")
        e(f"v_mov_b32 v{TABV+1}, s{sV+1}", f"v_add_co_u32 v{TABV}, vcc, s{sV}, v{T+3}", f"v_addc_co_u32 v{TABV+1}, vcc, 0, v{TABV+1}, vcc")
        vq.op("cpf", f"global_load_dword v{TSV+1}, {vr(TABV,2)}, off")

    def srd_hi(s, size):
        e(f"s_mov_b32 s{s+2}, {size}", f"s_mov_b32 s{s+3}, 0x20000")

    def srd_lo(s, lo, off):
        e(f"s_add_u32 s{s}, s{lo}, {off}", f"s_addc_u32 s{s+1}, s{lo+1}, 0")

    e(f"v_lshlrev_b32 v{T+2}, 3, v0")
    if P["CPF"] == 2:
        cpf()
    e(f"v_lshrrev_b32 v{T}, 6, v0", f"v_and_b32 v{LANE}, 63, v0", f"v_lshlrev_b32 v{T+1}, 2, v0", f"v_mov_b32 v{T+5}, 0")
    e(f"v_readfirstlane_b32 s3, v{T}")
    e(f"ds_write_b32 v{T+1}, v{T+5} offset:{ACNT}", f"ds_write_b32 v{T+1}, v{T+5} offset:{AINV+3072}")
    e(f"s_mul_i32 s{sT}, s2, {CH*4}", f"s_mul_i32 s{sT2}, s2, {CH*8}", f"s_mul_i32 s{sOFF}, s2, {CH*32}")
    e(f"v_lshlrev_b32 v{X16}, 4, v{LANE}", f"v_lshlrev_b32 v{T+7}, 4, v0", f"v_mov_b32 v{ONE}, 1")
    e(f"s_lshl_b32 s{sEM}, s3, 10", f"s_add_u32 s{sEM}, s{sEM}, {EAST}", f"s_movk_i32 s{sCNT}, 4096", f"s_movk_i32 s{sNV}, 8192")
    srd_hi(sA0, CH * 4); srd_hi(sA1, CH * 4); srd_hi(sA2, CH * 8); srd_hi(sEA, CH * 32)
    if P["DIAGW"] or P["DIAGL"]:
        e(f"s_memrealtime s[{sTSP}:{sTSP+1}]")
    e("s_waitcnt lgkmcnt(0)")
    if P["TS"]:
        e(f"v_writelane_b32 v{TSV}, s92, 0")
        ts.names.append("first")
    ts.stamp("start")
    srd_lo(sA0, 6, f"s{sT}")
    for i in range(3):
        o = f"0 offen offset:{2048*i}" if i < 2 else f"s{sCNT} offen"
        vq.op("dst", f"buffer_load_dword v{DSTV+i}, v{T+1}, {sr(sA0)}, {o} {apol}")
    srd_lo(sA1, 4, f"s{sT}")
    if P["ABAR"] == 2:
        e("s_barrier")
    for i in range(3):
        o = f"0 offen offset:{2048*i}" if i < 2 else f"s{sCNT} offen"
        vq.op("src", f"buffer_load_dword v{SRCV+i}, v{T+1}, {sr(sA1)}, {o} {apol}")
    e(f"s_load_dword s{sTAG}, s[14:15], {WS_W}")
    if P["CPF"] == 1:
        cpf()
    srd_lo(sA2, 8, f"s{sT2}")
    srd_lo(sEA, 10, f"s{sOFF}")
    if P["ABAR"] == 1:
        e("s_barrier")
    for i, o in enumerate(("0", f"s{sCNT}", f"s{sNV}")):
        vq.op("sh", f"buffer_load_dwordx2 {vr(SHV+2*i,2)}, v{T+2}, {sr(sA2)}, {o} offen {apol}")

    def aea(p):
        for i in range(5):
            if astage[i] == p:
                e(f"s_add_u32 m0, s{sEM}, {8192*i}", f"s_mov_b32 s{sT}, {8192*i}")
                vq.op("ea", f"buffer_load_dwordx4 v{T+7}, {sr(sEA)}, s{sT} offen {apol} lds")
        if P["WST"] == p:
            weights()
        if P["WOST"] == p:
            wout()

    def weights():
        e("s_cmp_lt_u32 s3, 4")
        e(f"s_cselect_b32 s{sX}, s{SK+4}, s{SK+2}", f"s_cselect_b32 s{sX+1}, s{SK+5}, s{SK+3}", f"s_movk_i32 s{sT}, 128",
          f"s_cselect_b32 s{sX+2}, s{sCNT}, s{sT}", f"s_mov_b32 s{sX+3}, 0x20000")
        e(f"s_min_u32 s{sT}, s3, 5", f"s_lshl_b32 s{sT}, s{sT}, 10", f"s_add_u32 m0, s{sT}, {WR}", f"s_and_b32 s{sT}, s{sT}, 0xc00")
        vq.op("w", f"buffer_load_dwordx4 v{X16}, {sr(sX)}, s{sT} offen lds")

    def wout():
        srd(sOUT, SK + 6, SK + 7, None, 32768)
        e(f"s_lshl_b32 s{sT2}, s3, 12", f"s_add_u32 m0, s{sT2}, {WO}")
        for i in range(4):
            vq.op("w", f"buffer_load_dwordx4 v{X16}, {sr(sOUT)}, s{sT2} offen offset:{i*1024} lds")

    aea(0)
    if not P["ABAR"]:
        e("s_barrier")
    e(f"s_mov_b32 s{SK+8}, 109951168", f"s_movk_i32 s{SK+9}, 625", f"s_movk_i32 s{SK+10}, 838")
    e(f"v_cmp_gt_u32 s[{sV+4}:{sV+5}], {CH-1024}, v0") if CH - 1024 <= 64 else e(f"s_movk_i32 s{sT}, {CH-1024}", f"v_cmp_gt_u32 s[{sV+4}:{sV+5}], s{sT}, v0")
    init_round(True)
    if P["ACCZ"] == 9:
        for i in range(48):
            e(f"v_mov_b32 v{ACC+i}, 0")
    vq.wait("dst")
    ts.stamp("dst")
    for k in range(3):
        e(f"v_mul_hi_u32 v{BK+k}, v{DSTV+k}, s{SK+8}")
    for k in range(3):
        e(f"v_lshlrev_b32 v{BA+k}, 2, v{BK+k}")
        if k == 2:
            e(f"s_mov_b64 exec, s[{sV+4}:{sV+5}]")
        e(f"ds_add_rtn_u32 v{RK+k}, v{BA+k}, v{ONE} offset:{ACNT}")
    e("s_mov_b64 exec, -1")
    e("s_waitcnt lgkmcnt(0)", "s_barrier")
    ts.stamp("hist")
    e(f"ds_read_b128 {vr(CT,4)}, v{X16} offset:{ACNT}")
    aea(1)
    for k in range(3):
        e(f"v_mad_u32_u24 v{NL+k}, v{BK+k}, s{SK+9}, 15", f"v_lshrrev_b32 v{NL+k}, 4, v{NL+k}", f"v_sub_u32 v{NL+k}, v{DSTV+k}, v{NL+k}")
        e(f"v_lshrrev_b32 v{BK+k}, 3, v{BK+k}", f"v_and_b32 v{BK+k}, 28, v{BK+k}")
    e("s_waitcnt lgkmcnt(0)")
    e(f"v_add_u32 v{T+3}, v{CT}, v{CT+1}", f"v_add3_u32 v{T+3}, v{T+3}, v{CT+2}, v{CT+3}", f"v_mov_b32 v{T+4}, v{T+3}")
    scan_dpp(e, T + 4, True)
    e(f"v_sub_u32 v{ST}, v{T+4}, v{T+3}")
    for k in range(3):
        e(f"v_add_u32 v{ST+1+k}, v{ST+k}, v{CT+k}")
    e(f"ds_write_b128 v{X16}, {vr(ST,4)} offset:{ASTART}")
    for k in range(3):
        e(f"ds_read_b32 v{PS+k}, v{BA+k} offset:{ASTART}")
    vq.wait("src")
    for k in range(3):
        e(f"v_mul_u32_u24 v{KEY+k}, s{SK+10}, v{SRCV+k}", f"v_lshrrev_b32 v{KEY+k}, 18, v{KEY+k}", f"v_sub_u32 v{KEY+k}, v{KEY+k}, v{BK+k}",
          f"v_and_b32 v{KEY+k}, 31, v{KEY+k}", f"v_lshl_or_b32 v{KEY+k}, v{NL+k}, 5, v{KEY+k}",
          f"v_lshlrev_b32 v{KEY+k}, 21, v{KEY+k}", f"v_lshl_or_b32 v{KEY+k}, v{SRCV+k}, 7, v{KEY+k}")
    e(f"v_lshlrev_b32 v{NL}, 5, v0", f"v_add_u32 v{NL+1}, {512*32}, v{NL}", f"v_add_u32 v{NL+2}, {1024*32}, v{NL}")
    e(f"s_mov_b32 s{sT2}, {ASKS}")
    vq.wait("sh", "lgkmcnt(0)")
    for k in range(3):
        e(f"v_add_u32 v{PS+k}, v{PS+k}, v{RK+k}")
        e(f"v_lshlrev_b32 v{BA+k}, 2, v{PS+k}", f"v_mad_u32_u24 v{PS+k}, v{PS+k}, 12, s{sT2}")
        if k == 2:
            e(f"s_mov_b64 exec, s[{sV+4}:{sV+5}]")
        e(f"ds_write_b32 v{BA+k}, v{NL+k} offset:{AINV}")
        e(f"ds_write2_b32 v{PS+k}, v{SHV+2*k}, v{SHV+2*k+1} offset0:0 offset1:1")
        e(f"ds_write_b32 v{PS+k}, v{KEY+k} offset:8")
    e("s_mov_b64 exec, -1")
    aea(2)
    e(f"s_mul_i32 s{sTAG}, s{sTAG}, 0x9e3779b1", f"s_add_u32 s{sTAG}, s{sTAG}, 0x7f4a7c15")
    e(f"s_mul_i32 s{sTAG2}, s{sTAG}, 0x85ebca6b", f"s_and_b32 s{sTAG2}, s{sTAG2}, 0xffc00000")
    e(f"s_lshl_b32 s{sT}, s3, 7", f"v_lshl_add_u32 v{T+3}, v{LANE}, 3, s{sT}")
    e(f"ds_read_b64 {vr(CT,2)}, v{T+3} offset:{ACNT}", f"ds_read_b64 {vr(ST,2)}, v{T+3} offset:{ASTART}")
    e(f"s_mul_i32 s{sT}, s2, {CS*12}", f"s_add_u32 s{sT}, s{sT}, {WS_SK}")
    srd(sA0, 14, 15, f"s{sT}", CS * 12)
    e(f"s_mul_i32 s{sT}, s2, {CS*32}", f"s_add_u32 s{sT}, s{sT}, {WS_EA}")
    srd(sA1, 14, 15, f"s{sT}", CH * 32)
    e(f"v_lshrrev_b32 v{T+3}, 1, v0", f"v_lshlrev_b32 v{T+3}, 2, v{T+3}")
    e(f"v_and_b32 v{T+4}, 1, v0", f"v_lshlrev_b32 v{T+4}, 4, v{T+4}", f"v_add_u32 v{T+4}, {EAST}, v{T+4}", f"v_add_u32 v{T+6}, {ASKS}, v{T+7}")
    e("s_waitcnt lgkmcnt(0)", "s_barrier")
    ts.stamp("scat")
    e(f"ds_read_b128 {vr(OUTV,4)}, v{T+6}", f"ds_read_b128 {vr(OUTV+4,4)}, v{T+6} offset:8192")
    for i in range(5):
        e(f"ds_read_b32 v{IV+i}, v{T+3} offset:{AINV + i*1024}")
    aea(3)

    def skst():
        vq.op("skst", f"buffer_store_dwordx4 {vr(OUTV,4)}, v{T+7}, {sr(sA0)}, 0 offen {P['ASTPOL']}")
        if P["STH"] == 1 and not P["SKEARLY"]:
            e("s_waitcnt vmcnt(0)")
        vq.op("skst", f"buffer_store_dwordx4 {vr(OUTV+4,4)}, v{T+7}, {sr(sA0)}, s{sNV} offen {P['ASTPOL']}")

    def frag_r(F0, t0, t1, t2):
        e(f"v_lshrrev_b32 v{t0}, 5, v{LANE}", f"v_lshlrev_b32 v{t0}, 11, v{t0}", f"v_and_b32 v{t1}, 15, v{LANE}", f"v_lshl_add_u32 v{t0}, v{t1}, 4, v{t0}")
        for i in range(8):
            e(f"ds_read_b128 {vr(F0+4*i,4)}, v{t0} offset:{WR + 256*i}")
        e(f"v_lshrrev_b32 v{t0}, 4, v{LANE}", f"v_lshlrev_b32 v{t0}, 5, v{t0}", f"v_and_b32 v{t1}, 3, v{LANE}", f"v_lshl_add_u32 v{t0}, v{t1}, 1, v{t0}")
        for v in range(4):
            e(f"ds_read_u16 v{F0+32+v}, v{t0} offset:{WR + 4096 + 8*v}")
        e(f"v_bfe_i32 v{t2}, v{LANE}, 4, 1", f"v_and_b32 v{t2}, 0x02020202, v{t2}", f"v_add_u32 v{t2}, 0x05040100, v{t2}")
        e("s_waitcnt lgkmcnt(0)")
        for h in range(2):
            for t in range(2):
                for ip in range(4):
                    e(f"v_perm_b32 v{WRF+8*h+4*t+ip}, v{F0+4*(2*ip+1)+t+2*h}, v{F0+4*(2*ip)+t+2*h}, v{t2}")
        e(f"v_lshl_or_b32 v{CGF}, v{F0+33}, 16, v{F0+32}", f"v_lshl_or_b32 v{CGF+1}, v{F0+35}, 16, v{F0+34}")

    def frag_o(F0, t0, t1, sM):
        e(f"v_and_b32 v{t1}, 15, v{LANE}", f"v_lshrrev_b32 v{t0}, 4, v{LANE}", f"v_lshlrev_b32 v{t0}, 13, v{t0}", f"v_lshl_add_u32 v{t0}, v{t1}, 2, v{t0}",
          f"s_and_b32 s{sM}, s3, 3", f"s_lshl_b32 s{sM}, s{sM}, 6", f"s_add_u32 s{sM}, s{sM}, {WO}", f"v_add_u32 v{t0}, s{sM}, v{t0}")
        for s in range(4):
            for ip in range(4):
                e(f"ds_read2st64_b32 {vr(F0+8*s+2*ip,2)}, v{t0} offset0:{8*ip+s} offset1:{8*ip+4+s}")
        e(f"s_mov_b32 s{sM}, 0x05040100", f"s_mov_b32 s{sM+1}, 0x07060302")
        for s in range(4):
            e(f"s_waitcnt lgkmcnt({12-4*s})")
            for t in range(2):
                for ip in range(4):
                    e(f"v_perm_b32 v{WOF+8*s+4*t+ip}, v{F0+8*s+2*ip+1}, v{F0+8*s+2*ip}, s{sM+t}")

    def consts():
        e(f"s_and_b32 s{sB}, s2, 7", f"s_lshl_b32 s{sB}, s{sB}, 5", f"s_lshr_b32 s{sT}, s2, 3", f"s_add_u32 s{sB}, s{sB}, s{sT}")
        e(f"s_mul_i32 s{sNB}, s{sB}, 625", f"s_add_u32 s{sNCNT}, s{sNB}, 640", f"s_add_u32 s{sNB}, s{sNB}, 15",
          f"s_lshr_b32 s{sNB}, s{sNB}, 4", f"s_lshr_b32 s{sNCNT}, s{sNCNT}, 4", f"s_sub_u32 s{sNCNT}, s{sNCNT}, s{sNB}")
        e(f"s_mov_b32 s{sM0}, 0x0f0f0f0f", f"s_mov_b32 s{sM0+1}, 0x0f0f0f0f", f"s_mov_b32 s{sM1}, 0xf0f0f0f0", f"s_mov_b32 s{sM1+1}, 0xf0f0f0f0")
        for i in range(8):
            e(f"v_mov_b32 v{EA0+i}, 0")
        e(f"v_and_b32 v{T+3}, 4, v{LANE}", f"v_lshlrev_b32 v{T+3}, 2, v{T+3}", f"v_mov_b32 v{T+4}, 0xffff", f"v_lshlrev_b32 v{T+4}, v{T+3}, v{T+4}")
        e(f"v_bfe_i32 v{T+3}, v{LANE}, 3, 1", f"v_and_b32 v{MQ}, v{T+3}, v{T+4}", f"v_xor_b32 v{MP}, v{MQ}, v{T+4}")
        e(f"v_lshrrev_b32 v{EAC}, 5, v{LANE}", f"v_lshlrev_b32 v{EAC}, 4, v{EAC}", f"v_add_u32 v{EAC}, {EAST}, v{EAC}")
        e(f"v_and_b32 v{LAC}, 15, v{LANE}", f"v_lshlrev_b32 v{LAC}, 2, v{LAC}")
        e(f"v_bfe_u32 v{T+3}, v{LANE}, 3, 2", f"v_and_b32 v{T+4}, 3, v{LANE}", f"v_lshl_add_u32 v{T+3}, v{T+3}, 2, v{T+4}", f"v_lshlrev_b32 v{LBC}, 2, v{T+3}")
        e(f"v_bfe_i32 v{cODD}, v0, 0, 1", f"s_lshl_b32 s{sT}, s3, 10", f"v_and_b32 v{cMAPW}, 4, v{cODD}", f"v_add_u32 v{cMAPW}, s{sT}, v{cMAPW}")
        e(f"v_lshl_add_u32 v{cMAP1}, v{LANE}, 2, s{sT}", f"v_lshrrev_b32 v{cMAP2}, 1, v{LANE}", f"v_lshl_add_u32 v{cMAP2}, v{cMAP2}, 2, s{sT}")
        e(f"v_mul_u32_u24 v{cL12}, 12, v{LANE}", f"v_and_b32 v{cDEG}, 12, v{cMAP1}", f"v_and_b32 v{cBIN}, 124, v{cMAP1}")
        e(f"v_lshlrev_b32 v{cSH}, 1, v{cMAP1}", f"v_add_u32 v{cSH}, {SHST}, v{cSH}", f"v_lshlrev_b32 v{cR21}, 19, v{cMAP1}")
        e(f"s_mul_i32 s{sT}, s3, 640", f"v_add_u32 v{cROW}, s{sT}, v{cBIN}", f"v_sub_u32 v{cTIE}, 63, v{LANE}")
        e(f"s_lshl_b32 s{sT}, s3, 5", f"v_lshl_add_u32 v{cNOD}, v{LANE}, 2, s{sT}")
        e(f"v_lshrrev_b32 v{cLST}, 3, v{LANE}", f"v_mul_u32_u24 v{cLST}, {GAP*4}, v{cLST}", f"v_add_u32 v{cLST}, {LIST}, v{cLST}")
        e(f"s_cmp_eq_u32 s{sNCNT}, 40")
        tabs = []
        for part in (PART39, PART40):
            t = [0] * 40
            for w, p in enumerate(part):
                for sl, r in enumerate(p):
                    t[r] = w * 8 + sl
            tabs.append([sum(t[5 * q + i] << (6 * i) for i in range(5)) for q in range(8)])
        e(f"v_mov_b32 v{RT}, 0")
        for q in range(8):
            e(f"s_mov_b32 s{sT}, {tabs[0][q]}", f"s_cselect_b32 s{sT}, {tabs[1][q]}, s{sT}")
            m = 31 << (5 * q)
            e(f"s_mov_b32 exec_lo, {m & 0xffffffff}", f"s_mov_b32 exec_hi, {m >> 32}", f"v_mov_b32 v{RT}, s{sT}")
        e("s_mov_b64 exec, -1")
        e(f"v_mul_u32_u24 v{T+3}, 52, v{LANE}", f"v_lshrrev_b32 v{T+3}, 8, v{T+3}", f"v_mad_i32_i24 v{T+3}, v{T+3}, -5, v{LANE}",
          f"v_mul_u32_u24 v{T+3}, 6, v{T+3}", f"v_lshrrev_b32 v{RT}, v{T+3}, v{RT}")
        e(f"v_and_b32 v{T+3}, 7, v{RT}", f"v_bfe_u32 v{RT}, v{RT}, 3, 3", f"v_lshlrev_b32 v{T+3}, 12, v{T+3}", f"v_lshl_or_b32 v{RT}, v{RT}, 7, v{T+3}")
        srd(sTAB, 14, 15, None, WS_W + 64)
        srd(sSK, 14, 15, WS_SK, NCH * CS * 12)

    def extra(pos):
        if P["CPOS"] == pos:
            consts()
        if P["ACCZ"] == pos:
            for i in range(48):
                e(f"v_mov_b32 v{ACC+i}, 0")

    e("s_waitcnt lgkmcnt(0)")
    if P["SKEARLY"]:
        skst()
    for i in range(5):
        e(f"v_add_u32 v{IV+i}, v{T+4}, v{IV+i}")
    for k in range(2):
        e(f"v_lshl_or_b32 v{TABV+2*k}, v{CT+k}, 11, v{ST+k}", f"v_or_b32 v{TABV+2*k}, s{sTAG2}, v{TABV+2*k}", f"v_mov_b32 v{TABV+2*k+1}, s{sTAG}")
    extra(0)
    e(f"s_waitcnt vmcnt({min(vq.n('w') + P['WGN'], vq.n('ea'))})")
    e("s_barrier")
    ts.stamp("land")
    for i in range(5):
        e(f"ds_read_b128 {vr(OUTV+8+4*i,4)}, v{IV+i}")
    extra(1)
    if P["FRG"] & 1:
        frag_r(RW, T, T + 1, T + 2)
    if P["FRG"] & 2:
        frag_o(RW, T, T + 1, SK + 8)
    ts.stamp("guard")
    if not P["SKEARLY"]:
        skst()
    for i in range(5):
        thr = f"vmcnt({P['STH']-1}) " if P["STH"] and i < P["STHN"] else ""
        e(f"s_mov_b32 s{sT}, {8192*i}", f"s_waitcnt {thr}lgkmcnt({4-i})")
        vq.op("st", f"buffer_store_dwordx4 {vr(OUTV+8+4*i,4)}, v{T+7}, {sr(sA1)}, s{sT} offen {P['ASTPOL']}")
    aea(4)
    ts.stamp("issued")

    extra(2)
    e(f"s_lshl_b32 s{sT}, s2, 3", f"s_add_u32 s{sT}, s{sT}, s3", f"s_lshl_b32 s{sT}, s{sT}, 8")
    srd(sX, SK, SK + 1, None, N * 1024)
    srd(sEA, 14, 15, WS_EA, NCH * CS * 32)
    if P["XPF"]:
        n = P["XPF"]
        e(f"s_and_b32 s{sBASE}, s2, 7", f"s_mul_i32 s{sBASE}, s{sBASE}, {1252*1024}", f"s_and_b32 s{sT2}, s2, 0xf8",
          f"s_add_u32 s{sT2}, s{sT2}, s3", f"s_mul_i32 s{sT2}, s{sT2}, {n*128}", f"s_add_u32 s{sBASE}, s{sBASE}, s{sT2}")
        e(f"v_min_u32 v{T+6}, {n-1}, v{LANE}", f"v_lshlrev_b32 v{T+6}, 7, v{T+6}")
    e("s_waitcnt vmcnt(0)", "s_barrier")
    ts.stamp("drained")
    e("s_mov_b64 exec, 0xffff")
    e(f"buffer_store_dwordx4 {vr(TABV,4)}, v{X16}, {sr(sTAB)}, s{sT} offen sc1")
    e("s_mov_b64 exec, -1")
    if P["XPF"]:
        e(f"buffer_load_dword v{PFV}, v{T+6}, {sr(sX)}, s{sBASE} offen")
    if P["WOST"] == 9:
        wout()
    e(f"s_lshl_b32 s{sT}, s{sNB}, 10", f"s_add_u32 s{sOUT}, s12, s{sT}", f"s_addc_u32 s{sOUT+1}, s13, 0",
      f"s_lshl_b32 s{sOUT+2}, s{sNCNT}, 10", f"s_mov_b32 s{sOUT+3}, 0x20000")
    if not P["FRG"] & 1:
        frag_r(RW, T, T + 1, T + 2)
    if P["WOST"] != 9 and not P["FRG"] & 2:
        frag_o(128, T, T + 1, SK + 8)
    extra(3)
    e(f"v_lshrrev_b32 v{T+1}, 1, v0", f"v_lshlrev_b32 v{T+2}, 11, v{T+1}", f"s_lshl_b32 s{sNR}, s{sB}, 3")
    e(f"v_mul_u32_u24 v{RG0}, {CS}, v{T+1}", f"s_mov_b32 s{sROFF}, 0", f"s_mov_b32 s{sCNT}, {SPIN}", f"s_mov_b32 s{sT2}, 0xffc00000")
    e(f"s_lshl_b32 s{sEM}, s3, 13", f"s_add_u32 s{sEM}, s{sEM}, {EAST}", f"s_movk_i32 s{sK4}, 4096")
    if P["PWAIT"]:
        e("s_waitcnt vmcnt(0)")
    if P["PWAIT"] == 2:
        e("s_barrier")
    ts.stamp("frag")
    PL = 206
    poll1 = f"buffer_load_dwordx2 {vr(PL,2)}, v{T+2}, {sr(sTAB)}, s{sNR} offen sc1"

    def tagcheck():
        e(f"v_xor_b32 v{T+3}, s{sTAG2}, v{PL}", f"v_xor_b32 v{T+4}, s{sTAG}, v{PL+1}", f"v_and_or_b32 v{T+3}, v{T+3}, s{sT2}, v{T+4}")
        e(f"v_cmpx_ne_u32 vcc, 0, v{T+3}")

    e(poll1, "s_waitcnt vmcnt(0)")
    tagcheck()
    e("s_cbranch_execnz L_poll")
    e.label("L_polled")
    e("s_mov_b64 exec, -1")
    ts.stamp("tab")
    G1, G2, SKR, RNK, CA = RW, RW + 4, RW + 12, TP, TP + 4
    MU = P["MU"]
    sVm = [sV, sV + 2, sV + 4, sA2]

    def bea1(i):
        e(f"s_add_u32 m0, s{sEM}, {4096*(i//4)}")
        vq.op("ea", f"buffer_load_dwordx4 v{G2+i}, {sr(sEA)}, {'0' if i < 4 else 's%d' % sK4} offen offset:{1024*(i%4)} {ldpol} lds")

    def bea(p):
        for i in range(6):
            if bstage[i] == p:
                bea1(i)

    def skld(i):
        e(f"v_mad_u32_u24 v{G1+i}, v{G1+i}, 12, v{cL12}")
        vq.op(f"sk{i}", f"buffer_load_dwordx3 {vr(SKR+4*i,3)}, v{G1+i}, {sr(sSK)}, 0 offen offset:{768*i} {ldpol}")

    cmps = [f"v_cmp_lt_i32 s[{SK+2*i}:{SK+2*i+1}], {2*i}, v{T+2}" for i in range(MU + 1)]
    e(f"v_bfe_u32 v{RLEN}, v{PL}, 11, 11", f"v_and_b32 v{RBASE}, v{RLEN}, v{cODD}", f"v_add_u32 v{T+2}, v{RLEN}, v{cODD}")
    fill = [f"v_and_b32 v{T+3}, 0x7ff, v{PL}"] + cmps + [f"v_add_u32 v{RG0}, v{RG0}, v{T+3}"]
    e(fill.pop(0))
    for mod in ("row_shr:1 row_mask:0xf", "row_shr:2 row_mask:0xf", "row_shr:4 row_mask:0xf", "row_shr:8 row_mask:0xf", "row_bcast:15 row_mask:0xa", "row_bcast:31 row_mask:0xc"):
        e(f"v_add_u32_dpp v{RBASE}, v{RBASE}, v{RBASE} {mod} bank_mask:0xf")
        e(*fill[:2]); fill = fill[2:]
    e(f"v_readlane_b32 s{sNW}, v{RBASE}, 63")
    e(f"v_mov_b32_dpp v{RBASE}, v{RBASE} quad_perm:[0,0,2,2] row_mask:0xf bank_mask:0xf")
    e(f"v_sub_u32 v{RG0}, v{RG0}, v{RBASE}")
    e(f"v_lshl_add_u32 v{T}, v{RBASE}, 2, v{cMAPW}")
    e(f"s_cmp_gt_u32 s{sNW}, {CAPW}", "s_cbranch_scc1 L_clip")
    e.label("L_mapw")
    for i in range(MU):
        e(f"s_mov_b64 exec, s[{SK+2*i}:{SK+2*i+1}]")
        e(f"ds_write_b32 v{T}, v{RG0} offset:{8*i}")
    e("s_mov_b64 exec, -1")
    e(f"s_cmp_lg_u64 s[{SK+2*MU}:{SK+2*MU+1}], 0", "s_cbranch_scc1 L_map2")
    for i in range(3):
        e(f"ds_read_b32 v{G1+i}, v{cMAP1} offset:{256*i}")
    for i in range(6):
        e(f"ds_read_b32 v{G2+i}, v{cMAP2} offset:{128*i}")
    e(f"s_cmp_gt_i32 s{sNW}, 192", "s_cbranch_scc1 L_r1")
    e.label("L_r1b")
    e("s_waitcnt lgkmcnt(6)")
    ts.stamp("map")
    for i in range(3):
        skld(i)
    e(f"v_mov_b32 v{T+3}, s{sNW}", "s_mov_b64 exec, 1", f"ds_max_i32 v{T+5}, v{T+3} offset:{TOT}", "s_mov_b64 exec, -1")
    e("s_waitcnt lgkmcnt(1)")
    for i in range(6):
        e(f"v_lshl_add_u32 v{G2+i}, v{G2+i}, 5, v{X16}")
    if P["SKBAR"]:
        e("s_barrier")
    ts.stamp("skiss")
    bea(0)
    for i in range(4):
        e(f"v_add_u32 v{T+3}, {64*i}, v{LANE}", f"v_cmp_gt_i32 s[{sVm[i]}:{sVm[i]+1}], s{sNW}, v{T+3}")
    e(f"s_mov_b32 s{sT2}, 0x1fff80", f"s_mul_i32 s{sOFF}, s3, 5")

    def count(i):
        key = SKR + 4 * i + 2
        e(f"v_lshrrev_b32 v{CA+i}, 21, v{key}", f"v_lshlrev_b32 v{CA+i}, 2, v{CA+i}")
        e(f"v_lshrrev_b32 v{T+3}, 26, v{key}", f"v_lshl_or_b32 v{T+3}, v{T+3}, 4, v{cDEG}")
        e(f"s_mov_b64 exec, s[{sVm[i]}:{sVm[i]+1}]")
        e(f"ds_add_rtn_u32 v{RNK+i}, v{CA+i}, v{ONE} offset:{CNT2}")
        e(f"ds_add_u32 v{T+3}, v{ONE} offset:{DEG}")
        e("s_mov_b64 exec, -1")

    def entry(i):
        key = SKR + 4 * i + 2
        e(f"ds_write_b64 v{cSH}, {vr(SKR+4*i,2)} offset:{512*i}")
        e(f"v_and_or_b32 v{key}, v{key}, s{sT2}, v{cR21}")
        if i:
            e(f"v_add_u32 v{key}, {64*i << 21}, v{key}")

    for i in range(3):
        vq.wait(f"sk{i}")
        if i == 0:
            ts.stamp("sk")
        count(i)
    e(f"s_cmp_gt_i32 s{sNW}, 192", "s_cbranch_scc1 L_r2")
    e.label("L_r2b")
    for i in range(3):
        entry(i)
    ts.stamp("atom")
    bea(1)
    e("s_waitcnt lgkmcnt(3)", "s_barrier")
    ts.stamp("b1")
    CN, CAD = XR, XR + 8
    e(f"s_cmp_lg_u32 s{sROFF}, 0", "s_cbranch_scc1 L_rank2")
    e(f"ds_read_b128 {vr(CAD,4)}, v{X16} offset:{DEG}")
    for j in range(5):
        e(f"ds_read_b32 v{CN+j}, v{cROW} offset:{CNT2 + 128*j}")
    e(f"ds_read_b32 v{T+6}, v{T+5} offset:{TOT}")
    bea(5)
    for j in range(1, 5):
        e(f"s_add_u32 s{SK+j}, s{sOFF}, {j}")
    e("s_waitcnt lgkmcnt(6)")
    e(f"v_add_u32 v{T+1}, v{CAD}, v{CAD+1}", f"v_add3_u32 v{T+1}, v{T+1}, v{CAD+2}, v{CAD+3}")
    e(f"v_lshl_or_b32 v{T+1}, v{T+1}, 6, v{cTIE}")
    for j in range(5):
        e(f"v_readlane_b32 s{SK+j}, v{T+1}, s{SK+j if j else sOFF}")
    for j in range(5):
        e(f"v_cmp_lt_u32 s[{SK+6+2*j}:{SK+7+2*j}], s{SK+j}, v{T+1}")
    for j in range(5):
        e(f"s_bcnt1_i32_b64 s{SK+j}, s[{SK+6+2*j}:{SK+7+2*j}]")
    e("s_waitcnt lgkmcnt(0)")
    for j in range(5):
        e(f"v_readlane_b32 s{sASG[j]}, v{RT}, s{SK+j}")
    e(f"v_readfirstlane_b32 s{sN}, v{T+6}")
    e.label("L_ranked")
    e("s_mov_b32 exec_hi, 0")
    for j in range(5):
        e(f"s_and_b32 s{sT}, s{sASG[j]}, 0x380")
        e(f"v_add_u32 v{CAD+j}, s{sT}, v{cBIN}")
        e(f"ds_add_rtn_u32 v{CN+j}, v{CAD+j}, v{CN+j} offset:{WB}")
    for j in range(5):
        e(f"v_or_b32 v{CAD+j}, s{sASG[j]}, v{CAD+j}")
    for j in range(5):
        e(f"v_writelane_b32 v{T+3}, s{sASG[j]}, {j}")
    for j in range(5):
        e("s_waitcnt lgkmcnt(4)")
        e(f"v_lshl_or_b32 v{CN+j}, v{CN+j}, 16, v{CAD+j}")
        e(f"ds_write_b32 v{cROW}, v{CN+j} offset:{CNT2 + 128*j}")
    e(f"v_add_lshl_u32 v{T+4}, v{LANE}, s{sOFF}, 7")
    e(f"v_lshrrev_b32 v{T+1}, 10, v{T+3}", f"v_bfe_u32 v{T+3}, v{T+3}, 2, 8", f"v_or_b32 v{T+3}, v{T+3}, v{T+1}")
    e("s_mov_b32 exec_lo, 31")
    e(f"ds_write_b32 v{T+3}, v{T+4} offset:{NODEOF}")
    e("s_mov_b64 exec, -1")
    ts.stamp("rank")
    bea(2)
    e(f"s_lshl_b32 s{sT}, s3, 3", f"s_add_u32 s{sT2}, s{sT}, 7")
    e("s_waitcnt lgkmcnt(0)", "s_barrier")
    ts.stamp("b2")
    e(f"ds_read_b128 {vr(CN,4)}, v{X16} offset:{WB}")
    for i in range(3):
        e(f"ds_read_b32 v{CA+i}, v{CA+i} offset:{CNT2}")
    e(f"ds_read_b32 v{T+3}, v{cNOD} offset:{NODEOF}")
    bea(6)
    e("s_waitcnt lgkmcnt(4)")
    e(f"v_add_u32 v{T+1}, v{CN}, v{CN+1}", f"v_add3_u32 v{T+1}, v{T+1}, v{CN+2}, v{CN+3}", f"v_mov_b32 v{T+2}, v{T+1}")
    e("s_waitcnt lgkmcnt(1)")

    def place(i):
        key = SKR + 4 * i + 2
        return [f"v_bfe_u32 v{T+7}, v{CA+i}, 12, 3", f"v_or_b32 v{key}, v{T+7}, v{key}", f"v_and_b32 v{G1+i}, 0x3ff, v{CA+i}",
                f"v_lshrrev_b32 v{CA+i}, 16, v{CA+i}", f"v_add_u32 v{CA+i}, v{CA+i}, v{RNK+i}"]

    fill = place(0) + place(1) + place(2)
    e(fill.pop(0))
    for mod in ("row_shr:1 row_mask:0xf", "row_shr:2 row_mask:0xf", "row_shr:4 row_mask:0xf", "row_shr:8 row_mask:0xf", "row_bcast:15 row_mask:0xa", "row_bcast:31 row_mask:0xc"):
        e(f"v_add_u32_dpp v{T+2}, v{T+2}, v{T+2} {mod} bank_mask:0xf")
        e(*fill[:2]); fill = fill[2:]
    e(f"v_sub_u32 v{T+1}, v{T+2}, v{T+1}")
    e(f"v_lshl_add_u32 v{CAD}, v{T+1}, 2, v{cLST}")
    for k in range(3):
        e(f"v_lshl_add_u32 v{CAD+1+k}, v{CN+k}, 2, v{CAD+k}")
    e(f"ds_write_b128 v{X16}, {vr(CAD,4)} offset:{START}")
    for i in range(3):
        e(f"ds_read_b32 v{G1+i}, v{G1+i} offset:{START}")
    e(*fill)
    e(f"v_readlane_b32 s{sNV}, v{T+2}, s{sT2}", f"v_readlane_b32 s{sCNT}, v{T+1}, s{sT}", f"v_readlane_b32 s{sBASE}, v{CAD}, s{sT}")
    e(f"v_mov_b32 v{T+4}, {(0x3fff << 7) | 5}")
    e(f"s_sub_u32 s{sNV}, s{sNV}, s{sCNT}", f"s_lshl_b32 s{sT}, s{sNV}, 2")
    e(f"v_add_u32 v{LA}, s{sBASE}, v{LAC}", f"v_add_u32 v{LB}, s{sBASE}, v{LBC}", f"v_add_u32 v{T+1}, s{sT}, v{LA}")

    def scatter(i):
        e(f"v_lshl_add_u32 v{CA+i}, v{CA+i}, 2, v{G1+i}")
        e(f"s_mov_b64 exec, s[{sVm[i]}:{sVm[i]+1}]")
        e(f"ds_write_b32 v{CA+i}, v{SKR+4*i+2}")
        e("s_mov_b64 exec, -1")

    for i in range(3):
        e("s_waitcnt lgkmcnt(2)")
        scatter(i)
    e(f"ds_write_b32 v{T+1}, v{T+4}")
    e(f"s_cmp_gt_i32 s{sNW}, 192", "s_cbranch_scc1 L_r3")
    e.label("L_r3b")
    bea(3)
    for j in range(5):
        e(f"v_readlane_b32 s{sNODE+j}, v{T+3}, {j}")
    ts.stamp("list")
    if P["WOST"] == 9:
        frag_o(XR, PQ, PQ + 1, SK + 8)
    assert D == 6
    sP0 = sT
    e(f"s_add_u32 s{sP0}, s{sNV}, 1", f"s_and_b32 s{sP0}, s{sP0}, -2", f"s_add_u32 s{sCNT}, s{sP0}, 15", f"s_lshr_b32 s{sCNT}, s{sCNT}, 4",
      f"s_sub_u32 s{sP0}, 0, s{sP0}", f"s_and_b32 s{sP0}, s{sP0}, 15", f"s_sub_u32 s{sCNT}, s{sCNT}, 1", f"s_cmp_gt_i32 s{sCNT}, 0", f"s_cselect_b32 s{sP0}, s{sP0}, 0")
    e(f"s_lshl_b32 s{sOFF}, s{sP0}, 2", f"v_subrev_u32 v{LA}, s{sOFF}, v{LA}", f"v_subrev_u32 v{LB}, s{sOFF}, v{LB}",
      f"s_and_b32 s{sOFF}, s{sOFF}, 32", f"v_add_u32 v{T+4}, s{sOFF}, v{LA}", f"s_and_b32 s{SK+8}, s{sP0}, 6")
    e(f"s_mov_b32 s{sT2}, 0x00fffc38", f"s_mov_b32 s{sNR}, 0xffffff00", f"s_mov_b32 s{sBASE}, {SHST}")
    if P["PRIO"] == 1:
        e("s_cmp_lt_u32 s3, 4", "s_cbranch_scc1 L_np", "s_setprio 1")
        e.label("L_np")
    e("s_waitcnt vmcnt(0) lgkmcnt(0)", "s_barrier")
    ts.stamp("b4")
    e(f"ds_read_b32 v{K}, v{T+4}", f"ds_read_b32 v{ENT+2}, v{LB}", f"ds_read_b32 v{KN}, v{LA} offset:{4*D}")
    e(f"s_cmp_eq_u32 s{sNV}, 0", "s_cbranch_scc1 L_swept")
    AL = P["ALIGN"]

    def al():
        if AL:
            e(".p2align 3")

    def ea_reads():
        e(f"v_lshrrev_b32 v{T}, 21, v{ENT+2}", f"v_lshl_add_u32 v{T+3}, v{T}, 3, s{sBASE}", f"v_lshl_add_u32 v{T}, v{T}, 5, v{EAC}")
        e(f"ds_read_b64 {vr(ENT,2)}, v{T+3}")
        e(f"s_mov_b64 exec, s[{sM0}:{sM0+1}]", f"ds_read_b128 {vr(EA0,4)}, v{T}")
        e(f"s_mov_b64 exec, s[{sM1}:{sM1+1}]", f"ds_read_b128 {vr(EA1,4)}, v{T}")
        e("s_mov_b64 exec, -1")

    def pq(j):
        p = PQ + 2 * (j % 2)
        return [f"v_cvt_pk_bf16_f32 v{T+1+j%2}, v{AGN+j}, v{AGN+j}", f"v_and_b32 v{p}, v{MP}, v{T+1+j%2}", f"v_and_b32 v{p+1}, v{MQ}, v{T+1+j%2}"]

    def head(kind):
        e("s_waitcnt lgkmcnt(0)"); al()
        for q in range(4):
            e(f"v_mfma_f32_4x4x4_16b_bf16 {vr(AGN+4*q,4)}, {vr(ENT,2)}, {vr(CGF,2)}, 0 cbsz:4 abid:{2*q}")
        fill = [f"v_lshlrev_b32 v{K}, 3, v{KN}", f"v_and_b32 v{K}, s{sT2}, v{K}"]
        if kind != "last":
            fill += [f"v_add_u32 v{LA}, 64, v{LA}", f"v_add_u32 v{LB}, 64, v{LB}", f"ds_read_b32 v{KN}, v{LA} offset:{4*D}", f"ds_read_b32 v{ENT+2}, v{LB}"]
        groups = [fill[:4], fill[4:], pq(0) if kind != "first" else [], []]
        for q in range(4):
            h, t = q % 2, q // 2
            e(f"v_mfma_f32_32x32x16_bf16 {vr(RW+16*h,16)}, {vr(EA0+4*t,4)}, {vr(WRF+8*h+4*t,4)}, {vr(RW+16*h,16) if t else 0}")
            e(*groups[q])

    def pks(j):
        t = TP + 8 * (j % 2)
        for h in range(2):
            r = RW + 16 * h + j
            rp = r & ~1
            sel = "op_sel:[0,1,0] op_sel_hi:[1,1,1]" if r & 1 else "op_sel_hi:[1,0,1]"
            for q in range(2):
                a = ACC + 4 * h + 2 * q
                e(f"v_pk_fma_f32 {vr(a,2)}, {vr(t+4*h+2*q,2)}, {vr(rp,2)}, {vr(a,2)} {sel}")

    def mf(j, h):
        t, p, s = TP + 8 * (j % 2), PQ + 2 * (j % 2), XR + 4 * (j % R)
        e(f"v_mfma_f32_16x16x16_bf16 {vr(t+4*h,4)}, {vr(p,2)}, {vr(s+2*h,2)}, 0")

    def rl(q, lane):
        e(f"v_readlane_b32 s{SK + q % 8}, v{K}, {lane}")

    def sand(q):
        e(f"s_and_b32 s{sOFF}, s{SK + q % 8}, s{sNR}")

    def xl(q):
        e(f"buffer_load_dwordx4 {vr(XR + 4 * (q % R),4)}, v{X16}, {sr(sX)}, s{sOFF} offen")

    def body(last):
        for j in range(0, 16, 2):
            ld = not last or j + D < 16
            if not last or j == 0:
                e.label(f"L_{'f' if last else 'j'}{j}")
            nx = pq(j + 1)
            e(f"s_waitcnt vmcnt({D-1 if ld else 15-j})"); al()
            mf(j, 0)
            if ld:
                rl(j + D, j)
            e(*nx[:1]); mf(j, 1); e(*nx[1:])
            if ld and P["SCH"] == 2:
                sand(j + D); e(f"s_waitcnt vmcnt({D-2})"); xl(j + D)
            elif ld:
                sand(j + D); xl(j + D); e(f"s_waitcnt vmcnt({D-1})")
            else:
                e(f"s_waitcnt vmcnt({14-j})"); al()
            nx = pq(j + 2) if j < 14 else []
            mf(j + 1, 0)
            if ld:
                rl(j + 1 + D, j + 1)
            e(*nx[:1]); mf(j + 1, 1); e(*nx[1:])
            if j == 2 and not last:
                e("s_waitcnt lgkmcnt(0)")
                ea_reads(); al()
            if ld:
                sand(j + 1 + D)
            e(f"s_set_gpr_idx_on s{SK + j % 8}, gpr_idx(SRC2,DST)")
            xl(j + 1 + D) if ld else al()
            pks(j)
            e(f"s_set_gpr_idx_idx s{SK + (j + 1) % 8}")
            if j == 14 and not last:
                e(f"s_sub_u32 s{sCNT}, s{sCNT}, 1")
            al()
            pks(j + 1)
            e("s_set_gpr_idx_off")

    e("s_waitcnt lgkmcnt(1)")
    e(f"v_lshlrev_b32 v{K}, 3, v{K}", f"v_and_b32 v{K}, s{sT2}, v{K}")
    if P["EAF"]:
        ea_reads()
    for q in (2, 4, 6):
        e(f"s_cmp_eq_u32 s{SK+8}, {q}", f"s_cbranch_scc1 L_p{q}")
    for q in range(0, 12, 2):
        e.label(f"L_p{q}")
        rl(q, q); rl(q + 1, q + 1)
        sand(q); xl(q); sand(q + 1); xl(q + 1)
        if 4 <= q < 10:
            e(f"s_cmp_eq_u32 s{SK+8}, {q-4}", "s_cbranch_scc1 L_pd")
    e.label("L_pd")
    if not P["EAF"]:
        ea_reads()
    ts.stamp("b5")
    head("first")
    e(f"s_set_gpr_idx_on s{sP0}, gpr_idx(SRC0,SRC1)")
    e.idx_range, keep = {("v", i) for i in range(AGN, AGN + 16)}, e.idx_range
    e(pq(0)[0])
    e.idx_range = keep
    e("s_set_gpr_idx_off")
    e(*pq(0)[1:])
    e("s_waitcnt lgkmcnt(0)")
    ea_reads()
    e(f"s_cmp_eq_u32 s{sCNT}, 0", "s_cbranch_scc1 L_f0")
    for j in range(2, 16, 2):
        e(f"s_cmp_eq_u32 s{sP0}, {j}", f"s_cbranch_scc1 L_j{j}")
    e("s_branch L_j0")
    e(".p2align 3")
    e.label("L_loop")
    head("mid")
    body(False)
    e(f"s_cmp_lg_u32 s{sCNT}, 0", "s_cbranch_scc1 L_loop")
    head("last")
    body(True)
    e.label("L_swept")
    ts.stamp("swept")
    e(f"s_add_u32 s{sROFF}, s{sROFF}, {CAPW}", f"s_cmp_lt_u32 s{sROFF}, s{sN}", "s_cbranch_scc1 L_again")
    e(f"v_lshlrev_b32 v{T}, 2, v{LANE}")
    for s in range(5):
        e(f"s_mul_i32 s{sT}, s{sNODE+s}, 9")
        for w in range(4):
            e(f"v_cvt_pk_bf16_f32 v{RW+4*s+w}, v{ACC+8*s+w}, v{ACC+8*s+4+w}")
        e(f"v_add_u32 v{RW+20+s}, s{sT}, v{T}")
        for w in (0, 2):
            e(f"ds_write2_b32 v{RW+20+s}, v{RW+4*s+w}, v{RW+4*s+w+1} offset0:{72*w} offset1:{72*w+72}")
    e(f"v_and_b32 v{T}, 15, v{LANE}", f"v_lshrrev_b32 v{T+1}, 4, v{LANE}", f"s_lshr_b32 s{sT}, s3, 2", f"s_mul_i32 s{sT2}, s{sT}, {5*4608}")
    e(f"v_mul_u32_u24 v{T+2}, 288, v{T}", f"v_lshl_add_u32 v{T+2}, v{T+1}, 4, v{T+2}", f"v_add_u32 v{T+2}, s{sT2}, v{T+2}")
    if P["EPI"] >= 20:
        e(f"s_mul_i32 s{sT}, s{sT}, 20480", f"s_and_b32 s{sT2}, s3, 3", f"s_lshl_b32 s{sOFF}, s{sT2}, 2", f"s_add_u32 s{sCNT}, s{sT}, {EAST}")
        e(f"v_add_u32 v{T+1}, s{sOFF}, v{T+1}")
        e(f"v_and_b32 v{T+3}, 7, v{T}", f"v_xor_b32 v{T+3}, v{T+3}, v{T+1}", f"v_lshlrev_b32 v{T+3}, 4, v{T+3}",
          f"v_lshl_add_u32 v{T+3}, v{T}, 8, v{T+3}", f"v_add_u32 v{T+3}, s{sCNT}, v{T+3}")
        e(f"v_and_b32 v{T+4}, 7, v{T+1}", f"v_xor_b32 v{T+4}, v{T+4}, v{T}", f"v_lshlrev_b32 v{T+4}, 4, v{T+4}",
          f"v_lshl_add_u32 v{T+4}, v{T+1}, 8, v{T+4}", f"v_add_u32 v{T+4}, s{sCNT}, v{T+4}")
        e(f"s_lshl_b32 s{sT2}, s{sT2}, 10", f"s_add_u32 s{sT}, s{sT}, s{sT2}")
        e("s_waitcnt lgkmcnt(0)", "s_barrier")
        ts.stamp("agb")
        AF, DD, PK, RB = ACC, 128, 168, 176
        lq = []

        def lop(tag, text):
            e(text); lq.append(tag)

        def lwait(tag):
            n = len(lq) - 1 - max(i for i, t in enumerate(lq) if t == tag)
            e(f"s_waitcnt lgkmcnt({min(n, 15)})")

        def afrag(tl):
            for s in range(4):
                lop(f"a{tl}{s}", f"ds_read_b128 {vr(AF+16*tl+4*s,4)}, v{T+2} offset:{AGL + 4608*tl + 64*s}")

        def mm(tl, s):
            for t in range(2):
                c = "0" if s == 0 else vr(DD + 8 * tl + 4 * t, 4)
                e(f"v_mfma_f32_16x16x32_bf16 {vr(DD+8*tl+4*t,4)}, {vr(WOF+8*s+4*t,4)}, {vr(AF+16*tl+4*s,4)}, {c}")

        afrag(0); afrag(1)
        for tl in range(7):
            if tl < 5:
                if tl == 0:
                    lwait("a00"); mm(0, 0); lwait("a01"); mm(0, 1); lwait("a03")
                    afrag(2)
                else:
                    lwait(f"a{tl}3"); mm(tl, 0)
                    if tl + 2 < 5:
                        afrag(tl + 2)
                    mm(tl, 1)
            if 1 <= tl <= 5:
                p = PK + 4 * (tl % 2)
                for i in range(4):
                    e(f"v_cvt_pk_bf16_f32 v{p+i}, v{DD+8*(tl-1)+i}, v{DD+8*(tl-1)+4+i}")
                lop(f"w{tl-1}", f"ds_write_b128 v{T+3}, {vr(p,4)} offset:{4096*(tl-1)}")
            if tl < 5:
                mm(tl, 2)
            if tl >= 2:
                lwait(f"r{tl-2}")
                e(f"buffer_store_dwordx4 {vr(RB+4*(tl-2),4)}, v{X16}, {sr(sOUT)}, s{sT} offen {P['OUTPOL']}", f"s_add_u32 s{sT}, s{sT}, 4096")
            if 1 <= tl <= 5 and P["EPI"] == 21:
                lwait(f"w{tl-1}"); e("s_barrier")
                lop(f"r{tl-1}", f"ds_read_b128 {vr(RB+4*(tl-1),4)}, v{T+4} offset:{4096*(tl-1)}")
            if tl < 5:
                mm(tl, 3)
            if 1 <= tl <= 5 and P["EPI"] == 20:
                lwait(f"w{tl-1}"); e("s_barrier")
                lop(f"r{tl-1}", f"ds_read_b128 {vr(RB+4*(tl-1),4)}, v{T+4} offset:{4096*(tl-1)}")
    else:
        e(f"v_lshlrev_b32 v{T+1}, 10, v{T+1}", f"v_lshl_add_u32 v{T+1}, v{T}, 2, v{T+1}",
          f"s_mul_i32 s{sT}, s{sT}, 20480", f"s_and_b32 s{sT2}, s3, 3", f"s_lshl_b32 s{sT2}, s{sT2}, 6", f"s_add_u32 s{sT}, s{sT}, s{sT2}")
        e("s_waitcnt lgkmcnt(0)" if P["NOVM"] else "s_waitcnt vmcnt(0) lgkmcnt(0)", "s_barrier")
        ts.stamp("agb")
        AF, DD, PK = ACC, 128, 168

        def afrag(tl):
            for s in range(4):
                e(f"ds_read_b128 {vr(AF+16*tl+4*s,4)}, v{T+2} offset:{AGL + 4608*tl + 64*s}")

        afrag(0); afrag(1)

        def stores(tl):
            o = []
            for i in range(4):
                o.append(f"v_cvt_pk_bf16_f32 v{PK+4*tl+i}, v{DD+8*tl+i}, v{DD+8*tl+4+i}")
                if P["EPI"] != 8 or tl == 4:
                    o.append(f"buffer_store_dword v{PK+4*tl+i}, v{T+1}, {sr(sOUT)}, s{sT} offen offset:{256*i} {P['OUTPOL']}")
            o.append(f"s_add_u32 s{sT}, s{sT}, 4096")
            return o

        for tl in range(5):
            if tl + 2 < 5:
                afrag(tl + 2)
            pend = stores(tl - 1) if tl > 0 else []
            for s in range(4):
                if P["EPI"] == 0 or tl == 0:
                    e(f"s_waitcnt lgkmcnt({4 * min(2, 4 - tl) + 3 - s})")
                elif s == 0:
                    e(f"s_waitcnt lgkmcnt({4 * min(2, 4 - tl)})")
                for t in range(2):
                    c = "0" if s == 0 else vr(DD + 8 * tl + 4 * t, 4)
                    if P["EPI"] != 9 or s == 0:
                        e(f"v_mfma_f32_16x16x32_bf16 {vr(DD+8*tl+4*t,4)}, {vr(AF+16*tl+4*s,4)}, {vr(WOF+8*s+4*t,4)}, {c}")
                    if P["EPI"] == 1 and 2 * s + t >= 3:
                        e(*pend[:2]); pend = pend[2:]
            e(*pend)
        e(*stores(4))
    ts.stamp("stored")
    e("s_or_b32 s4, s2, s3", "s_cbranch_scc1 L_notag")
    e(f"v_mov_b32 v{T}, s{sTAG}", f"v_lshlrev_b32 v{T+2}, 2, v{LANE}", f"s_mov_b32 s{sT}, {WS_W}")
    e(f"buffer_store_dword v{T}, v{T+2}, {sr(sTAB)}, s{sT} offen sc1")
    e.label("L_notag")
    if P["DIAGL"] == 1:
        e(f"s_add_u32 s8, s14, {WS_TS}", "s_addc_u32 s9, s15, 0", "s_load_dword s6, s[8:9], 0", "s_waitcnt lgkmcnt(0)")
        e.label("L_diag")
        e("s_memrealtime s[4:5]", "s_waitcnt lgkmcnt(0)", "s_sub_u32 s4, s4, s6", "s_cmp_lt_u32 s4, 4000", "s_cbranch_scc1 L_diag")
    if P["DIAGL"] == 2:
        e("s_or_b32 s4, s2, s3", "s_cbranch_scc1 L_done")
        e(f"v_mov_b32 v{T}, s{sTSP}", f"v_mov_b32 v{T+1}, {WS_TS}", f"global_store_dword v{T+1}, v{T}, s[14:15]")
    if P["DIAGW"]:
        e(f"s_add_u32 s6, s{sTSP+1}, {P['DIAGW']}", "s_min_u32 s6, s6, 30000")
        e.label("L_diag")
        e("s_memrealtime s[4:5]", "s_waitcnt lgkmcnt(0)", f"s_sub_u32 s4, s4, s{sTSP}", "s_cmp_lt_u32 s4, s6", "s_cbranch_scc1 L_diag")
    if P["DIAGC"]:
        e("s_memtime s[6:7]", "s_waitcnt lgkmcnt(0)")
        e.label("L_diag")
        e("s_memtime s[4:5]", "s_waitcnt lgkmcnt(0)", "s_sub_u32 s4, s4, s6", f"s_cmp_lt_u32 s4, {P['DIAGC']}", "s_cbranch_scc1 L_diag")
    if P["TS"]:
        e("s_waitcnt vmcnt(0)")
        ts.stamp("end")
        e(f"s_lshl_b32 s{sT}, s2, 3", f"s_add_u32 s{sT}, s{sT}, s3", f"s_lshl_b32 s{sT}, s{sT}, 8", f"s_add_u32 s{sT}, s{sT}, {WS_TS}")
        e(f"v_lshl_add_u32 v{T}, v{LANE}, 2, s{sT}", f"global_store_dword v{T}, v{TSV}, s[14:15]")
        if P["DBG"]:
            e(f"s_cmp_lg_u32 s2, {P['DBG']}", "s_cbranch_scc1 L_done", "s_cmp_lg_u32 s3, 0", "s_cbranch_scc1 L_done")
            e("s_load_dwordx2 s[4:5], s[0:1], 72", f"v_readlane_b32 s{sT}, v{TSV}, 0", f"v_lshlrev_b32 v{T}, 2, v{LANE}")
            e(f"v_subrev_u32 v{TSV}, s{sT}, v{TSV}", "s_waitcnt lgkmcnt(0)", f"global_store_dword v{T}, v{TSV}, s[4:5]")
    e.label("L_done")
    e("s_endpgm")
    e.label("L_again")
    e("s_waitcnt vmcnt(0) lgkmcnt(0)", "s_barrier")
    init_round(False)
    e(f"v_add_u32 v{RLEN}, v{RLEN}, v{RBASE}", f"v_subrev_u32 v{RLEN}, {CAPW}, v{RLEN}", f"v_max_i32 v{RLEN}, 0, v{RLEN}")
    e(f"v_subrev_u32 v{RBASE}, {CAPW}, v{RBASE}", f"v_max_i32 v{RBASE}, 0, v{RBASE}", f"v_sub_u32 v{RLEN}, v{RLEN}, v{RBASE}")
    e(f"v_add_u32 v{RG0}, {CAPW}, v{RG0}", f"s_sub_i32 s{sNW}, s{sNW}, {CAPW}", f"v_lshl_add_u32 v{T}, v{RBASE}, 2, v{cMAPW}")
    e("s_waitcnt lgkmcnt(0)", "s_barrier")
    e.label("L_clip")
    e(f"v_add_u32 v{T+2}, v{RBASE}, v{RLEN}", f"v_min_i32 v{T+2}, {CAPW}, v{T+2}", f"v_sub_u32 v{T+2}, v{T+2}, v{RBASE}", f"v_add_u32 v{T+2}, v{T+2}, v{cODD}")
    e.label("L_masks")
    e(*cmps)
    e("s_nop 0", "s_branch L_mapw")
    e.label("L_map2")
    e(f"v_add_u32 v{T}, {8*MU}, v{T}", f"v_subrev_u32 v{T+2}, {2*MU}, v{T+2}")
    e("s_branch L_masks")
    e.label("L_r1")
    e(f"ds_read_b32 v{G1+3}, v{cMAP1} offset:768", f"ds_read_b32 v{G2+6}, v{cMAP2} offset:768", f"ds_read_b32 v{G2+7}, v{cMAP2} offset:896")
    e("s_waitcnt lgkmcnt(0)")
    skld(3)
    for i in (6, 7):
        e(f"v_lshl_add_u32 v{G2+i}, v{G2+i}, 5, v{X16}")
        bea1(i)
    e("s_branch L_r1b")
    e.label("L_r2")
    count(3)
    entry(3)
    e("s_branch L_r2b")
    e.label("L_r3")
    e(f"ds_read_b32 v{CA+3}, v{CA+3} offset:{CNT2}", "s_waitcnt lgkmcnt(0)")
    e(*place(3))
    e(f"ds_read_b32 v{G1+3}, v{G1+3} offset:{START}", "s_waitcnt lgkmcnt(0)")
    scatter(3)
    e("s_branch L_r3b")
    e.label("L_poll")
    e(poll1, f"s_sub_u32 s{sCNT}, s{sCNT}, 1", "s_cbranch_scc1 L_done", "s_waitcnt vmcnt(0)")
    tagcheck()
    e("s_cbranch_execnz L_poll", "s_branch L_polled")
    e.label("L_rank2")
    for j in range(5):
        e(f"ds_read_b32 v{CN+j}, v{cROW} offset:{CNT2 + 128*j}")
    bea(5)
    e("s_waitcnt lgkmcnt(0)")
    e.label("L_end")
    e("s_branch L_ranked")
    return e.text(), LDS, 256, 102


HEADER = """; Kernarg layout for this problem (88 bytes, ptrs only, base s[0:1]):
"""


def generate(**kw):
    P = dict(DEF)
    P.update(kw)
    k, lds, v, s = gen(P)
    n = NAME + "_kernel"
    out = HEADER
    tiny = ""
    if P["DIAGL"]:
        t = "; @launch kernel=tiny_kernel grid=(1,1,1) block=(64,1,1) lds=0\n"
        m = f"; @launch kernel={n} grid=(256,1,1) block=(512,1,1) lds={lds}\n"
        out += t + m if P["DIAGL"] == 1 else m + t
        tiny = ".globl tiny_kernel\n.p2align 8\n.type tiny_kernel,@function\ntiny_kernel:\ns_memrealtime s[4:5]\ns_load_dwordx2 s[14:15], s[0:1], 80\ns_waitcnt lgkmcnt(0)\n"
        if P["DIAGL"] == 1:
            tiny += f"v_mov_b32 v1, s4\nv_mov_b32 v2, {WS_TS}\nglobal_store_dword v2, v1, s[14:15]\ns_endpgm\n"
        else:
            tiny += f"s_add_u32 s8, s14, {WS_TS}\ns_addc_u32 s9, s15, 0\ns_load_dword s6, s[8:9], 0\ns_waitcnt lgkmcnt(0)\nL_td:\ns_memrealtime s[4:5]\ns_waitcnt lgkmcnt(0)\ns_sub_u32 s4, s4, s6\ns_cmp_lt_u32 s4, 4000\ns_cbranch_scc1 L_td\ns_endpgm\n"
    else:
        out += f"; @launch grid=(256,1,1) block=(512,1,1) lds={lds}\n"
    out += '.amdgcn_target "amdgcn-amd-amdhsa--gfx950"\n.text\n' + tiny
    out += f".globl {n}\n.p2align 8\n.type {n},@function\n{n}:\n{k}"
    out += '.section .rodata,"a"\n'
    out += (f".p2align 6\n.amdhsa_kernel {n}\n  .amdhsa_next_free_vgpr {v}\n  .amdhsa_next_free_sgpr {s}\n"
            f"  .amdhsa_accum_offset {(v+3)//4*4}\n  .amdhsa_group_segment_fixed_size 0\n  .amdhsa_kernarg_size 88\n"
            f"  .amdhsa_user_sgpr_count 2\n  .amdhsa_user_sgpr_kernarg_segment_ptr 1\n  .amdhsa_system_sgpr_workgroup_id_x 1\n"
            f"  .amdhsa_float_denorm_mode_32 3\n.end_amdhsa_kernel\n")
    if tiny:
        out += (".p2align 6\n.amdhsa_kernel tiny_kernel\n  .amdhsa_next_free_vgpr 8\n  .amdhsa_next_free_sgpr 32\n  .amdhsa_accum_offset 8\n"
                "  .amdhsa_group_segment_fixed_size 0\n  .amdhsa_kernarg_size 88\n  .amdhsa_user_sgpr_count 2\n  .amdhsa_user_sgpr_kernarg_segment_ptr 1\n"
                "  .amdhsa_system_sgpr_workgroup_id_x 1\n.end_amdhsa_kernel\n")
    return out


if __name__ == "__main__":
    kw = {}
    for a in sys.argv[1:]:
        k, v = a.split("=", 1)
        kw[k] = int(v) if v.lstrip("-").isdigit() else v
    sys.stdout.write(generate(**kw))
```

```python
import sys, os
sys.path.insert(0, os.path.dirname(os.path.abspath(__file__)))
from emit import Emitter

NAME = "gather_scatter__tensor_product_equiv_mace__graph"
N, E = 10000, 320000
CH, NCH, CS = 1250, 256, 1280
WS_TAB, WS_W, WS_FL, WS_SK, WS_EA, WS_TS = 0, 0x80000, 0x90000, 0x100000, 0x500000, 0x2000000
CAPW, GAP = 256, 16
CAP = 8 * CAPW
SPIN = 200000

DEF = dict(NS=0, GP=0, SP=1, EAF=1, EPI=2, SCH=2, XDUM=0, NOVM=1, PWAIT=2, ALIGN=1, PRIO=1, PSTEP=16, DIAGL=0, DIAGW=0, DIAGK=0, DIAGAT='tab', DIAGC=0, D=6, TS=0, DBG=0, APOL="nt", AEA="00222", BEA="011222", SKBAR=1, ABAR=2, SKEARLY=0, XPF=26, CPF=2, MU=7, OUTPOL="sc1", LDPOL="sc1", WST=3, WOST=3, ACCZ=2, CPOS=2, FRG=0, WGN=0, STH=0, STHN=5, ASTPOL='sc1')

PART39 = [[3, 11, 21, 31, 36], [5, 8, 20, 27, 38], [0, 6, 7, 13, 39], [9, 14, 18, 25, 34], [10, 16, 19, 24, 32], [4, 12, 26, 29, 33], [1, 17, 23, 28, 37], [2, 15, 22, 30, 35]]
PART40 = [[1, 10, 15, 30, 39], [2, 9, 21, 28, 37], [4, 14, 22, 27, 31], [6, 12, 18, 24, 35], [3, 8, 16, 29, 38], [5, 13, 17, 26, 34], [0, 20, 23, 32, 36], [7, 11, 19, 25, 33]]


def vr(a, n):
    return f"v[{a}:{a+n-1}]" if n > 1 else f"v{a}"


def sr(a, n=4):
    return f"s[{a}:{a+n-1}]"


def scan_dpp(e, v, full):
    for k in (1, 2, 4, 8):
        e(f"v_add_u32_dpp v{v}, v{v}, v{v} row_shr:{k} row_mask:0xf bank_mask:0xf")
    e(f"v_add_u32_dpp v{v}, v{v}, v{v} row_bcast:15 row_mask:0xa bank_mask:0xf")
    if full:
        e(f"v_add_u32_dpp v{v}, v{v}, v{v} row_bcast:31 row_mask:0xc bank_mask:0xf")


class TS:
    last = None

    def __init__(self, e, on, pair, vreg):
        self.e, self.on, self.pair, self.v, self.names = e, on, pair, vreg, []
        TS.last = self

    diag = None

    def stamp(self, name):
        if self.diag and self.diag[0] == name:
            self.e("s_memrealtime s[4:5]", "s_waitcnt lgkmcnt(0)", f"s_sub_u32 s4, s4, s{self.pair}", f"s_mul_i32 s{self.pair+1}, s4, {self.diag[1]}")
        if self.on and (self.on == 1 or name in str(self.on).split(",") or name in ("start", "end")):
            e, p = self.e, self.pair
            e(f"s_memrealtime s[{p}:{p+1}]", "s_waitcnt lgkmcnt(0)", f"v_writelane_b32 v{self.v}, s{p}, {len(self.names)}")
            self.names.append(name)


class VQ:
    def __init__(self, e):
        self.e, self.q = e, []

    def op(self, tag, text):
        self.e(text)
        self.q.append(tag)

    def n(self, tag):
        idx = max(i for i, t in enumerate(self.q) if t == tag)
        return len(self.q) - 1 - idx

    def wait(self, tag, extra=""):
        self.e(f"s_waitcnt vmcnt({self.n(tag)}) {extra}".strip())


def gen(P):
    e = Emitter()
    vq = VQ(e)
    D = P["D"]
    R = 8
    MAP, CNT2, WB, DEG, TOT, NODEOF, START, WR, WO = 0, 8192, 13312, 14336, 15360, 15616, 16384, 17408, 23552
    LIST = WO + 32768
    SHST = LIST + (CAP + 8 * GAP + 128) * 4
    EAST = SHST + CAP * 8
    assert SHST + CAP * 8 <= EAST
    LDS = EAST + CAP * 32
    AGL = 0
    ACNT, ASTART, AINV, ASKS = LIST, LIST + 1024, LIST + 2048, LIST + 7168
    assert ASKS + 16384 <= EAST
    LANE, X16, RLEN, RBASE, RG0, ONE, PFV = 1, 2, 3, 4, 5, 6, 7
    T = 8
    ACC, RW, XR, TP, AGN, PQ, EA0, EA1, WRF, CGF, ENT = 16, 64, 96, 128, 144, 160, 164, 168, 172, 188, 192
    MP, MQ = CGF + 2, CGF + 3
    K, KN, LA, LB, EAC, LAC, LBC, RT, TSV = 196, 197, 198, 199, 200, 201, 202, 203, 204
    WOF = 208
    cODD, cMAPW, cMAP1, cMAP2, cL12, cDEG, cSH, cR21, cROW, cTIE, cBIN, cNOD, cLST = range(240, 253)
    e.idx_range = {("v", i) for i in range(ACC, ACC + 48)}
    sX, sTAB, sSK, sEA, sA0, sA1, sOUT = 16, 20, 24, 28, 32, 36, 40
    sB, sNB, sNCNT, sN, sROFF, sNR, sNV, sBASE, sEM, sCNT, sT, sT2 = 44, 45, 46, 47, 48, 49, 50, 51, 52, 53, 54, 55
    sNODE = 56
    sOFF = 61
    sTAG, sTAG2 = 62, 63
    SK = 64
    sV = 80
    sM0, sM1 = 86, 88
    sASG = [90, 91, 92, 93, 94]
    sNW, sK4 = 95, 98
    sA2, sTSP = 96, 100
    ts = TS(e, P["TS"], sTSP, TSV)
    if P["DIAGW"]:
        ts.diag = (P["DIAGAT"], P["DIAGK"])
    apol, ldpol = P["APOL"], P["LDPOL"]
    astage = [int(c) for c in str(P["AEA"]).zfill(5)]
    bstage = [int(c) for c in str(P["BEA"]).zfill(6)]

    def srd(s, lo, hi, off, size):
        if off is None:
            e(f"s_mov_b32 s{s}, s{lo}", f"s_mov_b32 s{s+1}, s{hi}")
        else:
            e(f"s_add_u32 s{s}, s{lo}, {off}", f"s_addc_u32 s{s+1}, s{hi}, 0")
        e(f"s_mov_b32 s{s+2}, {size}", f"s_mov_b32 s{s+3}, 0x20000")

    def init_round(first):
        e(f"v_lshlrev_b32 v{T+3}, 2, v0", f"v_mov_b32 v{T+4}, 0x00700000", f"v_mov_b32 v{T+5}, 0")
        for i in range(4):
            e(f"ds_write_b32 v{T+3}, v{T+4} offset:{MAP + i*2048}")
        for i in range(4 if first else 3):
            e(f"ds_write_b32 v{T+3}, v{T+5} offset:{CNT2 + i*2048}")

    DSTV, SRCV, SHV, BK, BA, RK, NL, KEY, CT, ST, PS = 64, 68, 72, 80, 84, 88, 92, 96, 100, 104, 108
    TABV = 112
    OUTV = 128
    IV = 156
    CGR = 120
    if P["TS"]:
        e("s_memrealtime s[92:93]")
    e("s_cmp_ge_u32 s2, 256", "s_cbranch_scc1 L_done")
    e("s_load_dwordx4 s[4:7], s[0:1], 8")
    e("s_load_dwordx4 s[8:11], s[0:1], 24")
    e("s_load_dwordx2 s[14:15], s[0:1], 80")
    e(f"s_load_dwordx2 s[{SK}:{SK+1}], s[0:1], 0")
    e(f"s_load_dwordx2 s[{SK+2}:{SK+3}], s[0:1], 40")
    e(f"s_load_dwordx4 s[{SK+4}:{SK+7}], s[0:1], 48")
    e("s_load_dwordx2 s[12:13], s[0:1], 64")

    def cpf():
        e(f"s_getpc_b64 s[{sV}:{sV+1}]")
        e.label("L_pc")
        e(f"s_and_b32 s{sB}, s2, 0xf8", f"s_lshl_b32 s{sB}, s{sB}, 6")
        e(f"v_and_b32 v{T+3}, 0x180, v{T+2}", f"v_add_u32 v{T+3}, s{sB}, v{T+3}", f"v_min_u32 v{T+3}, L_end-L_pc, v{T+3}")
        e(f"v_mov_b32 v{TABV+1}, s{sV+1}", f"v_add_co_u32 v{TABV}, vcc, s{sV}, v{T+3}", f"v_addc_co_u32 v{TABV+1}, vcc, 0, v{TABV+1}, vcc")
        vq.op("cpf", f"global_load_dword v{TSV+1}, {vr(TABV,2)}, off")

    def srd_hi(s, size):
        e(f"s_mov_b32 s{s+2}, {size}", f"s_mov_b32 s{s+3}, 0x20000")

    def srd_lo(s, lo, off):
        e(f"s_add_u32 s{s}, s{lo}, {off}", f"s_addc_u32 s{s+1}, s{lo+1}, 0")

    e(f"v_lshlrev_b32 v{T+2}, 3, v0")
    if P["CPF"] == 2:
        cpf()
    e(f"v_lshrrev_b32 v{T}, 6, v0", f"v_and_b32 v{LANE}, 63, v0", f"v_lshlrev_b32 v{T+1}, 2, v0", f"v_mov_b32 v{T+5}, 0")
    e(f"v_readfirstlane_b32 s3, v{T}")
    e(f"ds_write_b32 v{T+1}, v{T+5} offset:{ACNT}", f"ds_write_b32 v{T+1}, v{T+5} offset:{AINV+3072}")
    e(f"s_mul_i32 s{sT}, s2, {CH*4}", f"s_mul_i32 s{sT2}, s2, {CH*8}", f"s_mul_i32 s{sOFF}, s2, {CH*32}")
    e(f"v_lshlrev_b32 v{X16}, 4, v{LANE}", f"v_lshlrev_b32 v{T+7}, 4, v0", f"v_mov_b32 v{ONE}, 1")
    e(f"s_lshl_b32 s{sEM}, s3, 10", f"s_add_u32 s{sEM}, s{sEM}, {EAST}", f"s_movk_i32 s{sCNT}, 4096", f"s_movk_i32 s{sNV}, 8192")
    srd_hi(sA0, CH * 4); srd_hi(sA1, CH * 4); srd_hi(sA2, CH * 8); srd_hi(sEA, CH * 32)
    if P["DIAGW"] or P["DIAGL"]:
        e(f"s_memrealtime s[{sTSP}:{sTSP+1}]")
    e("s_waitcnt lgkmcnt(0)")
    if P["TS"]:
        e(f"v_writelane_b32 v{TSV}, s92, 0")
        ts.names.append("first")
    ts.stamp("start")
    srd_lo(sA0, 6, f"s{sT}")
    for i in range(3):
        o = f"0 offen offset:{2048*i}" if i < 2 else f"s{sCNT} offen"
        vq.op("dst", f"buffer_load_dword v{DSTV+i}, v{T+1}, {sr(sA0)}, {o} {apol}")
    srd_lo(sA1, 4, f"s{sT}")
    if P["ABAR"] == 2:
        e("s_barrier")
    for i in range(3):
        o = f"0 offen offset:{2048*i}" if i < 2 else f"s{sCNT} offen"
        vq.op("src", f"buffer_load_dword v{SRCV+i}, v{T+1}, {sr(sA1)}, {o} {apol}")
    e(f"s_load_dword s{sTAG}, s[14:15], {WS_W}")
    if P["CPF"] == 1:
        cpf()
    srd_lo(sA2, 8, f"s{sT2}")
    srd_lo(sEA, 10, f"s{sOFF}")
    if P["ABAR"] == 1:
        e("s_barrier")
    for i, o in enumerate(("0", f"s{sCNT}", f"s{sNV}")):
        vq.op("sh", f"buffer_load_dwordx2 {vr(SHV+2*i,2)}, v{T+2}, {sr(sA2)}, {o} offen {apol}")

    def aea(p):
        for i in range(5):
            if astage[i] == p:
                e(f"s_add_u32 m0, s{sEM}, {8192*i}", f"s_mov_b32 s{sT}, {8192*i}")
                vq.op("ea", f"buffer_load_dwordx4 v{T+7}, {sr(sEA)}, s{sT} offen {apol} lds")
        if P["WST"] == p:
            weights()
        if P["WOST"] == p:
            wout()

    def weights():
        e("s_cmp_lt_u32 s3, 4")
        e(f"s_cselect_b32 s{sX}, s{SK+4}, s{SK+2}", f"s_cselect_b32 s{sX+1}, s{SK+5}, s{SK+3}", f"s_movk_i32 s{sT}, 128",
          f"s_cselect_b32 s{sX+2}, s{sCNT}, s{sT}", f"s_mov_b32 s{sX+3}, 0x20000")
        e(f"s_min_u32 s{sT}, s3, 5", f"s_lshl_b32 s{sT}, s{sT}, 10", f"s_add_u32 m0, s{sT}, {WR}", f"s_and_b32 s{sT}, s{sT}, 0xc00")
        vq.op("w", f"buffer_load_dwordx4 v{X16}, {sr(sX)}, s{sT} offen lds")

    def wout():
        srd(sOUT, SK + 6, SK + 7, None, 32768)
        e(f"s_lshl_b32 s{sT2}, s3, 12", f"s_add_u32 m0, s{sT2}, {WO}")
        for i in range(4):
            vq.op("w", f"buffer_load_dwordx4 v{X16}, {sr(sOUT)}, s{sT2} offen offset:{i*1024} lds")

    aea(0)
    if not P["ABAR"]:
        e("s_barrier")
    e(f"s_mov_b32 s{SK+8}, 109951168", f"s_movk_i32 s{SK+9}, 625", f"s_movk_i32 s{SK+10}, 838")
    e(f"v_cmp_gt_u32 s[{sV+4}:{sV+5}], {CH-1024}, v0") if CH - 1024 <= 64 else e(f"s_movk_i32 s{sT}, {CH-1024}", f"v_cmp_gt_u32 s[{sV+4}:{sV+5}], s{sT}, v0")
    srd(sTAB, 14, 15, None, WS_FL + 8192)
    init_round(True)
    if P["ACCZ"] == 9:
        for i in range(48):
            e(f"v_mov_b32 v{ACC+i}, 0")
    vq.wait("dst")
    ts.stamp("dst")
    for k in range(3):
        e(f"v_mul_hi_u32 v{BK+k}, v{DSTV+k}, s{SK+8}")
    for k in range(3):
        e(f"v_lshlrev_b32 v{BA+k}, 2, v{BK+k}")
        if k == 2:
            e(f"s_mov_b64 exec, s[{sV+4}:{sV+5}]")
        e(f"ds_add_rtn_u32 v{RK+k}, v{BA+k}, v{ONE} offset:{ACNT}")
    e("s_mov_b64 exec, -1")
    e("s_waitcnt lgkmcnt(0)", "s_barrier")
    ts.stamp("hist")
    e(f"ds_read_b128 {vr(CT,4)}, v{X16} offset:{ACNT}")
    e(f"s_mul_i32 s{sTAG}, s{sTAG}, 0x9e3779b1", f"s_add_u32 s{sTAG}, s{sTAG}, 0x7f4a7c15")
    e(f"s_mul_i32 s{sTAG2}, s{sTAG}, 0x85ebca6b", f"s_and_b32 s{sTAG2}, s{sTAG2}, 0xffc00000")
    NS = P["NS"]
    SG = CGR
    gpoll = f"buffer_load_dword v{SG+1}, v{SG}, {sr(sTAB)}, s{sROFF} offen sc1"

    def signal(pos):
        if NS and P["SP"] == pos:
            e("s_cmp_lg_u32 s3, 0", "s_cbranch_scc1 L_nosig", f"s_cmp_lt_u32 s2, {256-8*NS}", "s_cbranch_scc1 L_nosig")
            e(f"s_lshl_b32 s{sT}, s2, 7", f"s_add_u32 s{sT}, s{sT}, {WS_FL - (256-8*NS)*128}", f"v_mov_b32 v{SG+2}, s{sTAG}")
            e("s_mov_b32 exec_hi, 0", f"buffer_store_dword v{SG+2}, v{T+1}, {sr(sTAB)}, s{sT} offen sc1", "s_mov_b32 exec_hi, -1")
            e.label("L_nosig")

    signal(2)
    aea(1)
    for k in range(3):
        e(f"v_mad_u32_u24 v{NL+k}, v{BK+k}, s{SK+9}, 15", f"v_lshrrev_b32 v{NL+k}, 4, v{NL+k}", f"v_sub_u32 v{NL+k}, v{DSTV+k}, v{NL+k}")
        e(f"v_lshrrev_b32 v{BK+k}, 3, v{BK+k}", f"v_and_b32 v{BK+k}, 28, v{BK+k}")
    e("s_waitcnt lgkmcnt(0)")
    e(f"v_add_u32 v{T+3}, v{CT}, v{CT+1}", f"v_add3_u32 v{T+3}, v{T+3}, v{CT+2}, v{CT+3}", f"v_mov_b32 v{T+4}, v{T+3}")
    scan_dpp(e, T + 4, True)
    e(f"v_sub_u32 v{ST}, v{T+4}, v{T+3}")
    for k in range(3):
        e(f"v_add_u32 v{ST+1+k}, v{ST+k}, v{CT+k}")
    e(f"ds_write_b128 v{X16}, {vr(ST,4)} offset:{ASTART}")
    for k in range(3):
        e(f"ds_read_b32 v{PS+k}, v{BA+k} offset:{ASTART}")
    vq.wait("src")
    for k in range(3):
        e(f"v_mul_u32_u24 v{KEY+k}, s{SK+10}, v{SRCV+k}", f"v_lshrrev_b32 v{KEY+k}, 18, v{KEY+k}", f"v_sub_u32 v{KEY+k}, v{KEY+k}, v{BK+k}",
          f"v_and_b32 v{KEY+k}, 31, v{KEY+k}", f"v_lshl_or_b32 v{KEY+k}, v{NL+k}, 5, v{KEY+k}",
          f"v_lshlrev_b32 v{KEY+k}, 21, v{KEY+k}", f"v_lshl_or_b32 v{KEY+k}, v{SRCV+k}, 7, v{KEY+k}")
    e(f"v_lshlrev_b32 v{NL}, 5, v0", f"v_add_u32 v{NL+1}, {512*32}, v{NL}", f"v_add_u32 v{NL+2}, {1024*32}, v{NL}")
    e(f"s_mov_b32 s{sT2}, {ASKS}")
    vq.wait("sh", "lgkmcnt(0)")
    for k in range(3):
        e(f"v_add_u32 v{PS+k}, v{PS+k}, v{RK+k}")
        e(f"v_lshlrev_b32 v{BA+k}, 2, v{PS+k}", f"v_mad_u32_u24 v{PS+k}, v{PS+k}, 12, s{sT2}")
        if k == 2:
            e(f"s_mov_b64 exec, s[{sV+4}:{sV+5}]")
        e(f"ds_write_b32 v{BA+k}, v{NL+k} offset:{AINV}")
        e(f"ds_write2_b32 v{PS+k}, v{SHV+2*k}, v{SHV+2*k+1} offset0:0 offset1:1")
        e(f"ds_write_b32 v{PS+k}, v{KEY+k} offset:8")
    e("s_mov_b64 exec, -1")
    signal(1)
    aea(2)
    signal(3)
    e(f"s_lshl_b32 s{sT}, s3, 7", f"v_lshl_add_u32 v{T+3}, v{LANE}, 3, s{sT}")
    e(f"ds_read_b64 {vr(CT,2)}, v{T+3} offset:{ACNT}", f"ds_read_b64 {vr(ST,2)}, v{T+3} offset:{ASTART}")
    e(f"s_mul_i32 s{sT}, s2, {CS*12}", f"s_add_u32 s{sT}, s{sT}, {WS_SK}")
    srd(sA0, 14, 15, f"s{sT}", CS * 12)
    e(f"s_mul_i32 s{sT}, s2, {CS*32}", f"s_add_u32 s{sT}, s{sT}, {WS_EA}")
    srd(sA1, 14, 15, f"s{sT}", CH * 32)
    e(f"v_lshrrev_b32 v{T+3}, 1, v0", f"v_lshlrev_b32 v{T+3}, 2, v{T+3}")
    e(f"v_and_b32 v{T+4}, 1, v0", f"v_lshlrev_b32 v{T+4}, 4, v{T+4}", f"v_add_u32 v{T+4}, {EAST}, v{T+4}", f"v_add_u32 v{T+6}, {ASKS}, v{T+7}")
    e("s_waitcnt lgkmcnt(0)", "s_barrier")
    ts.stamp("scat")
    e(f"ds_read_b128 {vr(OUTV,4)}, v{T+6}", f"ds_read_b128 {vr(OUTV+4,4)}, v{T+6} offset:8192")
    for i in range(5):
        e(f"ds_read_b32 v{IV+i}, v{T+3} offset:{AINV + i*1024}")
    signal(0)
    if NS:
        e(f"v_and_b32 v{SG}, {8*NS-1}, v{LANE}", f"v_lshlrev_b32 v{SG}, 7, v{SG}", f"s_mov_b32 s{sROFF}, {WS_FL}")
        if P["GP"] == 0:
            e("s_cmp_lg_u32 s3, 7", "s_cbranch_scc1 L_nogp")
            e(gpoll)
            e.label("L_nogp")
    aea(3)

    def skst():
        vq.op("skst", f"buffer_store_dwordx4 {vr(OUTV,4)}, v{T+7}, {sr(sA0)}, 0 offen {P['ASTPOL']}")
        if P["STH"] == 1 and not P["SKEARLY"]:
            e("s_waitcnt vmcnt(0)")
        vq.op("skst", f"buffer_store_dwordx4 {vr(OUTV+4,4)}, v{T+7}, {sr(sA0)}, s{sNV} offen {P['ASTPOL']}")

    def frag_r(F0, t0, t1, t2):
        e(f"v_lshrrev_b32 v{t0}, 5, v{LANE}", f"v_lshlrev_b32 v{t0}, 11, v{t0}", f"v_and_b32 v{t1}, 15, v{LANE}", f"v_lshl_add_u32 v{t0}, v{t1}, 4, v{t0}")
        for i in range(8):
            e(f"ds_read_b128 {vr(F0+4*i,4)}, v{t0} offset:{WR + 256*i}")
        e(f"v_lshrrev_b32 v{t0}, 4, v{LANE}", f"v_lshlrev_b32 v{t0}, 5, v{t0}", f"v_and_b32 v{t1}, 3, v{LANE}", f"v_lshl_add_u32 v{t0}, v{t1}, 1, v{t0}")
        for v in range(4):
            e(f"ds_read_u16 v{F0+32+v}, v{t0} offset:{WR + 4096 + 8*v}")
        e(f"v_bfe_i32 v{t2}, v{LANE}, 4, 1", f"v_and_b32 v{t2}, 0x02020202, v{t2}", f"v_add_u32 v{t2}, 0x05040100, v{t2}")
        e("s_waitcnt lgkmcnt(0)")
        for h in range(2):
            for t in range(2):
                for ip in range(4):
                    e(f"v_perm_b32 v{WRF+8*h+4*t+ip}, v{F0+4*(2*ip+1)+t+2*h}, v{F0+4*(2*ip)+t+2*h}, v{t2}")
        e(f"v_lshl_or_b32 v{CGF}, v{F0+33}, 16, v{F0+32}", f"v_lshl_or_b32 v{CGF+1}, v{F0+35}, 16, v{F0+34}")

    def frag_o(F0, t0, t1, sM):
        e(f"v_and_b32 v{t1}, 15, v{LANE}", f"v_lshrrev_b32 v{t0}, 4, v{LANE}", f"v_lshlrev_b32 v{t0}, 13, v{t0}", f"v_lshl_add_u32 v{t0}, v{t1}, 2, v{t0}",
          f"s_and_b32 s{sM}, s3, 3", f"s_lshl_b32 s{sM}, s{sM}, 6", f"s_add_u32 s{sM}, s{sM}, {WO}", f"v_add_u32 v{t0}, s{sM}, v{t0}")
        for s in range(4):
            for ip in range(4):
                e(f"ds_read2st64_b32 {vr(F0+8*s+2*ip,2)}, v{t0} offset0:{8*ip+s} offset1:{8*ip+4+s}")
        e(f"s_mov_b32 s{sM}, 0x05040100", f"s_mov_b32 s{sM+1}, 0x07060302")
        for s in range(4):
            e(f"s_waitcnt lgkmcnt({12-4*s})")
            for t in range(2):
                for ip in range(4):
                    e(f"v_perm_b32 v{WOF+8*s+4*t+ip}, v{F0+8*s+2*ip+1}, v{F0+8*s+2*ip}, s{sM+t}")

    def consts():
        e(f"s_and_b32 s{sB}, s2, 7", f"s_lshl_b32 s{sB}, s{sB}, 5", f"s_lshr_b32 s{sT}, s2, 3", f"s_add_u32 s{sB}, s{sB}, s{sT}")
        e(f"s_mul_i32 s{sNB}, s{sB}, 625", f"s_add_u32 s{sNCNT}, s{sNB}, 640", f"s_add_u32 s{sNB}, s{sNB}, 15",
          f"s_lshr_b32 s{sNB}, s{sNB}, 4", f"s_lshr_b32 s{sNCNT}, s{sNCNT}, 4", f"s_sub_u32 s{sNCNT}, s{sNCNT}, s{sNB}")
        e(f"s_mov_b32 s{sM0}, 0x0f0f0f0f", f"s_mov_b32 s{sM0+1}, 0x0f0f0f0f", f"s_mov_b32 s{sM1}, 0xf0f0f0f0", f"s_mov_b32 s{sM1+1}, 0xf0f0f0f0")
        for i in range(8):
            e(f"v_mov_b32 v{EA0+i}, 0")
        e(f"v_and_b32 v{T+3}, 4, v{LANE}", f"v_lshlrev_b32 v{T+3}, 2, v{T+3}", f"v_mov_b32 v{T+4}, 0xffff", f"v_lshlrev_b32 v{T+4}, v{T+3}, v{T+4}")
        e(f"v_bfe_i32 v{T+3}, v{LANE}, 3, 1", f"v_and_b32 v{MQ}, v{T+3}, v{T+4}", f"v_xor_b32 v{MP}, v{MQ}, v{T+4}")
        e(f"v_lshrrev_b32 v{EAC}, 5, v{LANE}", f"v_lshlrev_b32 v{EAC}, 4, v{EAC}", f"v_add_u32 v{EAC}, {EAST}, v{EAC}")
        e(f"v_and_b32 v{LAC}, 15, v{LANE}", f"v_lshlrev_b32 v{LAC}, 2, v{LAC}")
        e(f"v_bfe_u32 v{T+3}, v{LANE}, 3, 2", f"v_and_b32 v{T+4}, 3, v{LANE}", f"v_lshl_add_u32 v{T+3}, v{T+3}, 2, v{T+4}", f"v_lshlrev_b32 v{LBC}, 2, v{T+3}")
        e(f"v_bfe_i32 v{cODD}, v0, 0, 1", f"s_lshl_b32 s{sT}, s3, 10", f"v_and_b32 v{cMAPW}, 4, v{cODD}", f"v_add_u32 v{cMAPW}, s{sT}, v{cMAPW}")
        e(f"v_lshl_add_u32 v{cMAP1}, v{LANE}, 2, s{sT}", f"v_lshrrev_b32 v{cMAP2}, 1, v{LANE}", f"v_lshl_add_u32 v{cMAP2}, v{cMAP2}, 2, s{sT}")
        e(f"v_mul_u32_u24 v{cL12}, 12, v{LANE}", f"v_and_b32 v{cDEG}, 12, v{cMAP1}", f"v_and_b32 v{cBIN}, 124, v{cMAP1}")
        e(f"v_lshlrev_b32 v{cSH}, 1, v{cMAP1}", f"v_add_u32 v{cSH}, {SHST}, v{cSH}", f"v_lshlrev_b32 v{cR21}, 19, v{cMAP1}")
        e(f"s_mul_i32 s{sT}, s3, 640", f"v_add_u32 v{cROW}, s{sT}, v{cBIN}", f"v_sub_u32 v{cTIE}, 63, v{LANE}")
        e(f"s_lshl_b32 s{sT}, s3, 5", f"v_lshl_add_u32 v{cNOD}, v{LANE}, 2, s{sT}")
        e(f"v_lshrrev_b32 v{cLST}, 3, v{LANE}", f"v_mul_u32_u24 v{cLST}, {GAP*4}, v{cLST}", f"v_add_u32 v{cLST}, {LIST}, v{cLST}")
        e(f"s_cmp_eq_u32 s{sNCNT}, 40")
        tabs = []
        for part in (PART39, PART40):
            t = [0] * 40
            for w, p in enumerate(part):
                for sl, r in enumerate(p):
                    t[r] = w * 8 + sl
            tabs.append([sum(t[5 * q + i] << (6 * i) for i in range(5)) for q in range(8)])
        e(f"v_mov_b32 v{RT}, 0")
        for q in range(8):
            e(f"s_mov_b32 s{sT}, {tabs[0][q]}", f"s_cselect_b32 s{sT}, {tabs[1][q]}, s{sT}")
            m = 31 << (5 * q)
            e(f"s_mov_b32 exec_lo, {m & 0xffffffff}", f"s_mov_b32 exec_hi, {m >> 32}", f"v_mov_b32 v{RT}, s{sT}")
        e("s_mov_b64 exec, -1")
        e(f"v_mul_u32_u24 v{T+3}, 52, v{LANE}", f"v_lshrrev_b32 v{T+3}, 8, v{T+3}", f"v_mad_i32_i24 v{T+3}, v{T+3}, -5, v{LANE}",
          f"v_mul_u32_u24 v{T+3}, 6, v{T+3}", f"v_lshrrev_b32 v{RT}, v{T+3}, v{RT}")
        e(f"v_and_b32 v{T+3}, 7, v{RT}", f"v_bfe_u32 v{RT}, v{RT}, 3, 3", f"v_lshlrev_b32 v{T+3}, 12, v{T+3}", f"v_lshl_or_b32 v{RT}, v{RT}, 7, v{T+3}")
        srd(sSK, 14, 15, WS_SK, NCH * CS * 12)

    def extra(pos):
        if P["CPOS"] == pos:
            consts()
        if P["ACCZ"] == pos:
            for i in range(48):
                e(f"v_mov_b32 v{ACC+i}, 0")

    e("s_waitcnt lgkmcnt(0)")
    if P["SKEARLY"]:
        skst()
    for i in range(5):
        e(f"v_add_u32 v{IV+i}, v{T+4}, v{IV+i}")
    for k in range(2):
        e(f"v_lshl_or_b32 v{TABV+2*k}, v{CT+k}, 11, v{ST+k}", f"v_or_b32 v{TABV+2*k}, s{sTAG2}, v{TABV+2*k}", f"v_mov_b32 v{TABV+2*k+1}, s{sTAG}")
    extra(0)
    e(f"s_waitcnt vmcnt({min(vq.n('w') + P['WGN'], vq.n('ea'))})")
    if NS:
        ts.stamp("land0")
        e("s_cmp_eq_u32 s3, 7", "s_cbranch_scc1 L_guard")
        e.label("L_guarded")
    e("s_barrier")
    ts.stamp("land")
    for i in range(5):
        e(f"ds_read_b128 {vr(OUTV+8+4*i,4)}, v{IV+i}")
    extra(1)
    if P["FRG"] & 1:
        frag_r(RW, T, T + 1, T + 2)
    if P["FRG"] & 2:
        frag_o(RW, T, T + 1, SK + 8)
    ts.stamp("guard")
    if not P["SKEARLY"]:
        skst()
    for i in range(5):
        thr = f"vmcnt({P['STH']-1}) " if P["STH"] and i < P["STHN"] else ""
        e(f"s_mov_b32 s{sT}, {8192*i}", f"s_waitcnt {thr}lgkmcnt({4-i})")
        vq.op("st", f"buffer_store_dwordx4 {vr(OUTV+8+4*i,4)}, v{T+7}, {sr(sA1)}, s{sT} offen {P['ASTPOL']}")
    aea(4)
    ts.stamp("issued")

    extra(2)
    e(f"s_lshl_b32 s{sT}, s2, 3", f"s_add_u32 s{sT}, s{sT}, s3", f"s_lshl_b32 s{sT}, s{sT}, 8")
    srd(sX, SK, SK + 1, None, N * 1024)
    srd(sEA, 14, 15, WS_EA, NCH * CS * 32)
    if P["XPF"]:
        n = P["XPF"]
        e(f"s_and_b32 s{sBASE}, s2, 7", f"s_mul_i32 s{sBASE}, s{sBASE}, {1252*1024}", f"s_and_b32 s{sT2}, s2, 0xf8",
          f"s_add_u32 s{sT2}, s{sT2}, s3", f"s_mul_i32 s{sT2}, s{sT2}, {n*128}", f"s_add_u32 s{sBASE}, s{sBASE}, s{sT2}")
        e(f"v_min_u32 v{T+6}, {n-1}, v{LANE}", f"v_lshlrev_b32 v{T+6}, 7, v{T+6}")
    e("s_waitcnt vmcnt(0)", "s_barrier")
    ts.stamp("drained")
    e("s_mov_b64 exec, 0xffff")
    e(f"buffer_store_dwordx4 {vr(TABV,4)}, v{X16}, {sr(sTAB)}, s{sT} offen sc1")
    e("s_mov_b64 exec, -1")
    if P["XPF"]:
        e(f"buffer_load_dword v{PFV}, v{T+6}, {sr(sX)}, s{sBASE} offen")
    if P["WOST"] == 9:
        wout()
    e(f"s_lshl_b32 s{sT}, s{sNB}, 10", f"s_add_u32 s{sOUT}, s12, s{sT}", f"s_addc_u32 s{sOUT+1}, s13, 0",
      f"s_lshl_b32 s{sOUT+2}, s{sNCNT}, 10", f"s_mov_b32 s{sOUT+3}, 0x20000")
    if not P["FRG"] & 1:
        frag_r(RW, T, T + 1, T + 2)
    if P["WOST"] != 9 and not P["FRG"] & 2:
        frag_o(128, T, T + 1, SK + 8)
    extra(3)
    e(f"v_lshrrev_b32 v{T+1}, 1, v0", f"v_lshlrev_b32 v{T+2}, 11, v{T+1}", f"s_lshl_b32 s{sNR}, s{sB}, 3")
    e(f"v_mul_u32_u24 v{RG0}, {CS}, v{T+1}", f"s_mov_b32 s{sROFF}, 0", f"s_mov_b32 s{sCNT}, {SPIN}", f"s_mov_b32 s{sT2}, 0xffc00000")
    e(f"s_lshl_b32 s{sEM}, s3, 13", f"s_add_u32 s{sEM}, s{sEM}, {EAST}", f"s_movk_i32 s{sK4}, 4096")
    if P["PWAIT"]:
        e("s_waitcnt vmcnt(0)")
    if P["PWAIT"] == 2:
        e("s_barrier")
    ts.stamp("frag")
    PL = 206
    poll1 = f"buffer_load_dwordx2 {vr(PL,2)}, v{T+2}, {sr(sTAB)}, s{sNR} offen sc1"

    def tagcheck():
        e(f"v_xor_b32 v{T+3}, s{sTAG2}, v{PL}", f"v_xor_b32 v{T+4}, s{sTAG}, v{PL+1}", f"v_and_or_b32 v{T+3}, v{T+3}, s{sT2}, v{T+4}")
        e(f"v_cmpx_ne_u32 vcc, 0, v{T+3}")

    e(poll1, "s_waitcnt vmcnt(0)")
    tagcheck()
    e("s_cbranch_execnz L_poll")
    e.label("L_polled")
    e("s_mov_b64 exec, -1")
    ts.stamp("tab")
    G1, G2, SKR, RNK, CA = RW, RW + 4, RW + 12, TP, TP + 4
    MU = P["MU"]
    sVm = [sV, sV + 2, sV + 4, sA2]

    def bea1(i):
        e(f"s_add_u32 m0, s{sEM}, {4096*(i//4)}")
        vq.op("ea", f"buffer_load_dwordx4 v{G2+i}, {sr(sEA)}, {'0' if i < 4 else 's%d' % sK4} offen offset:{1024*(i%4)} {ldpol} lds")

    def bea(p):
        for i in range(6):
            if bstage[i] == p:
                bea1(i)

    def skld(i):
        e(f"v_mad_u32_u24 v{G1+i}, v{G1+i}, 12, v{cL12}")
        vq.op(f"sk{i}", f"buffer_load_dwordx3 {vr(SKR+4*i,3)}, v{G1+i}, {sr(sSK)}, 0 offen offset:{768*i} {ldpol}")

    cmps = [f"v_cmp_lt_i32 s[{SK+2*i}:{SK+2*i+1}], {2*i}, v{T+2}" for i in range(MU + 1)]
    e(f"v_bfe_u32 v{RLEN}, v{PL}, 11, 11", f"v_and_b32 v{RBASE}, v{RLEN}, v{cODD}", f"v_add_u32 v{T+2}, v{RLEN}, v{cODD}")
    fill = [f"v_and_b32 v{T+3}, 0x7ff, v{PL}"] + cmps + [f"v_add_u32 v{RG0}, v{RG0}, v{T+3}"]
    e(fill.pop(0))
    for mod in ("row_shr:1 row_mask:0xf", "row_shr:2 row_mask:0xf", "row_shr:4 row_mask:0xf", "row_shr:8 row_mask:0xf", "row_bcast:15 row_mask:0xa", "row_bcast:31 row_mask:0xc"):
        e(f"v_add_u32_dpp v{RBASE}, v{RBASE}, v{RBASE} {mod} bank_mask:0xf")
        e(*fill[:2]); fill = fill[2:]
    e(f"v_readlane_b32 s{sNW}, v{RBASE}, 63")
    e(f"v_mov_b32_dpp v{RBASE}, v{RBASE} quad_perm:[0,0,2,2] row_mask:0xf bank_mask:0xf")
    e(f"v_sub_u32 v{RG0}, v{RG0}, v{RBASE}")
    e(f"v_lshl_add_u32 v{T}, v{RBASE}, 2, v{cMAPW}")
    e(f"s_cmp_gt_u32 s{sNW}, {CAPW}", "s_cbranch_scc1 L_clip")
    e.label("L_mapw")
    for i in range(MU):
        e(f"s_mov_b64 exec, s[{SK+2*i}:{SK+2*i+1}]")
        e(f"ds_write_b32 v{T}, v{RG0} offset:{8*i}")
    e("s_mov_b64 exec, -1")
    e(f"s_cmp_lg_u64 s[{SK+2*MU}:{SK+2*MU+1}], 0", "s_cbranch_scc1 L_map2")
    for i in range(3):
        e(f"ds_read_b32 v{G1+i}, v{cMAP1} offset:{256*i}")
    for i in range(6):
        e(f"ds_read_b32 v{G2+i}, v{cMAP2} offset:{128*i}")
    e(f"s_cmp_gt_i32 s{sNW}, 192", "s_cbranch_scc1 L_r1")
    e.label("L_r1b")
    e("s_waitcnt lgkmcnt(6)")
    ts.stamp("map")
    for i in range(3):
        skld(i)
    e(f"v_mov_b32 v{T+3}, s{sNW}", "s_mov_b64 exec, 1", f"ds_max_i32 v{T+5}, v{T+3} offset:{TOT}", "s_mov_b64 exec, -1")
    e("s_waitcnt lgkmcnt(1)")
    for i in range(6):
        e(f"v_lshl_add_u32 v{G2+i}, v{G2+i}, 5, v{X16}")
    if P["SKBAR"]:
        e("s_barrier")
    ts.stamp("skiss")
    bea(0)
    for i in range(4):
        e(f"v_add_u32 v{T+3}, {64*i}, v{LANE}", f"v_cmp_gt_i32 s[{sVm[i]}:{sVm[i]+1}], s{sNW}, v{T+3}")
    e(f"s_mov_b32 s{sT2}, 0x1fff80", f"s_mul_i32 s{sOFF}, s3, 5")

    def count(i):
        key = SKR + 4 * i + 2
        e(f"v_lshrrev_b32 v{CA+i}, 21, v{key}", f"v_lshlrev_b32 v{CA+i}, 2, v{CA+i}")
        e(f"v_lshrrev_b32 v{T+3}, 26, v{key}", f"v_lshl_or_b32 v{T+3}, v{T+3}, 4, v{cDEG}")
        e(f"s_mov_b64 exec, s[{sVm[i]}:{sVm[i]+1}]")
        e(f"ds_add_rtn_u32 v{RNK+i}, v{CA+i}, v{ONE} offset:{CNT2}")
        e(f"ds_add_u32 v{T+3}, v{ONE} offset:{DEG}")
        e("s_mov_b64 exec, -1")

    def entry(i):
        key = SKR + 4 * i + 2
        e(f"ds_write_b64 v{cSH}, {vr(SKR+4*i,2)} offset:{512*i}")
        e(f"v_and_or_b32 v{key}, v{key}, s{sT2}, v{cR21}")
        if i:
            e(f"v_add_u32 v{key}, {64*i << 21}, v{key}")

    for i in range(3):
        vq.wait(f"sk{i}")
        if i == 0:
            ts.stamp("sk")
        count(i)
    e(f"s_cmp_gt_i32 s{sNW}, 192", "s_cbranch_scc1 L_r2")
    e.label("L_r2b")
    for i in range(3):
        entry(i)
    ts.stamp("atom")
    bea(1)
    e("s_waitcnt lgkmcnt(3)", "s_barrier")
    ts.stamp("b1")
    CN, CAD = XR, XR + 8
    e(f"s_cmp_lg_u32 s{sROFF}, 0", "s_cbranch_scc1 L_rank2")
    e(f"ds_read_b128 {vr(CAD,4)}, v{X16} offset:{DEG}")
    for j in range(5):
        e(f"ds_read_b32 v{CN+j}, v{cROW} offset:{CNT2 + 128*j}")
    e(f"ds_read_b32 v{T+6}, v{T+5} offset:{TOT}")
    bea(5)
    for j in range(1, 5):
        e(f"s_add_u32 s{SK+j}, s{sOFF}, {j}")
    e("s_waitcnt lgkmcnt(6)")
    e(f"v_add_u32 v{T+1}, v{CAD}, v{CAD+1}", f"v_add3_u32 v{T+1}, v{T+1}, v{CAD+2}, v{CAD+3}")
    e(f"v_lshl_or_b32 v{T+1}, v{T+1}, 6, v{cTIE}")
    for j in range(5):
        e(f"v_readlane_b32 s{SK+j}, v{T+1}, s{SK+j if j else sOFF}")
    for j in range(5):
        e(f"v_cmp_lt_u32 s[{SK+6+2*j}:{SK+7+2*j}], s{SK+j}, v{T+1}")
    for j in range(5):
        e(f"s_bcnt1_i32_b64 s{SK+j}, s[{SK+6+2*j}:{SK+7+2*j}]")
    e("s_waitcnt lgkmcnt(0)")
    for j in range(5):
        e(f"v_readlane_b32 s{sASG[j]}, v{RT}, s{SK+j}")
    e(f"v_readfirstlane_b32 s{sN}, v{T+6}")
    e.label("L_ranked")
    e("s_mov_b32 exec_hi, 0")
    for j in range(5):
        e(f"s_and_b32 s{sT}, s{sASG[j]}, 0x380")
        e(f"v_add_u32 v{CAD+j}, s{sT}, v{cBIN}")
        e(f"ds_add_rtn_u32 v{CN+j}, v{CAD+j}, v{CN+j} offset:{WB}")
    for j in range(5):
        e(f"v_or_b32 v{CAD+j}, s{sASG[j]}, v{CAD+j}")
    for j in range(5):
        e(f"v_writelane_b32 v{T+3}, s{sASG[j]}, {j}")
    for j in range(5):
        e("s_waitcnt lgkmcnt(4)")
        e(f"v_lshl_or_b32 v{CN+j}, v{CN+j}, 16, v{CAD+j}")
        e(f"ds_write_b32 v{cROW}, v{CN+j} offset:{CNT2 + 128*j}")
    e(f"v_add_lshl_u32 v{T+4}, v{LANE}, s{sOFF}, 7")
    e(f"v_lshrrev_b32 v{T+1}, 10, v{T+3}", f"v_bfe_u32 v{T+3}, v{T+3}, 2, 8", f"v_or_b32 v{T+3}, v{T+3}, v{T+1}")
    e("s_mov_b32 exec_lo, 31")
    e(f"ds_write_b32 v{T+3}, v{T+4} offset:{NODEOF}")
    e("s_mov_b64 exec, -1")
    ts.stamp("rank")
    bea(2)
    e(f"s_lshl_b32 s{sT}, s3, 3", f"s_add_u32 s{sT2}, s{sT}, 7")
    e("s_waitcnt lgkmcnt(0)", "s_barrier")
    ts.stamp("b2")
    e(f"ds_read_b128 {vr(CN,4)}, v{X16} offset:{WB}")
    for i in range(3):
        e(f"ds_read_b32 v{CA+i}, v{CA+i} offset:{CNT2}")
    e(f"ds_read_b32 v{T+3}, v{cNOD} offset:{NODEOF}")
    bea(6)
    e("s_waitcnt lgkmcnt(4)")
    e(f"v_add_u32 v{T+1}, v{CN}, v{CN+1}", f"v_add3_u32 v{T+1}, v{T+1}, v{CN+2}, v{CN+3}", f"v_mov_b32 v{T+2}, v{T+1}")
    e("s_waitcnt lgkmcnt(1)")

    def place(i):
        key = SKR + 4 * i + 2
        return [f"v_bfe_u32 v{T+7}, v{CA+i}, 12, 3", f"v_or_b32 v{key}, v{T+7}, v{key}", f"v_and_b32 v{G1+i}, 0x3ff, v{CA+i}",
                f"v_lshrrev_b32 v{CA+i}, 16, v{CA+i}", f"v_add_u32 v{CA+i}, v{CA+i}, v{RNK+i}"]

    fill = place(0) + place(1) + place(2)
    e(fill.pop(0))
    for mod in ("row_shr:1 row_mask:0xf", "row_shr:2 row_mask:0xf", "row_shr:4 row_mask:0xf", "row_shr:8 row_mask:0xf", "row_bcast:15 row_mask:0xa", "row_bcast:31 row_mask:0xc"):
        e(f"v_add_u32_dpp v{T+2}, v{T+2}, v{T+2} {mod} bank_mask:0xf")
        e(*fill[:2]); fill = fill[2:]
    e(f"v_sub_u32 v{T+1}, v{T+2}, v{T+1}")
    e(f"v_lshl_add_u32 v{CAD}, v{T+1}, 2, v{cLST}")
    for k in range(3):
        e(f"v_lshl_add_u32 v{CAD+1+k}, v{CN+k}, 2, v{CAD+k}")
    e(f"ds_write_b128 v{X16}, {vr(CAD,4)} offset:{START}")
    for i in range(3):
        e(f"ds_read_b32 v{G1+i}, v{G1+i} offset:{START}")
    e(*fill)
    e(f"v_readlane_b32 s{sNV}, v{T+2}, s{sT2}", f"v_readlane_b32 s{sCNT}, v{T+1}, s{sT}", f"v_readlane_b32 s{sBASE}, v{CAD}, s{sT}")
    e(f"v_mov_b32 v{T+4}, {(0x3fff << 7) | 5}")
    e(f"s_sub_u32 s{sNV}, s{sNV}, s{sCNT}", f"s_lshl_b32 s{sT}, s{sNV}, 2")
    e(f"v_add_u32 v{LA}, s{sBASE}, v{LAC}", f"v_add_u32 v{LB}, s{sBASE}, v{LBC}", f"v_add_u32 v{T+1}, s{sT}, v{LA}")

    def scatter(i):
        e(f"v_lshl_add_u32 v{CA+i}, v{CA+i}, 2, v{G1+i}")
        e(f"s_mov_b64 exec, s[{sVm[i]}:{sVm[i]+1}]")
        e(f"ds_write_b32 v{CA+i}, v{SKR+4*i+2}")
        e("s_mov_b64 exec, -1")

    for i in range(3):
        e("s_waitcnt lgkmcnt(2)")
        scatter(i)
    e(f"ds_write_b32 v{T+1}, v{T+4}")
    e(f"s_cmp_gt_i32 s{sNW}, 192", "s_cbranch_scc1 L_r3")
    e.label("L_r3b")
    bea(3)
    for j in range(5):
        e(f"v_readlane_b32 s{sNODE+j}, v{T+3}, {j}")
    ts.stamp("list")
    if P["WOST"] == 9:
        frag_o(XR, PQ, PQ + 1, SK + 8)
    assert D == 6
    sP0 = sT
    e(f"s_add_u32 s{sP0}, s{sNV}, 1", f"s_and_b32 s{sP0}, s{sP0}, -2", f"s_add_u32 s{sCNT}, s{sP0}, 15", f"s_lshr_b32 s{sCNT}, s{sCNT}, 4",
      f"s_sub_u32 s{sP0}, 0, s{sP0}", f"s_and_b32 s{sP0}, s{sP0}, 15", f"s_sub_u32 s{sCNT}, s{sCNT}, 1", f"s_cmp_gt_i32 s{sCNT}, 0", f"s_cselect_b32 s{sP0}, s{sP0}, 0")
    e(f"s_lshl_b32 s{sOFF}, s{sP0}, 2", f"v_subrev_u32 v{LA}, s{sOFF}, v{LA}", f"v_subrev_u32 v{LB}, s{sOFF}, v{LB}",
      f"s_and_b32 s{sOFF}, s{sOFF}, 32", f"v_add_u32 v{T+4}, s{sOFF}, v{LA}", f"s_and_b32 s{SK+8}, s{sP0}, 6")
    e(f"s_mov_b32 s{sT2}, 0x00fffc38", f"s_mov_b32 s{sNR}, 0xffffff00", f"s_mov_b32 s{sBASE}, {SHST}")
    if P["PRIO"] == 1:
        e("s_cmp_lt_u32 s3, 4", "s_cbranch_scc1 L_np", "s_setprio 1")
        e.label("L_np")
    e("s_waitcnt vmcnt(0) lgkmcnt(0)", "s_barrier")
    ts.stamp("b4")
    e(f"ds_read_b32 v{K}, v{T+4}", f"ds_read_b32 v{ENT+2}, v{LB}", f"ds_read_b32 v{KN}, v{LA} offset:{4*D}")
    e(f"s_cmp_eq_u32 s{sNV}, 0", "s_cbranch_scc1 L_swept")
    AL = P["ALIGN"]

    def al():
        if AL:
            e(".p2align 3")

    def ea_reads():
        e(f"v_lshrrev_b32 v{T}, 21, v{ENT+2}", f"v_lshl_add_u32 v{T+3}, v{T}, 3, s{sBASE}", f"v_lshl_add_u32 v{T}, v{T}, 5, v{EAC}")
        e(f"ds_read_b64 {vr(ENT,2)}, v{T+3}")
        e(f"s_mov_b64 exec, s[{sM0}:{sM0+1}]", f"ds_read_b128 {vr(EA0,4)}, v{T}")
        e(f"s_mov_b64 exec, s[{sM1}:{sM1+1}]", f"ds_read_b128 {vr(EA1,4)}, v{T}")
        e("s_mov_b64 exec, -1")

    def pq(j):
        p = PQ + 2 * (j % 2)
        return [f"v_cvt_pk_bf16_f32 v{T+1+j%2}, v{AGN+j}, v{AGN+j}", f"v_and_b32 v{p}, v{MP}, v{T+1+j%2}", f"v_and_b32 v{p+1}, v{MQ}, v{T+1+j%2}"]

    def head(kind):
        e("s_waitcnt lgkmcnt(0)"); al()
        for q in range(4):
            e(f"v_mfma_f32_4x4x4_16b_bf16 {vr(AGN+4*q,4)}, {vr(ENT,2)}, {vr(CGF,2)}, 0 cbsz:4 abid:{2*q}")
        fill = [f"v_lshlrev_b32 v{K}, 3, v{KN}", f"v_and_b32 v{K}, s{sT2}, v{K}"]
        if kind != "last":
            fill += [f"v_add_u32 v{LA}, 64, v{LA}", f"v_add_u32 v{LB}, 64, v{LB}", f"ds_read_b32 v{KN}, v{LA} offset:{4*D}", f"ds_read_b32 v{ENT+2}, v{LB}"]
        groups = [fill[:4], fill[4:], pq(0) if kind != "first" else [], []]
        for q in range(4):
            h, t = q % 2, q // 2
            e(f"v_mfma_f32_32x32x16_bf16 {vr(RW+16*h,16)}, {vr(EA0+4*t,4)}, {vr(WRF+8*h+4*t,4)}, {vr(RW+16*h,16) if t else 0}")
            e(*groups[q])

    def pks(j):
        t = TP + 8 * (j % 2)
        for h in range(2):
            r = RW + 16 * h + j
            rp = r & ~1
            sel = "op_sel:[0,1,0] op_sel_hi:[1,1,1]" if r & 1 else "op_sel_hi:[1,0,1]"
            for q in range(2):
                a = ACC + 4 * h + 2 * q
                e(f"v_pk_fma_f32 {vr(a,2)}, {vr(t+4*h+2*q,2)}, {vr(rp,2)}, {vr(a,2)} {sel}")

    def mf(j, h):
        t, p, s = TP + 8 * (j % 2), PQ + 2 * (j % 2), XR + 4 * (j % R)
        e(f"v_mfma_f32_16x16x16_bf16 {vr(t+4*h,4)}, {vr(p,2)}, {vr(s+2*h,2)}, 0")

    def rl(q, lane):
        e(f"v_readlane_b32 s{SK + q % 8}, v{K}, {lane}")

    def sand(q):
        e(f"s_and_b32 s{sOFF}, s{SK + q % 8}, s{sNR}")

    def xl(q):
        e(f"buffer_load_dwordx4 {vr(XR + 4 * (q % R),4)}, v{X16}, {sr(sX)}, s{sOFF} offen")

    def body(last):
        for j in range(0, 16, 2):
            ld = not last or j + D < 16
            if not last or j == 0:
                e.label(f"L_{'f' if last else 'j'}{j}")
            nx = pq(j + 1)
            e(f"s_waitcnt vmcnt({D-1 if ld else 15-j})"); al()
            mf(j, 0)
            if ld:
                rl(j + D, j)
            e(*nx[:1]); mf(j, 1); e(*nx[1:])
            if ld and P["SCH"] == 2:
                sand(j + D); e(f"s_waitcnt vmcnt({D-2})"); xl(j + D)
            elif ld:
                sand(j + D); xl(j + D); e(f"s_waitcnt vmcnt({D-1})")
            else:
                e(f"s_waitcnt vmcnt({14-j})"); al()
            nx = pq(j + 2) if j < 14 else []
            mf(j + 1, 0)
            if ld:
                rl(j + 1 + D, j + 1)
            e(*nx[:1]); mf(j + 1, 1); e(*nx[1:])
            if j == 2 and not last:
                e("s_waitcnt lgkmcnt(0)")
                ea_reads(); al()
            if ld:
                sand(j + 1 + D)
            e(f"s_set_gpr_idx_on s{SK + j % 8}, gpr_idx(SRC2,DST)")
            xl(j + 1 + D) if ld else al()
            pks(j)
            e(f"s_set_gpr_idx_idx s{SK + (j + 1) % 8}")
            if j == 14 and not last:
                e(f"s_sub_u32 s{sCNT}, s{sCNT}, 1")
            al()
            pks(j + 1)
            e("s_set_gpr_idx_off")

    e("s_waitcnt lgkmcnt(1)")
    e(f"v_lshlrev_b32 v{K}, 3, v{K}", f"v_and_b32 v{K}, s{sT2}, v{K}")
    if P["EAF"]:
        ea_reads()
    for q in (2, 4, 6):
        e(f"s_cmp_eq_u32 s{SK+8}, {q}", f"s_cbranch_scc1 L_p{q}")
    for q in range(0, 12, 2):
        e.label(f"L_p{q}")
        rl(q, q); rl(q + 1, q + 1)
        sand(q); xl(q); sand(q + 1); xl(q + 1)
        if 4 <= q < 10:
            e(f"s_cmp_eq_u32 s{SK+8}, {q-4}", "s_cbranch_scc1 L_pd")
    e.label("L_pd")
    if not P["EAF"]:
        ea_reads()
    ts.stamp("b5")
    head("first")
    e(f"s_set_gpr_idx_on s{sP0}, gpr_idx(SRC0,SRC1)")
    e.idx_range, keep = {("v", i) for i in range(AGN, AGN + 16)}, e.idx_range
    e(pq(0)[0])
    e.idx_range = keep
    e("s_set_gpr_idx_off")
    e(*pq(0)[1:])
    e("s_waitcnt lgkmcnt(0)")
    ea_reads()
    e(f"s_cmp_eq_u32 s{sCNT}, 0", "s_cbranch_scc1 L_f0")
    for j in range(2, 16, 2):
        e(f"s_cmp_eq_u32 s{sP0}, {j}", f"s_cbranch_scc1 L_j{j}")
    e("s_branch L_j0")
    e(".p2align 3")
    e.label("L_loop")
    head("mid")
    body(False)
    e(f"s_cmp_lg_u32 s{sCNT}, 0", "s_cbranch_scc1 L_loop")
    head("last")
    body(True)
    e.label("L_swept")
    ts.stamp("swept")
    e(f"s_add_u32 s{sROFF}, s{sROFF}, {CAPW}", f"s_cmp_lt_u32 s{sROFF}, s{sN}", "s_cbranch_scc1 L_again")
    e(f"v_lshlrev_b32 v{T}, 2, v{LANE}")
    for s in range(5):
        e(f"s_mul_i32 s{sT}, s{sNODE+s}, 9")
        for w in range(4):
            e(f"v_cvt_pk_bf16_f32 v{RW+4*s+w}, v{ACC+8*s+w}, v{ACC+8*s+4+w}")
        e(f"v_add_u32 v{RW+20+s}, s{sT}, v{T}")
        for w in (0, 2):
            e(f"ds_write2_b32 v{RW+20+s}, v{RW+4*s+w}, v{RW+4*s+w+1} offset0:{72*w} offset1:{72*w+72}")
    e(f"v_and_b32 v{T}, 15, v{LANE}", f"v_lshrrev_b32 v{T+1}, 4, v{LANE}", f"s_lshr_b32 s{sT}, s3, 2", f"s_mul_i32 s{sT2}, s{sT}, {5*4608}")
    e(f"v_mul_u32_u24 v{T+2}, 288, v{T}", f"v_lshl_add_u32 v{T+2}, v{T+1}, 4, v{T+2}", f"v_add_u32 v{T+2}, s{sT2}, v{T+2}")
    if P["EPI"] >= 20:
        e(f"s_mul_i32 s{sT}, s{sT}, 20480", f"s_and_b32 s{sT2}, s3, 3", f"s_lshl_b32 s{sOFF}, s{sT2}, 2", f"s_add_u32 s{sCNT}, s{sT}, {EAST}")
        e(f"v_add_u32 v{T+1}, s{sOFF}, v{T+1}")
        e(f"v_and_b32 v{T+3}, 7, v{T}", f"v_xor_b32 v{T+3}, v{T+3}, v{T+1}", f"v_lshlrev_b32 v{T+3}, 4, v{T+3}",
          f"v_lshl_add_u32 v{T+3}, v{T}, 8, v{T+3}", f"v_add_u32 v{T+3}, s{sCNT}, v{T+3}")
        e(f"v_and_b32 v{T+4}, 7, v{T+1}", f"v_xor_b32 v{T+4}, v{T+4}, v{T}", f"v_lshlrev_b32 v{T+4}, 4, v{T+4}",
          f"v_lshl_add_u32 v{T+4}, v{T+1}, 8, v{T+4}", f"v_add_u32 v{T+4}, s{sCNT}, v{T+4}")
        e(f"s_lshl_b32 s{sT2}, s{sT2}, 10", f"s_add_u32 s{sT}, s{sT}, s{sT2}")
        e("s_waitcnt lgkmcnt(0)", "s_barrier")
        ts.stamp("agb")
        AF, DD, PK, RB = ACC, 128, 168, 176
        lq = []

        def lop(tag, text):
            e(text); lq.append(tag)

        def lwait(tag):
            n = len(lq) - 1 - max(i for i, t in enumerate(lq) if t == tag)
            e(f"s_waitcnt lgkmcnt({min(n, 15)})")

        def afrag(tl):
            for s in range(4):
                lop(f"a{tl}{s}", f"ds_read_b128 {vr(AF+16*tl+4*s,4)}, v{T+2} offset:{AGL + 4608*tl + 64*s}")

        def mm(tl, s):
            for t in range(2):
                c = "0" if s == 0 else vr(DD + 8 * tl + 4 * t, 4)
                e(f"v_mfma_f32_16x16x32_bf16 {vr(DD+8*tl+4*t,4)}, {vr(WOF+8*s+4*t,4)}, {vr(AF+16*tl+4*s,4)}, {c}")

        afrag(0); afrag(1)
        for tl in range(7):
            if tl < 5:
                if tl == 0:
                    lwait("a00"); mm(0, 0); lwait("a01"); mm(0, 1); lwait("a03")
                    afrag(2)
                else:
                    lwait(f"a{tl}3"); mm(tl, 0)
                    if tl + 2 < 5:
                        afrag(tl + 2)
                    mm(tl, 1)
            if 1 <= tl <= 5:
                p = PK + 4 * (tl % 2)
                for i in range(4):
                    e(f"v_cvt_pk_bf16_f32 v{p+i}, v{DD+8*(tl-1)+i}, v{DD+8*(tl-1)+4+i}")
                lop(f"w{tl-1}", f"ds_write_b128 v{T+3}, {vr(p,4)} offset:{4096*(tl-1)}")
            if tl < 5:
                mm(tl, 2)
            if tl >= 2:
                lwait(f"r{tl-2}")
                e(f"buffer_store_dwordx4 {vr(RB+4*(tl-2),4)}, v{X16}, {sr(sOUT)}, s{sT} offen {P['OUTPOL']}", f"s_add_u32 s{sT}, s{sT}, 4096")
            if 1 <= tl <= 5 and P["EPI"] == 21:
                lwait(f"w{tl-1}"); e("s_barrier")
                lop(f"r{tl-1}", f"ds_read_b128 {vr(RB+4*(tl-1),4)}, v{T+4} offset:{4096*(tl-1)}")
            if tl < 5:
                mm(tl, 3)
            if 1 <= tl <= 5 and P["EPI"] == 20:
                lwait(f"w{tl-1}"); e("s_barrier")
                lop(f"r{tl-1}", f"ds_read_b128 {vr(RB+4*(tl-1),4)}, v{T+4} offset:{4096*(tl-1)}")
    else:
        e(f"v_lshlrev_b32 v{T+1}, 10, v{T+1}", f"v_lshl_add_u32 v{T+1}, v{T}, 2, v{T+1}",
          f"s_mul_i32 s{sT}, s{sT}, 20480", f"s_and_b32 s{sT2}, s3, 3", f"s_lshl_b32 s{sT2}, s{sT2}, 6", f"s_add_u32 s{sT}, s{sT}, s{sT2}")
        e("s_waitcnt lgkmcnt(0)" if P["NOVM"] else "s_waitcnt vmcnt(0) lgkmcnt(0)", "s_barrier")
        ts.stamp("agb")
        AF, DD, PK = ACC, 128, 168

        def afrag(tl):
            for s in range(4):
                e(f"ds_read_b128 {vr(AF+16*tl+4*s,4)}, v{T+2} offset:{AGL + 4608*tl + 64*s}")

        afrag(0); afrag(1)

        def stores(tl):
            o = []
            for i in range(4):
                o.append(f"v_cvt_pk_bf16_f32 v{PK+4*tl+i}, v{DD+8*tl+i}, v{DD+8*tl+4+i}")
                if P["EPI"] != 8 or tl == 4:
                    o.append(f"buffer_store_dword v{PK+4*tl+i}, v{T+1}, {sr(sOUT)}, s{sT} offen offset:{256*i} {P['OUTPOL']}")
            o.append(f"s_add_u32 s{sT}, s{sT}, 4096")
            return o

        for tl in range(5):
            if tl + 2 < 5:
                afrag(tl + 2)
            pend = stores(tl - 1) if tl > 0 else []
            for s in range(4):
                if P["EPI"] == 0 or tl == 0:
                    e(f"s_waitcnt lgkmcnt({4 * min(2, 4 - tl) + 3 - s})")
                elif s == 0:
                    e(f"s_waitcnt lgkmcnt({4 * min(2, 4 - tl)})")
                for t in range(2):
                    c = "0" if s == 0 else vr(DD + 8 * tl + 4 * t, 4)
                    if P["EPI"] != 9 or s == 0:
                        e(f"v_mfma_f32_16x16x32_bf16 {vr(DD+8*tl+4*t,4)}, {vr(AF+16*tl+4*s,4)}, {vr(WOF+8*s+4*t,4)}, {c}")
                    if P["EPI"] == 1 and 2 * s + t >= 3:
                        e(*pend[:2]); pend = pend[2:]
            e(*pend)
        e(*stores(4))
    ts.stamp("stored")
    e("s_or_b32 s4, s2, s3", "s_cbranch_scc1 L_notag")
    e(f"v_mov_b32 v{T}, s{sTAG}", f"v_lshlrev_b32 v{T+2}, 2, v{LANE}", f"s_mov_b32 s{sT}, {WS_W}")
    e(f"buffer_store_dword v{T}, v{T+2}, {sr(sTAB)}, s{sT} offen sc1")
    e.label("L_notag")
    if P["DIAGL"] == 1:
        e(f"s_add_u32 s8, s14, {WS_TS}", "s_addc_u32 s9, s15, 0", "s_load_dword s6, s[8:9], 0", "s_waitcnt lgkmcnt(0)")
        e.label("L_diag")
        e("s_memrealtime s[4:5]", "s_waitcnt lgkmcnt(0)", "s_sub_u32 s4, s4, s6", "s_cmp_lt_u32 s4, 4000", "s_cbranch_scc1 L_diag")
    if P["DIAGL"] == 2:
        e("s_or_b32 s4, s2, s3", "s_cbranch_scc1 L_done")
        e(f"v_mov_b32 v{T}, s{sTSP}", f"v_mov_b32 v{T+1}, {WS_TS}", f"global_store_dword v{T+1}, v{T}, s[14:15]")
    if P["DIAGW"]:
        e(f"s_add_u32 s6, s{sTSP+1}, {P['DIAGW']}", "s_min_u32 s6, s6, 30000")
        e.label("L_diag")
        e("s_memrealtime s[4:5]", "s_waitcnt lgkmcnt(0)", f"s_sub_u32 s4, s4, s{sTSP}", "s_cmp_lt_u32 s4, s6", "s_cbranch_scc1 L_diag")
    if P["DIAGC"]:
        e("s_memtime s[6:7]", "s_waitcnt lgkmcnt(0)")
        e.label("L_diag")
        e("s_memtime s[4:5]", "s_waitcnt lgkmcnt(0)", "s_sub_u32 s4, s4, s6", f"s_cmp_lt_u32 s4, {P['DIAGC']}", "s_cbranch_scc1 L_diag")
    if P["TS"]:
        e("s_waitcnt vmcnt(0)")
        ts.stamp("end")
        e(f"s_lshl_b32 s{sT}, s2, 3", f"s_add_u32 s{sT}, s{sT}, s3", f"s_lshl_b32 s{sT}, s{sT}, 8", f"s_add_u32 s{sT}, s{sT}, {WS_TS}")
        e(f"v_lshl_add_u32 v{T}, v{LANE}, 2, s{sT}", f"global_store_dword v{T}, v{TSV}, s[14:15]")
        if P["DBG"]:
            e(f"s_cmp_lg_u32 s2, {P['DBG']}", "s_cbranch_scc1 L_done", "s_cmp_lg_u32 s3, 0", "s_cbranch_scc1 L_done")
            e("s_load_dwordx2 s[4:5], s[0:1], 72", f"v_readlane_b32 s{sT}, v{TSV}, 0", f"v_lshlrev_b32 v{T}, 2, v{LANE}")
            e(f"v_subrev_u32 v{TSV}, s{sT}, v{TSV}", "s_waitcnt lgkmcnt(0)", f"global_store_dword v{T}, v{TSV}, s[4:5]")
    e.label("L_done")
    e("s_endpgm")
    e.label("L_again")
    e("s_waitcnt vmcnt(0) lgkmcnt(0)", "s_barrier")
    init_round(False)
    e(f"v_add_u32 v{RLEN}, v{RLEN}, v{RBASE}", f"v_subrev_u32 v{RLEN}, {CAPW}, v{RLEN}", f"v_max_i32 v{RLEN}, 0, v{RLEN}")
    e(f"v_subrev_u32 v{RBASE}, {CAPW}, v{RBASE}", f"v_max_i32 v{RBASE}, 0, v{RBASE}", f"v_sub_u32 v{RLEN}, v{RLEN}, v{RBASE}")
    e(f"v_add_u32 v{RG0}, {CAPW}, v{RG0}", f"s_sub_i32 s{sNW}, s{sNW}, {CAPW}", f"v_lshl_add_u32 v{T}, v{RBASE}, 2, v{cMAPW}")
    e("s_waitcnt lgkmcnt(0)", "s_barrier")
    e.label("L_clip")
    e(f"v_add_u32 v{T+2}, v{RBASE}, v{RLEN}", f"v_min_i32 v{T+2}, {CAPW}, v{T+2}", f"v_sub_u32 v{T+2}, v{T+2}, v{RBASE}", f"v_add_u32 v{T+2}, v{T+2}, v{cODD}")
    e.label("L_masks")
    e(*cmps)
    e("s_nop 0", "s_branch L_mapw")
    e.label("L_map2")
    e(f"v_add_u32 v{T}, {8*MU}, v{T}", f"v_subrev_u32 v{T+2}, {2*MU}, v{T+2}")
    e("s_branch L_masks")
    e.label("L_r1")
    e(f"ds_read_b32 v{G1+3}, v{cMAP1} offset:768", f"ds_read_b32 v{G2+6}, v{cMAP2} offset:768", f"ds_read_b32 v{G2+7}, v{cMAP2} offset:896")
    e("s_waitcnt lgkmcnt(0)")
    skld(3)
    for i in (6, 7):
        e(f"v_lshl_add_u32 v{G2+i}, v{G2+i}, 5, v{X16}")
        bea1(i)
    e("s_branch L_r1b")
    e.label("L_r2")
    count(3)
    entry(3)
    e("s_branch L_r2b")
    e.label("L_r3")
    e(f"ds_read_b32 v{CA+3}, v{CA+3} offset:{CNT2}", "s_waitcnt lgkmcnt(0)")
    e(*place(3))
    e(f"ds_read_b32 v{G1+3}, v{G1+3} offset:{START}", "s_waitcnt lgkmcnt(0)")
    scatter(3)
    e("s_branch L_r3b")
    if NS:
        e.label("L_guard")
        e(f"s_movk_i32 s{sNW}, 64")
        if P["GP"] == 0:
            e(f"v_cmp_ne_u32 vcc, s{sTAG}, v{SG+1}", "s_cbranch_vccz L_guarded")
        e.label("L_guard2")
        e(gpoll, f"s_sub_u32 s{sNW}, s{sNW}, 1", "s_cbranch_scc1 L_guarded", "s_waitcnt vmcnt(0)")
        e(f"v_cmp_ne_u32 vcc, s{sTAG}, v{SG+1}", "s_cbranch_vccnz L_guard2", "s_branch L_guarded")
    e.label("L_poll")
    e(poll1, f"s_sub_u32 s{sCNT}, s{sCNT}, 1", "s_cbranch_scc1 L_done", "s_waitcnt vmcnt(0)")
    tagcheck()
    e("s_cbranch_execnz L_poll", "s_branch L_polled")
    e.label("L_rank2")
    for j in range(5):
        e(f"ds_read_b32 v{CN+j}, v{cROW} offset:{CNT2 + 128*j}")
    bea(5)
    e("s_waitcnt lgkmcnt(0)")
    e.label("L_end")
    e("s_branch L_ranked")
    return e.text(), LDS, 256, 102


HEADER = """; Kernarg layout for this problem (88 bytes, ptrs only, base s[0:1]):
"""


def generate(**kw):
    P = dict(DEF)
    P.update(kw)
    k, lds, v, s = gen(P)
    n = NAME + "_kernel"
    out = HEADER
    tiny = ""
    if P["DIAGL"]:
        t = "; @launch kernel=tiny_kernel grid=(1,1,1) block=(64,1,1) lds=0\n"
        m = f"; @launch kernel={n} grid=(256,1,1) block=(512,1,1) lds={lds}\n"
        out += t + m if P["DIAGL"] == 1 else m + t
        tiny = ".globl tiny_kernel\n.p2align 8\n.type tiny_kernel,@function\ntiny_kernel:\ns_memrealtime s[4:5]\ns_load_dwordx2 s[14:15], s[0:1], 80\ns_waitcnt lgkmcnt(0)\n"
        if P["DIAGL"] == 1:
            tiny += f"v_mov_b32 v1, s4\nv_mov_b32 v2, {WS_TS}\nglobal_store_dword v2, v1, s[14:15]\ns_endpgm\n"
        else:
            tiny += f"s_add_u32 s8, s14, {WS_TS}\ns_addc_u32 s9, s15, 0\ns_load_dword s6, s[8:9], 0\ns_waitcnt lgkmcnt(0)\nL_td:\ns_memrealtime s[4:5]\ns_waitcnt lgkmcnt(0)\ns_sub_u32 s4, s4, s6\ns_cmp_lt_u32 s4, 4000\ns_cbranch_scc1 L_td\ns_endpgm\n"
    else:
        out += f"; @launch grid=(256,1,1) block=(512,1,1) lds={lds}\n"
    out += '.amdgcn_target "amdgcn-amd-amdhsa--gfx950"\n.text\n' + tiny
    out += f".globl {n}\n.p2align 8\n.type {n},@function\n{n}:\n{k}"
    out += '.section .rodata,"a"\n'
    out += (f".p2align 6\n.amdhsa_kernel {n}\n  .amdhsa_next_free_vgpr {v}\n  .amdhsa_next_free_sgpr {s}\n"
            f"  .amdhsa_accum_offset {(v+3)//4*4}\n  .amdhsa_group_segment_fixed_size 0\n  .amdhsa_kernarg_size 88\n"
            f"  .amdhsa_user_sgpr_count 2\n  .amdhsa_user_sgpr_kernarg_segment_ptr 1\n  .amdhsa_system_sgpr_workgroup_id_x 1\n"
            f"  .amdhsa_float_denorm_mode_32 3\n.end_amdhsa_kernel\n")
    if tiny:
        out += (".p2align 6\n.amdhsa_kernel tiny_kernel\n  .amdhsa_next_free_vgpr 8\n  .amdhsa_next_free_sgpr 32\n  .amdhsa_accum_offset 8\n"
                "  .amdhsa_group_segment_fixed_size 0\n  .amdhsa_kernarg_size 88\n  .amdhsa_user_sgpr_count 2\n  .amdhsa_user_sgpr_kernarg_segment_ptr 1\n"
                "  .amdhsa_system_sgpr_workgroup_id_x 1\n.end_amdhsa_kernel\n")
    return out


if __name__ == "__main__":
    kw = {}
    for a in sys.argv[1:]:
        k, v = a.split("=", 1)
        kw[k] = int(v) if v.lstrip("-").isdigit() else v
    sys.stdout.write(generate(**kw))
```

```python
import sys, os
sys.path.insert(0, os.path.dirname(os.path.abspath(__file__)))
from emit import Emitter

NAME = "gather_scatter__tensor_product_equiv_mace__graph"
N, E = 10000, 320000
CH, NCH, CS = 1250, 256, 1280
WS_TAB, WS_W, WS_FL, WS_SK, WS_EA, WS_TS = 0, 0x80000, 0x90000, 0x100000, 0x500000, 0x2000000
CAPW, GAP = 224, 16
CAP = 8 * CAPW
SPIN = 200000

DEF = dict(WFPRE=16, WFK=6, LASTPOL='sc1', EPRIO=0, XPA=0, XPAW=0, BIAS=30, NS=0, GP=0, SP=1, EAF=1, EPI=2, SCH=2, XDUM=0, NOVM=1, PWAIT=2, ALIGN=1, PRIO=1, PSTEP=16, DIAGL=0, DIAGW=0, DIAGK=0, DIAGAT='tab', DIAGC=0, D=6, TS=0, DBG=0, APOL="nt", AEA="00011", BEA="011222", SKBAR=1, ABAR=2, SKEARLY=0, XPF=26, CPF=2, MU=7, OUTPOL="sc1", LDPOL="sc1", WST=3, WOST=3, ACCZ=2, CPOS=2, FRG=0, WGN=0, STH=0, STHN=5, ASTPOL='sc1')

PART39 = [[3, 11, 21, 31, 36], [5, 8, 20, 27, 38], [0, 6, 7, 13, 39], [9, 14, 18, 25, 34], [10, 16, 19, 24, 32], [4, 12, 26, 29, 33], [1, 17, 23, 28, 37], [2, 15, 22, 30, 35]]
PART40 = [[1, 10, 15, 30, 39], [2, 9, 21, 28, 37], [4, 14, 22, 27, 31], [6, 12, 18, 24, 35], [3, 8, 16, 29, 38], [5, 13, 17, 26, 34], [0, 20, 23, 32, 36], [7, 11, 19, 25, 33]]
PARTS = {0: (PART39, PART40)}
PARTS[12] = ([[12, 16, 24, 26, 30], [8, 14, 15, 31, 36], [2, 10, 23, 34, 37], [5, 17, 18, 22, 38], [0, 1, 7, 19, 39], [3, 11, 20, 29, 35], [6, 9, 25, 27, 32], [4, 13, 21, 28, 33]],
    [[9, 12, 19, 28, 32], [3, 10, 22, 29, 37], [7, 8, 23, 26, 36], [0, 18, 20, 34, 38], [5, 6, 14, 21, 39], [4, 11, 16, 24, 35], [1, 15, 25, 27, 31], [2, 13, 17, 30, 33]])
PARTS[20] = ([[13, 17, 24, 26, 31], [4, 16, 25, 29, 36], [5, 19, 23, 28, 35], [1, 6, 8, 10, 39], [7, 9, 20, 27, 32], [3, 12, 14, 33, 34], [2, 15, 18, 22, 37], [0, 11, 21, 30, 38]],
    [[11, 12, 17, 20, 38], [3, 16, 26, 28, 34], [8, 10, 19, 29, 36], [7, 14, 25, 27, 31], [6, 13, 15, 24, 30], [0, 9, 22, 23, 39], [2, 4, 21, 32, 35], [1, 5, 18, 33, 37]])
PARTS[30] = ([[12, 16, 25, 29, 32], [0, 5, 9, 20, 39], [1, 18, 27, 34, 37], [7, 19, 22, 30, 35], [2, 6, 24, 26, 36], [4, 11, 13, 31, 33], [10, 15, 17, 21, 28], [3, 8, 14, 23, 38]],
    [[6, 9, 26, 28, 37], [1, 11, 24, 35, 38], [5, 17, 23, 31, 33], [8, 12, 21, 29, 36], [2, 4, 15, 22, 39], [7, 10, 14, 18, 34], [0, 16, 20, 30, 32], [3, 13, 19, 25, 27]])
PARTS[40] = ([[7, 13, 28, 29, 37], [10, 17, 22, 30, 36], [1, 4, 6, 23, 39], [9, 19, 26, 31, 33], [5, 12, 15, 18, 35], [2, 11, 16, 27, 34], [0, 8, 24, 25, 38], [3, 14, 20, 21, 32]],
    [[8, 17, 25, 31, 32], [3, 19, 22, 28, 38], [6, 15, 18, 33, 37], [2, 14, 24, 29, 39], [0, 12, 21, 27, 34], [1, 9, 13, 26, 36], [5, 7, 10, 23, 35], [4, 11, 16, 20, 30]])
PARTS[50] = ([[2, 19, 28, 35, 37], [0, 6, 11, 24, 39], [15, 17, 27, 29, 34], [1, 20, 30, 32, 38], [4, 7, 18, 23, 33], [9, 10, 12, 21, 31], [5, 13, 16, 25, 26], [3, 8, 14, 22, 36]],
    [[7, 15, 27, 30, 36], [8, 18, 19, 28, 38], [4, 14, 31, 33, 35], [6, 13, 20, 29, 39], [2, 3, 22, 23, 34], [0, 11, 12, 26, 37], [1, 9, 17, 24, 32], [5, 10, 16, 21, 25]])


def vr(a, n):
    return f"v[{a}:{a+n-1}]" if n > 1 else f"v{a}"


def sr(a, n=4):
    return f"s[{a}:{a+n-1}]"


def scan_dpp(e, v, full):
    for k in (1, 2, 4, 8):
        e(f"v_add_u32_dpp v{v}, v{v}, v{v} row_shr:{k} row_mask:0xf bank_mask:0xf")
    e(f"v_add_u32_dpp v{v}, v{v}, v{v} row_bcast:15 row_mask:0xa bank_mask:0xf")
    if full:
        e(f"v_add_u32_dpp v{v}, v{v}, v{v} row_bcast:31 row_mask:0xc bank_mask:0xf")


class TS:
    last = None

    def __init__(self, e, on, pair, vreg):
        self.e, self.on, self.pair, self.v, self.names = e, on, pair, vreg, []
        TS.last = self

    diag = None

    def stamp(self, name):
        if self.diag and self.diag[0] == name:
            self.e("s_memrealtime s[4:5]", "s_waitcnt lgkmcnt(0)", f"s_sub_u32 s4, s4, s{self.pair}", f"s_mul_i32 s{self.pair+1}, s4, {self.diag[1]}")
        if self.on and (self.on == 1 or name in str(self.on).split(",") or name in ("start", "end")):
            e, p = self.e, self.pair
            e(f"s_memrealtime s[{p}:{p+1}]", "s_waitcnt lgkmcnt(0)", f"v_writelane_b32 v{self.v}, s{p}, {len(self.names)}")
            self.names.append(name)


class VQ:
    def __init__(self, e):
        self.e, self.q = e, []

    def op(self, tag, text):
        self.e(text)
        self.q.append(tag)

    def n(self, tag):
        idx = max(i for i, t in enumerate(self.q) if t == tag)
        return len(self.q) - 1 - idx

    def wait(self, tag, extra=""):
        self.e(f"s_waitcnt vmcnt({self.n(tag)}) {extra}".strip())


def gen(P):
    e = Emitter()
    vq = VQ(e)
    D = P["D"]
    R = 8
    MAP, CNT2, WB, DEG, TOT, NODEOF, START, WR, WO = 0, 8192, 13312, 14336, 15360, 15616, 16384, 17408, 46080
    LIST = WO + 32768
    SHST = LIST + (CAP + 8 * GAP + 128) * 4
    EAST = SHST + CAP * 8
    assert SHST + CAP * 8 <= EAST
    LDS = EAST + CAP * 32
    AGL = 0
    ACNT, ASTART, AINV, ASKS = 23552, 24576, 25600, 30720
    assert ASKS + CS * 12 <= WO and LDS <= 163840
    LANE, X16, RLEN, RBASE, RG0, ONE, PFV = 1, 2, 3, 4, 5, 6, 7
    T = 8
    ACC, RW, XR, TP, AGN, PQ, EA0, EA1, WRF, CGF, ENT = 16, 64, 96, 128, 144, 160, 164, 168, 172, 188, 192
    MP, MQ = CGF + 2, CGF + 3
    K, KN, LA, LB, EAC, LAC, LBC, RT, TSV = 196, 197, 198, 199, 200, 201, 202, 203, 204
    cODD, cMAPW, cMAP1, cMAP2, cL12, cDEG, cSH, cR21, cROW, cTIE, cBIN, cNOD, cLST = range(240, 253)
    e.idx_range = {("v", i) for i in range(ACC, ACC + 48)}
    sX, sTAB, sSK, sEA, sA0, sA1, sOUT = 16, 20, 24, 28, 32, 36, 40
    sB, sNB, sNCNT, sN, sROFF, sNR, sNV, sBASE, sEM, sCNT, sT, sT2 = 44, 45, 46, 47, 48, 49, 50, 51, 52, 53, 54, 55
    sNODE = 56
    sOFF = 61
    sTAG, sTAG2 = 62, 63
    SK = 64
    sV = 80
    sM0, sM1 = 86, 88
    sASG = [90, 91, 92, 93, 94]
    sNW, sK4 = 95, 98
    sA2, sTSP = 96, 100
    ts = TS(e, P["TS"], sTSP, TSV)
    if P["DIAGW"]:
        ts.diag = (P["DIAGAT"], P["DIAGK"])
    apol, ldpol = P["APOL"], P["LDPOL"]
    astage = [int(c) for c in str(P["AEA"]).zfill(5)]
    bstage = [int(c) for c in str(P["BEA"]).zfill(6)]

    def srd(s, lo, hi, off, size):
        if off is None:
            e(f"s_mov_b32 s{s}, s{lo}", f"s_mov_b32 s{s+1}, s{hi}")
        else:
            e(f"s_add_u32 s{s}, s{lo}, {off}", f"s_addc_u32 s{s+1}, s{hi}, 0")
        e(f"s_mov_b32 s{s+2}, {size}", f"s_mov_b32 s{s+3}, 0x20000")

    def init_round(first):
        e(f"v_lshlrev_b32 v{T+3}, 2, v0", f"v_mov_b32 v{T+4}, 0x00700000", f"v_mov_b32 v{T+5}, 0")
        for i in range(4):
            e(f"ds_write_b32 v{T+3}, v{T+4} offset:{MAP + i*2048}")
        for i in range(4 if first else 3):
            e(f"ds_write_b32 v{T+3}, v{T+5} offset:{CNT2 + i*2048}")

    DSTV, SRCV, SHV, BK, BA, RK, NL, KEY, CT, ST, PS = 64, 68, 72, 80, 84, 88, 92, 96, 100, 104, 108
    TABV = 112
    OUTV = 128
    IV = 156
    CGR = 120
    if P["TS"]:
        e("s_memrealtime s[92:93]")
    e("s_cmp_ge_u32 s2, 256", "s_cbranch_scc1 L_done")
    e("s_load_dwordx4 s[4:7], s[0:1], 8")
    e("s_load_dwordx4 s[8:11], s[0:1], 24")
    e("s_load_dwordx2 s[14:15], s[0:1], 80")
    e(f"s_load_dwordx2 s[{SK}:{SK+1}], s[0:1], 0")
    e(f"s_load_dwordx2 s[{SK+2}:{SK+3}], s[0:1], 40")
    e(f"s_load_dwordx4 s[{SK+4}:{SK+7}], s[0:1], 48")
    e("s_load_dwordx2 s[12:13], s[0:1], 64")

    def cpf():
        e(f"s_getpc_b64 s[{sV}:{sV+1}]")
        e.label("L_pc")
        e(f"s_and_b32 s{sB}, s2, 0xf8", f"s_lshl_b32 s{sB}, s{sB}, 6")
        e(f"v_and_b32 v{T+3}, 0x180, v{T+2}", f"v_add_u32 v{T+3}, s{sB}, v{T+3}", f"v_min_u32 v{T+3}, L_end-L_pc, v{T+3}")
        e(f"v_mov_b32 v{TABV+1}, s{sV+1}", f"v_add_co_u32 v{TABV}, vcc, s{sV}, v{T+3}", f"v_addc_co_u32 v{TABV+1}, vcc, 0, v{TABV+1}, vcc")
        vq.op("cpf", f"global_load_dword v{TSV+1}, {vr(TABV,2)}, off")

    def srd_hi(s, size):
        e(f"s_mov_b32 s{s+2}, {size}", f"s_mov_b32 s{s+3}, 0x20000")

    def srd_lo(s, lo, off):
        e(f"s_add_u32 s{s}, s{lo}, {off}", f"s_addc_u32 s{s+1}, s{lo+1}, 0")

    e(f"v_lshlrev_b32 v{T+2}, 3, v0")
    if P["CPF"] == 2:
        cpf()
    e(f"v_lshrrev_b32 v{T}, 6, v0", f"v_and_b32 v{LANE}, 63, v0", f"v_lshlrev_b32 v{T+1}, 2, v0", f"v_mov_b32 v{T+5}, 0")
    e(f"v_readfirstlane_b32 s3, v{T}")
    e(f"ds_write_b32 v{T+1}, v{T+5} offset:{ACNT}", f"ds_write_b32 v{T+1}, v{T+5} offset:{AINV+3072}")
    e(f"s_mul_i32 s{sT}, s2, {CH*4}", f"s_mul_i32 s{sT2}, s2, {CH*8}", f"s_mul_i32 s{sOFF}, s2, {CH*32}")
    e(f"v_lshlrev_b32 v{X16}, 4, v{LANE}", f"v_lshlrev_b32 v{T+7}, 4, v0", f"v_mov_b32 v{ONE}, 1")
    e(f"s_lshl_b32 s{sEM}, s3, 10", f"s_add_u32 s{sEM}, s{sEM}, {EAST}", f"s_movk_i32 s{sCNT}, 4096", f"s_movk_i32 s{sNV}, 8192")
    srd_hi(sA0, CH * 4); srd_hi(sA1, CH * 4); srd_hi(sA2, CH * 8); srd_hi(sEA, CH * 32)
    if P["DIAGW"] or P["DIAGL"]:
        e(f"s_memrealtime s[{sTSP}:{sTSP+1}]")
    e("s_waitcnt lgkmcnt(0)")
    if P["TS"]:
        e(f"v_writelane_b32 v{TSV}, s92, 0")
        ts.names.append("first")
    ts.stamp("start")
    srd_lo(sA0, 6, f"s{sT}")
    for i in range(3):
        o = f"0 offen offset:{2048*i}" if i < 2 else f"s{sCNT} offen"
        vq.op("dst", f"buffer_load_dword v{DSTV+i}, v{T+1}, {sr(sA0)}, {o} {apol}")
    srd_lo(sA1, 4, f"s{sT}")
    if P["ABAR"] == 2:
        e("s_barrier")
    for i in range(3):
        o = f"0 offen offset:{2048*i}" if i < 2 else f"s{sCNT} offen"
        vq.op("src", f"buffer_load_dword v{SRCV+i}, v{T+1}, {sr(sA1)}, {o} {apol}")
    e(f"s_load_dword s{sTAG}, s[14:15], {WS_W}")
    if P["CPF"] == 1:
        cpf()
    srd_lo(sA2, 8, f"s{sT2}")
    srd_lo(sEA, 10, f"s{sOFF}")
    if P["ABAR"] == 1:
        e("s_barrier")
    for i, o in enumerate(("0", f"s{sCNT}", f"s{sNV}")):
        vq.op("sh", f"buffer_load_dwordx2 {vr(SHV+2*i,2)}, v{T+2}, {sr(sA2)}, {o} offen {apol}")

    def aea(p):
        for i in range(5):
            if astage[i] == p:
                e(f"s_add_u32 m0, s{sEM}, {8192*i}", f"s_mov_b32 s{sT}, {8192*i}")
                vq.op("ea", f"buffer_load_dwordx4 v{T+7}, {sr(sEA)}, s{sT} offen {apol} lds")
        if P["WST"] == p:
            weights()
        if P["WOST"] == p:
            wout()

    def weights():
        e("s_cmp_lt_u32 s3, 4")
        e(f"s_cselect_b32 s{sX}, s{SK+4}, s{SK+2}", f"s_cselect_b32 s{sX+1}, s{SK+5}, s{SK+3}", f"s_movk_i32 s{sT}, 128",
          f"s_cselect_b32 s{sX+2}, s{sCNT}, s{sT}", f"s_mov_b32 s{sX+3}, 0x20000")
        e(f"s_min_u32 s{sT}, s3, 5", f"s_lshl_b32 s{sT}, s{sT}, 10", f"s_add_u32 m0, s{sT}, {WR}", f"s_and_b32 s{sT}, s{sT}, 0xc00")
        vq.op("w", f"buffer_load_dwordx4 v{X16}, {sr(sX)}, s{sT} offen lds")

    def wout():
        srd(sOUT, SK + 6, SK + 7, None, 32768)
        e(f"s_lshl_b32 s{sT2}, s3, 12", f"s_add_u32 m0, s{sT2}, {WO}")
        for i in range(4):
            vq.op("w", f"buffer_load_dwordx4 v{X16}, {sr(sOUT)}, s{sT2} offen offset:{i*1024} lds")

    aea(0)
    if not P["ABAR"]:
        e("s_barrier")
    e(f"s_mov_b32 s{SK+8}, 109951168", f"s_movk_i32 s{SK+9}, 625", f"s_movk_i32 s{SK+10}, 838")
    e(f"v_cmp_gt_u32 s[{sV+4}:{sV+5}], {CH-1024}, v0") if CH - 1024 <= 64 else e(f"s_movk_i32 s{sT}, {CH-1024}", f"v_cmp_gt_u32 s[{sV+4}:{sV+5}], s{sT}, v0")
    srd(sTAB, 14, 15, None, WS_FL + 8192)
    init_round(True)
    if P["ACCZ"] == 9:
        for i in range(48):
            e(f"v_mov_b32 v{ACC+i}, 0")
    vq.wait("dst")
    ts.stamp("dst")
    for k in range(3):
        e(f"v_mul_hi_u32 v{BK+k}, v{DSTV+k}, s{SK+8}")
    for k in range(3):
        e(f"v_lshlrev_b32 v{BA+k}, 2, v{BK+k}")
        if k == 2:
            e(f"s_mov_b64 exec, s[{sV+4}:{sV+5}]")
        e(f"ds_add_rtn_u32 v{RK+k}, v{BA+k}, v{ONE} offset:{ACNT}")
    e("s_mov_b64 exec, -1")
    e("s_waitcnt lgkmcnt(0)", "s_barrier")
    ts.stamp("hist")
    e(f"ds_read_b128 {vr(CT,4)}, v{X16} offset:{ACNT}")
    e(f"s_mul_i32 s{sTAG}, s{sTAG}, 0x9e3779b1", f"s_add_u32 s{sTAG}, s{sTAG}, 0x7f4a7c15")
    e(f"s_mul_i32 s{sTAG2}, s{sTAG}, 0x85ebca6b", f"s_and_b32 s{sTAG2}, s{sTAG2}, 0xffc00000")
    NS = P["NS"]
    SG = CGR
    gpoll = f"buffer_load_dword v{SG+1}, v{SG}, {sr(sTAB)}, s{sROFF} offen sc1"

    def signal(pos):
        if NS and P["SP"] == pos:
            e("s_cmp_lg_u32 s3, 0", "s_cbranch_scc1 L_nosig", f"s_cmp_lt_u32 s2, {256-8*NS}", "s_cbranch_scc1 L_nosig")
            e(f"s_lshl_b32 s{sT}, s2, 7", f"s_add_u32 s{sT}, s{sT}, {WS_FL - (256-8*NS)*128}", f"v_mov_b32 v{SG+2}, s{sTAG}")
            e("s_mov_b32 exec_hi, 0", f"buffer_store_dword v{SG+2}, v{T+1}, {sr(sTAB)}, s{sT} offen sc1", "s_mov_b32 exec_hi, -1")
            e.label("L_nosig")

    signal(2)
    aea(1)
    for k in range(3):
        e(f"v_mad_u32_u24 v{NL+k}, v{BK+k}, s{SK+9}, 15", f"v_lshrrev_b32 v{NL+k}, 4, v{NL+k}", f"v_sub_u32 v{NL+k}, v{DSTV+k}, v{NL+k}")
        e(f"v_lshrrev_b32 v{BK+k}, 3, v{BK+k}", f"v_and_b32 v{BK+k}, 28, v{BK+k}")
    e("s_waitcnt lgkmcnt(0)")
    e(f"v_add_u32 v{T+3}, v{CT}, v{CT+1}", f"v_add3_u32 v{T+3}, v{T+3}, v{CT+2}, v{CT+3}", f"v_mov_b32 v{T+4}, v{T+3}")
    scan_dpp(e, T + 4, True)
    e(f"v_sub_u32 v{ST}, v{T+4}, v{T+3}")
    for k in range(3):
        e(f"v_add_u32 v{ST+1+k}, v{ST+k}, v{CT+k}")
    e(f"ds_write_b128 v{X16}, {vr(ST,4)} offset:{ASTART}")
    for k in range(3):
        e(f"ds_read_b32 v{PS+k}, v{BA+k} offset:{ASTART}")
    vq.wait("src")
    for k in range(3):
        e(f"v_mul_u32_u24 v{KEY+k}, s{SK+10}, v{SRCV+k}", f"v_lshrrev_b32 v{KEY+k}, 18, v{KEY+k}", f"v_sub_u32 v{KEY+k}, v{KEY+k}, v{BK+k}",
          f"v_and_b32 v{KEY+k}, 31, v{KEY+k}", f"v_lshl_or_b32 v{KEY+k}, v{NL+k}, 5, v{KEY+k}",
          f"v_lshlrev_b32 v{KEY+k}, 21, v{KEY+k}", f"v_lshl_or_b32 v{KEY+k}, v{SRCV+k}, 7, v{KEY+k}")
    e(f"v_lshlrev_b32 v{NL}, 5, v0", f"v_add_u32 v{NL+1}, {512*32}, v{NL}", f"v_add_u32 v{NL+2}, {1024*32}, v{NL}")
    e(f"s_mov_b32 s{sT2}, {ASKS}")
    vq.wait("sh", "lgkmcnt(0)")
    for k in range(3):
        e(f"v_add_u32 v{PS+k}, v{PS+k}, v{RK+k}")
        e(f"v_lshlrev_b32 v{BA+k}, 2, v{PS+k}", f"v_mad_u32_u24 v{PS+k}, v{PS+k}, 12, s{sT2}")
        if k == 2:
            e(f"s_mov_b64 exec, s[{sV+4}:{sV+5}]")
        e(f"ds_write_b32 v{BA+k}, v{NL+k} offset:{AINV}")
        e(f"ds_write2_b32 v{PS+k}, v{SHV+2*k}, v{SHV+2*k+1} offset0:0 offset1:1")
        e(f"ds_write_b32 v{PS+k}, v{KEY+k} offset:8")
    e("s_mov_b64 exec, -1")
    signal(1)
    aea(2)
    signal(3)
    e(f"s_lshl_b32 s{sT}, s3, 7", f"v_lshl_add_u32 v{T+3}, v{LANE}, 3, s{sT}")
    e(f"ds_read_b64 {vr(CT,2)}, v{T+3} offset:{ACNT}", f"ds_read_b64 {vr(ST,2)}, v{T+3} offset:{ASTART}")
    e(f"s_mul_i32 s{sT}, s2, {CS*12}", f"s_add_u32 s{sT}, s{sT}, {WS_SK}")
    srd(sA0, 14, 15, f"s{sT}", CS * 12)
    e(f"s_mul_i32 s{sT}, s2, {CS*32}", f"s_add_u32 s{sT}, s{sT}, {WS_EA}")
    srd(sA1, 14, 15, f"s{sT}", CH * 32)
    e(f"v_lshrrev_b32 v{T+3}, 1, v0", f"v_lshlrev_b32 v{T+3}, 2, v{T+3}")
    e(f"v_and_b32 v{T+4}, 1, v0", f"v_lshlrev_b32 v{T+4}, 4, v{T+4}", f"v_add_u32 v{T+4}, {EAST}, v{T+4}", f"v_add_u32 v{T+6}, {ASKS}, v{T+7}")
    e("s_waitcnt lgkmcnt(0)", "s_barrier")
    ts.stamp("scat")
    e(f"ds_read_b128 {vr(OUTV,4)}, v{T+6}", f"ds_read_b128 {vr(OUTV+4,4)}, v{T+6} offset:8192")
    for i in range(5):
        e(f"ds_read_b32 v{IV+i}, v{T+3} offset:{AINV + i*1024}")
    signal(0)
    if NS:
        e(f"v_and_b32 v{SG}, {8*NS-1}, v{LANE}", f"v_lshlrev_b32 v{SG}, 7, v{SG}", f"s_mov_b32 s{sROFF}, {WS_FL}")
        if P["GP"] == 0:
            e("s_cmp_lg_u32 s3, 7", "s_cbranch_scc1 L_nogp")
            e(gpoll)
            e.label("L_nogp")
    aea(3)
    if P["XPA"]:
        n = P["XPA"]
        srd(sX, SK, SK + 1, None, N * 1024)
        e(f"s_and_b32 s{sBASE}, s2, 7", f"s_mul_i32 s{sBASE}, s{sBASE}, {1252*1024}", f"s_and_b32 s{sT2}, s2, 0xf8",
          f"s_add_u32 s{sT2}, s{sT2}, s3", f"s_mul_i32 s{sT2}, s{sT2}, {n*128}", f"s_add_u32 s{sBASE}, s{sBASE}, s{sT2}")
        e(f"v_min_u32 v{SG+3}, {n-1}, v{LANE}", f"v_lshlrev_b32 v{SG+3}, 7, v{SG+3}")
        vq.op("w" if P["XPAW"] else "xpa", f"buffer_load_dword v{PFV}, v{SG+3}, {sr(sX)}, s{sBASE} offen")

    def skst():
        vq.op("skst", f"buffer_store_dwordx4 {vr(OUTV,4)}, v{T+7}, {sr(sA0)}, 0 offen {P['ASTPOL']}")
        if P["STH"] == 1 and not P["SKEARLY"]:
            e("s_waitcnt vmcnt(0)")
        vq.op("skst", f"buffer_store_dwordx4 {vr(OUTV+4,4)}, v{T+7}, {sr(sA0)}, s{sNV} offen {P['ASTPOL']}")

    def frag_r(F0, t0, t1, t2):
        e(f"v_lshrrev_b32 v{t0}, 5, v{LANE}", f"v_lshlrev_b32 v{t0}, 11, v{t0}", f"v_and_b32 v{t1}, 15, v{LANE}", f"v_lshl_add_u32 v{t0}, v{t1}, 4, v{t0}")
        for i in range(8):
            e(f"ds_read_b128 {vr(F0+4*i,4)}, v{t0} offset:{WR + 256*i}")
        e(f"v_lshrrev_b32 v{t0}, 4, v{LANE}", f"v_lshlrev_b32 v{t0}, 5, v{t0}", f"v_and_b32 v{t1}, 3, v{LANE}", f"v_lshl_add_u32 v{t0}, v{t1}, 1, v{t0}")
        for v in range(4):
            e(f"ds_read_u16 v{F0+32+v}, v{t0} offset:{WR + 4096 + 8*v}")
        e(f"v_bfe_i32 v{t2}, v{LANE}, 4, 1", f"v_and_b32 v{t2}, 0x02020202, v{t2}", f"v_add_u32 v{t2}, 0x05040100, v{t2}")
        e("s_waitcnt lgkmcnt(0)")
        for h in range(2):
            for t in range(2):
                for ip in range(4):
                    e(f"v_perm_b32 v{WRF+8*h+4*t+ip}, v{F0+4*(2*ip+1)+t+2*h}, v{F0+4*(2*ip)+t+2*h}, v{t2}")
        e(f"v_lshl_or_b32 v{CGF}, v{F0+33}, 16, v{F0+32}", f"v_lshl_or_b32 v{CGF+1}, v{F0+35}, 16, v{F0+34}")

    def frag_o(F0, F1, t0, t1, sM):
        e(f"v_and_b32 v{t1}, 7, v{LANE}", f"v_lshrrev_b32 v{t0}, 4, v{LANE}", f"v_lshlrev_b32 v{t0}, 13, v{t0}", f"v_lshl_add_u32 v{t0}, v{t1}, 4, v{t0}",
          f"v_and_b32 v{t1}, 8, v{LANE}", f"s_and_b32 s{sM}, s3, 3", f"s_lshl_b32 s{sM}, s{sM}, 8", f"s_lshr_b32 s{sM+1}, s3, 2", f"s_lshl_b32 s{sM+1}, s{sM+1}, 7",
          f"s_add_u32 s{sM}, s{sM}, s{sM+1}", f"s_add_u32 s{sM}, s{sM}, {WO}", f"v_add3_u32 v{t0}, v{t0}, v{t1}, s{sM}")
        for ip in range(4):
            e(f"ds_read2st64_b64 {vr(F0+4*ip,4)}, v{t0} offset0:{4*ip} offset1:{4*ip+2}")
        e(f"s_mov_b32 s{sM}, 0x05040100", f"s_mov_b32 s{sM+1}, 0x07060302")
        for ip in range(4):
            e(f"s_waitcnt lgkmcnt({3-ip})")
            for t in range(4):
                e(f"v_perm_b32 v{F1+4*t+ip}, v{F0+4*ip+2+t//2}, v{F0+4*ip+t//2}, s{sM+t%2}")

    def consts():
        e(f"s_and_b32 s{sB}, s2, 7", f"s_lshl_b32 s{sB}, s{sB}, 5", f"s_lshr_b32 s{sT}, s2, 3", f"s_add_u32 s{sB}, s{sB}, s{sT}")
        e(f"s_mul_i32 s{sNB}, s{sB}, 625", f"s_add_u32 s{sNCNT}, s{sNB}, 640", f"s_add_u32 s{sNB}, s{sNB}, 15",
          f"s_lshr_b32 s{sNB}, s{sNB}, 4", f"s_lshr_b32 s{sNCNT}, s{sNCNT}, 4", f"s_sub_u32 s{sNCNT}, s{sNCNT}, s{sNB}")
        e(f"s_mov_b32 s{sM0}, 0x0f0f0f0f", f"s_mov_b32 s{sM0+1}, 0x0f0f0f0f", f"s_mov_b32 s{sM1}, 0xf0f0f0f0", f"s_mov_b32 s{sM1+1}, 0xf0f0f0f0")
        for i in range(8):
            e(f"v_mov_b32 v{EA0+i}, 0")
        e(f"v_and_b32 v{T+3}, 4, v{LANE}", f"v_lshlrev_b32 v{T+3}, 2, v{T+3}", f"v_mov_b32 v{T+4}, 0xffff", f"v_lshlrev_b32 v{T+4}, v{T+3}, v{T+4}")
        e(f"v_bfe_i32 v{T+3}, v{LANE}, 3, 1", f"v_and_b32 v{MQ}, v{T+3}, v{T+4}", f"v_xor_b32 v{MP}, v{MQ}, v{T+4}")
        e(f"v_lshrrev_b32 v{EAC}, 5, v{LANE}", f"v_lshlrev_b32 v{EAC}, 4, v{EAC}", f"v_add_u32 v{EAC}, {EAST}, v{EAC}")
        e(f"v_and_b32 v{LAC}, 15, v{LANE}", f"v_lshlrev_b32 v{LAC}, 2, v{LAC}")
        e(f"v_bfe_u32 v{T+3}, v{LANE}, 3, 2", f"v_and_b32 v{T+4}, 3, v{LANE}", f"v_lshl_add_u32 v{T+3}, v{T+3}, 2, v{T+4}", f"v_lshlrev_b32 v{LBC}, 2, v{T+3}")
        e(f"v_bfe_i32 v{cODD}, v0, 0, 1", f"s_lshl_b32 s{sT}, s3, 10", f"v_and_b32 v{cMAPW}, 4, v{cODD}", f"v_add_u32 v{cMAPW}, s{sT}, v{cMAPW}")
        e(f"v_lshl_add_u32 v{cMAP1}, v{LANE}, 2, s{sT}", f"v_lshrrev_b32 v{cMAP2}, 1, v{LANE}", f"v_lshl_add_u32 v{cMAP2}, v{cMAP2}, 2, s{sT}")
        e(f"v_mul_u32_u24 v{cL12}, 12, v{LANE}", f"v_and_b32 v{cDEG}, 12, v{cMAP1}", f"v_and_b32 v{cBIN}, 124, v{cMAP1}")
        e(f"s_mul_i32 s{sT}, s3, {CAPW}", f"v_add_u32 v{cR21}, s{sT}, v{LANE}", f"v_lshlrev_b32 v{cSH}, 3, v{cR21}", f"v_add_u32 v{cSH}, {SHST}, v{cSH}", f"v_lshlrev_b32 v{cR21}, 21, v{cR21}")
        e(f"s_mul_i32 s{sT}, s3, 640", f"v_add_u32 v{cROW}, s{sT}, v{cBIN}", f"v_sub_u32 v{cTIE}, 63, v{LANE}")
        e(f"s_lshl_b32 s{sT}, s3, 5", f"v_lshl_add_u32 v{cNOD}, v{LANE}, 2, s{sT}")
        e(f"v_lshrrev_b32 v{cLST}, 3, v{LANE}", f"v_mul_u32_u24 v{cLST}, {GAP*4}, v{cLST}", f"v_add_u32 v{cLST}, {LIST}, v{cLST}")
        e(f"s_cmp_eq_u32 s{sNCNT}, 40")
        tabs = []
        for part in PARTS[P["BIAS"]]:
            t = [0] * 40
            for w, p in enumerate(part):
                for sl, r in enumerate(p):
                    t[r] = w * 8 + sl
            tabs.append([sum(t[5 * q + i] << (6 * i) for i in range(5)) for q in range(8)])
        e(f"v_mov_b32 v{RT}, 0")
        for q in range(8):
            e(f"s_mov_b32 s{sT}, {tabs[0][q]}", f"s_cselect_b32 s{sT}, {tabs[1][q]}, s{sT}")
            m = 31 << (5 * q)
            e(f"s_mov_b32 exec_lo, {m & 0xffffffff}", f"s_mov_b32 exec_hi, {m >> 32}", f"v_mov_b32 v{RT}, s{sT}")
        e("s_mov_b64 exec, -1")
        e(f"v_mul_u32_u24 v{T+3}, 52, v{LANE}", f"v_lshrrev_b32 v{T+3}, 8, v{T+3}", f"v_mad_i32_i24 v{T+3}, v{T+3}, -5, v{LANE}",
          f"v_mul_u32_u24 v{T+3}, 6, v{T+3}", f"v_lshrrev_b32 v{RT}, v{T+3}, v{RT}")
        e(f"v_and_b32 v{T+3}, 7, v{RT}", f"v_bfe_u32 v{RT}, v{RT}, 3, 3", f"v_lshlrev_b32 v{T+3}, 12, v{T+3}", f"v_lshl_or_b32 v{RT}, v{RT}, 7, v{T+3}")
        srd(sSK, 14, 15, WS_SK, NCH * CS * 12)

    def extra(pos):
        if P["CPOS"] == pos:
            consts()
        if P["ACCZ"] == pos:
            for i in range(48):
                e(f"v_mov_b32 v{ACC+i}, 0")

    e("s_waitcnt lgkmcnt(0)")
    if P["SKEARLY"]:
        skst()
    for i in range(5):
        e(f"v_add_u32 v{IV+i}, v{T+4}, v{IV+i}")
    for k in range(2):
        e(f"v_lshl_or_b32 v{TABV+2*k}, v{CT+k}, 11, v{ST+k}", f"v_or_b32 v{TABV+2*k}, s{sTAG2}, v{TABV+2*k}", f"v_mov_b32 v{TABV+2*k+1}, s{sTAG}")
    extra(0)
    e(f"s_waitcnt vmcnt({min(vq.n('w') + P['WGN'], vq.n('ea'))})")
    if NS:
        ts.stamp("land0")
        e("s_cmp_eq_u32 s3, 7", "s_cbranch_scc1 L_guard")
        e.label("L_guarded")
    e("s_barrier")
    ts.stamp("land")
    for i in range(5):
        e(f"ds_read_b128 {vr(OUTV+8+4*i,4)}, v{IV+i}")
    extra(1)
    if P["FRG"] & 1:
        frag_r(RW, T, T + 1, T + 2)
    ts.stamp("guard")
    if not P["SKEARLY"]:
        skst()
    for i in range(5):
        thr = f"vmcnt({P['STH']-1}) " if P["STH"] and i < P["STHN"] else ""
        e(f"s_mov_b32 s{sT}, {8192*i}", f"s_waitcnt {thr}lgkmcnt({4-i})")
        vq.op("st", f"buffer_store_dwordx4 {vr(OUTV+8+4*i,4)}, v{T+7}, {sr(sA1)}, s{sT} offen {P['ASTPOL']}")
    aea(4)
    ts.stamp("issued")

    extra(2)
    e(f"s_lshl_b32 s{sT}, s2, 3", f"s_add_u32 s{sT}, s{sT}, s3", f"s_lshl_b32 s{sT}, s{sT}, 8")
    srd(sX, SK, SK + 1, None, N * 1024)
    srd(sEA, 14, 15, WS_EA, NCH * CS * 32)
    if P["XPF"]:
        n = P["XPF"]
        e(f"s_and_b32 s{sBASE}, s2, 7", f"s_mul_i32 s{sBASE}, s{sBASE}, {1252*1024}", f"s_and_b32 s{sT2}, s2, 0xf8",
          f"s_add_u32 s{sT2}, s{sT2}, s3", f"s_mul_i32 s{sT2}, s{sT2}, {n*128}", f"s_add_u32 s{sBASE}, s{sBASE}, s{sT2}")
        if P["XPA"]:
            e(f"s_add_u32 s{sBASE}, s{sBASE}, {P['XPA']*128*256}")
        e(f"v_min_u32 v{T+6}, {n-1}, v{LANE}", f"v_lshlrev_b32 v{T+6}, 7, v{T+6}")
    e("s_waitcnt vmcnt(0)", "s_barrier")
    ts.stamp("drained")
    e("s_mov_b64 exec, 0xffff")
    e(f"buffer_store_dwordx4 {vr(TABV,4)}, v{X16}, {sr(sTAB)}, s{sT} offen sc1")
    e("s_mov_b64 exec, -1")
    if P["XPF"]:
        e(f"buffer_load_dword v{PFV}, v{T+6}, {sr(sX)}, s{sBASE} offen")
    e(f"s_lshl_b32 s{sT}, s{sNB}, 10", f"s_add_u32 s{sOUT}, s12, s{sT}", f"s_addc_u32 s{sOUT+1}, s13, 0",
      f"s_lshl_b32 s{sOUT+2}, s{sNCNT}, 10", f"s_mov_b32 s{sOUT+3}, 0x20000")
    if not P["FRG"] & 1:
        frag_r(RW, T, T + 1, T + 2)
    frag_o(128, 144, T, T + 1, SK + 8)
    e(f"s_lshl_b32 s{sT}, s3, 12", f"v_add_u32 v{T}, s{sT}, v{X16}")
    extra(3)
    e(f"v_lshrrev_b32 v{T+1}, 1, v0", f"v_lshlrev_b32 v{T+2}, 11, v{T+1}", f"s_lshl_b32 s{sNR}, s{sB}, 3")
    e(f"v_mul_u32_u24 v{RG0}, {CS}, v{T+1}", f"s_mov_b32 s{sROFF}, 0", f"s_mov_b32 s{sCNT}, {SPIN}", f"s_mov_b32 s{sT2}, 0xffc00000")
    e(f"s_mul_i32 s{sEM}, s3, {CAPW*32}", f"s_add_u32 s{sEM}, s{sEM}, {EAST}", f"s_movk_i32 s{sK4}, 4096")
    e("s_waitcnt vmcnt(0)", "s_barrier")
    ts.stamp("frag")
    PL = 206
    poll1 = f"buffer_load_dwordx2 {vr(PL,2)}, v{T+2}, {sr(sTAB)}, s{sNR} offen sc1"

    def tagcheck():
        e(f"v_xor_b32 v{T+3}, s{sTAG2}, v{PL}", f"v_xor_b32 v{T+4}, s{sTAG}, v{PL+1}", f"v_and_or_b32 v{T+3}, v{T+3}, s{sT2}, v{T+4}")
        e(f"v_cmpx_ne_u32 vcc, 0, v{T+3}")

    e(poll1)
    for t in range(4):
        e(f"ds_write_b128 v{T}, {vr(144+4*t,4)} offset:{WO + 1024*t}")
    e("s_waitcnt vmcnt(0)")
    tagcheck()
    e("s_cbranch_execnz L_poll")
    e.label("L_polled")
    e("s_mov_b64 exec, -1")
    ts.stamp("tab")
    G1, G2, SKR, RNK, CA = RW, RW + 4, RW + 12, TP, TP + 4
    MU = P["MU"]
    sVm = [sV, sV + 2, sV + 4, sA2]

    def bea1(i):
        e(f"s_add_u32 m0, s{sEM}, {4096*(i//4)}")
        vq.op("ea", f"buffer_load_dwordx4 v{G2+i}, {sr(sEA)}, {'0' if i < 4 else 's%d' % sK4} offen offset:{1024*(i%4)} {ldpol} lds")

    def bea(p):
        for i in range(6):
            if bstage[i] == p:
                bea1(i)

    def skld(i):
        e(f"v_mad_u32_u24 v{G1+i}, v{G1+i}, 12, v{cL12}")
        vq.op(f"sk{i}", f"buffer_load_dwordx3 {vr(SKR+4*i,3)}, v{G1+i}, {sr(sSK)}, 0 offen offset:{768*i} {ldpol}")

    cmps = [f"v_cmp_lt_i32 s[{SK+2*i}:{SK+2*i+1}], {2*i}, v{T+2}" for i in range(MU + 1)]
    e(f"v_bfe_u32 v{RLEN}, v{PL}, 11, 11", f"v_and_b32 v{RBASE}, v{RLEN}, v{cODD}", f"v_add_u32 v{T+2}, v{RLEN}, v{cODD}")
    fill = [f"v_and_b32 v{T+3}, 0x7ff, v{PL}"] + cmps + [f"v_add_u32 v{RG0}, v{RG0}, v{T+3}"]
    e(fill.pop(0))
    for mod in ("row_shr:1 row_mask:0xf", "row_shr:2 row_mask:0xf", "row_shr:4 row_mask:0xf", "row_shr:8 row_mask:0xf", "row_bcast:15 row_mask:0xa", "row_bcast:31 row_mask:0xc"):
        e(f"v_add_u32_dpp v{RBASE}, v{RBASE}, v{RBASE} {mod} bank_mask:0xf")
        e(*fill[:2]); fill = fill[2:]
    e(f"v_readlane_b32 s{sNW}, v{RBASE}, 63")
    e(f"v_mov_b32_dpp v{RBASE}, v{RBASE} quad_perm:[0,0,2,2] row_mask:0xf bank_mask:0xf")
    e(f"v_sub_u32 v{RG0}, v{RG0}, v{RBASE}")
    e(f"v_lshl_add_u32 v{T}, v{RBASE}, 2, v{cMAPW}")
    e(f"s_cmp_gt_u32 s{sNW}, {CAPW}", "s_cbranch_scc1 L_clip")
    e.label("L_mapw")
    for i in range(MU):
        e(f"s_mov_b64 exec, s[{SK+2*i}:{SK+2*i+1}]")
        e(f"ds_write_b32 v{T}, v{RG0} offset:{8*i}")
    e("s_mov_b64 exec, -1")
    e(f"s_cmp_lg_u64 s[{SK+2*MU}:{SK+2*MU+1}], 0", "s_cbranch_scc1 L_map2")
    for i in range(3):
        e(f"ds_read_b32 v{G1+i}, v{cMAP1} offset:{256*i}")
    for i in range(6):
        e(f"ds_read_b32 v{G2+i}, v{cMAP2} offset:{128*i}")
    e(f"s_cmp_gt_i32 s{sNW}, 192", "s_cbranch_scc1 L_r1")
    e.label("L_r1b")
    e("s_waitcnt lgkmcnt(6)")
    ts.stamp("map")
    for i in range(3):
        skld(i)
    e(f"v_mov_b32 v{T+3}, s{sNW}", "s_mov_b64 exec, 1", f"ds_max_i32 v{T+5}, v{T+3} offset:{TOT}", "s_mov_b64 exec, -1")
    e("s_waitcnt lgkmcnt(1)")
    for i in range(6):
        e(f"v_lshl_add_u32 v{G2+i}, v{G2+i}, 5, v{X16}")
    if P["SKBAR"]:
        e("s_barrier")
    ts.stamp("skiss")
    bea(0)
    for i in range(4):
        e(f"v_add_u32 v{T+3}, {64*i}, v{LANE}", f"v_cmp_gt_i32 s[{sVm[i]}:{sVm[i]+1}], s{sNW}, v{T+3}")
    e(f"s_mov_b32 s{sT2}, 0x1fff80", f"s_mul_i32 s{sOFF}, s3, 5", f"s_mov_b32 s{sVm[3]+1}, 0")

    def count(i):
        key = SKR + 4 * i + 2
        e(f"v_lshrrev_b32 v{CA+i}, 21, v{key}", f"v_lshlrev_b32 v{CA+i}, 2, v{CA+i}")
        e(f"v_lshrrev_b32 v{T+3}, 26, v{key}", f"v_lshl_or_b32 v{T+3}, v{T+3}, 4, v{cDEG}")
        e(f"s_mov_b64 exec, s[{sVm[i]}:{sVm[i]+1}]")
        e(f"ds_add_rtn_u32 v{RNK+i}, v{CA+i}, v{ONE} offset:{CNT2}")
        e(f"ds_add_u32 v{T+3}, v{ONE} offset:{DEG}")
        e("s_mov_b64 exec, -1")

    def entry(i):
        key = SKR + 4 * i + 2
        if i == 3:
            e("s_mov_b32 exec_hi, 0")
        e(f"ds_write_b64 v{cSH}, {vr(SKR+4*i,2)} offset:{512*i}")
        if i == 3:
            e("s_mov_b32 exec_hi, -1")
        e(f"v_and_or_b32 v{key}, v{key}, s{sT2}, v{cR21}")
        if i:
            e(f"v_add_u32 v{key}, {64*i << 21}, v{key}")

    for i in range(3):
        vq.wait(f"sk{i}")
        if i == 0:
            ts.stamp("sk")
        count(i)
    e(f"s_cmp_gt_i32 s{sNW}, 192", "s_cbranch_scc1 L_r2")
    e.label("L_r2b")
    for i in range(3):
        entry(i)
    ts.stamp("atom")
    bea(1)
    e("s_waitcnt lgkmcnt(3)", "s_barrier")
    ts.stamp("b1")
    CN, CAD = XR, XR + 8
    e(f"s_cmp_lg_u32 s{sROFF}, 0", "s_cbranch_scc1 L_rank2")
    e(f"ds_read_b128 {vr(CAD,4)}, v{X16} offset:{DEG}")
    for j in range(5):
        e(f"ds_read_b32 v{CN+j}, v{cROW} offset:{CNT2 + 128*j}")
    e(f"ds_read_b32 v{T+6}, v{T+5} offset:{TOT}")
    bea(5)
    for j in range(1, 5):
        e(f"s_add_u32 s{SK+j}, s{sOFF}, {j}")
    e("s_waitcnt lgkmcnt(6)")
    e(f"v_add_u32 v{T+1}, v{CAD}, v{CAD+1}", f"v_add3_u32 v{T+1}, v{T+1}, v{CAD+2}, v{CAD+3}")
    e(f"v_lshl_or_b32 v{T+1}, v{T+1}, 6, v{cTIE}")
    for j in range(5):
        e(f"v_readlane_b32 s{SK+j}, v{T+1}, s{SK+j if j else sOFF}")
    for j in range(5):
        e(f"v_cmp_lt_u32 s[{SK+6+2*j}:{SK+7+2*j}], s{SK+j}, v{T+1}")
    for j in range(5):
        e(f"s_bcnt1_i32_b64 s{SK+j}, s[{SK+6+2*j}:{SK+7+2*j}]")
    e("s_waitcnt lgkmcnt(0)")
    for j in range(5):
        e(f"v_readlane_b32 s{sASG[j]}, v{RT}, s{SK+j}")
    e(f"v_readfirstlane_b32 s{sN}, v{T+6}")
    e.label("L_ranked")
    e("s_mov_b32 exec_hi, 0")
    for j in range(5):
        e(f"s_and_b32 s{sT}, s{sASG[j]}, 0x380")
        e(f"v_add_u32 v{CAD+j}, s{sT}, v{cBIN}")
        e(f"ds_add_rtn_u32 v{CN+j}, v{CAD+j}, v{CN+j} offset:{WB}")
    for j in range(5):
        e(f"v_or_b32 v{CAD+j}, s{sASG[j]}, v{CAD+j}")
    for j in range(5):
        e(f"v_writelane_b32 v{T+3}, s{sASG[j]}, {j}")
    for j in range(5):
        e("s_waitcnt lgkmcnt(4)")
        e(f"v_lshl_or_b32 v{CN+j}, v{CN+j}, 16, v{CAD+j}")
        e(f"ds_write_b32 v{cROW}, v{CN+j} offset:{CNT2 + 128*j}")
    e(f"v_add_lshl_u32 v{T+4}, v{LANE}, s{sOFF}, 7")
    e(f"v_lshrrev_b32 v{T+1}, 10, v{T+3}", f"v_bfe_u32 v{T+3}, v{T+3}, 2, 8", f"v_or_b32 v{T+3}, v{T+3}, v{T+1}")
    e("s_mov_b32 exec_lo, 31")
    e(f"ds_write_b32 v{T+3}, v{T+4} offset:{NODEOF}")
    e("s_mov_b64 exec, -1")
    ts.stamp("rank")
    bea(2)
    e(f"s_lshl_b32 s{sT}, s3, 3", f"s_add_u32 s{sT2}, s{sT}, 7")
    e("s_waitcnt lgkmcnt(0)", "s_barrier")
    ts.stamp("b2")
    e(f"ds_read_b128 {vr(CN,4)}, v{X16} offset:{WB}")
    for i in range(3):
        e(f"ds_read_b32 v{CA+i}, v{CA+i} offset:{CNT2}")
    e(f"ds_read_b32 v{T+3}, v{cNOD} offset:{NODEOF}")
    bea(6)
    e("s_waitcnt lgkmcnt(4)")
    e(f"v_add_u32 v{T+1}, v{CN}, v{CN+1}", f"v_add3_u32 v{T+1}, v{T+1}, v{CN+2}, v{CN+3}", f"v_mov_b32 v{T+2}, v{T+1}")
    e("s_waitcnt lgkmcnt(1)")

    def place(i):
        key = SKR + 4 * i + 2
        return [f"v_bfe_u32 v{T+7}, v{CA+i}, 12, 3", f"v_or_b32 v{key}, v{T+7}, v{key}", f"v_and_b32 v{G1+i}, 0x3ff, v{CA+i}",
                f"v_lshrrev_b32 v{CA+i}, 16, v{CA+i}", f"v_add_u32 v{CA+i}, v{CA+i}, v{RNK+i}"]

    fill = place(0) + place(1) + place(2)
    e(fill.pop(0))
    for mod in ("row_shr:1 row_mask:0xf", "row_shr:2 row_mask:0xf", "row_shr:4 row_mask:0xf", "row_shr:8 row_mask:0xf", "row_bcast:15 row_mask:0xa", "row_bcast:31 row_mask:0xc"):
        e(f"v_add_u32_dpp v{T+2}, v{T+2}, v{T+2} {mod} bank_mask:0xf")
        e(*fill[:2]); fill = fill[2:]
    e(f"v_sub_u32 v{T+1}, v{T+2}, v{T+1}")
    e(f"v_lshl_add_u32 v{CAD}, v{T+1}, 2, v{cLST}")
    for k in range(3):
        e(f"v_lshl_add_u32 v{CAD+1+k}, v{CN+k}, 2, v{CAD+k}")
    e(f"ds_write_b128 v{X16}, {vr(CAD,4)} offset:{START}")
    for i in range(3):
        e(f"ds_read_b32 v{G1+i}, v{G1+i} offset:{START}")
    e(*fill)
    e(f"v_readlane_b32 s{sNV}, v{T+2}, s{sT2}", f"v_readlane_b32 s{sCNT}, v{T+1}, s{sT}", f"v_readlane_b32 s{sBASE}, v{CAD}, s{sT}")
    e(f"v_mov_b32 v{T+4}, {(0x3fff << 7) | 5}")
    e(f"s_sub_u32 s{sNV}, s{sNV}, s{sCNT}", f"s_lshl_b32 s{sT}, s{sNV}, 2")
    e(f"v_add_u32 v{LA}, s{sBASE}, v{LAC}", f"v_add_u32 v{LB}, s{sBASE}, v{LBC}", f"v_add_u32 v{T+1}, s{sT}, v{LA}")

    def scatter(i):
        e(f"v_lshl_add_u32 v{CA+i}, v{CA+i}, 2, v{G1+i}")
        e(f"s_mov_b64 exec, s[{sVm[i]}:{sVm[i]+1}]")
        e(f"ds_write_b32 v{CA+i}, v{SKR+4*i+2}")
        e("s_mov_b64 exec, -1")

    for i in range(3):
        e("s_waitcnt lgkmcnt(2)")
        scatter(i)
    e(f"ds_write_b32 v{T+1}, v{T+4}")
    e(f"s_cmp_gt_i32 s{sNW}, 192", "s_cbranch_scc1 L_r3")
    e.label("L_r3b")
    bea(3)
    for j in range(5):
        e(f"v_readlane_b32 s{sNODE+j}, v{T+3}, {j}")
    ts.stamp("list")
    eAG, eFR, eST, eWF, sEO = [208, 209, 210, 211, 212], 213, 214, 215, 99
    e(f"v_lshlrev_b32 v{T}, 2, v{LANE}")
    for s in range(5):
        e(f"s_mul_i32 s{sT}, s{sNODE+s}, 9", f"v_add_u32 v{eAG[s]}, s{sT}, v{T}")
    e(f"s_lshr_b32 s{sEO}, s3, 1", f"s_mul_i32 s{sEO}, s{sEO}, 3", f"s_min_u32 s{sEO}, s{sEO}, 8", f"s_mul_i32 s{sT2}, s{sEO}, 4608")
    e(f"v_and_b32 v{T}, 15, v{LANE}", f"v_lshrrev_b32 v{T+1}, 4, v{LANE}")
    e(f"v_mul_u32_u24 v{eFR}, 288, v{T}", f"v_lshl_add_u32 v{eFR}, v{T+1}, 4, v{eFR}", f"v_add_u32 v{eFR}, s{sT2}, v{eFR}")
    e(f"v_lshrrev_b32 v{T+1}, 3, v{LANE}", f"v_lshlrev_b32 v{T+1}, 9, v{T+1}", f"v_and_b32 v{T}, 7, v{LANE}", f"v_lshl_add_u32 v{eST}, v{T}, 4, v{T+1}")
    e(f"s_lshl_b32 s{sEO}, s{sEO}, 12", f"s_and_b32 s{sT2}, s3, 1", f"s_lshl_b32 s{sT}, s{sT2}, 7", f"s_add_u32 s{sEO}, s{sEO}, s{sT}",
      f"s_lshl_b32 s{sT2}, s{sT2}, 14", f"s_add_u32 s{sT2}, s{sT2}, {WO}", f"v_add_u32 v{eWF}, s{sT2}, v{X16}")
    NK = P["WFK"]
    WF = [216 + 4 * q for q in range(NK)] + [96 + 4 * q for q in range(16 - NK)]
    for q in range(NK):
        e(f"ds_read_b128 {vr(WF[q],4)}, v{eWF} offset:{1024*q}")
    assert D == 6
    sP0 = sT
    e(f"s_add_u32 s{sP0}, s{sNV}, 1", f"s_and_b32 s{sP0}, s{sP0}, -2", f"s_add_u32 s{sCNT}, s{sP0}, 15", f"s_lshr_b32 s{sCNT}, s{sCNT}, 4",
      f"s_sub_u32 s{sP0}, 0, s{sP0}", f"s_and_b32 s{sP0}, s{sP0}, 15", f"s_sub_u32 s{sCNT}, s{sCNT}, 1", f"s_cmp_gt_i32 s{sCNT}, 0", f"s_cselect_b32 s{sP0}, s{sP0}, 0")
    e(f"s_lshl_b32 s{sOFF}, s{sP0}, 2", f"v_subrev_u32 v{LA}, s{sOFF}, v{LA}", f"v_subrev_u32 v{LB}, s{sOFF}, v{LB}",
      f"s_and_b32 s{sOFF}, s{sOFF}, 32", f"v_add_u32 v{T+4}, s{sOFF}, v{LA}", f"s_and_b32 s{SK+8}, s{sP0}, 6")
    e(f"s_mov_b32 s{sT2}, 0x00fffc38", f"s_mov_b32 s{sNR}, 0xffffff00", f"s_mov_b32 s{sBASE}, {SHST}")
    if P["PRIO"] == 1:
        e("s_cmp_lt_u32 s3, 4", "s_cbranch_scc1 L_np", "s_setprio 1")
        e.label("L_np")
    e("s_waitcnt vmcnt(0) lgkmcnt(0)", "s_barrier")
    ts.stamp("b4")
    e(f"ds_read_b32 v{K}, v{T+4}", f"ds_read_b32 v{ENT+2}, v{LB}", f"ds_read_b32 v{KN}, v{LA} offset:{4*D}")
    e(f"s_cmp_eq_u32 s{sNV}, 0", "s_cbranch_scc1 L_swept")
    AL = P["ALIGN"]

    def al():
        if AL:
            e(".p2align 3")

    def ea_reads():
        e(f"v_lshrrev_b32 v{T}, 21, v{ENT+2}", f"v_lshl_add_u32 v{T+3}, v{T}, 3, s{sBASE}", f"v_lshl_add_u32 v{T}, v{T}, 5, v{EAC}")
        e(f"ds_read_b64 {vr(ENT,2)}, v{T+3}")
        e(f"s_mov_b64 exec, s[{sM0}:{sM0+1}]", f"ds_read_b128 {vr(EA0,4)}, v{T}")
        e(f"s_mov_b64 exec, s[{sM1}:{sM1+1}]", f"ds_read_b128 {vr(EA1,4)}, v{T}")
        e("s_mov_b64 exec, -1")

    def pq(j):
        p = PQ + 2 * (j % 2)
        return [f"v_cvt_pk_bf16_f32 v{T+1+j%2}, v{AGN+j}, v{AGN+j}", f"v_and_b32 v{p}, v{MP}, v{T+1+j%2}", f"v_and_b32 v{p+1}, v{MQ}, v{T+1+j%2}"]

    def head(kind):
        e("s_waitcnt lgkmcnt(0)"); al()
        for q in range(4):
            e(f"v_mfma_f32_4x4x4_16b_bf16 {vr(AGN+4*q,4)}, {vr(ENT,2)}, {vr(CGF,2)}, 0 cbsz:4 abid:{2*q}")
        fill = [f"v_lshlrev_b32 v{K}, 3, v{KN}", f"v_and_b32 v{K}, s{sT2}, v{K}"]
        if kind != "last":
            fill += [f"v_add_u32 v{LA}, 64, v{LA}", f"v_add_u32 v{LB}, 64, v{LB}", f"ds_read_b32 v{KN}, v{LA} offset:{4*D}", f"ds_read_b32 v{ENT+2}, v{LB}"]
        groups = [fill[:4], fill[4:], pq(0) if kind != "first" else [], []]
        for q in range(4):
            h, t = q % 2, q // 2
            e(f"v_mfma_f32_32x32x16_bf16 {vr(RW+16*h,16)}, {vr(EA0+4*t,4)}, {vr(WRF+8*h+4*t,4)}, {vr(RW+16*h,16) if t else 0}")
            e(*groups[q])

    def pks(j):
        t = TP + 8 * (j % 2)
        for h in range(2):
            r = RW + 16 * h + j
            rp = r & ~1
            sel = "op_sel:[0,1,0] op_sel_hi:[1,1,1]" if r & 1 else "op_sel_hi:[1,0,1]"
            for q in range(2):
                a = ACC + 4 * h + 2 * q
                e(f"v_pk_fma_f32 {vr(a,2)}, {vr(t+4*h+2*q,2)}, {vr(rp,2)}, {vr(a,2)} {sel}")

    def mf(j, h):
        t, p, s = TP + 8 * (j % 2), PQ + 2 * (j % 2), XR + 4 * (j % R)
        e(f"v_mfma_f32_16x16x16_bf16 {vr(t+4*h,4)}, {vr(p,2)}, {vr(s+2*h,2)}, 0")

    def rl(q, lane):
        e(f"v_readlane_b32 s{SK + q % 8}, v{K}, {lane}")

    def sand(q):
        e(f"s_and_b32 s{sOFF}, s{SK + q % 8}, s{sNR}")

    def xl(q):
        e(f"buffer_load_dwordx4 {vr(XR + 4 * (q % R),4)}, v{X16}, {sr(sX)}, s{sOFF} offen")

    def body(last):
        for j in range(0, 16, 2):
            ld = not last or j + D < 16
            if not last or j == 0:
                e.label(f"L_{'f' if last else 'j'}{j}")
            nx = pq(j + 1)
            e(f"s_waitcnt vmcnt({D-1 if ld else 15-j})"); al()
            mf(j, 0)
            if ld:
                rl(j + D, j)
            e(*nx[:1]); mf(j, 1); e(*nx[1:])
            if ld and P["SCH"] == 2:
                sand(j + D); e(f"s_waitcnt vmcnt({D-2})"); xl(j + D)
            elif ld:
                sand(j + D); xl(j + D); e(f"s_waitcnt vmcnt({D-1})")
            else:
                e(f"s_waitcnt vmcnt({14-j})"); al()
            nx = pq(j + 2) if j < 14 else []
            mf(j + 1, 0)
            if ld:
                rl(j + 1 + D, j + 1)
            e(*nx[:1]); mf(j + 1, 1); e(*nx[1:])
            if j == 2 and not last:
                e("s_waitcnt lgkmcnt(0)")
                ea_reads(); al()
            if ld:
                sand(j + 1 + D)
            e(f"s_set_gpr_idx_on s{SK + j % 8}, gpr_idx(SRC2,DST)")
            xl(j + 1 + D) if ld else al()
            pks(j)
            e(f"s_set_gpr_idx_idx s{SK + (j + 1) % 8}")
            if j == 14 and not last:
                e(f"s_sub_u32 s{sCNT}, s{sCNT}, 1")
            al()
            pks(j + 1)
            e("s_set_gpr_idx_off")

    e("s_waitcnt lgkmcnt(1)")
    e(f"v_lshlrev_b32 v{K}, 3, v{K}", f"v_and_b32 v{K}, s{sT2}, v{K}")
    if P["EAF"]:
        ea_reads()
    for q in (2, 4, 6):
        e(f"s_cmp_eq_u32 s{SK+8}, {q}", f"s_cbranch_scc1 L_p{q}")
    for q in range(0, 12, 2):
        e.label(f"L_p{q}")
        rl(q, q); rl(q + 1, q + 1)
        sand(q); xl(q); sand(q + 1); xl(q + 1)
        if 4 <= q < 10:
            e(f"s_cmp_eq_u32 s{SK+8}, {q-4}", "s_cbranch_scc1 L_pd")
    e.label("L_pd")
    if not P["EAF"]:
        ea_reads()
    ts.stamp("b5")
    head("first")
    e(f"s_set_gpr_idx_on s{sP0}, gpr_idx(SRC0,SRC1)")
    e.idx_range, keep = {("v", i) for i in range(AGN, AGN + 16)}, e.idx_range
    e(pq(0)[0])
    e.idx_range = keep
    e("s_set_gpr_idx_off")
    e(*pq(0)[1:])
    e("s_waitcnt lgkmcnt(0)")
    ea_reads()
    e(f"s_cmp_eq_u32 s{sCNT}, 0", "s_cbranch_scc1 L_f0")
    for j in range(2, 16, 2):
        e(f"s_cmp_eq_u32 s{sP0}, {j}", f"s_cbranch_scc1 L_j{j}")
    e("s_branch L_j0")
    e(".p2align 3")
    e.label("L_loop")
    head("mid")
    body(False)
    e(f"s_cmp_lg_u32 s{sCNT}, 0", "s_cbranch_scc1 L_loop")
    head("last")
    body(True)
    e.label("L_swept")
    ts.stamp("swept")
    e(f"s_add_u32 s{sROFF}, s{sROFF}, {CAPW}", f"s_cmp_lt_u32 s{sROFF}, s{sN}", "s_cbranch_scc1 L_again")
    AF, DD, OB, OT = ACC, 160, 64, 80
    if P["EPRIO"] >= 0:
        e(f"s_setprio {P['EPRIO']}")
    for s in range(5):
        for w in range(4):
            e(f"v_cvt_pk_bf16_f32 v{RW+4*s+w}, v{ACC+8*s+w}, v{ACC+8*s+4+w}")
        for w in (0, 2):
            e(f"ds_write2_b32 v{eAG[s]}, v{RW+4*s+w}, v{RW+4*s+w+1} offset0:{72*w} offset1:{72*w+72}")
    NPRE = P["WFPRE"]
    for q in range(NK, NPRE):
        e(f"ds_read_b128 {vr(WF[q],4)}, v{eWF} offset:{1024*q}")
    e(f"s_waitcnt lgkmcnt({NPRE - NK})", "s_barrier")
    ts.stamp("agb")
    lq = [f"w{q}" for q in range(NPRE)]

    def lop(tag, text):
        e(text); lq.append(tag)

    def lwait(*tags):
        n = len(lq) - 1 - max(lq.index(t) for t in tags)
        e(f"s_waitcnt lgkmcnt({min(n, 15)})")

    def afrag(k, ss=range(4)):
        for s in ss:
            lop(f"a{k}{s}", f"ds_read_b128 {vr(AF+16*k+4*s,4)}, v{eFR} offset:{AGL + 4608*k + 64*s}")

    def post(k, pol=P['OUTPOL']):
        d, o = DD + 16 * (k % 2), OB + 8 * (k % 2)
        x = []
        for r in range(2):
            for c in range(2):
                x.append(f"v_cvt_pk_bf16_f32 v{o+4*r+c}, v{d+8*c+r}, v{d+8*c+4+r}")
                x.append(f"v_cvt_pk_bf16_f32 v{OT+2*r+c}, v{d+8*c+r}, v{d+8*c+4+r}")
                x.append(f"v_cvt_pk_bf16_f32 v{o+4*r+2+c}, v{d+8*c+r+2}, v{d+8*c+4+r+2}")
            for c in range(2):
                x.append(f"v_mov_b32_dpp v{o+4*r+c}, v{o+4*r+2+c} row_ror:8 row_mask:0xf bank_mask:0xc")
            for c in range(2):
                x.append(f"v_mov_b32_dpp v{o+4*r+2+c}, v{OT+2*r+c} row_ror:8 row_mask:0xf bank_mask:0x3")
            x.append(f"buffer_store_dwordx4 {vr(o+4*r,4)}, v{eST}, {sr(sOUT)}, s{sEO} offen offset:{256*r} {pol}")
        x.append(f"s_add_u32 s{sEO}, s{sEO}, 4096")
        return x

    def tile(k, pend):
        d = DD + 16 * (k % 2)
        for s in range(4):
            if k == 0:
                lwait(f"a0{s}", f"w{4*s+3}")
            elif s == 0:
                lwait(f"a{k}3")
            for t in range(4):
                c = "0" if s == 0 else vr(d + 4 * t, 4)
                e(f"v_mfma_f32_16x16x32_bf16 {vr(d+4*t,4)}, {vr(AF+16*k+4*s,4)}, {vr(WF[4*s+t],4)}, {c}")
                if 4 * s + t >= 4:
                    e(*pend[:2]); pend = pend[2:]
            if k == 0 and s == 0:
                afrag(1)
            if k == 0 and s == 1:
                afrag(2)
        e(*pend)

    for s in range(4):
        afrag(0, [s])
        for q in range(max(NPRE, 4 * s), 4 * s + 4):
            lop(f"w{q}", f"ds_read_b128 {vr(WF[q],4)}, v{eWF} offset:{1024*q}")
    tile(0, [])
    tile(1, post(0))
    e("s_cmp_ge_u32 s3, 4", "s_cbranch_scc1 L_two")
    tile(2, post(1))
    e(*post(2, P['LASTPOL']))
    e.label("L_stored")
    ts.stamp("stored")
    e("s_or_b32 s4, s2, s3", "s_cbranch_scc1 L_notag")
    e(f"v_mov_b32 v{T}, s{sTAG}", f"v_lshlrev_b32 v{T+2}, 2, v{LANE}", f"s_mov_b32 s{sT}, {WS_W}")
    e(f"buffer_store_dword v{T}, v{T+2}, {sr(sTAB)}, s{sT} offen sc1")
    e.label("L_notag")
    if P["DIAGW"] and P["DIAGAT"] == "fin":
        e("s_waitcnt vmcnt(0)")
        ts.stamp("fin")
    if P["DIAGL"] == 1:
        e(f"s_add_u32 s8, s14, {WS_TS}", "s_addc_u32 s9, s15, 0", "s_load_dword s6, s[8:9], 0", "s_waitcnt lgkmcnt(0)")
        e.label("L_diag")
        e("s_memrealtime s[4:5]", "s_waitcnt lgkmcnt(0)", "s_sub_u32 s4, s4, s6", "s_cmp_lt_u32 s4, 4000", "s_cbranch_scc1 L_diag")
    if P["DIAGL"] == 2:
        e("s_or_b32 s4, s2, s3", "s_cbranch_scc1 L_done")
        e(f"v_mov_b32 v{T}, s{sTSP}", f"v_mov_b32 v{T+1}, {WS_TS}", f"global_store_dword v{T+1}, v{T}, s[14:15]")
    if P["DIAGW"]:
        e(f"s_add_u32 s6, s{sTSP+1}, {P['DIAGW']}", "s_min_u32 s6, s6, 30000")
        e.label("L_diag")
        e("s_memrealtime s[4:5]", "s_waitcnt lgkmcnt(0)", f"s_sub_u32 s4, s4, s{sTSP}", "s_cmp_lt_u32 s4, s6", "s_cbranch_scc1 L_diag")
    if P["DIAGC"]:
        e("s_memtime s[6:7]", "s_waitcnt lgkmcnt(0)")
        e.label("L_diag")
        e("s_memtime s[4:5]", "s_waitcnt lgkmcnt(0)", "s_sub_u32 s4, s4, s6", f"s_cmp_lt_u32 s4, {P['DIAGC']}", "s_cbranch_scc1 L_diag")
    if P["TS"]:
        e("s_waitcnt vmcnt(0)")
        ts.stamp("end")
        e(f"s_lshl_b32 s{sT}, s2, 3", f"s_add_u32 s{sT}, s{sT}, s3", f"s_lshl_b32 s{sT}, s{sT}, 8", f"s_add_u32 s{sT}, s{sT}, {WS_TS}")
        e(f"v_lshl_add_u32 v{T}, v{LANE}, 2, s{sT}", f"global_store_dword v{T}, v{TSV}, s[14:15]")
        if P["DBG"]:
            e(f"s_cmp_lg_u32 s2, {P['DBG']}", "s_cbranch_scc1 L_done", "s_cmp_lg_u32 s3, 0", "s_cbranch_scc1 L_done")
            e("s_load_dwordx2 s[4:5], s[0:1], 72", f"v_readlane_b32 s{sT}, v{TSV}, 0", f"v_lshlrev_b32 v{T}, 2, v{LANE}")
            e(f"v_subrev_u32 v{TSV}, s{sT}, v{TSV}", "s_waitcnt lgkmcnt(0)", f"global_store_dword v{T}, v{TSV}, s[4:5]")
    e.label("L_done")
    e("s_endpgm")
    e.label("L_again")
    e("s_waitcnt vmcnt(0) lgkmcnt(0)", "s_barrier")
    init_round(False)
    e(f"v_add_u32 v{RLEN}, v{RLEN}, v{RBASE}", f"v_subrev_u32 v{RLEN}, {CAPW}, v{RLEN}", f"v_max_i32 v{RLEN}, 0, v{RLEN}")
    e(f"v_subrev_u32 v{RBASE}, {CAPW}, v{RBASE}", f"v_max_i32 v{RBASE}, 0, v{RBASE}", f"v_sub_u32 v{RLEN}, v{RLEN}, v{RBASE}")
    e(f"v_add_u32 v{RG0}, {CAPW}, v{RG0}", f"s_sub_i32 s{sNW}, s{sNW}, {CAPW}", f"v_lshl_add_u32 v{T}, v{RBASE}, 2, v{cMAPW}")
    e("s_waitcnt lgkmcnt(0)", "s_barrier")
    e.label("L_clip")
    e(f"v_add_u32 v{T+2}, v{RBASE}, v{RLEN}", f"v_min_i32 v{T+2}, {CAPW}, v{T+2}", f"v_sub_u32 v{T+2}, v{T+2}, v{RBASE}", f"v_add_u32 v{T+2}, v{T+2}, v{cODD}")
    e.label("L_masks")
    e(*cmps)
    e("s_nop 0", "s_branch L_mapw")
    e.label("L_map2")
    e(f"v_add_u32 v{T}, {8*MU}, v{T}", f"v_subrev_u32 v{T+2}, {2*MU}, v{T+2}")
    e("s_branch L_masks")
    e.label("L_r1")
    e(f"ds_read_b32 v{G1+3}, v{cMAP1} offset:768", f"ds_read_b32 v{G2+6}, v{cMAP2} offset:768")
    e("s_waitcnt lgkmcnt(0)")
    skld(3)
    for i in (6,):
        e(f"v_lshl_add_u32 v{G2+i}, v{G2+i}, 5, v{X16}")
        bea1(i)
    e("s_branch L_r1b")
    e.label("L_r2")
    count(3)
    entry(3)
    e("s_branch L_r2b")
    e.label("L_r3")
    e(f"ds_read_b32 v{CA+3}, v{CA+3} offset:{CNT2}", "s_waitcnt lgkmcnt(0)")
    e(*place(3))
    e(f"ds_read_b32 v{G1+3}, v{G1+3} offset:{START}", "s_waitcnt lgkmcnt(0)")
    scatter(3)
    e("s_branch L_r3b")
    if NS:
        e.label("L_guard")
        e(f"s_movk_i32 s{sNW}, 64")
        if P["GP"] == 0:
            e(f"v_cmp_ne_u32 vcc, s{sTAG}, v{SG+1}", "s_cbranch_vccz L_guarded")
        e.label("L_guard2")
        e(gpoll, f"s_sub_u32 s{sNW}, s{sNW}, 1", "s_cbranch_scc1 L_guarded", "s_waitcnt vmcnt(0)")
        e(f"v_cmp_ne_u32 vcc, s{sTAG}, v{SG+1}", "s_cbranch_vccnz L_guard2", "s_branch L_guarded")
    e.label("L_two", pad=8)
    e(*post(1, P['LASTPOL']))
    e("s_branch L_stored")
    e.label("L_poll")
    e(poll1, f"s_sub_u32 s{sCNT}, s{sCNT}, 1", "s_cbranch_scc1 L_done", "s_waitcnt vmcnt(0)")
    tagcheck()
    e("s_cbranch_execnz L_poll", "s_branch L_polled")
    e.label("L_rank2")
    for j in range(5):
        e(f"ds_read_b32 v{CN+j}, v{cROW} offset:{CNT2 + 128*j}")
    bea(5)
    e("s_waitcnt lgkmcnt(0)")
    e.label("L_end")
    e("s_branch L_ranked")
    return e.text(), LDS, 256, 102


HEADER = """; Kernarg layout for this problem (88 bytes, ptrs only, base s[0:1]):
"""


def generate(**kw):
    P = dict(DEF)
    P.update(kw)
    k, lds, v, s = gen(P)
    n = NAME + "_kernel"
    out = HEADER
    tiny = ""
    if P["DIAGL"]:
        t = "; @launch kernel=tiny_kernel grid=(1,1,1) block=(64,1,1) lds=0\n"
        m = f"; @launch kernel={n} grid=(256,1,1) block=(512,1,1) lds={lds}\n"
        out += t + m if P["DIAGL"] == 1 else m + t
        tiny = ".globl tiny_kernel\n.p2align 8\n.type tiny_kernel,@function\ntiny_kernel:\ns_memrealtime s[4:5]\ns_load_dwordx2 s[14:15], s[0:1], 80\ns_waitcnt lgkmcnt(0)\n"
        if P["DIAGL"] == 1:
            tiny += f"v_mov_b32 v1, s4\nv_mov_b32 v2, {WS_TS}\nglobal_store_dword v2, v1, s[14:15]\ns_endpgm\n"
        else:
            tiny += f"s_add_u32 s8, s14, {WS_TS}\ns_addc_u32 s9, s15, 0\ns_load_dword s6, s[8:9], 0\ns_waitcnt lgkmcnt(0)\nL_td:\ns_memrealtime s[4:5]\ns_waitcnt lgkmcnt(0)\ns_sub_u32 s4, s4, s6\ns_cmp_lt_u32 s4, 4000\ns_cbranch_scc1 L_td\ns_endpgm\n"
    else:
        out += f"; @launch grid=(256,1,1) block=(512,1,1) lds={lds}\n"
    out += '.amdgcn_target "amdgcn-amd-amdhsa--gfx950"\n.text\n' + tiny
    out += f".globl {n}\n.p2align 8\n.type {n},@function\n{n}:\n{k}"
    out += '.section .rodata,"a"\n'
    out += (f".p2align 6\n.amdhsa_kernel {n}\n  .amdhsa_next_free_vgpr {v}\n  .amdhsa_next_free_sgpr {s}\n"
            f"  .amdhsa_accum_offset {(v+3)//4*4}\n  .amdhsa_group_segment_fixed_size 0\n  .amdhsa_kernarg_size 88\n"
            f"  .amdhsa_user_sgpr_count 2\n  .amdhsa_user_sgpr_kernarg_segment_ptr 1\n  .amdhsa_system_sgpr_workgroup_id_x 1\n"
            f"  .amdhsa_float_denorm_mode_32 3\n.end_amdhsa_kernel\n")
    if tiny:
        out += (".p2align 6\n.amdhsa_kernel tiny_kernel\n  .amdhsa_next_free_vgpr 8\n  .amdhsa_next_free_sgpr 32\n  .amdhsa_accum_offset 8\n"
                "  .amdhsa_group_segment_fixed_size 0\n  .amdhsa_kernarg_size 88\n  .amdhsa_user_sgpr_count 2\n  .amdhsa_user_sgpr_kernarg_segment_ptr 1\n"
                "  .amdhsa_system_sgpr_workgroup_id_x 1\n.end_amdhsa_kernel\n")
    return out


if __name__ == "__main__":
    kw = {}
    for a in sys.argv[1:]:
        k, v = a.split("=", 1)
        kw[k] = int(v) if v.lstrip("-").isdigit() else v
    sys.stdout.write(generate(**kw))
```

```python
import sys, os
sys.path.insert(0, os.path.dirname(os.path.abspath(__file__)))
from emit import Emitter

NAME = "gather_scatter__tensor_product_equiv_mace__graph"
N, E = 10000, 320000
CH, NCH, CS = 1250, 256, 1280
WS_TAB, WS_W, WS_FL, WS_SK, WS_EA, WS_TS = 0, 0x80000, 0x90000, 0x100000, 0x500000, 0x2000000
CAPW, GAP = 224, 16
CAP = 8 * CAPW
SPIN = 200000

DEF = dict(ABL='', WFPRE=16, WFK=6, LASTPOL='sc1', EPRIO=0, XPA=0, XPAW=0, BIAS=30, NS=0, GP=0, SP=1, EAF=1, EPI=2, SCH=2, XDUM=0, NOVM=1, PWAIT=2, ALIGN=1, PRIO=1, PSTEP=16, DIAGL=0, DIAGW=0, DIAGK=0, DIAGAT='tab', DIAGC=0, D=6, TS=0, DBG=0, APOL="nt", AEA="00222", BEA="011222", SKBAR=1, ABAR=2, SKEARLY=0, XPF=18, CPF=2, MU=7, OUTPOL="sc1", LDPOL="sc1", WST=3, WOST=3, ACCZ=2, CPOS=2, FRG=0, WGN=0, STH=0, STHN=5, ASTPOL='sc1')

PART39 = [[3, 11, 21, 31, 36], [5, 8, 20, 27, 38], [0, 6, 7, 13, 39], [9, 14, 18, 25, 34], [10, 16, 19, 24, 32], [4, 12, 26, 29, 33], [1, 17, 23, 28, 37], [2, 15, 22, 30, 35]]
PART40 = [[1, 10, 15, 30, 39], [2, 9, 21, 28, 37], [4, 14, 22, 27, 31], [6, 12, 18, 24, 35], [3, 8, 16, 29, 38], [5, 13, 17, 26, 34], [0, 20, 23, 32, 36], [7, 11, 19, 25, 33]]
PARTS = {0: (PART39, PART40)}
PARTS[12] = ([[12, 16, 24, 26, 30], [8, 14, 15, 31, 36], [2, 10, 23, 34, 37], [5, 17, 18, 22, 38], [0, 1, 7, 19, 39], [3, 11, 20, 29, 35], [6, 9, 25, 27, 32], [4, 13, 21, 28, 33]],
    [[9, 12, 19, 28, 32], [3, 10, 22, 29, 37], [7, 8, 23, 26, 36], [0, 18, 20, 34, 38], [5, 6, 14, 21, 39], [4, 11, 16, 24, 35], [1, 15, 25, 27, 31], [2, 13, 17, 30, 33]])
PARTS[20] = ([[13, 17, 24, 26, 31], [4, 16, 25, 29, 36], [5, 19, 23, 28, 35], [1, 6, 8, 10, 39], [7, 9, 20, 27, 32], [3, 12, 14, 33, 34], [2, 15, 18, 22, 37], [0, 11, 21, 30, 38]],
    [[11, 12, 17, 20, 38], [3, 16, 26, 28, 34], [8, 10, 19, 29, 36], [7, 14, 25, 27, 31], [6, 13, 15, 24, 30], [0, 9, 22, 23, 39], [2, 4, 21, 32, 35], [1, 5, 18, 33, 37]])
PARTS[30] = ([[12, 16, 25, 29, 32], [0, 5, 9, 20, 39], [1, 18, 27, 34, 37], [7, 19, 22, 30, 35], [2, 6, 24, 26, 36], [4, 11, 13, 31, 33], [10, 15, 17, 21, 28], [3, 8, 14, 23, 38]],
    [[6, 9, 26, 28, 37], [1, 11, 24, 35, 38], [5, 17, 23, 31, 33], [8, 12, 21, 29, 36], [2, 4, 15, 22, 39], [7, 10, 14, 18, 34], [0, 16, 20, 30, 32], [3, 13, 19, 25, 27]])
PARTS[40] = ([[7, 13, 28, 29, 37], [10, 17, 22, 30, 36], [1, 4, 6, 23, 39], [9, 19, 26, 31, 33], [5, 12, 15, 18, 35], [2, 11, 16, 27, 34], [0, 8, 24, 25, 38], [3, 14, 20, 21, 32]],
    [[8, 17, 25, 31, 32], [3, 19, 22, 28, 38], [6, 15, 18, 33, 37], [2, 14, 24, 29, 39], [0, 12, 21, 27, 34], [1, 9, 13, 26, 36], [5, 7, 10, 23, 35], [4, 11, 16, 20, 30]])
PARTS[50] = ([[2, 19, 28, 35, 37], [0, 6, 11, 24, 39], [15, 17, 27, 29, 34], [1, 20, 30, 32, 38], [4, 7, 18, 23, 33], [9, 10, 12, 21, 31], [5, 13, 16, 25, 26], [3, 8, 14, 22, 36]],
    [[7, 15, 27, 30, 36], [8, 18, 19, 28, 38], [4, 14, 31, 33, 35], [6, 13, 20, 29, 39], [2, 3, 22, 23, 34], [0, 11, 12, 26, 37], [1, 9, 17, 24, 32], [5, 10, 16, 21, 25]])


def vr(a, n):
    return f"v[{a}:{a+n-1}]" if n > 1 else f"v{a}"


def sr(a, n=4):
    return f"s[{a}:{a+n-1}]"


def scan_dpp(e, v, full):
    for k in (1, 2, 4, 8):
        e(f"v_add_u32_dpp v{v}, v{v}, v{v} row_shr:{k} row_mask:0xf bank_mask:0xf")
    e(f"v_add_u32_dpp v{v}, v{v}, v{v} row_bcast:15 row_mask:0xa bank_mask:0xf")
    if full:
        e(f"v_add_u32_dpp v{v}, v{v}, v{v} row_bcast:31 row_mask:0xc bank_mask:0xf")


class TS:
    last = None

    def __init__(self, e, on, pair, vreg):
        self.e, self.on, self.pair, self.v, self.names = e, on, pair, vreg, []
        TS.last = self

    diag = None

    def stamp(self, name):
        if self.diag and self.diag[0] == name:
            self.e("s_memrealtime s[4:5]", "s_waitcnt lgkmcnt(0)", f"s_sub_u32 s4, s4, s{self.pair}", f"s_mul_i32 s{self.pair+1}, s4, {self.diag[1]}")
        if self.on and (self.on == 1 or name in str(self.on).split(",") or name in ("start", "end")):
            e, p = self.e, self.pair
            e(f"s_memrealtime s[{p}:{p+1}]", "s_waitcnt lgkmcnt(0)", f"v_writelane_b32 v{self.v}, s{p}, {len(self.names)}")
            self.names.append(name)


class VQ:
    def __init__(self, e):
        self.e, self.q = e, []

    def op(self, tag, text):
        self.e(text)
        self.q.append(tag)

    def n(self, tag):
        idx = max(i for i, t in enumerate(self.q) if t == tag)
        return len(self.q) - 1 - idx

    def wait(self, tag, extra=""):
        self.e(f"s_waitcnt vmcnt({self.n(tag)}) {extra}".strip())


def gen(P):
    e = Emitter()
    vq = VQ(e)
    D = P["D"]
    R = 8
    MAP, CNT2, WB, DEG, TOT, NODEOF, START, WR, WO = 0, 8192, 13312, 14336, 15360, 15616, 16384, 17408, 46080
    LIST = WO + 32768
    SHST = LIST + (CAP + 8 * GAP + 128) * 4
    EAST = SHST + CAP * 8
    assert SHST + CAP * 8 <= EAST
    LDS = EAST + CAP * 32
    AGL = 0
    ACNT, ASTART, AINV, ASKS = 23552, 24576, 25600, 30720
    assert ASKS + CS * 12 <= WO and LDS <= 163840
    LANE, X16, RLEN, RBASE, RG0, ONE, PFV = 1, 2, 3, 4, 5, 6, 7
    T = 8
    ACC, RW, XR, TP, AGN, PQ, EA0, EA1, WRF, CGF, ENT = 16, 64, 96, 128, 144, 160, 164, 168, 172, 188, 192
    MP, MQ = CGF + 2, CGF + 3
    K, KN, LA, LB, EAC, LAC, LBC, RT, TSV = 196, 197, 198, 199, 200, 201, 202, 203, 204
    cODD, cMAPW, cMAP1, cMAP2, cL12, cDEG, cSH, cR21, cROW, cTIE, cBIN, cNOD, cLST = range(240, 253)
    e.idx_range = {("v", i) for i in range(ACC, ACC + 48)}
    sX, sTAB, sSK, sEA, sA0, sA1, sOUT = 16, 20, 24, 28, 32, 36, 40
    sB, sNB, sNCNT, sN, sROFF, sNR, sNV, sBASE, sEM, sCNT, sT, sT2 = 44, 45, 46, 47, 48, 49, 50, 51, 52, 53, 54, 55
    sNODE = 56
    sOFF = 61
    sTAG, sTAG2 = 62, 63
    SK = 64
    sV = 80
    sM0, sM1 = 86, 88
    sASG = [90, 91, 92, 93, 94]
    sNW, sK4 = 95, 98
    sA2, sTSP = 96, 100
    ts = TS(e, P["TS"], sTSP, TSV)
    if P["DIAGW"]:
        ts.diag = (P["DIAGAT"], P["DIAGK"])
    apol, ldpol = P["APOL"], P["LDPOL"]
    astage = [int(c) for c in str(P["AEA"]).zfill(5)]
    bstage = [int(c) for c in str(P["BEA"]).zfill(6)]

    def srd(s, lo, hi, off, size):
        if off is None:
            e(f"s_mov_b32 s{s}, s{lo}", f"s_mov_b32 s{s+1}, s{hi}")
        else:
            e(f"s_add_u32 s{s}, s{lo}, {off}", f"s_addc_u32 s{s+1}, s{hi}, 0")
        e(f"s_mov_b32 s{s+2}, {size}", f"s_mov_b32 s{s+3}, 0x20000")

    def init_round(first):
        e(f"v_lshlrev_b32 v{T+3}, 2, v0", f"v_mov_b32 v{T+4}, 0x00700000", f"v_mov_b32 v{T+5}, 0")
        for i in range(4):
            e(f"ds_write_b32 v{T+3}, v{T+4} offset:{MAP + i*2048}")
        for i in range(4 if first else 3):
            e(f"ds_write_b32 v{T+3}, v{T+5} offset:{CNT2 + i*2048}")

    DSTV, SRCV, SHV, BK, BA, RK, NL, KEY, CT, ST, PS = 64, 68, 72, 80, 84, 88, 92, 96, 100, 104, 108
    TABV = 112
    OUTV = 128
    IV = 156
    CGR = 120
    if P["TS"]:
        e("s_memrealtime s[92:93]")
    e("s_cmp_ge_u32 s2, 256", "s_cbranch_scc1 L_done")
    e("s_load_dwordx4 s[4:7], s[0:1], 8")
    e("s_load_dwordx4 s[8:11], s[0:1], 24")
    e("s_load_dwordx2 s[14:15], s[0:1], 80")
    e(f"s_load_dwordx2 s[{SK}:{SK+1}], s[0:1], 0")
    e(f"s_load_dwordx2 s[{SK+2}:{SK+3}], s[0:1], 40")
    e(f"s_load_dwordx4 s[{SK+4}:{SK+7}], s[0:1], 48")
    e("s_load_dwordx2 s[12:13], s[0:1], 64")

    def cpf():
        e(f"s_getpc_b64 s[{sV}:{sV+1}]")
        e.label("L_pc")
        e(f"s_and_b32 s{sB}, s2, 0xf8", f"s_lshl_b32 s{sB}, s{sB}, 6")
        e(f"v_and_b32 v{T+3}, 0x180, v{T+2}", f"v_add_u32 v{T+3}, s{sB}, v{T+3}", f"v_min_u32 v{T+3}, L_end-L_pc, v{T+3}")
        e(f"v_mov_b32 v{TABV+1}, s{sV+1}", f"v_add_co_u32 v{TABV}, vcc, s{sV}, v{T+3}", f"v_addc_co_u32 v{TABV+1}, vcc, 0, v{TABV+1}, vcc")
        vq.op("cpf", f"global_load_dword v{TSV+1}, {vr(TABV,2)}, off")

    def srd_hi(s, size):
        e(f"s_mov_b32 s{s+2}, {size}", f"s_mov_b32 s{s+3}, 0x20000")

    def srd_lo(s, lo, off):
        e(f"s_add_u32 s{s}, s{lo}, {off}", f"s_addc_u32 s{s+1}, s{lo+1}, 0")

    e(f"v_lshlrev_b32 v{T+2}, 3, v0")
    if P["CPF"] == 2:
        cpf()
    e(f"v_lshrrev_b32 v{T}, 6, v0", f"v_and_b32 v{LANE}, 63, v0", f"v_lshlrev_b32 v{T+1}, 2, v0", f"v_mov_b32 v{T+5}, 0")
    e(f"v_readfirstlane_b32 s3, v{T}")
    e(f"ds_write_b32 v{T+1}, v{T+5} offset:{ACNT}", f"ds_write_b32 v{T+1}, v{T+5} offset:{AINV+3072}")
    e(f"s_mul_i32 s{sT}, s2, {CH*4}", f"s_mul_i32 s{sT2}, s2, {CH*8}", f"s_mul_i32 s{sOFF}, s2, {CH*32}")
    e(f"v_lshlrev_b32 v{X16}, 4, v{LANE}", f"v_lshlrev_b32 v{T+7}, 4, v0", f"v_mov_b32 v{ONE}, 1")
    e(f"s_lshl_b32 s{sEM}, s3, 10", f"s_add_u32 s{sEM}, s{sEM}, {EAST}", f"s_movk_i32 s{sCNT}, 4096", f"s_movk_i32 s{sNV}, 8192")
    srd_hi(sA0, CH * 4); srd_hi(sA1, CH * 4); srd_hi(sA2, CH * 8); srd_hi(sEA, CH * 32)
    if P["DIAGW"] or P["DIAGL"]:
        e(f"s_memrealtime s[{sTSP}:{sTSP+1}]")
    e("s_waitcnt lgkmcnt(0)")
    if P["TS"]:
        e(f"v_writelane_b32 v{TSV}, s92, 0")
        ts.names.append("first")
    ts.stamp("start")
    srd_lo(sA0, 6, f"s{sT}")
    for i in range(3):
        o = f"0 offen offset:{2048*i}" if i < 2 else f"s{sCNT} offen"
        vq.op("dst", f"buffer_load_dword v{DSTV+i}, v{T+1}, {sr(sA0)}, {o} {apol}")
    srd_lo(sA1, 4, f"s{sT}")
    if P["ABAR"] == 2:
        e("s_barrier")
    for i in range(3):
        o = f"0 offen offset:{2048*i}" if i < 2 else f"s{sCNT} offen"
        vq.op("src", f"buffer_load_dword v{SRCV+i}, v{T+1}, {sr(sA1)}, {o} {apol}")
    e(f"s_load_dword s{sTAG}, s[14:15], {WS_W}")
    if P["CPF"] == 1:
        cpf()
    srd_lo(sA2, 8, f"s{sT2}")
    srd_lo(sEA, 10, f"s{sOFF}")
    if P["ABAR"] == 1:
        e("s_barrier")
    for i, o in enumerate(("0", f"s{sCNT}", f"s{sNV}")):
        vq.op("sh", f"buffer_load_dwordx2 {vr(SHV+2*i,2)}, v{T+2}, {sr(sA2)}, {o} offen {apol}")

    def aea(p):
        for i in range(5):
            if astage[i] == p:
                e(f"s_add_u32 m0, s{sEM}, {8192*i}", f"s_mov_b32 s{sT}, {8192*i}")
                vq.op("ea", f"buffer_load_dwordx4 v{T+7}, {sr(sEA)}, s{sT} offen {apol} lds")
        if P["WST"] == p:
            weights()
        if P["WOST"] == p:
            wout()

    def weights():
        e("s_cmp_lt_u32 s3, 4")
        e(f"s_cselect_b32 s{sX}, s{SK+4}, s{SK+2}", f"s_cselect_b32 s{sX+1}, s{SK+5}, s{SK+3}", f"s_movk_i32 s{sT}, 128",
          f"s_cselect_b32 s{sX+2}, s{sCNT}, s{sT}", f"s_mov_b32 s{sX+3}, 0x20000")
        e(f"s_min_u32 s{sT}, s3, 5", f"s_lshl_b32 s{sT}, s{sT}, 10", f"s_add_u32 m0, s{sT}, {WR}", f"s_and_b32 s{sT}, s{sT}, 0xc00")
        vq.op("w", f"buffer_load_dwordx4 v{X16}, {sr(sX)}, s{sT} offen lds")

    def wout():
        srd(sOUT, SK + 6, SK + 7, None, 32768)
        e(f"s_lshl_b32 s{sT2}, s3, 12", f"s_add_u32 m0, s{sT2}, {WO}")
        for i in range(4):
            vq.op("w", f"buffer_load_dwordx4 v{X16}, {sr(sOUT)}, s{sT2} offen offset:{i*1024} lds")

    aea(0)
    if not P["ABAR"]:
        e("s_barrier")
    e(f"s_mov_b32 s{SK+8}, 109951168", f"s_movk_i32 s{SK+9}, 625", f"s_movk_i32 s{SK+10}, 838")
    e(f"v_cmp_gt_u32 s[{sV+4}:{sV+5}], {CH-1024}, v0") if CH - 1024 <= 64 else e(f"s_movk_i32 s{sT}, {CH-1024}", f"v_cmp_gt_u32 s[{sV+4}:{sV+5}], s{sT}, v0")
    srd(sTAB, 14, 15, None, WS_FL + 8192)
    init_round(True)
    if P["ACCZ"] == 9:
        for i in range(48):
            e(f"v_mov_b32 v{ACC+i}, 0")
    vq.wait("dst")
    ts.stamp("dst")
    for k in range(3):
        e(f"v_mul_hi_u32 v{BK+k}, v{DSTV+k}, s{SK+8}")
    for k in range(3):
        e(f"v_lshlrev_b32 v{BA+k}, 2, v{BK+k}")
        if k == 2:
            e(f"s_mov_b64 exec, s[{sV+4}:{sV+5}]")
        e(f"ds_add_rtn_u32 v{RK+k}, v{BA+k}, v{ONE} offset:{ACNT}")
    e("s_mov_b64 exec, -1")
    e("s_waitcnt lgkmcnt(0)", "s_barrier")
    ts.stamp("hist")
    e(f"ds_read_b128 {vr(CT,4)}, v{X16} offset:{ACNT}")
    e(f"s_mul_i32 s{sTAG}, s{sTAG}, 0x9e3779b1", f"s_add_u32 s{sTAG}, s{sTAG}, 0x7f4a7c15")
    e(f"s_mul_i32 s{sTAG2}, s{sTAG}, 0x85ebca6b", f"s_and_b32 s{sTAG2}, s{sTAG2}, 0xffc00000")
    NS = P["NS"]
    SG = CGR
    gpoll = f"buffer_load_dword v{SG+1}, v{SG}, {sr(sTAB)}, s{sROFF} offen sc1"

    def signal(pos):
        if NS and P["SP"] == pos:
            e("s_cmp_lg_u32 s3, 0", "s_cbranch_scc1 L_nosig", f"s_cmp_lt_u32 s2, {256-8*NS}", "s_cbranch_scc1 L_nosig")
            e(f"s_lshl_b32 s{sT}, s2, 7", f"s_add_u32 s{sT}, s{sT}, {WS_FL - (256-8*NS)*128}", f"v_mov_b32 v{SG+2}, s{sTAG}")
            e("s_mov_b32 exec_hi, 0", f"buffer_store_dword v{SG+2}, v{T+1}, {sr(sTAB)}, s{sT} offen sc1", "s_mov_b32 exec_hi, -1")
            e.label("L_nosig")

    signal(2)
    aea(1)
    for k in range(3):
        e(f"v_mad_u32_u24 v{NL+k}, v{BK+k}, s{SK+9}, 15", f"v_lshrrev_b32 v{NL+k}, 4, v{NL+k}", f"v_sub_u32 v{NL+k}, v{DSTV+k}, v{NL+k}")
        e(f"v_lshrrev_b32 v{BK+k}, 3, v{BK+k}", f"v_and_b32 v{BK+k}, 28, v{BK+k}")
    e("s_waitcnt lgkmcnt(0)")
    e(f"v_add_u32 v{T+3}, v{CT}, v{CT+1}", f"v_add3_u32 v{T+3}, v{T+3}, v{CT+2}, v{CT+3}", f"v_mov_b32 v{T+4}, v{T+3}")
    scan_dpp(e, T + 4, True)
    e(f"v_sub_u32 v{ST}, v{T+4}, v{T+3}")
    for k in range(3):
        e(f"v_add_u32 v{ST+1+k}, v{ST+k}, v{CT+k}")
    e(f"ds_write_b128 v{X16}, {vr(ST,4)} offset:{ASTART}")
    for k in range(3):
        e(f"ds_read_b32 v{PS+k}, v{BA+k} offset:{ASTART}")
    vq.wait("src")
    for k in range(3):
        e(f"v_mul_u32_u24 v{KEY+k}, s{SK+10}, v{SRCV+k}", f"v_lshrrev_b32 v{KEY+k}, 18, v{KEY+k}", f"v_sub_u32 v{KEY+k}, v{KEY+k}, v{BK+k}",
          f"v_and_b32 v{KEY+k}, 31, v{KEY+k}", f"v_lshl_or_b32 v{KEY+k}, v{NL+k}, 5, v{KEY+k}",
          f"v_lshlrev_b32 v{KEY+k}, 21, v{KEY+k}", f"v_lshl_or_b32 v{KEY+k}, v{SRCV+k}, 7, v{KEY+k}")
    e(f"v_lshlrev_b32 v{NL}, 5, v0", f"v_add_u32 v{NL+1}, {512*32}, v{NL}", f"v_add_u32 v{NL+2}, {1024*32}, v{NL}")
    e(f"s_mov_b32 s{sT2}, {ASKS}")
    vq.wait("sh", "lgkmcnt(0)")
    for k in range(3):
        e(f"v_add_u32 v{PS+k}, v{PS+k}, v{RK+k}")
        e(f"v_lshlrev_b32 v{BA+k}, 2, v{PS+k}", f"v_mad_u32_u24 v{PS+k}, v{PS+k}, 12, s{sT2}")
        if k == 2:
            e(f"s_mov_b64 exec, s[{sV+4}:{sV+5}]")
        e(f"ds_write_b32 v{BA+k}, v{NL+k} offset:{AINV}")
        e(f"ds_write2_b32 v{PS+k}, v{SHV+2*k}, v{SHV+2*k+1} offset0:0 offset1:1")
        e(f"ds_write_b32 v{PS+k}, v{KEY+k} offset:8")
    e("s_mov_b64 exec, -1")
    signal(1)
    aea(2)
    signal(3)
    e(f"s_lshl_b32 s{sT}, s3, 7", f"v_lshl_add_u32 v{T+3}, v{LANE}, 3, s{sT}")
    e(f"ds_read_b64 {vr(CT,2)}, v{T+3} offset:{ACNT}", f"ds_read_b64 {vr(ST,2)}, v{T+3} offset:{ASTART}")
    e(f"s_mul_i32 s{sT}, s2, {CS*12}", f"s_add_u32 s{sT}, s{sT}, {WS_SK}")
    srd(sA0, 14, 15, f"s{sT}", CS * 12)
    e(f"s_mul_i32 s{sT}, s2, {CS*32}", f"s_add_u32 s{sT}, s{sT}, {WS_EA}")
    srd(sA1, 14, 15, f"s{sT}", CH * 32)
    e(f"v_lshrrev_b32 v{T+3}, 1, v0", f"v_lshlrev_b32 v{T+3}, 2, v{T+3}")
    e(f"v_and_b32 v{T+4}, 1, v0", f"v_lshlrev_b32 v{T+4}, 4, v{T+4}", f"v_add_u32 v{T+4}, {EAST}, v{T+4}", f"v_add_u32 v{T+6}, {ASKS}, v{T+7}")
    e("s_waitcnt lgkmcnt(0)", "s_barrier")
    ts.stamp("scat")
    e(f"ds_read_b128 {vr(OUTV,4)}, v{T+6}", f"ds_read_b128 {vr(OUTV+4,4)}, v{T+6} offset:8192")
    for i in range(5):
        e(f"ds_read_b32 v{IV+i}, v{T+3} offset:{AINV + i*1024}")
    signal(0)
    if NS:
        e(f"v_and_b32 v{SG}, {8*NS-1}, v{LANE}", f"v_lshlrev_b32 v{SG}, 7, v{SG}", f"s_mov_b32 s{sROFF}, {WS_FL}")
        if P["GP"] == 0:
            e("s_cmp_lg_u32 s3, 7", "s_cbranch_scc1 L_nogp")
            e(gpoll)
            e.label("L_nogp")
    aea(3)
    if P["XPA"]:
        n = P["XPA"]
        srd(sX, SK, SK + 1, None, N * 1024)
        e(f"s_and_b32 s{sBASE}, s2, 7", f"s_mul_i32 s{sBASE}, s{sBASE}, {1252*1024}", f"s_and_b32 s{sT2}, s2, 0xf8",
          f"s_add_u32 s{sT2}, s{sT2}, s3", f"s_mul_i32 s{sT2}, s{sT2}, {n*128}", f"s_add_u32 s{sBASE}, s{sBASE}, s{sT2}")
        e(f"v_min_u32 v{SG+3}, {n-1}, v{LANE}", f"v_lshlrev_b32 v{SG+3}, 7, v{SG+3}")
        vq.op("w" if P["XPAW"] else "xpa", f"buffer_load_dword v{PFV}, v{SG+3}, {sr(sX)}, s{sBASE} offen")

    def skst():
        vq.op("skst", f"buffer_store_dwordx4 {vr(OUTV,4)}, v{T+7}, {sr(sA0)}, 0 offen {P['ASTPOL']}")
        if P["STH"] == 1 and not P["SKEARLY"]:
            e("s_waitcnt vmcnt(0)")
        vq.op("skst", f"buffer_store_dwordx4 {vr(OUTV+4,4)}, v{T+7}, {sr(sA0)}, s{sNV} offen {P['ASTPOL']}")

    def frag_r(F0, t0, t1, t2):
        e(f"v_lshrrev_b32 v{t0}, 5, v{LANE}", f"v_lshlrev_b32 v{t0}, 11, v{t0}", f"v_and_b32 v{t1}, 15, v{LANE}", f"v_lshl_add_u32 v{t0}, v{t1}, 4, v{t0}")
        for i in range(8):
            e(f"ds_read_b128 {vr(F0+4*i,4)}, v{t0} offset:{WR + 256*i}")
        e(f"v_lshrrev_b32 v{t0}, 4, v{LANE}", f"v_lshlrev_b32 v{t0}, 5, v{t0}", f"v_and_b32 v{t1}, 3, v{LANE}", f"v_lshl_add_u32 v{t0}, v{t1}, 1, v{t0}")
        for v in range(4):
            e(f"ds_read_u16 v{F0+32+v}, v{t0} offset:{WR + 4096 + 8*v}")
        e(f"v_bfe_i32 v{t2}, v{LANE}, 4, 1", f"v_and_b32 v{t2}, 0x02020202, v{t2}", f"v_add_u32 v{t2}, 0x05040100, v{t2}")
        e("s_waitcnt lgkmcnt(0)")
        for h in range(2):
            for t in range(2):
                for ip in range(4):
                    e(f"v_perm_b32 v{WRF+8*h+4*t+ip}, v{F0+4*(2*ip+1)+t+2*h}, v{F0+4*(2*ip)+t+2*h}, v{t2}")
        e(f"v_lshl_or_b32 v{CGF}, v{F0+33}, 16, v{F0+32}", f"v_lshl_or_b32 v{CGF+1}, v{F0+35}, 16, v{F0+34}")

    def frag_o(F0, F1, t0, t1, sM):
        e(f"v_and_b32 v{t1}, 7, v{LANE}", f"v_lshrrev_b32 v{t0}, 4, v{LANE}", f"v_lshlrev_b32 v{t0}, 13, v{t0}", f"v_lshl_add_u32 v{t0}, v{t1}, 4, v{t0}",
          f"v_and_b32 v{t1}, 8, v{LANE}", f"s_and_b32 s{sM}, s3, 3", f"s_lshl_b32 s{sM}, s{sM}, 8", f"s_lshr_b32 s{sM+1}, s3, 2", f"s_lshl_b32 s{sM+1}, s{sM+1}, 7",
          f"s_add_u32 s{sM}, s{sM}, s{sM+1}", f"s_add_u32 s{sM}, s{sM}, {WO}", f"v_add3_u32 v{t0}, v{t0}, v{t1}, s{sM}")
        for ip in range(4):
            e(f"ds_read2st64_b64 {vr(F0+4*ip,4)}, v{t0} offset0:{4*ip} offset1:{4*ip+2}")
        e(f"s_mov_b32 s{sM}, 0x05040100", f"s_mov_b32 s{sM+1}, 0x07060302")
        for ip in range(4):
            e(f"s_waitcnt lgkmcnt({3-ip})")
            for t in range(4):
                e(f"v_perm_b32 v{F1+4*t+ip}, v{F0+4*ip+2+t//2}, v{F0+4*ip+t//2}, s{sM+t%2}")

    def consts():
        e(f"s_and_b32 s{sB}, s2, 7", f"s_lshl_b32 s{sB}, s{sB}, 5", f"s_lshr_b32 s{sT}, s2, 3", f"s_add_u32 s{sB}, s{sB}, s{sT}")
        e(f"s_mul_i32 s{sNB}, s{sB}, 625", f"s_add_u32 s{sNCNT}, s{sNB}, 640", f"s_add_u32 s{sNB}, s{sNB}, 15",
          f"s_lshr_b32 s{sNB}, s{sNB}, 4", f"s_lshr_b32 s{sNCNT}, s{sNCNT}, 4", f"s_sub_u32 s{sNCNT}, s{sNCNT}, s{sNB}")
        e(f"s_mov_b32 s{sM0}, 0x0f0f0f0f", f"s_mov_b32 s{sM0+1}, 0x0f0f0f0f", f"s_mov_b32 s{sM1}, 0xf0f0f0f0", f"s_mov_b32 s{sM1+1}, 0xf0f0f0f0")
        for i in range(8):
            e(f"v_mov_b32 v{EA0+i}, 0")
        e(f"v_and_b32 v{T+3}, 4, v{LANE}", f"v_lshlrev_b32 v{T+3}, 2, v{T+3}", f"v_mov_b32 v{T+4}, 0xffff", f"v_lshlrev_b32 v{T+4}, v{T+3}, v{T+4}")
        e(f"v_bfe_i32 v{T+3}, v{LANE}, 3, 1", f"v_and_b32 v{MQ}, v{T+3}, v{T+4}", f"v_xor_b32 v{MP}, v{MQ}, v{T+4}")
        e(f"v_lshrrev_b32 v{EAC}, 5, v{LANE}", f"v_lshlrev_b32 v{EAC}, 4, v{EAC}", f"v_add_u32 v{EAC}, {EAST}, v{EAC}")
        e(f"v_and_b32 v{LAC}, 15, v{LANE}", f"v_lshlrev_b32 v{LAC}, 2, v{LAC}")
        e(f"v_bfe_u32 v{T+3}, v{LANE}, 3, 2", f"v_and_b32 v{T+4}, 3, v{LANE}", f"v_lshl_add_u32 v{T+3}, v{T+3}, 2, v{T+4}", f"v_lshlrev_b32 v{LBC}, 2, v{T+3}")
        e(f"v_bfe_i32 v{cODD}, v0, 0, 1", f"s_lshl_b32 s{sT}, s3, 10", f"v_and_b32 v{cMAPW}, 4, v{cODD}", f"v_add_u32 v{cMAPW}, s{sT}, v{cMAPW}")
        e(f"v_lshl_add_u32 v{cMAP1}, v{LANE}, 2, s{sT}", f"v_lshrrev_b32 v{cMAP2}, 1, v{LANE}", f"v_lshl_add_u32 v{cMAP2}, v{cMAP2}, 2, s{sT}")
        e(f"v_mul_u32_u24 v{cL12}, 12, v{LANE}", f"v_and_b32 v{cDEG}, 12, v{cMAP1}", f"v_and_b32 v{cBIN}, 124, v{cMAP1}")
        e(f"s_mul_i32 s{sT}, s3, {CAPW}", f"v_add_u32 v{cR21}, s{sT}, v{LANE}", f"v_lshlrev_b32 v{cSH}, 3, v{cR21}", f"v_add_u32 v{cSH}, {SHST}, v{cSH}", f"v_lshlrev_b32 v{cR21}, 21, v{cR21}")
        e(f"s_mul_i32 s{sT}, s3, 640", f"v_add_u32 v{cROW}, s{sT}, v{cBIN}", f"v_sub_u32 v{cTIE}, 63, v{LANE}")
        e(f"s_lshl_b32 s{sT}, s3, 5", f"v_lshl_add_u32 v{cNOD}, v{LANE}, 2, s{sT}")
        e(f"v_lshrrev_b32 v{cLST}, 3, v{LANE}", f"v_mul_u32_u24 v{cLST}, {GAP*4}, v{cLST}", f"v_add_u32 v{cLST}, {LIST}, v{cLST}")
        e(f"s_cmp_eq_u32 s{sNCNT}, 40")
        tabs = []
        for part in PARTS[P["BIAS"]]:
            t = [0] * 40
            for w, p in enumerate(part):
                for sl, r in enumerate(p):
                    t[r] = w * 8 + sl
            tabs.append([sum(t[5 * q + i] << (6 * i) for i in range(5)) for q in range(8)])
        e(f"v_mov_b32 v{RT}, 0")
        for q in range(8):
            e(f"s_mov_b32 s{sT}, {tabs[0][q]}", f"s_cselect_b32 s{sT}, {tabs[1][q]}, s{sT}")
            m = 31 << (5 * q)
            e(f"s_mov_b32 exec_lo, {m & 0xffffffff}", f"s_mov_b32 exec_hi, {m >> 32}", f"v_mov_b32 v{RT}, s{sT}")
        e("s_mov_b64 exec, -1")
        e(f"v_mul_u32_u24 v{T+3}, 52, v{LANE}", f"v_lshrrev_b32 v{T+3}, 8, v{T+3}", f"v_mad_i32_i24 v{T+3}, v{T+3}, -5, v{LANE}",
          f"v_mul_u32_u24 v{T+3}, 6, v{T+3}", f"v_lshrrev_b32 v{RT}, v{T+3}, v{RT}")
        e(f"v_and_b32 v{T+3}, 7, v{RT}", f"v_bfe_u32 v{RT}, v{RT}, 3, 3", f"v_lshlrev_b32 v{T+3}, 12, v{T+3}", f"v_lshl_or_b32 v{RT}, v{RT}, 7, v{T+3}")
        srd(sSK, 14, 15, WS_SK, NCH * CS * 12)

    def extra(pos):
        if P["CPOS"] == pos:
            consts()
        if P["ACCZ"] == pos:
            for i in range(48):
                e(f"v_mov_b32 v{ACC+i}, 0")

    e("s_waitcnt lgkmcnt(0)")
    if P["SKEARLY"]:
        skst()
    for i in range(5):
        e(f"v_add_u32 v{IV+i}, v{T+4}, v{IV+i}")
    for k in range(2):
        e(f"v_lshl_or_b32 v{TABV+2*k}, v{CT+k}, 11, v{ST+k}", f"v_or_b32 v{TABV+2*k}, s{sTAG2}, v{TABV+2*k}", f"v_mov_b32 v{TABV+2*k+1}, s{sTAG}")
    extra(0)
    e(f"s_waitcnt vmcnt({min(vq.n('w') + P['WGN'], vq.n('ea'))})")
    if NS:
        ts.stamp("land0")
        e("s_cmp_eq_u32 s3, 7", "s_cbranch_scc1 L_guard")
        e.label("L_guarded")
    e("s_barrier")
    ts.stamp("land")
    for i in range(5):
        e(f"ds_read_b128 {vr(OUTV+8+4*i,4)}, v{IV+i}")
    extra(1)
    if P["FRG"] & 1:
        frag_r(RW, T, T + 1, T + 2)
    ts.stamp("guard")
    if not P["SKEARLY"]:
        skst()
    for i in range(5):
        thr = f"vmcnt({P['STH']-1}) " if P["STH"] and i < P["STHN"] else ""
        e(f"s_mov_b32 s{sT}, {8192*i}", f"s_waitcnt {thr}lgkmcnt({4-i})")
        vq.op("st", f"buffer_store_dwordx4 {vr(OUTV+8+4*i,4)}, v{T+7}, {sr(sA1)}, s{sT} offen {P['ASTPOL']}")
    aea(4)
    ts.stamp("issued")

    extra(2)
    e(f"s_lshl_b32 s{sT}, s2, 3", f"s_add_u32 s{sT}, s{sT}, s3", f"s_lshl_b32 s{sT}, s{sT}, 8")
    srd(sX, SK, SK + 1, None, N * 1024)
    srd(sEA, 14, 15, WS_EA, NCH * CS * 32)
    if P["XPF"]:
        n = P["XPF"]
        e(f"s_and_b32 s{sBASE}, s2, 7", f"s_mul_i32 s{sBASE}, s{sBASE}, {1252*1024}", f"s_and_b32 s{sT2}, s2, 0xf8",
          f"s_add_u32 s{sT2}, s{sT2}, s3", f"s_mul_i32 s{sT2}, s{sT2}, {n*128}", f"s_add_u32 s{sBASE}, s{sBASE}, s{sT2}")
        if P["XPA"]:
            e(f"s_add_u32 s{sBASE}, s{sBASE}, {P['XPA']*128*256}")
        e(f"v_min_u32 v{T+6}, {n-1}, v{LANE}", f"v_lshlrev_b32 v{T+6}, 7, v{T+6}")
    e("s_waitcnt vmcnt(0)", "s_barrier")
    ts.stamp("drained")
    e("s_mov_b64 exec, 0xffff")
    e(f"buffer_store_dwordx4 {vr(TABV,4)}, v{X16}, {sr(sTAB)}, s{sT} offen sc1")
    e("s_mov_b64 exec, -1")
    if P["XPF"]:
        e(f"buffer_load_dword v{PFV}, v{T+6}, {sr(sX)}, s{sBASE} offen")
    e(f"s_lshl_b32 s{sT}, s{sNB}, 10", f"s_add_u32 s{sOUT}, s12, s{sT}", f"s_addc_u32 s{sOUT+1}, s13, 0",
      f"s_lshl_b32 s{sOUT+2}, s{sNCNT}, 10", f"s_mov_b32 s{sOUT+3}, 0x20000")
    if not P["FRG"] & 1:
        frag_r(RW, T, T + 1, T + 2)
    frag_o(128, 144, T, T + 1, SK + 8)
    e(f"s_lshl_b32 s{sT}, s3, 12", f"v_add_u32 v{T}, s{sT}, v{X16}")
    extra(3)
    e(f"v_lshrrev_b32 v{T+1}, 1, v0", f"v_lshlrev_b32 v{T+2}, 11, v{T+1}", f"s_lshl_b32 s{sNR}, s{sB}, 3")
    e(f"v_mul_u32_u24 v{RG0}, {CS}, v{T+1}", f"s_mov_b32 s{sROFF}, 0", f"s_mov_b32 s{sCNT}, {SPIN}", f"s_mov_b32 s{sT2}, 0xffc00000")
    e(f"s_mul_i32 s{sEM}, s3, {CAPW*32}", f"s_add_u32 s{sEM}, s{sEM}, {EAST}", f"s_movk_i32 s{sK4}, 4096")
    e("s_waitcnt vmcnt(0)", "s_barrier")
    ts.stamp("frag")
    PL = 206
    poll1 = f"buffer_load_dwordx2 {vr(PL,2)}, v{T+2}, {sr(sTAB)}, s{sNR} offen sc1"

    def tagcheck():
        e(f"v_xor_b32 v{T+3}, s{sTAG2}, v{PL}", f"v_xor_b32 v{T+4}, s{sTAG}, v{PL+1}", f"v_and_or_b32 v{T+3}, v{T+3}, s{sT2}, v{T+4}")
        e(f"v_cmpx_ne_u32 vcc, 0, v{T+3}")

    e(poll1)
    for t in range(4):
        e(f"ds_write_b128 v{T}, {vr(144+4*t,4)} offset:{WO + 1024*t}")
    e("s_waitcnt vmcnt(0)")
    tagcheck()
    e("s_cbranch_execnz L_poll")
    e.label("L_polled")
    e("s_mov_b64 exec, -1")
    ts.stamp("tab")
    G1, G2, SKR, RNK, CA = RW, RW + 4, RW + 12, TP, TP + 4
    MU = P["MU"]
    sVm = [sV, sV + 2, sV + 4, sA2]

    def bea1(i):
        e(f"s_add_u32 m0, s{sEM}, {4096*(i//4)}")
        vq.op("ea", f"buffer_load_dwordx4 v{G2+i}, {sr(sEA)}, {'0' if i < 4 else 's%d' % sK4} offen offset:{1024*(i%4)} {ldpol} lds")

    def bea(p):
        for i in range(6):
            if bstage[i] == p:
                bea1(i)

    def skld(i):
        e(f"v_mad_u32_u24 v{G1+i}, v{G1+i}, 12, v{cL12}")
        vq.op(f"sk{i}", f"buffer_load_dwordx3 {vr(SKR+4*i,3)}, v{G1+i}, {sr(sSK)}, 0 offen offset:{768*i} {ldpol}")

    cmps = [f"v_cmp_lt_i32 s[{SK+2*i}:{SK+2*i+1}], {2*i}, v{T+2}" for i in range(MU + 1)]
    e(f"v_bfe_u32 v{RLEN}, v{PL}, 11, 11", f"v_and_b32 v{RBASE}, v{RLEN}, v{cODD}", f"v_add_u32 v{T+2}, v{RLEN}, v{cODD}")
    fill = [f"v_and_b32 v{T+3}, 0x7ff, v{PL}"] + cmps + [f"v_add_u32 v{RG0}, v{RG0}, v{T+3}"]
    e(fill.pop(0))
    for mod in ("row_shr:1 row_mask:0xf", "row_shr:2 row_mask:0xf", "row_shr:4 row_mask:0xf", "row_shr:8 row_mask:0xf", "row_bcast:15 row_mask:0xa", "row_bcast:31 row_mask:0xc"):
        e(f"v_add_u32_dpp v{RBASE}, v{RBASE}, v{RBASE} {mod} bank_mask:0xf")
        e(*fill[:2]); fill = fill[2:]
    e(f"v_readlane_b32 s{sNW}, v{RBASE}, 63")
    e(f"v_mov_b32_dpp v{RBASE}, v{RBASE} quad_perm:[0,0,2,2] row_mask:0xf bank_mask:0xf")
    e(f"v_sub_u32 v{RG0}, v{RG0}, v{RBASE}")
    e(f"v_lshl_add_u32 v{T}, v{RBASE}, 2, v{cMAPW}")
    e(f"s_cmp_gt_u32 s{sNW}, {CAPW}", "s_cbranch_scc1 L_clip")
    e.label("L_mapw")
    for i in range(MU):
        e(f"s_mov_b64 exec, s[{SK+2*i}:{SK+2*i+1}]")
        e(f"ds_write_b32 v{T}, v{RG0} offset:{8*i}")
    e("s_mov_b64 exec, -1")
    e(f"s_cmp_lg_u64 s[{SK+2*MU}:{SK+2*MU+1}], 0", "s_cbranch_scc1 L_map2")
    for i in range(3):
        e(f"ds_read_b32 v{G1+i}, v{cMAP1} offset:{256*i}")
    for i in range(6):
        e(f"ds_read_b32 v{G2+i}, v{cMAP2} offset:{128*i}")
    e(f"s_cmp_gt_i32 s{sNW}, 192", "s_cbranch_scc1 L_r1")
    e.label("L_r1b")
    e("s_waitcnt lgkmcnt(6)")
    ts.stamp("map")
    for i in range(3):
        skld(i)
    e(f"v_mov_b32 v{T+3}, s{sNW}", "s_mov_b64 exec, 1", f"ds_max_i32 v{T+5}, v{T+3} offset:{TOT}", "s_mov_b64 exec, -1")
    e("s_waitcnt lgkmcnt(1)")
    for i in range(6):
        e(f"v_lshl_add_u32 v{G2+i}, v{G2+i}, 5, v{X16}")
    if P["SKBAR"]:
        e("s_barrier")
    ts.stamp("skiss")
    bea(0)
    for i in range(4):
        e(f"v_add_u32 v{T+3}, {64*i}, v{LANE}", f"v_cmp_gt_i32 s[{sVm[i]}:{sVm[i]+1}], s{sNW}, v{T+3}")
    e(f"s_mov_b32 s{sT2}, 0x1fff80", f"s_mul_i32 s{sOFF}, s3, 5", f"s_mov_b32 s{sVm[3]+1}, 0")

    def count(i):
        key = SKR + 4 * i + 2
        e(f"v_lshrrev_b32 v{CA+i}, 21, v{key}", f"v_lshlrev_b32 v{CA+i}, 2, v{CA+i}")
        e(f"v_lshrrev_b32 v{T+3}, 26, v{key}", f"v_lshl_or_b32 v{T+3}, v{T+3}, 4, v{cDEG}")
        e(f"s_mov_b64 exec, s[{sVm[i]}:{sVm[i]+1}]")
        e(f"ds_add_rtn_u32 v{RNK+i}, v{CA+i}, v{ONE} offset:{CNT2}")
        e(f"ds_add_u32 v{T+3}, v{ONE} offset:{DEG}")
        e("s_mov_b64 exec, -1")

    def entry(i):
        key = SKR + 4 * i + 2
        if i == 3:
            e("s_mov_b32 exec_hi, 0")
        e(f"ds_write_b64 v{cSH}, {vr(SKR+4*i,2)} offset:{512*i}")
        if i == 3:
            e("s_mov_b32 exec_hi, -1")
        e(f"v_and_or_b32 v{key}, v{key}, s{sT2}, v{cR21}")
        if i:
            e(f"v_add_u32 v{key}, {64*i << 21}, v{key}")

    for i in range(3):
        vq.wait(f"sk{i}")
        if i == 0:
            ts.stamp("sk")
        count(i)
    e(f"s_cmp_gt_i32 s{sNW}, 192", "s_cbranch_scc1 L_r2")
    e.label("L_r2b")
    for i in range(3):
        entry(i)
    ts.stamp("atom")
    bea(1)
    e("s_waitcnt lgkmcnt(3)", "s_barrier")
    ts.stamp("b1")
    CN, CAD = XR, XR + 8
    e(f"s_cmp_lg_u32 s{sROFF}, 0", "s_cbranch_scc1 L_rank2")
    e(f"ds_read_b128 {vr(CAD,4)}, v{X16} offset:{DEG}")
    for j in range(5):
        e(f"ds_read_b32 v{CN+j}, v{cROW} offset:{CNT2 + 128*j}")
    e(f"ds_read_b32 v{T+6}, v{T+5} offset:{TOT}")
    bea(5)
    for j in range(1, 5):
        e(f"s_add_u32 s{SK+j}, s{sOFF}, {j}")
    e("s_waitcnt lgkmcnt(6)")
    e(f"v_add_u32 v{T+1}, v{CAD}, v{CAD+1}", f"v_add3_u32 v{T+1}, v{T+1}, v{CAD+2}, v{CAD+3}")
    e(f"v_lshl_or_b32 v{T+1}, v{T+1}, 6, v{cTIE}")
    for j in range(5):
        e(f"v_readlane_b32 s{SK+j}, v{T+1}, s{SK+j if j else sOFF}")
    for j in range(5):
        e(f"v_cmp_lt_u32 s[{SK+6+2*j}:{SK+7+2*j}], s{SK+j}, v{T+1}")
    for j in range(5):
        e(f"s_bcnt1_i32_b64 s{SK+j}, s[{SK+6+2*j}:{SK+7+2*j}]")
    e("s_waitcnt lgkmcnt(0)")
    for j in range(5):
        e(f"v_readlane_b32 s{sASG[j]}, v{RT}, s{SK+j}")
    e(f"v_readfirstlane_b32 s{sN}, v{T+6}")
    e.label("L_ranked")
    e("s_mov_b32 exec_hi, 0")
    for j in range(5):
        e(f"s_and_b32 s{sT}, s{sASG[j]}, 0x380")
        e(f"v_add_u32 v{CAD+j}, s{sT}, v{cBIN}")
        e(f"ds_add_rtn_u32 v{CN+j}, v{CAD+j}, v{CN+j} offset:{WB}")
    for j in range(5):
        e(f"v_or_b32 v{CAD+j}, s{sASG[j]}, v{CAD+j}")
    for j in range(5):
        e(f"v_writelane_b32 v{T+3}, s{sASG[j]}, {j}")
    for j in range(5):
        e("s_waitcnt lgkmcnt(4)")
        e(f"v_lshl_or_b32 v{CN+j}, v{CN+j}, 16, v{CAD+j}")
        e(f"ds_write_b32 v{cROW}, v{CN+j} offset:{CNT2 + 128*j}")
    e(f"v_add_lshl_u32 v{T+4}, v{LANE}, s{sOFF}, 7")
    e(f"v_lshrrev_b32 v{T+1}, 10, v{T+3}", f"v_bfe_u32 v{T+3}, v{T+3}, 2, 8", f"v_or_b32 v{T+3}, v{T+3}, v{T+1}")
    e("s_mov_b32 exec_lo, 31")
    e(f"ds_write_b32 v{T+3}, v{T+4} offset:{NODEOF}")
    e("s_mov_b64 exec, -1")
    ts.stamp("rank")
    bea(2)
    e(f"s_lshl_b32 s{sT}, s3, 3", f"s_add_u32 s{sT2}, s{sT}, 7")
    e("s_waitcnt lgkmcnt(0)", "s_barrier")
    ts.stamp("b2")
    e(f"ds_read_b128 {vr(CN,4)}, v{X16} offset:{WB}")
    for i in range(3):
        e(f"ds_read_b32 v{CA+i}, v{CA+i} offset:{CNT2}")
    e(f"ds_read_b32 v{T+3}, v{cNOD} offset:{NODEOF}")
    bea(6)
    e("s_waitcnt lgkmcnt(4)")
    e(f"v_add_u32 v{T+1}, v{CN}, v{CN+1}", f"v_add3_u32 v{T+1}, v{T+1}, v{CN+2}, v{CN+3}", f"v_mov_b32 v{T+2}, v{T+1}")
    e("s_waitcnt lgkmcnt(1)")

    def place(i):
        key = SKR + 4 * i + 2
        return [f"v_bfe_u32 v{T+7}, v{CA+i}, 12, 3", f"v_or_b32 v{key}, v{T+7}, v{key}", f"v_and_b32 v{G1+i}, 0x3ff, v{CA+i}",
                f"v_lshrrev_b32 v{CA+i}, 16, v{CA+i}", f"v_add_u32 v{CA+i}, v{CA+i}, v{RNK+i}"]

    fill = place(0) + place(1) + place(2)
    e(fill.pop(0))
    for mod in ("row_shr:1 row_mask:0xf", "row_shr:2 row_mask:0xf", "row_shr:4 row_mask:0xf", "row_shr:8 row_mask:0xf", "row_bcast:15 row_mask:0xa", "row_bcast:31 row_mask:0xc"):
        e(f"v_add_u32_dpp v{T+2}, v{T+2}, v{T+2} {mod} bank_mask:0xf")
        e(*fill[:2]); fill = fill[2:]
    e(f"v_sub_u32 v{T+1}, v{T+2}, v{T+1}")
    e(f"v_lshl_add_u32 v{CAD}, v{T+1}, 2, v{cLST}")
    for k in range(3):
        e(f"v_lshl_add_u32 v{CAD+1+k}, v{CN+k}, 2, v{CAD+k}")
    e(f"ds_write_b128 v{X16}, {vr(CAD,4)} offset:{START}")
    for i in range(3):
        e(f"ds_read_b32 v{G1+i}, v{G1+i} offset:{START}")
    e(*fill)
    e(f"v_readlane_b32 s{sNV}, v{T+2}, s{sT2}", f"v_readlane_b32 s{sCNT}, v{T+1}, s{sT}", f"v_readlane_b32 s{sBASE}, v{CAD}, s{sT}")
    e(f"v_mov_b32 v{T+4}, {(0x3fff << 7) | 5}")
    e(f"s_sub_u32 s{sNV}, s{sNV}, s{sCNT}", f"s_lshl_b32 s{sT}, s{sNV}, 2")
    e(f"v_add_u32 v{LA}, s{sBASE}, v{LAC}", f"v_add_u32 v{LB}, s{sBASE}, v{LBC}", f"v_add_u32 v{T+1}, s{sT}, v{LA}")

    def scatter(i):
        e(f"v_lshl_add_u32 v{CA+i}, v{CA+i}, 2, v{G1+i}")
        e(f"s_mov_b64 exec, s[{sVm[i]}:{sVm[i]+1}]")
        e(f"ds_write_b32 v{CA+i}, v{SKR+4*i+2}")
        e("s_mov_b64 exec, -1")

    for i in range(3):
        e("s_waitcnt lgkmcnt(2)")
        scatter(i)
    e(f"ds_write_b32 v{T+1}, v{T+4}")
    e(f"s_cmp_gt_i32 s{sNW}, 192", "s_cbranch_scc1 L_r3")
    e.label("L_r3b")
    bea(3)
    for j in range(5):
        e(f"v_readlane_b32 s{sNODE+j}, v{T+3}, {j}")
    ts.stamp("list")
    eAG, eFR, eST, eWF, sEO = [208, 209, 210, 211, 212], 213, 214, 215, 99
    e(f"v_lshlrev_b32 v{T}, 2, v{LANE}")
    for s in range(5):
        e(f"s_mul_i32 s{sT}, s{sNODE+s}, 9", f"v_add_u32 v{eAG[s]}, s{sT}, v{T}")
    e(f"s_lshr_b32 s{sEO}, s3, 1", f"s_mul_i32 s{sEO}, s{sEO}, 3", f"s_min_u32 s{sEO}, s{sEO}, 8", f"s_mul_i32 s{sT2}, s{sEO}, 4608")
    e(f"v_and_b32 v{T}, 15, v{LANE}", f"v_lshrrev_b32 v{T+1}, 4, v{LANE}")
    e(f"v_mul_u32_u24 v{eFR}, 288, v{T}", f"v_lshl_add_u32 v{eFR}, v{T+1}, 4, v{eFR}", f"v_add_u32 v{eFR}, s{sT2}, v{eFR}")
    e(f"v_lshrrev_b32 v{T+1}, 3, v{LANE}", f"v_lshlrev_b32 v{T+1}, 9, v{T+1}", f"v_and_b32 v{T}, 7, v{LANE}", f"v_lshl_add_u32 v{eST}, v{T}, 4, v{T+1}")
    e(f"s_lshl_b32 s{sEO}, s{sEO}, 12", f"s_and_b32 s{sT2}, s3, 1", f"s_lshl_b32 s{sT}, s{sT2}, 7", f"s_add_u32 s{sEO}, s{sEO}, s{sT}",
      f"s_lshl_b32 s{sT2}, s{sT2}, 14", f"s_add_u32 s{sT2}, s{sT2}, {WO}", f"v_add_u32 v{eWF}, s{sT2}, v{X16}")
    NK = P["WFK"]
    WF = [216 + 4 * q for q in range(NK)] + [96 + 4 * q for q in range(16 - NK)]
    for q in range(NK):
        e(f"ds_read_b128 {vr(WF[q],4)}, v{eWF} offset:{1024*q}")
    assert D == 6
    sP0 = sT
    e(f"s_add_u32 s{sP0}, s{sNV}, 1", f"s_and_b32 s{sP0}, s{sP0}, -2", f"s_add_u32 s{sCNT}, s{sP0}, 15", f"s_lshr_b32 s{sCNT}, s{sCNT}, 4",
      f"s_sub_u32 s{sP0}, 0, s{sP0}", f"s_and_b32 s{sP0}, s{sP0}, 15", f"s_sub_u32 s{sCNT}, s{sCNT}, 1", f"s_cmp_gt_i32 s{sCNT}, 0", f"s_cselect_b32 s{sP0}, s{sP0}, 0")
    e(f"s_lshl_b32 s{sOFF}, s{sP0}, 2", f"v_subrev_u32 v{LA}, s{sOFF}, v{LA}", f"v_subrev_u32 v{LB}, s{sOFF}, v{LB}",
      f"s_and_b32 s{sOFF}, s{sOFF}, 32", f"v_add_u32 v{T+4}, s{sOFF}, v{LA}", f"s_and_b32 s{SK+8}, s{sP0}, 6")
    e(f"s_mov_b32 s{sT2}, 0x00fffc38", f"s_mov_b32 s{sNR}, 0xffffff00", f"s_mov_b32 s{sBASE}, {SHST}")
    if P["PRIO"] == 1:
        e("s_cmp_lt_u32 s3, 4", "s_cbranch_scc1 L_np", "s_setprio 1")
        e.label("L_np")
    e("s_waitcnt vmcnt(0) lgkmcnt(0)", "s_barrier")
    ts.stamp("b4")
    e(f"ds_read_b32 v{K}, v{T+4}", f"ds_read_b32 v{ENT+2}, v{LB}", f"ds_read_b32 v{KN}, v{LA} offset:{4*D}")
    e(f"s_cmp_eq_u32 s{sNV}, 0", "s_cbranch_scc1 L_swept")
    AL = P["ALIGN"]

    def al():
        if AL:
            e(".p2align 3")

    def ea_reads():
        e(f"v_lshrrev_b32 v{T}, 21, v{ENT+2}", f"v_lshl_add_u32 v{T+3}, v{T}, 3, s{sBASE}", f"v_lshl_add_u32 v{T}, v{T}, 5, v{EAC}")
        e(f"ds_read_b64 {vr(ENT,2)}, v{T+3}")
        e(f"s_mov_b64 exec, s[{sM0}:{sM0+1}]", f"ds_read_b128 {vr(EA0,4)}, v{T}")
        e(f"s_mov_b64 exec, s[{sM1}:{sM1+1}]", f"ds_read_b128 {vr(EA1,4)}, v{T}")
        e("s_mov_b64 exec, -1")

    def pq(j):
        p = PQ + 2 * (j % 2)
        if "P" in P["ABL"] and j > 1:
            return ["s_nop 0"] * 0
        if "Q" in P["ABL"] and j > 1:
            return [f"v_perm_b32 v{p}, v{AGN+j}, v{AGN+j}, v{MP}", f"v_perm_b32 v{p+1}, v{AGN+j}, v{AGN+j}, v{MQ}"]
        return [f"v_cvt_pk_bf16_f32 v{T+1+j%2}, v{AGN+j}, v{AGN+j}", f"v_and_b32 v{p}, v{MP}, v{T+1+j%2}", f"v_and_b32 v{p+1}, v{MQ}, v{T+1+j%2}"]

    def head(kind):
        e("s_waitcnt lgkmcnt(0)"); al()
        for q in range(4):
            e(f"v_mfma_f32_4x4x4_16b_bf16 {vr(AGN+4*q,4)}, {vr(ENT,2)}, {vr(CGF,2)}, 0 cbsz:4 abid:{2*q}")
        fill = [f"v_lshlrev_b32 v{K}, 3, v{KN}", f"v_and_b32 v{K}, s{sT2}, v{K}"]
        if kind != "last":
            fill += [f"v_add_u32 v{LA}, 64, v{LA}", f"v_add_u32 v{LB}, 64, v{LB}", f"ds_read_b32 v{KN}, v{LA} offset:{4*D}", f"ds_read_b32 v{ENT+2}, v{LB}"]
        groups = [fill[:4], fill[4:], pq(0) if kind != "first" else [], []]
        for q in range(4):
            h, t = q % 2, q // 2
            if "R" in P["ABL"] and t:
                e(*groups[q]); continue
            e(f"v_mfma_f32_32x32x16_bf16 {vr(RW+16*h,16)}, {vr(EA0+4*t,4)}, {vr(WRF+8*h+4*t,4)}, {vr(RW+16*h,16) if t else 0}")
            e(*groups[q])

    def pks(j):
        t = TP + 8 * (j % 2)
        for h in range(2):
            r = RW + 16 * h + j
            rp = r & ~1
            sel = "op_sel:[0,1,0] op_sel_hi:[1,1,1]" if r & 1 else "op_sel_hi:[1,0,1]"
            for q in range(2):
                a = ACC + 4 * h + 2 * q
                e(f"v_pk_fma_f32 {vr(a,2)}, {vr(t+4*h+2*q,2)}, {vr(rp,2)}, {vr(a,2)} {sel}")

    def mf(j, h):
        t, p, s = TP + 8 * (j % 2), PQ + 2 * (j % 2), XR + 4 * (j % R)
        if "4" in P["ABL"]:
            e(f"v_mfma_f32_4x4x4_16b_bf16 {vr(t+4*h,4)}, {vr(CGF,2)}, {vr(s+2*h,2)}, 0 cbsz:4 abid:{j}")
            return
        e(f"v_mfma_f32_16x16x16_bf16 {vr(t+4*h,4)}, {vr(p,2)}, {vr(s+2*h,2)}, 0")

    def rl(q, lane):
        e(f"v_readlane_b32 s{SK + q % 8}, v{K}, {lane}")

    def sand(q):
        e(f"s_and_b32 s{sOFF}, s{SK + q % 8}, s{sNR}")

    def xl(q):
        e(f"buffer_load_dwordx4 {vr(XR + 4 * (q % R),4)}, v{X16}, {sr(sX)}, s{sOFF} offen")

    def body(last):
        for j in range(0, 16, 2):
            ld = not last or j + D < 16
            if not last or j == 0:
                e.label(f"L_{'f' if last else 'j'}{j}")
            nx = pq(j + 1)
            e(f"s_waitcnt vmcnt({D-1 if ld else 15-j})"); al()
            mf(j, 0)
            if ld:
                rl(j + D, j)
            e(*nx[:1]); mf(j, 1); e(*nx[1:])
            if ld and P["SCH"] == 2:
                sand(j + D); e(f"s_waitcnt vmcnt({D-2})"); xl(j + D)
            elif ld:
                sand(j + D); xl(j + D); e(f"s_waitcnt vmcnt({D-1})")
            else:
                e(f"s_waitcnt vmcnt({14-j})"); al()
            nx = pq(j + 2) if j < 14 else []
            mf(j + 1, 0)
            if ld:
                rl(j + 1 + D, j + 1)
            e(*nx[:1]); mf(j + 1, 1); e(*nx[1:])
            if j == 2 and not last:
                e("s_waitcnt lgkmcnt(0)")
                ea_reads(); al()
            if ld:
                sand(j + 1 + D)
            e(f"s_set_gpr_idx_on s{SK + j % 8}, gpr_idx(SRC2,DST)")
            xl(j + 1 + D) if ld else al()
            pks(j)
            e(f"s_set_gpr_idx_idx s{SK + (j + 1) % 8}")
            if j == 14 and not last:
                e(f"s_sub_u32 s{sCNT}, s{sCNT}, 1")
            al()
            pks(j + 1)
            e("s_set_gpr_idx_off")

    e("s_waitcnt lgkmcnt(1)")
    e(f"v_lshlrev_b32 v{K}, 3, v{K}", f"v_and_b32 v{K}, s{sT2}, v{K}")
    if P["EAF"]:
        ea_reads()
    for q in (2, 4, 6):
        e(f"s_cmp_eq_u32 s{SK+8}, {q}", f"s_cbranch_scc1 L_p{q}")
    for q in range(0, 12, 2):
        e.label(f"L_p{q}")
        rl(q, q); rl(q + 1, q + 1)
        sand(q); xl(q); sand(q + 1); xl(q + 1)
        if 4 <= q < 10:
            e(f"s_cmp_eq_u32 s{SK+8}, {q-4}", "s_cbranch_scc1 L_pd")
    e.label("L_pd")
    if not P["EAF"]:
        ea_reads()
    ts.stamp("b5")
    head("first")
    e(f"s_set_gpr_idx_on s{sP0}, gpr_idx(SRC0,SRC1)")
    e.idx_range, keep = {("v", i) for i in range(AGN, AGN + 16)}, e.idx_range
    e(pq(0)[0])
    e.idx_range = keep
    e("s_set_gpr_idx_off")
    e(*pq(0)[1:])
    e("s_waitcnt lgkmcnt(0)")
    ea_reads()
    e(f"s_cmp_eq_u32 s{sCNT}, 0", "s_cbranch_scc1 L_f0")
    for j in range(2, 16, 2):
        e(f"s_cmp_eq_u32 s{sP0}, {j}", f"s_cbranch_scc1 L_j{j}")
    e("s_branch L_j0")
    e(".p2align 3")
    e.label("L_loop")
    head("mid")
    body(False)
    e(f"s_cmp_lg_u32 s{sCNT}, 0", "s_cbranch_scc1 L_loop")
    head("last")
    body(True)
    e.label("L_swept")
    ts.stamp("swept")
    e(f"s_add_u32 s{sROFF}, s{sROFF}, {CAPW}", f"s_cmp_lt_u32 s{sROFF}, s{sN}", "s_cbranch_scc1 L_again")
    AF, DD, OB, OT = ACC, 160, 64, 80
    if P["EPRIO"] >= 0:
        e(f"s_setprio {P['EPRIO']}")
    for s in range(5):
        for w in range(4):
            e(f"v_cvt_pk_bf16_f32 v{RW+4*s+w}, v{ACC+8*s+w}, v{ACC+8*s+4+w}")
        for w in (0, 2):
            e(f"ds_write2_b32 v{eAG[s]}, v{RW+4*s+w}, v{RW+4*s+w+1} offset0:{72*w} offset1:{72*w+72}")
    NPRE = P["WFPRE"]
    for q in range(NK, NPRE):
        e(f"ds_read_b128 {vr(WF[q],4)}, v{eWF} offset:{1024*q}")
    e(f"s_waitcnt lgkmcnt({NPRE - NK})", "s_barrier")
    ts.stamp("agb")
    lq = [f"w{q}" for q in range(NPRE)]

    def lop(tag, text):
        e(text); lq.append(tag)

    def lwait(*tags):
        n = len(lq) - 1 - max(lq.index(t) for t in tags)
        e(f"s_waitcnt lgkmcnt({min(n, 15)})")

    def afrag(k, ss=range(4)):
        for s in ss:
            lop(f"a{k}{s}", f"ds_read_b128 {vr(AF+16*k+4*s,4)}, v{eFR} offset:{AGL + 4608*k + 64*s}")

    def post(k, pol=P['OUTPOL']):
        d, o = DD + 16 * (k % 2), OB + 8 * (k % 2)
        x = []
        for r in range(2):
            for c in range(2):
                x.append(f"v_cvt_pk_bf16_f32 v{o+4*r+c}, v{d+8*c+r}, v{d+8*c+4+r}")
                x.append(f"v_cvt_pk_bf16_f32 v{OT+2*r+c}, v{d+8*c+r}, v{d+8*c+4+r}")
                x.append(f"v_cvt_pk_bf16_f32 v{o+4*r+2+c}, v{d+8*c+r+2}, v{d+8*c+4+r+2}")
            for c in range(2):
                x.append(f"v_mov_b32_dpp v{o+4*r+c}, v{o+4*r+2+c} row_ror:8 row_mask:0xf bank_mask:0xc")
            for c in range(2):
                x.append(f"v_mov_b32_dpp v{o+4*r+2+c}, v{OT+2*r+c} row_ror:8 row_mask:0xf bank_mask:0x3")
            x.append(f"buffer_store_dwordx4 {vr(o+4*r,4)}, v{eST}, {sr(sOUT)}, s{sEO} offen offset:{256*r} {pol}")
        x.append(f"s_add_u32 s{sEO}, s{sEO}, 4096")
        return x

    def tile(k, pend):
        d = DD + 16 * (k % 2)
        for s in range(4):
            if k == 0:
                lwait(f"a0{s}", f"w{4*s+3}")
            elif s == 0:
                lwait(f"a{k}3")
            for t in range(4):
                c = "0" if s == 0 else vr(d + 4 * t, 4)
                e(f"v_mfma_f32_16x16x32_bf16 {vr(d+4*t,4)}, {vr(AF+16*k+4*s,4)}, {vr(WF[4*s+t],4)}, {c}")
                if 4 * s + t >= 4:
                    e(*pend[:2]); pend = pend[2:]
            if k == 0 and s == 0:
                afrag(1)
            if k == 0 and s == 1:
                afrag(2)
        e(*pend)

    for s in range(4):
        afrag(0, [s])
        for q in range(max(NPRE, 4 * s), 4 * s + 4):
            lop(f"w{q}", f"ds_read_b128 {vr(WF[q],4)}, v{eWF} offset:{1024*q}")
    tile(0, [])
    tile(1, post(0))
    e("s_cmp_ge_u32 s3, 4", "s_cbranch_scc1 L_two")
    tile(2, post(1))
    e(*post(2, P['LASTPOL']))
    e.label("L_stored")
    ts.stamp("stored")
    e("s_or_b32 s4, s2, s3", "s_cbranch_scc1 L_notag")
    e(f"v_mov_b32 v{T}, s{sTAG}", f"v_lshlrev_b32 v{T+2}, 2, v{LANE}", f"s_mov_b32 s{sT}, {WS_W}")
    e(f"buffer_store_dword v{T}, v{T+2}, {sr(sTAB)}, s{sT} offen sc1")
    e.label("L_notag")
    if P["DIAGW"] and P["DIAGAT"] == "fin":
        e("s_waitcnt vmcnt(0)")
        ts.stamp("fin")
    if P["DIAGL"] == 1:
        e(f"s_add_u32 s8, s14, {WS_TS}", "s_addc_u32 s9, s15, 0", "s_load_dword s6, s[8:9], 0", "s_waitcnt lgkmcnt(0)")
        e.label("L_diag")
        e("s_memrealtime s[4:5]", "s_waitcnt lgkmcnt(0)", "s_sub_u32 s4, s4, s6", "s_cmp_lt_u32 s4, 4000", "s_cbranch_scc1 L_diag")
    if P["DIAGL"] == 2:
        e("s_or_b32 s4, s2, s3", "s_cbranch_scc1 L_done")
        e(f"v_mov_b32 v{T}, s{sTSP}", f"v_mov_b32 v{T+1}, {WS_TS}", f"global_store_dword v{T+1}, v{T}, s[14:15]")
    if P["DIAGW"]:
        e(f"s_add_u32 s6, s{sTSP+1}, {P['DIAGW']}", "s_min_u32 s6, s6, 30000")
        e.label("L_diag")
        e("s_memrealtime s[4:5]", "s_waitcnt lgkmcnt(0)", f"s_sub_u32 s4, s4, s{sTSP}", "s_cmp_lt_u32 s4, s6", "s_cbranch_scc1 L_diag")
    if P["DIAGC"]:
        e("s_memtime s[6:7]", "s_waitcnt lgkmcnt(0)")
        e.label("L_diag")
        e("s_memtime s[4:5]", "s_waitcnt lgkmcnt(0)", "s_sub_u32 s4, s4, s6", f"s_cmp_lt_u32 s4, {P['DIAGC']}", "s_cbranch_scc1 L_diag")
    if P["TS"]:
        e("s_waitcnt vmcnt(0)")
        ts.stamp("end")
        e(f"s_lshl_b32 s{sT}, s2, 3", f"s_add_u32 s{sT}, s{sT}, s3", f"s_lshl_b32 s{sT}, s{sT}, 8", f"s_add_u32 s{sT}, s{sT}, {WS_TS}")
        e(f"v_lshl_add_u32 v{T}, v{LANE}, 2, s{sT}", f"global_store_dword v{T}, v{TSV}, s[14:15]")
        if P["DBG"]:
            e(f"s_cmp_lg_u32 s2, {P['DBG']}", "s_cbranch_scc1 L_done", "s_cmp_lg_u32 s3, 0", "s_cbranch_scc1 L_done")
            e("s_load_dwordx2 s[4:5], s[0:1], 72", f"v_readlane_b32 s{sT}, v{TSV}, 0", f"v_lshlrev_b32 v{T}, 2, v{LANE}")
            e(f"v_subrev_u32 v{TSV}, s{sT}, v{TSV}", "s_waitcnt lgkmcnt(0)", f"global_store_dword v{T}, v{TSV}, s[4:5]")
    e.label("L_done")
    e("s_endpgm")
    e.label("L_again")
    e("s_waitcnt vmcnt(0) lgkmcnt(0)", "s_barrier")
    init_round(False)
    e(f"v_add_u32 v{RLEN}, v{RLEN}, v{RBASE}", f"v_subrev_u32 v{RLEN}, {CAPW}, v{RLEN}", f"v_max_i32 v{RLEN}, 0, v{RLEN}")
    e(f"v_subrev_u32 v{RBASE}, {CAPW}, v{RBASE}", f"v_max_i32 v{RBASE}, 0, v{RBASE}", f"v_sub_u32 v{RLEN}, v{RLEN}, v{RBASE}")
    e(f"v_add_u32 v{RG0}, {CAPW}, v{RG0}", f"s_sub_i32 s{sNW}, s{sNW}, {CAPW}", f"v_lshl_add_u32 v{T}, v{RBASE}, 2, v{cMAPW}")
    e("s_waitcnt lgkmcnt(0)", "s_barrier")
    e.label("L_clip")
    e(f"v_add_u32 v{T+2}, v{RBASE}, v{RLEN}", f"v_min_i32 v{T+2}, {CAPW}, v{T+2}", f"v_sub_u32 v{T+2}, v{T+2}, v{RBASE}", f"v_add_u32 v{T+2}, v{T+2}, v{cODD}")
    e.label("L_masks")
    e(*cmps)
    e("s_nop 0", "s_branch L_mapw")
    e.label("L_map2")
    e(f"v_add_u32 v{T}, {8*MU}, v{T}", f"v_subrev_u32 v{T+2}, {2*MU}, v{T+2}")
    e("s_branch L_masks")
    e.label("L_r1")
    e(f"ds_read_b32 v{G1+3}, v{cMAP1} offset:768", f"ds_read_b32 v{G2+6}, v{cMAP2} offset:768")
    e("s_waitcnt lgkmcnt(0)")
    skld(3)
    for i in (6,):
        e(f"v_lshl_add_u32 v{G2+i}, v{G2+i}, 5, v{X16}")
        bea1(i)
    e("s_branch L_r1b")
    e.label("L_r2")
    count(3)
    entry(3)
    e("s_branch L_r2b")
    e.label("L_r3")
    e(f"ds_read_b32 v{CA+3}, v{CA+3} offset:{CNT2}", "s_waitcnt lgkmcnt(0)")
    e(*place(3))
    e(f"ds_read_b32 v{G1+3}, v{G1+3} offset:{START}", "s_waitcnt lgkmcnt(0)")
    scatter(3)
    e("s_branch L_r3b")
    if NS:
        e.label("L_guard")
        e(f"s_movk_i32 s{sNW}, 64")
        if P["GP"] == 0:
            e(f"v_cmp_ne_u32 vcc, s{sTAG}, v{SG+1}", "s_cbranch_vccz L_guarded")
        e.label("L_guard2")
        e(gpoll, f"s_sub_u32 s{sNW}, s{sNW}, 1", "s_cbranch_scc1 L_guarded", "s_waitcnt vmcnt(0)")
        e(f"v_cmp_ne_u32 vcc, s{sTAG}, v{SG+1}", "s_cbranch_vccnz L_guard2", "s_branch L_guarded")
    e.label("L_two", pad=8)
    e(*post(1, P['LASTPOL']))
    e("s_branch L_stored")
    e.label("L_poll")
    e(poll1, f"s_sub_u32 s{sCNT}, s{sCNT}, 1", "s_cbranch_scc1 L_done", "s_waitcnt vmcnt(0)")
    tagcheck()
    e("s_cbranch_execnz L_poll", "s_branch L_polled")
    e.label("L_rank2")
    for j in range(5):
        e(f"ds_read_b32 v{CN+j}, v{cROW} offset:{CNT2 + 128*j}")
    bea(5)
    e("s_waitcnt lgkmcnt(0)")
    e.label("L_end")
    e("s_branch L_ranked")
    return e.text(), LDS, 256, 102


HEADER = """; Kernarg layout for this problem (88 bytes, ptrs only, base s[0:1]):
"""


def generate(**kw):
    P = dict(DEF)
    P.update(kw)
    k, lds, v, s = gen(P)
    n = NAME + "_kernel"
    out = HEADER
    tiny = ""
    if P["DIAGL"]:
        t = "; @launch kernel=tiny_kernel grid=(1,1,1) block=(64,1,1) lds=0\n"
        m = f"; @launch kernel={n} grid=(256,1,1) block=(512,1,1) lds={lds}\n"
        out += t + m if P["DIAGL"] == 1 else m + t
        tiny = ".globl tiny_kernel\n.p2align 8\n.type tiny_kernel,@function\ntiny_kernel:\ns_memrealtime s[4:5]\ns_load_dwordx2 s[14:15], s[0:1], 80\ns_waitcnt lgkmcnt(0)\n"
        if P["DIAGL"] == 1:
            tiny += f"v_mov_b32 v1, s4\nv_mov_b32 v2, {WS_TS}\nglobal_store_dword v2, v1, s[14:15]\ns_endpgm\n"
        else:
            tiny += f"s_add_u32 s8, s14, {WS_TS}\ns_addc_u32 s9, s15, 0\ns_load_dword s6, s[8:9], 0\ns_waitcnt lgkmcnt(0)\nL_td:\ns_memrealtime s[4:5]\ns_waitcnt lgkmcnt(0)\ns_sub_u32 s4, s4, s6\ns_cmp_lt_u32 s4, 4000\ns_cbranch_scc1 L_td\ns_endpgm\n"
    else:
        out += f"; @launch grid=(256,1,1) block=(512,1,1) lds={lds}\n"
    out += '.amdgcn_target "amdgcn-amd-amdhsa--gfx950"\n.text\n' + tiny
    out += f".globl {n}\n.p2align 8\n.type {n},@function\n{n}:\n{k}"
    out += '.section .rodata,"a"\n'
    out += (f".p2align 6\n.amdhsa_kernel {n}\n  .amdhsa_next_free_vgpr {v}\n  .amdhsa_next_free_sgpr {s}\n"
            f"  .amdhsa_accum_offset {(v+3)//4*4}\n  .amdhsa_group_segment_fixed_size 0\n  .amdhsa_kernarg_size 88\n"
            f"  .amdhsa_user_sgpr_count 2\n  .amdhsa_user_sgpr_kernarg_segment_ptr 1\n  .amdhsa_system_sgpr_workgroup_id_x 1\n"
            f"  .amdhsa_float_denorm_mode_32 3\n.end_amdhsa_kernel\n")
    if tiny:
        out += (".p2align 6\n.amdhsa_kernel tiny_kernel\n  .amdhsa_next_free_vgpr 8\n  .amdhsa_next_free_sgpr 32\n  .amdhsa_accum_offset 8\n"
                "  .amdhsa_group_segment_fixed_size 0\n  .amdhsa_kernarg_size 88\n  .amdhsa_user_sgpr_count 2\n  .amdhsa_user_sgpr_kernarg_segment_ptr 1\n"
                "  .amdhsa_system_sgpr_workgroup_id_x 1\n.end_amdhsa_kernel\n")
    return out


if __name__ == "__main__":
    kw = {}
    for a in sys.argv[1:]:
        k, v = a.split("=", 1)
        kw[k] = int(v) if v.lstrip("-").isdigit() else v
    sys.stdout.write(generate(**kw))
```

```python
import sys, os
sys.path.insert(0, os.path.dirname(os.path.abspath(__file__)))
from emit import Emitter

NAME = "gather_scatter__tensor_product_equiv_mace__graph"
N, E = 10000, 320000
CH, NCH, CS = 1250, 256, 1280
WS_TAB, WS_W, WS_FL, WS_SK, WS_EA, WS_TS = 0, 0x80000, 0x90000, 0x100000, 0x500000, 0x2000000
CAPW, GAP = 224, 16
CAP = 8 * CAPW
SPIN = 200000

DEF = dict(ABL='', WFPRE=16, WFK=6, LASTPOL='sc1', EPRIO=0, XPA=0, XPAW=0, BIAS=30, NS=0, GP=0, SP=1, EAF=1, EPI=2, SCH=2, XDUM=0, NOVM=1, PWAIT=2, ALIGN=1, PRIO=1, PSTEP=16, DIAGL=0, DIAGW=0, DIAGK=0, DIAGAT='tab', DIAGC=0, D=6, TS=0, DBG=0, APOL="nt", AEA="00222", BEA="011222", SKBAR=1, ABAR=2, SKEARLY=0, XPF=18, CPF=2, MU=7, OUTPOL="sc1", LDPOL="sc1", WST=3, WOST=3, ACCZ=2, CPOS=2, FRG=0, WGN=0, STH=0, STHN=5, ASTPOL='sc1')

PART39 = [[3, 11, 21, 31, 36], [5, 8, 20, 27, 38], [0, 6, 7, 13, 39], [9, 14, 18, 25, 34], [10, 16, 19, 24, 32], [4, 12, 26, 29, 33], [1, 17, 23, 28, 37], [2, 15, 22, 30, 35]]
PART40 = [[1, 10, 15, 30, 39], [2, 9, 21, 28, 37], [4, 14, 22, 27, 31], [6, 12, 18, 24, 35], [3, 8, 16, 29, 38], [5, 13, 17, 26, 34], [0, 20, 23, 32, 36], [7, 11, 19, 25, 33]]
PARTS = {0: (PART39, PART40)}
PARTS[12] = ([[12, 16, 24, 26, 30], [8, 14, 15, 31, 36], [2, 10, 23, 34, 37], [5, 17, 18, 22, 38], [0, 1, 7, 19, 39], [3, 11, 20, 29, 35], [6, 9, 25, 27, 32], [4, 13, 21, 28, 33]],
    [[9, 12, 19, 28, 32], [3, 10, 22, 29, 37], [7, 8, 23, 26, 36], [0, 18, 20, 34, 38], [5, 6, 14, 21, 39], [4, 11, 16, 24, 35], [1, 15, 25, 27, 31], [2, 13, 17, 30, 33]])
PARTS[20] = ([[13, 17, 24, 26, 31], [4, 16, 25, 29, 36], [5, 19, 23, 28, 35], [1, 6, 8, 10, 39], [7, 9, 20, 27, 32], [3, 12, 14, 33, 34], [2, 15, 18, 22, 37], [0, 11, 21, 30, 38]],
    [[11, 12, 17, 20, 38], [3, 16, 26, 28, 34], [8, 10, 19, 29, 36], [7, 14, 25, 27, 31], [6, 13, 15, 24, 30], [0, 9, 22, 23, 39], [2, 4, 21, 32, 35], [1, 5, 18, 33, 37]])
PARTS[30] = ([[12, 16, 25, 29, 32], [0, 5, 9, 20, 39], [1, 18, 27, 34, 37], [7, 19, 22, 30, 35], [2, 6, 24, 26, 36], [4, 11, 13, 31, 33], [10, 15, 17, 21, 28], [3, 8, 14, 23, 38]],
    [[6, 9, 26, 28, 37], [1, 11, 24, 35, 38], [5, 17, 23, 31, 33], [8, 12, 21, 29, 36], [2, 4, 15, 22, 39], [7, 10, 14, 18, 34], [0, 16, 20, 30, 32], [3, 13, 19, 25, 27]])
PARTS[40] = ([[7, 13, 28, 29, 37], [10, 17, 22, 30, 36], [1, 4, 6, 23, 39], [9, 19, 26, 31, 33], [5, 12, 15, 18, 35], [2, 11, 16, 27, 34], [0, 8, 24, 25, 38], [3, 14, 20, 21, 32]],
    [[8, 17, 25, 31, 32], [3, 19, 22, 28, 38], [6, 15, 18, 33, 37], [2, 14, 24, 29, 39], [0, 12, 21, 27, 34], [1, 9, 13, 26, 36], [5, 7, 10, 23, 35], [4, 11, 16, 20, 30]])
PARTS[50] = ([[2, 19, 28, 35, 37], [0, 6, 11, 24, 39], [15, 17, 27, 29, 34], [1, 20, 30, 32, 38], [4, 7, 18, 23, 33], [9, 10, 12, 21, 31], [5, 13, 16, 25, 26], [3, 8, 14, 22, 36]],
    [[7, 15, 27, 30, 36], [8, 18, 19, 28, 38], [4, 14, 31, 33, 35], [6, 13, 20, 29, 39], [2, 3, 22, 23, 34], [0, 11, 12, 26, 37], [1, 9, 17, 24, 32], [5, 10, 16, 21, 25]])


def vr(a, n):
    return f"v[{a}:{a+n-1}]" if n > 1 else f"v{a}"


def sr(a, n=4):
    return f"s[{a}:{a+n-1}]"


def scan_dpp(e, v, full):
    for k in (1, 2, 4, 8):
        e(f"v_add_u32_dpp v{v}, v{v}, v{v} row_shr:{k} row_mask:0xf bank_mask:0xf")
    e(f"v_add_u32_dpp v{v}, v{v}, v{v} row_bcast:15 row_mask:0xa bank_mask:0xf")
    if full:
        e(f"v_add_u32_dpp v{v}, v{v}, v{v} row_bcast:31 row_mask:0xc bank_mask:0xf")


class TS:
    last = None

    def __init__(self, e, on, pair, vreg):
        self.e, self.on, self.pair, self.v, self.names = e, on, pair, vreg, []
        TS.last = self

    diag = None

    def stamp(self, name):
        if self.diag and self.diag[0] == name:
            self.e("s_memrealtime s[4:5]", "s_waitcnt lgkmcnt(0)", f"s_sub_u32 s4, s4, s{self.pair}", f"s_mul_i32 s{self.pair+1}, s4, {self.diag[1]}")
        if self.on and (self.on == 1 or name in str(self.on).split(",") or name in ("start", "end")):
            e, p = self.e, self.pair
            e(f"s_memrealtime s[{p}:{p+1}]", "s_waitcnt lgkmcnt(0)", f"v_writelane_b32 v{self.v}, s{p}, {len(self.names)}")
            self.names.append(name)


class VQ:
    def __init__(self, e):
        self.e, self.q = e, []

    def op(self, tag, text):
        self.e(text)
        self.q.append(tag)

    def n(self, tag):
        idx = max(i for i, t in enumerate(self.q) if t == tag)
        return len(self.q) - 1 - idx

    def wait(self, tag, extra=""):
        self.e(f"s_waitcnt vmcnt({self.n(tag)}) {extra}".strip())


def gen(P):
    e = Emitter()
    vq = VQ(e)
    D = P["D"]
    R = 8
    MAP, CNT2, WB, DEG, TOT, NODEOF, START, WR, WO = 0, 8192, 13312, 14336, 15360, 15616, 16384, 17408, 46080
    LIST = WO + 32768
    SHST = LIST + (CAP + 8 * GAP + 128) * 4
    EAST = SHST + CAP * 8
    assert SHST + CAP * 8 <= EAST
    ZERO = EAST + CAP * 32
    LDS = ZERO + 64
    AGL = 0
    ACNT, ASTART, AINV, ASKS = 23552, 24576, 25600, 30720
    assert ASKS + CS * 12 <= WO and LDS <= 163840
    LANE, X16, RLEN, RBASE, RG0, ONE, PFV = 1, 2, 3, 4, 5, 6, 7
    T = 8
    ACC, RW, XR, TP, AGN, PQ, EA0, EA1, WRF, CGF, ENT = 16, 64, 96, 128, 144, 160, 164, 168, 172, 188, 192
    MP, MQ = CGF + 2, CGF + 3
    SIX, ZAD = EA1, EA1 + 1
    K, KN, LA, LB, EAC, LAC, LBC, RT, TSV = 196, 197, 198, 199, 200, 201, 202, 203, 204
    cODD, cMAPW, cMAP1, cMAP2, cL12, cDEG, cSH, cR21, cROW, cTIE, cBIN, cNOD, cLST = range(240, 253)
    e.idx_range = {("v", i) for i in range(ACC, ACC + 48)}
    sX, sTAB, sSK, sEA, sA0, sA1, sOUT = 16, 20, 24, 28, 32, 36, 40
    sB, sNB, sNCNT, sN, sROFF, sNR, sNV, sBASE, sEM, sCNT, sT, sT2 = 44, 45, 46, 47, 48, 49, 50, 51, 52, 53, 54, 55
    sNODE = 56
    sOFF = 61
    sTAG, sTAG2 = 62, 63
    SK = 64
    sV = 80
    sM0, sM1 = 86, 88
    sASG = [90, 91, 92, 93, 94]
    sNW, sK4 = 95, 98
    sA2, sTSP = 96, 100
    ts = TS(e, P["TS"], sTSP, TSV)
    if P["DIAGW"]:
        ts.diag = (P["DIAGAT"], P["DIAGK"])
    apol, ldpol = P["APOL"], P["LDPOL"]
    astage = [int(c) for c in str(P["AEA"]).zfill(5)]
    bstage = [int(c) for c in str(P["BEA"]).zfill(6)]

    def srd(s, lo, hi, off, size):
        if off is None:
            e(f"s_mov_b32 s{s}, s{lo}", f"s_mov_b32 s{s+1}, s{hi}")
        else:
            e(f"s_add_u32 s{s}, s{lo}, {off}", f"s_addc_u32 s{s+1}, s{hi}, 0")
        e(f"s_mov_b32 s{s+2}, {size}", f"s_mov_b32 s{s+3}, 0x20000")

    def init_round(first):
        e(f"v_lshlrev_b32 v{T+3}, 2, v0", f"v_mov_b32 v{T+4}, 0x00700000", f"v_mov_b32 v{T+5}, 0")
        for i in range(4):
            e(f"ds_write_b32 v{T+3}, v{T+4} offset:{MAP + i*2048}")
        for i in range(4 if first else 3):
            e(f"ds_write_b32 v{T+3}, v{T+5} offset:{CNT2 + i*2048}")

    DSTV, SRCV, SHV, BK, BA, RK, NL, KEY, CT, ST, PS = 64, 68, 72, 80, 84, 88, 92, 96, 100, 104, 108
    TABV = 112
    OUTV = 128
    IV = 156
    CGR = 120
    if P["TS"]:
        e("s_memrealtime s[92:93]")
    e("s_cmp_ge_u32 s2, 256", "s_cbranch_scc1 L_done")
    e("s_load_dwordx4 s[4:7], s[0:1], 8")
    e("s_load_dwordx4 s[8:11], s[0:1], 24")
    e("s_load_dwordx2 s[14:15], s[0:1], 80")
    e(f"s_load_dwordx2 s[{SK}:{SK+1}], s[0:1], 0")
    e(f"s_load_dwordx2 s[{SK+2}:{SK+3}], s[0:1], 40")
    e(f"s_load_dwordx4 s[{SK+4}:{SK+7}], s[0:1], 48")
    e("s_load_dwordx2 s[12:13], s[0:1], 64")

    def cpf():
        e(f"s_getpc_b64 s[{sV}:{sV+1}]")
        e.label("L_pc")
        e(f"s_and_b32 s{sB}, s2, 0xf8", f"s_lshl_b32 s{sB}, s{sB}, 6")
        e(f"v_and_b32 v{T+3}, 0x180, v{T+2}", f"v_add_u32 v{T+3}, s{sB}, v{T+3}", f"v_min_u32 v{T+3}, L_end-L_pc, v{T+3}")
        e(f"v_mov_b32 v{TABV+1}, s{sV+1}", f"v_add_co_u32 v{TABV}, vcc, s{sV}, v{T+3}", f"v_addc_co_u32 v{TABV+1}, vcc, 0, v{TABV+1}, vcc")
        vq.op("cpf", f"global_load_dword v{TSV+1}, {vr(TABV,2)}, off")

    def srd_hi(s, size):
        e(f"s_mov_b32 s{s+2}, {size}", f"s_mov_b32 s{s+3}, 0x20000")

    def srd_lo(s, lo, off):
        e(f"s_add_u32 s{s}, s{lo}, {off}", f"s_addc_u32 s{s+1}, s{lo+1}, 0")

    e(f"v_lshlrev_b32 v{T+2}, 3, v0")
    if P["CPF"] == 2:
        cpf()
    e(f"v_lshrrev_b32 v{T}, 6, v0", f"v_and_b32 v{LANE}, 63, v0", f"v_lshlrev_b32 v{T+1}, 2, v0", f"v_mov_b32 v{T+5}, 0")
    e(f"v_readfirstlane_b32 s3, v{T}")
    e(f"ds_write_b32 v{T+1}, v{T+5} offset:{ACNT}", f"ds_write_b32 v{T+1}, v{T+5} offset:{AINV+3072}")
    e(f"s_mul_i32 s{sT}, s2, {CH*4}", f"s_mul_i32 s{sT2}, s2, {CH*8}", f"s_mul_i32 s{sOFF}, s2, {CH*32}")
    e(f"v_lshlrev_b32 v{X16}, 4, v{LANE}", f"v_lshlrev_b32 v{T+7}, 4, v0", f"v_mov_b32 v{ONE}, 1")
    e(f"s_lshl_b32 s{sEM}, s3, 10", f"s_add_u32 s{sEM}, s{sEM}, {EAST}", f"s_movk_i32 s{sCNT}, 4096", f"s_movk_i32 s{sNV}, 8192")
    srd_hi(sA0, CH * 4); srd_hi(sA1, CH * 4); srd_hi(sA2, CH * 8); srd_hi(sEA, CH * 32)
    if P["DIAGW"] or P["DIAGL"]:
        e(f"s_memrealtime s[{sTSP}:{sTSP+1}]")
    e("s_waitcnt lgkmcnt(0)")
    if P["TS"]:
        e(f"v_writelane_b32 v{TSV}, s92, 0")
        ts.names.append("first")
    ts.stamp("start")
    srd_lo(sA0, 6, f"s{sT}")
    for i in range(3):
        o = f"0 offen offset:{2048*i}" if i < 2 else f"s{sCNT} offen"
        vq.op("dst", f"buffer_load_dword v{DSTV+i}, v{T+1}, {sr(sA0)}, {o} {apol}")
    srd_lo(sA1, 4, f"s{sT}")
    if P["ABAR"] == 2:
        e("s_barrier")
    for i in range(3):
        o = f"0 offen offset:{2048*i}" if i < 2 else f"s{sCNT} offen"
        vq.op("src", f"buffer_load_dword v{SRCV+i}, v{T+1}, {sr(sA1)}, {o} {apol}")
    e(f"s_load_dword s{sTAG}, s[14:15], {WS_W}")
    if P["CPF"] == 1:
        cpf()
    srd_lo(sA2, 8, f"s{sT2}")
    srd_lo(sEA, 10, f"s{sOFF}")
    if P["ABAR"] == 1:
        e("s_barrier")
    for i, o in enumerate(("0", f"s{sCNT}", f"s{sNV}")):
        vq.op("sh", f"buffer_load_dwordx2 {vr(SHV+2*i,2)}, v{T+2}, {sr(sA2)}, {o} offen {apol}")

    def aea(p):
        for i in range(5):
            if astage[i] == p:
                e(f"s_add_u32 m0, s{sEM}, {8192*i}", f"s_mov_b32 s{sT}, {8192*i}")
                vq.op("ea", f"buffer_load_dwordx4 v{T+7}, {sr(sEA)}, s{sT} offen {apol} lds")
        if P["WST"] == p:
            weights()
        if P["WOST"] == p:
            wout()

    def weights():
        e("s_cmp_lt_u32 s3, 4")
        e(f"s_cselect_b32 s{sX}, s{SK+4}, s{SK+2}", f"s_cselect_b32 s{sX+1}, s{SK+5}, s{SK+3}", f"s_movk_i32 s{sT}, 128",
          f"s_cselect_b32 s{sX+2}, s{sCNT}, s{sT}", f"s_mov_b32 s{sX+3}, 0x20000")
        e(f"s_min_u32 s{sT}, s3, 5", f"s_lshl_b32 s{sT}, s{sT}, 10", f"s_add_u32 m0, s{sT}, {WR}", f"s_and_b32 s{sT}, s{sT}, 0xc00")
        vq.op("w", f"buffer_load_dwordx4 v{X16}, {sr(sX)}, s{sT} offen lds")

    def wout():
        srd(sOUT, SK + 6, SK + 7, None, 32768)
        e(f"s_lshl_b32 s{sT2}, s3, 12", f"s_add_u32 m0, s{sT2}, {WO}")
        for i in range(4):
            vq.op("w", f"buffer_load_dwordx4 v{X16}, {sr(sOUT)}, s{sT2} offen offset:{i*1024} lds")

    aea(0)
    if not P["ABAR"]:
        e("s_barrier")
    e(f"s_mov_b32 s{SK+8}, 109951168", f"s_movk_i32 s{SK+9}, 625", f"s_movk_i32 s{SK+10}, 838")
    e(f"v_cmp_gt_u32 s[{sV+4}:{sV+5}], {CH-1024}, v0") if CH - 1024 <= 64 else e(f"s_movk_i32 s{sT}, {CH-1024}", f"v_cmp_gt_u32 s[{sV+4}:{sV+5}], s{sT}, v0")
    srd(sTAB, 14, 15, None, WS_FL + 8192)
    init_round(True)
    if P["ACCZ"] == 9:
        for i in range(48):
            e(f"v_mov_b32 v{ACC+i}, 0")
    vq.wait("dst")
    ts.stamp("dst")
    for k in range(3):
        e(f"v_mul_hi_u32 v{BK+k}, v{DSTV+k}, s{SK+8}")
    for k in range(3):
        e(f"v_lshlrev_b32 v{BA+k}, 2, v{BK+k}")
        if k == 2:
            e(f"s_mov_b64 exec, s[{sV+4}:{sV+5}]")
        e(f"ds_add_rtn_u32 v{RK+k}, v{BA+k}, v{ONE} offset:{ACNT}")
    e("s_mov_b64 exec, -1")
    e("s_waitcnt lgkmcnt(0)", "s_barrier")
    ts.stamp("hist")
    e(f"ds_read_b128 {vr(CT,4)}, v{X16} offset:{ACNT}")
    e(f"s_mul_i32 s{sTAG}, s{sTAG}, 0x9e3779b1", f"s_add_u32 s{sTAG}, s{sTAG}, 0x7f4a7c15")
    e(f"s_mul_i32 s{sTAG2}, s{sTAG}, 0x85ebca6b", f"s_and_b32 s{sTAG2}, s{sTAG2}, 0xffc00000")
    NS = P["NS"]
    SG = CGR
    gpoll = f"buffer_load_dword v{SG+1}, v{SG}, {sr(sTAB)}, s{sROFF} offen sc1"

    def signal(pos):
        if NS and P["SP"] == pos:
            e("s_cmp_lg_u32 s3, 0", "s_cbranch_scc1 L_nosig", f"s_cmp_lt_u32 s2, {256-8*NS}", "s_cbranch_scc1 L_nosig")
            e(f"s_lshl_b32 s{sT}, s2, 7", f"s_add_u32 s{sT}, s{sT}, {WS_FL - (256-8*NS)*128}", f"v_mov_b32 v{SG+2}, s{sTAG}")
            e("s_mov_b32 exec_hi, 0", f"buffer_store_dword v{SG+2}, v{T+1}, {sr(sTAB)}, s{sT} offen sc1", "s_mov_b32 exec_hi, -1")
            e.label("L_nosig")

    signal(2)
    aea(1)
    for k in range(3):
        e(f"v_mad_u32_u24 v{NL+k}, v{BK+k}, s{SK+9}, 15", f"v_lshrrev_b32 v{NL+k}, 4, v{NL+k}", f"v_sub_u32 v{NL+k}, v{DSTV+k}, v{NL+k}")
        e(f"v_lshrrev_b32 v{BK+k}, 3, v{BK+k}", f"v_and_b32 v{BK+k}, 28, v{BK+k}")
    e("s_waitcnt lgkmcnt(0)")
    e(f"v_add_u32 v{T+3}, v{CT}, v{CT+1}", f"v_add3_u32 v{T+3}, v{T+3}, v{CT+2}, v{CT+3}", f"v_mov_b32 v{T+4}, v{T+3}")
    scan_dpp(e, T + 4, True)
    e(f"v_sub_u32 v{ST}, v{T+4}, v{T+3}")
    for k in range(3):
        e(f"v_add_u32 v{ST+1+k}, v{ST+k}, v{CT+k}")
    e(f"ds_write_b128 v{X16}, {vr(ST,4)} offset:{ASTART}")
    for k in range(3):
        e(f"ds_read_b32 v{PS+k}, v{BA+k} offset:{ASTART}")
    vq.wait("src")
    for k in range(3):
        e(f"v_mul_u32_u24 v{KEY+k}, s{SK+10}, v{SRCV+k}", f"v_lshrrev_b32 v{KEY+k}, 18, v{KEY+k}", f"v_sub_u32 v{KEY+k}, v{KEY+k}, v{BK+k}",
          f"v_and_b32 v{KEY+k}, 31, v{KEY+k}", f"v_lshl_or_b32 v{KEY+k}, v{NL+k}, 5, v{KEY+k}",
          f"v_lshlrev_b32 v{KEY+k}, 21, v{KEY+k}", f"v_lshl_or_b32 v{KEY+k}, v{SRCV+k}, 7, v{KEY+k}")
    e(f"v_lshlrev_b32 v{NL}, 5, v0", f"v_add_u32 v{NL+1}, {512*32}, v{NL}", f"v_add_u32 v{NL+2}, {1024*32}, v{NL}")
    e(f"s_mov_b32 s{sT2}, {ASKS}")
    vq.wait("sh", "lgkmcnt(0)")
    for k in range(3):
        e(f"v_add_u32 v{PS+k}, v{PS+k}, v{RK+k}")
        e(f"v_lshlrev_b32 v{BA+k}, 2, v{PS+k}", f"v_mad_u32_u24 v{PS+k}, v{PS+k}, 12, s{sT2}")
        if k == 2:
            e(f"s_mov_b64 exec, s[{sV+4}:{sV+5}]")
        e(f"ds_write_b32 v{BA+k}, v{NL+k} offset:{AINV}")
        e(f"ds_write2_b32 v{PS+k}, v{SHV+2*k}, v{SHV+2*k+1} offset0:0 offset1:1")
        e(f"ds_write_b32 v{PS+k}, v{KEY+k} offset:8")
    e("s_mov_b64 exec, -1")
    signal(1)
    aea(2)
    signal(3)
    e(f"s_lshl_b32 s{sT}, s3, 7", f"v_lshl_add_u32 v{T+3}, v{LANE}, 3, s{sT}")
    e(f"ds_read_b64 {vr(CT,2)}, v{T+3} offset:{ACNT}", f"ds_read_b64 {vr(ST,2)}, v{T+3} offset:{ASTART}")
    e(f"s_mul_i32 s{sT}, s2, {CS*12}", f"s_add_u32 s{sT}, s{sT}, {WS_SK}")
    srd(sA0, 14, 15, f"s{sT}", CS * 12)
    e(f"s_mul_i32 s{sT}, s2, {CS*32}", f"s_add_u32 s{sT}, s{sT}, {WS_EA}")
    srd(sA1, 14, 15, f"s{sT}", CH * 32)
    e(f"v_lshrrev_b32 v{T+3}, 1, v0", f"v_lshlrev_b32 v{T+3}, 2, v{T+3}")
    e(f"v_and_b32 v{T+4}, 1, v0", f"v_lshlrev_b32 v{T+4}, 4, v{T+4}", f"v_add_u32 v{T+4}, {EAST}, v{T+4}", f"v_add_u32 v{T+6}, {ASKS}, v{T+7}")
    e("s_waitcnt lgkmcnt(0)", "s_barrier")
    ts.stamp("scat")
    e(f"ds_read_b128 {vr(OUTV,4)}, v{T+6}", f"ds_read_b128 {vr(OUTV+4,4)}, v{T+6} offset:8192")
    for i in range(5):
        e(f"ds_read_b32 v{IV+i}, v{T+3} offset:{AINV + i*1024}")
    signal(0)
    if NS:
        e(f"v_and_b32 v{SG}, {8*NS-1}, v{LANE}", f"v_lshlrev_b32 v{SG}, 7, v{SG}", f"s_mov_b32 s{sROFF}, {WS_FL}")
        if P["GP"] == 0:
            e("s_cmp_lg_u32 s3, 7", "s_cbranch_scc1 L_nogp")
            e(gpoll)
            e.label("L_nogp")
    aea(3)
    if P["XPA"]:
        n = P["XPA"]
        srd(sX, SK, SK + 1, None, N * 1024)
        e(f"s_and_b32 s{sBASE}, s2, 7", f"s_mul_i32 s{sBASE}, s{sBASE}, {1252*1024}", f"s_and_b32 s{sT2}, s2, 0xf8",
          f"s_add_u32 s{sT2}, s{sT2}, s3", f"s_mul_i32 s{sT2}, s{sT2}, {n*128}", f"s_add_u32 s{sBASE}, s{sBASE}, s{sT2}")
        e(f"v_min_u32 v{SG+3}, {n-1}, v{LANE}", f"v_lshlrev_b32 v{SG+3}, 7, v{SG+3}")
        vq.op("w" if P["XPAW"] else "xpa", f"buffer_load_dword v{PFV}, v{SG+3}, {sr(sX)}, s{sBASE} offen")

    def skst():
        vq.op("skst", f"buffer_store_dwordx4 {vr(OUTV,4)}, v{T+7}, {sr(sA0)}, 0 offen {P['ASTPOL']}")
        if P["STH"] == 1 and not P["SKEARLY"]:
            e("s_waitcnt vmcnt(0)")
        vq.op("skst", f"buffer_store_dwordx4 {vr(OUTV+4,4)}, v{T+7}, {sr(sA0)}, s{sNV} offen {P['ASTPOL']}")

    def frag_r(F0, t0, t1, t2):
        e(f"v_lshrrev_b32 v{t0}, 5, v{LANE}", f"v_lshlrev_b32 v{t0}, 10, v{t0}", f"v_and_b32 v{t1}, 15, v{LANE}", f"v_lshl_add_u32 v{t0}, v{t1}, 4, v{t0}")
        for i in range(8):
            e(f"ds_read_b128 {vr(F0+4*i,4)}, v{t0} offset:{WR + 2048*(i//4) + 256*(i%4)}")
        e(f"v_lshrrev_b32 v{t0}, 4, v{LANE}", f"v_lshlrev_b32 v{t0}, 5, v{t0}", f"v_and_b32 v{t1}, 3, v{LANE}", f"v_lshl_add_u32 v{t0}, v{t1}, 1, v{t0}")
        for v in range(4):
            e(f"ds_read_u16 v{F0+32+v}, v{t0} offset:{WR + 4096 + 8*v}")
        e(f"v_bfe_i32 v{t2}, v{LANE}, 4, 1", f"v_and_b32 v{t2}, 0x02020202, v{t2}", f"v_add_u32 v{t2}, 0x05040100, v{t2}")
        e("s_waitcnt lgkmcnt(0)")
        for h in range(2):
            for t in range(2):
                for ip in range(4):
                    e(f"v_perm_b32 v{WRF+8*h+2*ip+t}, v{F0+4*(2*ip+1)+t+2*h}, v{F0+4*(2*ip)+t+2*h}, v{t2}")
        e(f"v_lshl_or_b32 v{CGF}, v{F0+33}, 16, v{F0+32}", f"v_lshl_or_b32 v{CGF+1}, v{F0+35}, 16, v{F0+34}")

    def frag_o(F0, F1, t0, t1, sM):
        e(f"v_and_b32 v{t1}, 7, v{LANE}", f"v_lshrrev_b32 v{t0}, 4, v{LANE}", f"v_lshlrev_b32 v{t0}, 13, v{t0}", f"v_lshl_add_u32 v{t0}, v{t1}, 4, v{t0}",
          f"v_and_b32 v{t1}, 8, v{LANE}", f"s_and_b32 s{sM}, s3, 3", f"s_lshl_b32 s{sM}, s{sM}, 8", f"s_lshr_b32 s{sM+1}, s3, 2", f"s_lshl_b32 s{sM+1}, s{sM+1}, 7",
          f"s_add_u32 s{sM}, s{sM}, s{sM+1}", f"s_add_u32 s{sM}, s{sM}, {WO}", f"v_add3_u32 v{t0}, v{t0}, v{t1}, s{sM}")
        for ip in range(4):
            e(f"ds_read2st64_b64 {vr(F0+4*ip,4)}, v{t0} offset0:{4*ip} offset1:{4*ip+2}")
        e(f"s_mov_b32 s{sM}, 0x05040100", f"s_mov_b32 s{sM+1}, 0x07060302")
        for ip in range(4):
            e(f"s_waitcnt lgkmcnt({3-ip})")
            for t in range(4):
                e(f"v_perm_b32 v{F1+4*t+ip}, v{F0+4*ip+2+t//2}, v{F0+4*ip+t//2}, s{sM+t%2}")

    def consts():
        e(f"s_and_b32 s{sB}, s2, 7", f"s_lshl_b32 s{sB}, s{sB}, 5", f"s_lshr_b32 s{sT}, s2, 3", f"s_add_u32 s{sB}, s{sB}, s{sT}")
        e(f"s_mul_i32 s{sNB}, s{sB}, 625", f"s_add_u32 s{sNCNT}, s{sNB}, 640", f"s_add_u32 s{sNB}, s{sNB}, 15",
          f"s_lshr_b32 s{sNB}, s{sNB}, 4", f"s_lshr_b32 s{sNCNT}, s{sNCNT}, 4", f"s_sub_u32 s{sNCNT}, s{sNCNT}, s{sNB}")
        e(f"v_bfe_i32 v{SIX}, v{LANE}, 2, 1", f"v_and_b32 v{SIX}, 0xaaaa, v{SIX}", f"v_add_u32 v{SIX}, 0x4444, v{SIX}")
        e(f"v_mov_b32 v{ZAD}, {ZERO}", f"v_and_b32 v{T+3}, 60, v{T+1}", f"v_add_u32 v{T+3}, v{T+3}, v{ZAD}", f"ds_write_b32 v{T+3}, v{T+5}")
        e(f"v_and_b32 v{T+3}, 4, v{LANE}", f"v_lshlrev_b32 v{T+3}, 2, v{T+3}", f"v_mov_b32 v{T+4}, 0xffff", f"v_lshlrev_b32 v{T+4}, v{T+3}, v{T+4}")
        e(f"v_bfe_i32 v{T+3}, v{LANE}, 3, 1", f"v_and_b32 v{MQ}, v{T+3}, v{T+4}", f"v_xor_b32 v{MP}, v{MQ}, v{T+4}")
        e(f"v_lshrrev_b32 v{EAC}, 5, v{LANE}", f"v_lshlrev_b32 v{EAC}, 4, v{EAC}", f"v_add_u32 v{EAC}, {EAST}, v{EAC}")
        e(f"v_and_b32 v{LAC}, 15, v{LANE}", f"v_lshlrev_b32 v{LAC}, 2, v{LAC}")
        e(f"v_bfe_u32 v{T+3}, v{LANE}, 3, 2", f"v_and_b32 v{T+4}, 3, v{LANE}", f"v_lshl_add_u32 v{T+3}, v{T+3}, 2, v{T+4}", f"v_lshlrev_b32 v{LBC}, 2, v{T+3}")
        e(f"v_bfe_i32 v{cODD}, v0, 0, 1", f"s_lshl_b32 s{sT}, s3, 10", f"v_and_b32 v{cMAPW}, 4, v{cODD}", f"v_add_u32 v{cMAPW}, s{sT}, v{cMAPW}")
        e(f"v_lshl_add_u32 v{cMAP1}, v{LANE}, 2, s{sT}", f"v_lshrrev_b32 v{cMAP2}, 1, v{LANE}", f"v_lshl_add_u32 v{cMAP2}, v{cMAP2}, 2, s{sT}")
        e(f"v_mul_u32_u24 v{cL12}, 12, v{LANE}", f"v_and_b32 v{cDEG}, 12, v{cMAP1}", f"v_and_b32 v{cBIN}, 124, v{cMAP1}")
        e(f"s_mul_i32 s{sT}, s3, {CAPW}", f"v_add_u32 v{cR21}, s{sT}, v{LANE}", f"v_lshlrev_b32 v{cSH}, 3, v{cR21}", f"v_add_u32 v{cSH}, {SHST}, v{cSH}", f"v_lshlrev_b32 v{cR21}, 21, v{cR21}")
        e(f"s_mul_i32 s{sT}, s3, 640", f"v_add_u32 v{cROW}, s{sT}, v{cBIN}", f"v_sub_u32 v{cTIE}, 63, v{LANE}")
        e(f"s_lshl_b32 s{sT}, s3, 5", f"v_lshl_add_u32 v{cNOD}, v{LANE}, 2, s{sT}")
        e(f"v_lshrrev_b32 v{cLST}, 3, v{LANE}", f"v_mul_u32_u24 v{cLST}, {GAP*4}, v{cLST}", f"v_add_u32 v{cLST}, {LIST}, v{cLST}")
        e(f"s_cmp_eq_u32 s{sNCNT}, 40")
        tabs = []
        for part in PARTS[P["BIAS"]]:
            t = [0] * 40
            for w, p in enumerate(part):
                for sl, r in enumerate(p):
                    t[r] = w * 8 + sl
            tabs.append([sum(t[5 * q + i] << (6 * i) for i in range(5)) for q in range(8)])
        e(f"v_mov_b32 v{RT}, 0")
        for q in range(8):
            e(f"s_mov_b32 s{sT}, {tabs[0][q]}", f"s_cselect_b32 s{sT}, {tabs[1][q]}, s{sT}")
            m = 31 << (5 * q)
            e(f"s_mov_b32 exec_lo, {m & 0xffffffff}", f"s_mov_b32 exec_hi, {m >> 32}", f"v_mov_b32 v{RT}, s{sT}")
        e("s_mov_b64 exec, -1")
        e(f"v_mul_u32_u24 v{T+3}, 52, v{LANE}", f"v_lshrrev_b32 v{T+3}, 8, v{T+3}", f"v_mad_i32_i24 v{T+3}, v{T+3}, -5, v{LANE}",
          f"v_mul_u32_u24 v{T+3}, 6, v{T+3}", f"v_lshrrev_b32 v{RT}, v{T+3}, v{RT}")
        e(f"v_and_b32 v{T+3}, 7, v{RT}", f"v_bfe_u32 v{RT}, v{RT}, 3, 3", f"v_lshlrev_b32 v{T+3}, 12, v{T+3}", f"v_lshl_or_b32 v{RT}, v{RT}, 7, v{T+3}")
        srd(sSK, 14, 15, WS_SK, NCH * CS * 12)

    def extra(pos):
        if P["CPOS"] == pos:
            consts()
        if P["ACCZ"] == pos:
            for i in range(48):
                e(f"v_mov_b32 v{ACC+i}, 0")

    e("s_waitcnt lgkmcnt(0)")
    if P["SKEARLY"]:
        skst()
    for i in range(5):
        e(f"v_add_u32 v{IV+i}, v{T+4}, v{IV+i}")
    for k in range(2):
        e(f"v_lshl_or_b32 v{TABV+2*k}, v{CT+k}, 11, v{ST+k}", f"v_or_b32 v{TABV+2*k}, s{sTAG2}, v{TABV+2*k}", f"v_mov_b32 v{TABV+2*k+1}, s{sTAG}")
    extra(0)
    e(f"s_waitcnt vmcnt({min(vq.n('w') + P['WGN'], vq.n('ea'))})")
    if NS:
        ts.stamp("land0")
        e("s_cmp_eq_u32 s3, 7", "s_cbranch_scc1 L_guard")
        e.label("L_guarded")
    e("s_barrier")
    ts.stamp("land")
    for i in range(5):
        e(f"ds_read_b128 {vr(OUTV+8+4*i,4)}, v{IV+i}")
    extra(1)
    if P["FRG"] & 1:
        frag_r(RW, T, T + 1, T + 2)
    ts.stamp("guard")
    if not P["SKEARLY"]:
        skst()
    for i in range(5):
        thr = f"vmcnt({P['STH']-1}) " if P["STH"] and i < P["STHN"] else ""
        e(f"s_mov_b32 s{sT}, {8192*i}", f"s_waitcnt {thr}lgkmcnt({4-i})")
        vq.op("st", f"buffer_store_dwordx4 {vr(OUTV+8+4*i,4)}, v{T+7}, {sr(sA1)}, s{sT} offen {P['ASTPOL']}")
    aea(4)
    ts.stamp("issued")

    extra(2)
    e(f"s_lshl_b32 s{sT}, s2, 3", f"s_add_u32 s{sT}, s{sT}, s3", f"s_lshl_b32 s{sT}, s{sT}, 8")
    srd(sX, SK, SK + 1, None, N * 1024)
    srd(sEA, 14, 15, WS_EA, NCH * CS * 32)
    if P["XPF"]:
        n = P["XPF"]
        e(f"s_and_b32 s{sBASE}, s2, 7", f"s_mul_i32 s{sBASE}, s{sBASE}, {1252*1024}", f"s_and_b32 s{sT2}, s2, 0xf8",
          f"s_add_u32 s{sT2}, s{sT2}, s3", f"s_mul_i32 s{sT2}, s{sT2}, {n*128}", f"s_add_u32 s{sBASE}, s{sBASE}, s{sT2}")
        if P["XPA"]:
            e(f"s_add_u32 s{sBASE}, s{sBASE}, {P['XPA']*128*256}")
        e(f"v_min_u32 v{T+6}, {n-1}, v{LANE}", f"v_lshlrev_b32 v{T+6}, 7, v{T+6}")
    e("s_waitcnt vmcnt(0)", "s_barrier")
    ts.stamp("drained")
    e("s_mov_b64 exec, 0xffff")
    e(f"buffer_store_dwordx4 {vr(TABV,4)}, v{X16}, {sr(sTAB)}, s{sT} offen sc1")
    e("s_mov_b64 exec, -1")
    if P["XPF"]:
        e(f"buffer_load_dword v{PFV}, v{T+6}, {sr(sX)}, s{sBASE} offen")
    e(f"s_lshl_b32 s{sT}, s{sNB}, 10", f"s_add_u32 s{sOUT}, s12, s{sT}", f"s_addc_u32 s{sOUT+1}, s13, 0",
      f"s_lshl_b32 s{sOUT+2}, s{sNCNT}, 10", f"s_mov_b32 s{sOUT+3}, 0x20000")
    if not P["FRG"] & 1:
        frag_r(RW, T, T + 1, T + 2)
    frag_o(128, 144, T, T + 1, SK + 8)
    e(f"s_lshl_b32 s{sT}, s3, 12", f"v_add_u32 v{T}, s{sT}, v{X16}")
    extra(3)
    e(f"v_lshrrev_b32 v{T+1}, 1, v0", f"v_lshlrev_b32 v{T+2}, 11, v{T+1}", f"s_lshl_b32 s{sNR}, s{sB}, 3")
    e(f"v_mul_u32_u24 v{RG0}, {CS}, v{T+1}", f"s_mov_b32 s{sROFF}, 0", f"s_mov_b32 s{sCNT}, {SPIN}", f"s_mov_b32 s{sT2}, 0xffc00000")
    e(f"s_mul_i32 s{sEM}, s3, {CAPW*32}", f"s_add_u32 s{sEM}, s{sEM}, {EAST}", f"s_movk_i32 s{sK4}, 4096")
    e("s_waitcnt vmcnt(0)", "s_barrier")
    ts.stamp("frag")
    PL = 206
    poll1 = f"buffer_load_dwordx2 {vr(PL,2)}, v{T+2}, {sr(sTAB)}, s{sNR} offen sc1"

    def tagcheck():
        e(f"v_xor_b32 v{T+3}, s{sTAG2}, v{PL}", f"v_xor_b32 v{T+4}, s{sTAG}, v{PL+1}", f"v_and_or_b32 v{T+3}, v{T+3}, s{sT2}, v{T+4}")
        e(f"v_cmpx_ne_u32 vcc, 0, v{T+3}")

    e(poll1)
    for t in range(4):
        e(f"ds_write_b128 v{T}, {vr(144+4*t,4)} offset:{WO + 1024*t}")
    e("s_waitcnt vmcnt(0)")
    tagcheck()
    e("s_cbranch_execnz L_poll")
    e.label("L_polled")
    e("s_mov_b64 exec, -1")
    ts.stamp("tab")
    G1, G2, SKR, RNK, CA = RW, RW + 4, RW + 12, TP, TP + 4
    MU = P["MU"]
    sVm = [sV, sV + 2, sV + 4, sA2]

    def bea1(i):
        e(f"s_add_u32 m0, s{sEM}, {4096*(i//4)}")
        vq.op("ea", f"buffer_load_dwordx4 v{G2+i}, {sr(sEA)}, {'0' if i < 4 else 's%d' % sK4} offen offset:{1024*(i%4)} {ldpol} lds")

    def bea(p):
        for i in range(6):
            if bstage[i] == p:
                bea1(i)

    def skld(i):
        e(f"v_mad_u32_u24 v{G1+i}, v{G1+i}, 12, v{cL12}")
        vq.op(f"sk{i}", f"buffer_load_dwordx3 {vr(SKR+4*i,3)}, v{G1+i}, {sr(sSK)}, 0 offen offset:{768*i} {ldpol}")

    cmps = [f"v_cmp_lt_i32 s[{SK+2*i}:{SK+2*i+1}], {2*i}, v{T+2}" for i in range(MU + 1)]
    e(f"v_bfe_u32 v{RLEN}, v{PL}, 11, 11", f"v_and_b32 v{RBASE}, v{RLEN}, v{cODD}", f"v_add_u32 v{T+2}, v{RLEN}, v{cODD}")
    fill = [f"v_and_b32 v{T+3}, 0x7ff, v{PL}"] + cmps + [f"v_add_u32 v{RG0}, v{RG0}, v{T+3}"]
    e(fill.pop(0))
    for mod in ("row_shr:1 row_mask:0xf", "row_shr:2 row_mask:0xf", "row_shr:4 row_mask:0xf", "row_shr:8 row_mask:0xf", "row_bcast:15 row_mask:0xa", "row_bcast:31 row_mask:0xc"):
        e(f"v_add_u32_dpp v{RBASE}, v{RBASE}, v{RBASE} {mod} bank_mask:0xf")
        e(*fill[:2]); fill = fill[2:]
    e(f"v_readlane_b32 s{sNW}, v{RBASE}, 63")
    e(f"v_mov_b32_dpp v{RBASE}, v{RBASE} quad_perm:[0,0,2,2] row_mask:0xf bank_mask:0xf")
    e(f"v_sub_u32 v{RG0}, v{RG0}, v{RBASE}")
    e(f"v_lshl_add_u32 v{T}, v{RBASE}, 2, v{cMAPW}")
    e(f"s_cmp_gt_u32 s{sNW}, {CAPW}", "s_cbranch_scc1 L_clip")
    e.label("L_mapw")
    for i in range(MU):
        e(f"s_mov_b64 exec, s[{SK+2*i}:{SK+2*i+1}]")
        e(f"ds_write_b32 v{T}, v{RG0} offset:{8*i}")
    e("s_mov_b64 exec, -1")
    e(f"s_cmp_lg_u64 s[{SK+2*MU}:{SK+2*MU+1}], 0", "s_cbranch_scc1 L_map2")
    for i in range(3):
        e(f"ds_read_b32 v{G1+i}, v{cMAP1} offset:{256*i}")
    for i in range(6):
        e(f"ds_read_b32 v{G2+i}, v{cMAP2} offset:{128*i}")
    e(f"s_cmp_gt_i32 s{sNW}, 192", "s_cbranch_scc1 L_r1")
    e.label("L_r1b")
    e("s_waitcnt lgkmcnt(6)")
    ts.stamp("map")
    for i in range(3):
        skld(i)
    e(f"v_mov_b32 v{T+3}, s{sNW}", "s_mov_b64 exec, 1", f"ds_max_i32 v{T+5}, v{T+3} offset:{TOT}", "s_mov_b64 exec, -1")
    e("s_waitcnt lgkmcnt(1)")
    for i in range(6):
        e(f"v_lshl_add_u32 v{G2+i}, v{G2+i}, 5, v{X16}")
    if P["SKBAR"]:
        e("s_barrier")
    ts.stamp("skiss")
    bea(0)
    for i in range(4):
        e(f"v_add_u32 v{T+3}, {64*i}, v{LANE}", f"v_cmp_gt_i32 s[{sVm[i]}:{sVm[i]+1}], s{sNW}, v{T+3}")
    e(f"s_mov_b32 s{sT2}, 0x1fff80", f"s_mul_i32 s{sOFF}, s3, 5", f"s_mov_b32 s{sVm[3]+1}, 0")

    def count(i):
        key = SKR + 4 * i + 2
        e(f"v_lshrrev_b32 v{CA+i}, 21, v{key}", f"v_lshlrev_b32 v{CA+i}, 2, v{CA+i}")
        e(f"v_lshrrev_b32 v{T+3}, 26, v{key}", f"v_lshl_or_b32 v{T+3}, v{T+3}, 4, v{cDEG}")
        e(f"s_mov_b64 exec, s[{sVm[i]}:{sVm[i]+1}]")
        e(f"ds_add_rtn_u32 v{RNK+i}, v{CA+i}, v{ONE} offset:{CNT2}")
        e(f"ds_add_u32 v{T+3}, v{ONE} offset:{DEG}")
        e("s_mov_b64 exec, -1")

    def entry(i):
        key = SKR + 4 * i + 2
        if i == 3:
            e("s_mov_b32 exec_hi, 0")
        e(f"ds_write_b64 v{cSH}, {vr(SKR+4*i,2)} offset:{512*i}")
        if i == 3:
            e("s_mov_b32 exec_hi, -1")
        e(f"v_and_or_b32 v{key}, v{key}, s{sT2}, v{cR21}")
        if i:
            e(f"v_add_u32 v{key}, {64*i << 21}, v{key}")

    for i in range(3):
        vq.wait(f"sk{i}")
        if i == 0:
            ts.stamp("sk")
        count(i)
    e(f"s_cmp_gt_i32 s{sNW}, 192", "s_cbranch_scc1 L_r2")
    e.label("L_r2b")
    for i in range(3):
        entry(i)
    ts.stamp("atom")
    bea(1)
    e("s_waitcnt lgkmcnt(3)", "s_barrier")
    ts.stamp("b1")
    CN, CAD = XR, XR + 8
    e(f"s_cmp_lg_u32 s{sROFF}, 0", "s_cbranch_scc1 L_rank2")
    e(f"ds_read_b128 {vr(CAD,4)}, v{X16} offset:{DEG}")
    for j in range(5):
        e(f"ds_read_b32 v{CN+j}, v{cROW} offset:{CNT2 + 128*j}")
    e(f"ds_read_b32 v{T+6}, v{T+5} offset:{TOT}")
    bea(5)
    for j in range(1, 5):
        e(f"s_add_u32 s{SK+j}, s{sOFF}, {j}")
    e("s_waitcnt lgkmcnt(6)")
    e(f"v_add_u32 v{T+1}, v{CAD}, v{CAD+1}", f"v_add3_u32 v{T+1}, v{T+1}, v{CAD+2}, v{CAD+3}")
    e(f"v_lshl_or_b32 v{T+1}, v{T+1}, 6, v{cTIE}")
    for j in range(5):
        e(f"v_readlane_b32 s{SK+j}, v{T+1}, s{SK+j if j else sOFF}")
    for j in range(5):
        e(f"v_cmp_lt_u32 s[{SK+6+2*j}:{SK+7+2*j}], s{SK+j}, v{T+1}")
    for j in range(5):
        e(f"s_bcnt1_i32_b64 s{SK+j}, s[{SK+6+2*j}:{SK+7+2*j}]")
    e("s_waitcnt lgkmcnt(0)")
    for j in range(5):
        e(f"v_readlane_b32 s{sASG[j]}, v{RT}, s{SK+j}")
    e(f"v_readfirstlane_b32 s{sN}, v{T+6}")
    e.label("L_ranked")
    e("s_mov_b32 exec_hi, 0")
    for j in range(5):
        e(f"s_and_b32 s{sT}, s{sASG[j]}, 0x380")
        e(f"v_add_u32 v{CAD+j}, s{sT}, v{cBIN}")
        e(f"ds_add_rtn_u32 v{CN+j}, v{CAD+j}, v{CN+j} offset:{WB}")
    for j in range(5):
        e(f"v_or_b32 v{CAD+j}, s{sASG[j]}, v{CAD+j}")
    for j in range(5):
        e(f"v_writelane_b32 v{T+3}, s{sASG[j]}, {j}")
    for j in range(5):
        e("s_waitcnt lgkmcnt(4)")
        e(f"v_lshl_or_b32 v{CN+j}, v{CN+j}, 16, v{CAD+j}")
        e(f"ds_write_b32 v{cROW}, v{CN+j} offset:{CNT2 + 128*j}")
    e(f"v_add_lshl_u32 v{T+4}, v{LANE}, s{sOFF}, 7")
    e(f"v_lshrrev_b32 v{T+1}, 10, v{T+3}", f"v_bfe_u32 v{T+3}, v{T+3}, 2, 8", f"v_or_b32 v{T+3}, v{T+3}, v{T+1}")
    e("s_mov_b32 exec_lo, 31")
    e(f"ds_write_b32 v{T+3}, v{T+4} offset:{NODEOF}")
    e("s_mov_b64 exec, -1")
    ts.stamp("rank")
    bea(2)
    e(f"s_lshl_b32 s{sT}, s3, 3", f"s_add_u32 s{sT2}, s{sT}, 7")
    e("s_waitcnt lgkmcnt(0)", "s_barrier")
    ts.stamp("b2")
    e(f"ds_read_b128 {vr(CN,4)}, v{X16} offset:{WB}")
    for i in range(3):
        e(f"ds_read_b32 v{CA+i}, v{CA+i} offset:{CNT2}")
    e(f"ds_read_b32 v{T+3}, v{cNOD} offset:{NODEOF}")
    bea(6)
    e("s_waitcnt lgkmcnt(4)")
    e(f"v_add_u32 v{T+1}, v{CN}, v{CN+1}", f"v_add3_u32 v{T+1}, v{T+1}, v{CN+2}, v{CN+3}", f"v_mov_b32 v{T+2}, v{T+1}")
    e("s_waitcnt lgkmcnt(1)")

    def place(i):
        key = SKR + 4 * i + 2
        return [f"v_bfe_u32 v{T+7}, v{CA+i}, 12, 3", f"v_or_b32 v{key}, v{T+7}, v{key}", f"v_and_b32 v{G1+i}, 0x3ff, v{CA+i}",
                f"v_lshrrev_b32 v{CA+i}, 16, v{CA+i}", f"v_add_u32 v{CA+i}, v{CA+i}, v{RNK+i}"]

    fill = place(0) + place(1) + place(2)
    e(fill.pop(0))
    for mod in ("row_shr:1 row_mask:0xf", "row_shr:2 row_mask:0xf", "row_shr:4 row_mask:0xf", "row_shr:8 row_mask:0xf", "row_bcast:15 row_mask:0xa", "row_bcast:31 row_mask:0xc"):
        e(f"v_add_u32_dpp v{T+2}, v{T+2}, v{T+2} {mod} bank_mask:0xf")
        e(*fill[:2]); fill = fill[2:]
    e(f"v_sub_u32 v{T+1}, v{T+2}, v{T+1}")
    e(f"v_lshl_add_u32 v{CAD}, v{T+1}, 2, v{cLST}")
    for k in range(3):
        e(f"v_lshl_add_u32 v{CAD+1+k}, v{CN+k}, 2, v{CAD+k}")
    e(f"ds_write_b128 v{X16}, {vr(CAD,4)} offset:{START}")
    for i in range(3):
        e(f"ds_read_b32 v{G1+i}, v{G1+i} offset:{START}")
    e(*fill)
    e(f"v_readlane_b32 s{sNV}, v{T+2}, s{sT2}", f"v_readlane_b32 s{sCNT}, v{T+1}, s{sT}", f"v_readlane_b32 s{sBASE}, v{CAD}, s{sT}")
    e(f"v_mov_b32 v{T+4}, {(0x3fff << 7) | 5}")
    e(f"s_sub_u32 s{sNV}, s{sNV}, s{sCNT}", f"s_lshl_b32 s{sT}, s{sNV}, 2")
    e(f"v_add_u32 v{LA}, s{sBASE}, v{LAC}", f"v_add_u32 v{LB}, s{sBASE}, v{LBC}", f"v_add_u32 v{T+1}, s{sT}, v{LA}")

    def scatter(i):
        e(f"v_lshl_add_u32 v{CA+i}, v{CA+i}, 2, v{G1+i}")
        e(f"s_mov_b64 exec, s[{sVm[i]}:{sVm[i]+1}]")
        e(f"ds_write_b32 v{CA+i}, v{SKR+4*i+2}")
        e("s_mov_b64 exec, -1")

    for i in range(3):
        e("s_waitcnt lgkmcnt(2)")
        scatter(i)
    e(f"ds_write_b32 v{T+1}, v{T+4}")
    e(f"s_cmp_gt_i32 s{sNW}, 192", "s_cbranch_scc1 L_r3")
    e.label("L_r3b")
    bea(3)
    for j in range(5):
        e(f"v_readlane_b32 s{sNODE+j}, v{T+3}, {j}")
    ts.stamp("list")
    eAG, eFR, eST, eWF, sEO = [208, 209, 210, 211, 212], 213, 214, 215, 99
    e(f"v_lshlrev_b32 v{T}, 2, v{LANE}")
    for s in range(5):
        e(f"s_mul_i32 s{sT}, s{sNODE+s}, 9", f"v_add_u32 v{eAG[s]}, s{sT}, v{T}")
    e(f"s_lshr_b32 s{sEO}, s3, 1", f"s_mul_i32 s{sEO}, s{sEO}, 3", f"s_min_u32 s{sEO}, s{sEO}, 8", f"s_mul_i32 s{sT2}, s{sEO}, 4608")
    e(f"v_and_b32 v{T}, 15, v{LANE}", f"v_lshrrev_b32 v{T+1}, 4, v{LANE}")
    e(f"v_mul_u32_u24 v{eFR}, 288, v{T}", f"v_lshl_add_u32 v{eFR}, v{T+1}, 4, v{eFR}", f"v_add_u32 v{eFR}, s{sT2}, v{eFR}")
    e(f"v_lshrrev_b32 v{T+1}, 3, v{LANE}", f"v_lshlrev_b32 v{T+1}, 9, v{T+1}", f"v_and_b32 v{T}, 7, v{LANE}", f"v_lshl_add_u32 v{eST}, v{T}, 4, v{T+1}")
    e(f"s_lshl_b32 s{sEO}, s{sEO}, 12", f"s_and_b32 s{sT2}, s3, 1", f"s_lshl_b32 s{sT}, s{sT2}, 7", f"s_add_u32 s{sEO}, s{sEO}, s{sT}",
      f"s_lshl_b32 s{sT2}, s{sT2}, 14", f"s_add_u32 s{sT2}, s{sT2}, {WO}", f"v_add_u32 v{eWF}, s{sT2}, v{X16}")
    for i in range(32):
        e(f"v_mov_b32 v{RW+i}, 0")
    NK = P["WFK"]
    WF = [216 + 4 * q for q in range(NK)] + [96 + 4 * q for q in range(16 - NK)]
    for q in range(NK):
        e(f"ds_read_b128 {vr(WF[q],4)}, v{eWF} offset:{1024*q}")
    assert D == 6
    sP0 = sT
    e(f"s_add_u32 s{sP0}, s{sNV}, 1", f"s_and_b32 s{sP0}, s{sP0}, -2", f"s_add_u32 s{sCNT}, s{sP0}, 15", f"s_lshr_b32 s{sCNT}, s{sCNT}, 4",
      f"s_sub_u32 s{sP0}, 0, s{sP0}", f"s_and_b32 s{sP0}, s{sP0}, 15", f"s_sub_u32 s{sCNT}, s{sCNT}, 1", f"s_cmp_gt_i32 s{sCNT}, 0", f"s_cselect_b32 s{sP0}, s{sP0}, 0")
    e(f"s_lshl_b32 s{sOFF}, s{sP0}, 2", f"v_subrev_u32 v{LA}, s{sOFF}, v{LA}", f"v_subrev_u32 v{LB}, s{sOFF}, v{LB}",
      f"s_and_b32 s{sOFF}, s{sOFF}, 32", f"v_add_u32 v{T+4}, s{sOFF}, v{LA}", f"s_and_b32 s{SK+8}, s{sP0}, 6")
    e(f"s_mov_b32 s{sT2}, 0x00fffc38", f"s_mov_b32 s{sNR}, 0xffffff00", f"s_mov_b32 s{sBASE}, {SHST}")
    if P["PRIO"] == 1:
        e("s_cmp_lt_u32 s3, 4", "s_cbranch_scc1 L_np", "s_setprio 1")
        e.label("L_np")
    e("s_waitcnt vmcnt(0) lgkmcnt(0)", "s_barrier")
    ts.stamp("b4")
    e(f"ds_read_b32 v{K}, v{T+4}", f"ds_read_b32 v{ENT+2}, v{LB}", f"ds_read_b32 v{KN}, v{LA} offset:{4*D}")
    e(f"s_cmp_eq_u32 s{sNV}, 0", "s_cbranch_scc1 L_swept")
    AL = P["ALIGN"]

    def al():
        if AL:
            e(".p2align 3")

    def ea_reads():
        e(f"v_lshrrev_b32 v{T}, 21, v{ENT+2}", f"v_lshl_add_u32 v{T+3}, v{T}, 3, s{sBASE}", f"v_lshl_add_u32 v{T}, v{T}, 5, v{EAC}")
        e(f"ds_read_b64 {vr(ENT,2)}, v{T+3}")
        e(f"ds_read_b128 {vr(EA0,4)}, v{T}")

    def zq(q):
        e(f"ds_read_b128 {vr(RW+4*q,4)}, v{ZAD}", f"ds_read_b128 {vr(RW+16+4*q,4)}, v{ZAD}")

    def pq(j):
        p = PQ + 2 * (j % 2)
        if "P" in P["ABL"] and j > 1:
            return ["s_nop 0"] * 0
        if "Q" in P["ABL"] and j > 1:
            return [f"v_perm_b32 v{p}, v{AGN+j}, v{AGN+j}, v{MP}", f"v_perm_b32 v{p+1}, v{AGN+j}, v{AGN+j}, v{MQ}"]
        return [f"v_cvt_pk_bf16_f32 v{T+1+j%2}, v{AGN+j}, v{AGN+j}", f"v_and_b32 v{p}, v{MP}, v{T+1+j%2}", f"v_and_b32 v{p+1}, v{MQ}, v{T+1+j%2}"]

    def head(kind):
        e(f"s_waitcnt lgkmcnt({0 if kind == 'first' else 2})"); al()
        for q in range(4):
            e(f"v_mfma_f32_4x4x4_16b_bf16 {vr(AGN+4*q,4)}, {vr(ENT,2)}, {vr(CGF,2)}, 0 cbsz:4 abid:{2*q}")
        e(f"v_lshlrev_b32 v{K}, 3, v{KN}", f"v_and_b32 v{K}, s{sT2}, v{K}")
        rd = []
        if kind != "last":
            e(f"v_add_u32 v{LA}, 64, v{LA}", f"v_add_u32 v{LB}, 64, v{LB}")
            rd = [f"ds_read_b32 v{KN}, v{LA} offset:{4*D}", f"ds_read_b32 v{ENT+2}, v{LB}"]
        if kind != "first":
            e("s_waitcnt lgkmcnt(0)"); al()
        groups = [rd + (pq(0) if kind != "first" else []), []]
        for h in range(2):
            e(f"v_smfmac_f32_32x32x32_bf16 {vr(RW+16*h,16)}, {vr(EA0,4)}, {vr(WRF+8*h,8)}, v{SIX}")
            e(*groups[h])

    def pks(j):
        t = TP + 8 * (j % 2)
        for h in range(2):
            r = RW + 16 * h + j
            rp = r & ~1
            sel = "op_sel:[0,1,0] op_sel_hi:[1,1,1]" if r & 1 else "op_sel_hi:[1,0,1]"
            for q in range(2):
                a = ACC + 4 * h + 2 * q
                e(f"v_pk_fma_f32 {vr(a,2)}, {vr(t+4*h+2*q,2)}, {vr(rp,2)}, {vr(a,2)} {sel}")

    def mf(j, h):
        t, p, s = TP + 8 * (j % 2), PQ + 2 * (j % 2), XR + 4 * (j % R)
        if "4" in P["ABL"]:
            e(f"v_mfma_f32_4x4x4_16b_bf16 {vr(t+4*h,4)}, {vr(CGF,2)}, {vr(s+2*h,2)}, 0 cbsz:4 abid:{j}")
            return
        e(f"v_mfma_f32_16x16x16_bf16 {vr(t+4*h,4)}, {vr(p,2)}, {vr(s+2*h,2)}, 0")

    def rl(q, lane):
        e(f"v_readlane_b32 s{SK + q % 8}, v{K}, {lane}")

    def sand(q):
        e(f"s_and_b32 s{sOFF}, s{SK + q % 8}, s{sNR}")

    def xl(q):
        e(f"buffer_load_dwordx4 {vr(XR + 4 * (q % R),4)}, v{X16}, {sr(sX)}, s{sOFF} offen")

    def body(last):
        for j in range(0, 16, 2):
            ld = not last or j + D < 16
            if not last or j == 0:
                e.label(f"L_{'f' if last else 'j'}{j}")
            nx = pq(j + 1)
            e(f"s_waitcnt vmcnt({D-1 if ld else 15-j})"); al()
            mf(j, 0)
            if ld:
                rl(j + D, j)
            e(*nx[:1]); mf(j, 1); e(*nx[1:])
            if ld and P["SCH"] == 2:
                sand(j + D); e(f"s_waitcnt vmcnt({D-2})"); xl(j + D)
            elif ld:
                sand(j + D); xl(j + D); e(f"s_waitcnt vmcnt({D-1})")
            else:
                e(f"s_waitcnt vmcnt({14-j})"); al()
            nx = pq(j + 2) if j < 14 else []
            mf(j + 1, 0)
            if ld:
                rl(j + 1 + D, j + 1)
            e(*nx[:1]); mf(j + 1, 1); e(*nx[1:])
            if j == 2 and not last:
                e("s_waitcnt lgkmcnt(0)")
                ea_reads(); al()
            if ld:
                sand(j + 1 + D)
            e(f"s_set_gpr_idx_on s{SK + j % 8}, gpr_idx(SRC2,DST)")
            xl(j + 1 + D) if ld else al()
            pks(j)
            e(f"s_set_gpr_idx_idx s{SK + (j + 1) % 8}")
            if j == 14 and not last:
                e(f"s_sub_u32 s{sCNT}, s{sCNT}, 1")
            al()
            pks(j + 1)
            if j % 4 == 2 and not last:
                zq(j // 4)
            e("s_set_gpr_idx_off")

    e("s_waitcnt lgkmcnt(1)")
    e(f"v_lshlrev_b32 v{K}, 3, v{K}", f"v_and_b32 v{K}, s{sT2}, v{K}")
    if P["EAF"]:
        ea_reads()
    for q in (2, 4, 6):
        e(f"s_cmp_eq_u32 s{SK+8}, {q}", f"s_cbranch_scc1 L_p{q}")
    for q in range(0, 12, 2):
        e.label(f"L_p{q}")
        rl(q, q); rl(q + 1, q + 1)
        sand(q); xl(q); sand(q + 1); xl(q + 1)
        if 4 <= q < 10:
            e(f"s_cmp_eq_u32 s{SK+8}, {q-4}", "s_cbranch_scc1 L_pd")
    e.label("L_pd")
    if not P["EAF"]:
        ea_reads()
    ts.stamp("b5")
    head("first")
    e(f"s_set_gpr_idx_on s{sP0}, gpr_idx(SRC0,SRC1)")
    e.idx_range, keep = {("v", i) for i in range(AGN, AGN + 16)}, e.idx_range
    e(pq(0)[0])
    e.idx_range = keep
    e("s_set_gpr_idx_off")
    e(*pq(0)[1:])
    e("s_waitcnt lgkmcnt(0)")
    ea_reads()
    e(f"s_cmp_eq_u32 s{sCNT}, 0", "s_cbranch_scc1 L_f0")
    for j in range(0, 14, 2):
        e(f"s_cmp_eq_u32 s{sP0}, {j}", f"s_cbranch_scc1 L_j{j}")
        if j % 4 == 2:
            zq(j // 4)
    e("s_branch L_j14")
    e(".p2align 3")
    e.label("L_loop")
    head("mid")
    body(False)
    e(f"s_cmp_lg_u32 s{sCNT}, 0", "s_cbranch_scc1 L_loop")
    head("last")
    body(True)
    e.label("L_swept")
    ts.stamp("swept")
    e(f"s_add_u32 s{sROFF}, s{sROFF}, {CAPW}", f"s_cmp_lt_u32 s{sROFF}, s{sN}", "s_cbranch_scc1 L_again")
    AF, DD, OB, OT = ACC, 160, 64, 80
    if P["EPRIO"] >= 0:
        e(f"s_setprio {P['EPRIO']}")
    for s in range(5):
        for w in range(4):
            e(f"v_cvt_pk_bf16_f32 v{RW+4*s+w}, v{ACC+8*s+w}, v{ACC+8*s+4+w}")
        for w in (0, 2):
            e(f"ds_write2_b32 v{eAG[s]}, v{RW+4*s+w}, v{RW+4*s+w+1} offset0:{72*w} offset1:{72*w+72}")
    NPRE = P["WFPRE"]
    for q in range(NK, NPRE):
        e(f"ds_read_b128 {vr(WF[q],4)}, v{eWF} offset:{1024*q}")
    e(f"s_waitcnt lgkmcnt({NPRE - NK})", "s_barrier")
    ts.stamp("agb")
    lq = [f"w{q}" for q in range(NPRE)]

    def lop(tag, text):
        e(text); lq.append(tag)

    def lwait(*tags):
        n = len(lq) - 1 - max(lq.index(t) for t in tags)
        e(f"s_waitcnt lgkmcnt({min(n, 15)})")

    def afrag(k, ss=range(4)):
        for s in ss:
            lop(f"a{k}{s}", f"ds_read_b128 {vr(AF+16*k+4*s,4)}, v{eFR} offset:{AGL + 4608*k + 64*s}")

    def post(k, pol=P['OUTPOL']):
        d, o = DD + 16 * (k % 2), OB + 8 * (k % 2)
        x = []
        for r in range(2):
            for c in range(2):
                x.append(f"v_cvt_pk_bf16_f32 v{o+4*r+c}, v{d+8*c+r}, v{d+8*c+4+r}")
                x.append(f"v_cvt_pk_bf16_f32 v{OT+2*r+c}, v{d+8*c+r}, v{d+8*c+4+r}")
                x.append(f"v_cvt_pk_bf16_f32 v{o+4*r+2+c}, v{d+8*c+r+2}, v{d+8*c+4+r+2}")
            for c in range(2):
                x.append(f"v_mov_b32_dpp v{o+4*r+c}, v{o+4*r+2+c} row_ror:8 row_mask:0xf bank_mask:0xc")
            for c in range(2):
                x.append(f"v_mov_b32_dpp v{o+4*r+2+c}, v{OT+2*r+c} row_ror:8 row_mask:0xf bank_mask:0x3")
            x.append(f"buffer_store_dwordx4 {vr(o+4*r,4)}, v{eST}, {sr(sOUT)}, s{sEO} offen offset:{256*r} {pol}")
        x.append(f"s_add_u32 s{sEO}, s{sEO}, 4096")
        return x

    def tile(k, pend):
        d = DD + 16 * (k % 2)
        for s in range(4):
            if k == 0:
                lwait(f"a0{s}", f"w{4*s+3}")
            elif s == 0:
                lwait(f"a{k}3")
            for t in range(4):
                c = "0" if s == 0 else vr(d + 4 * t, 4)
                e(f"v_mfma_f32_16x16x32_bf16 {vr(d+4*t,4)}, {vr(AF+16*k+4*s,4)}, {vr(WF[4*s+t],4)}, {c}")
                if 4 * s + t >= 4:
                    e(*pend[:2]); pend = pend[2:]
            if k == 0 and s == 0:
                afrag(1)
            if k == 0 and s == 1:
                afrag(2)
        e(*pend)

    for s in range(4):
        afrag(0, [s])
        for q in range(max(NPRE, 4 * s), 4 * s + 4):
            lop(f"w{q}", f"ds_read_b128 {vr(WF[q],4)}, v{eWF} offset:{1024*q}")
    tile(0, [])
    tile(1, post(0))
    e("s_cmp_ge_u32 s3, 4", "s_cbranch_scc1 L_two")
    tile(2, post(1))
    e(*post(2, P['LASTPOL']))
    e.label("L_stored")
    ts.stamp("stored")
    e("s_or_b32 s4, s2, s3", "s_cbranch_scc1 L_notag")
    e(f"v_mov_b32 v{T}, s{sTAG}", f"v_lshlrev_b32 v{T+2}, 2, v{LANE}", f"s_mov_b32 s{sT}, {WS_W}")
    e(f"buffer_store_dword v{T}, v{T+2}, {sr(sTAB)}, s{sT} offen sc1")
    e.label("L_notag")
    if P["DIAGW"] and P["DIAGAT"] == "fin":
        e("s_waitcnt vmcnt(0)")
        ts.stamp("fin")
    if P["DIAGL"] == 1:
        e(f"s_add_u32 s8, s14, {WS_TS}", "s_addc_u32 s9, s15, 0", "s_load_dword s6, s[8:9], 0", "s_waitcnt lgkmcnt(0)")
        e.label("L_diag")
        e("s_memrealtime s[4:5]", "s_waitcnt lgkmcnt(0)", "s_sub_u32 s4, s4, s6", "s_cmp_lt_u32 s4, 4000", "s_cbranch_scc1 L_diag")
    if P["DIAGL"] == 2:
        e("s_or_b32 s4, s2, s3", "s_cbranch_scc1 L_done")
        e(f"v_mov_b32 v{T}, s{sTSP}", f"v_mov_b32 v{T+1}, {WS_TS}", f"global_store_dword v{T+1}, v{T}, s[14:15]")
    if P["DIAGW"]:
        e(f"s_add_u32 s6, s{sTSP+1}, {P['DIAGW']}", "s_min_u32 s6, s6, 30000")
        e.label("L_diag")
        e("s_memrealtime s[4:5]", "s_waitcnt lgkmcnt(0)", f"s_sub_u32 s4, s4, s{sTSP}", "s_cmp_lt_u32 s4, s6", "s_cbranch_scc1 L_diag")
    if P["DIAGC"]:
        e("s_memtime s[6:7]", "s_waitcnt lgkmcnt(0)")
        e.label("L_diag")
        e("s_memtime s[4:5]", "s_waitcnt lgkmcnt(0)", "s_sub_u32 s4, s4, s6", f"s_cmp_lt_u32 s4, {P['DIAGC']}", "s_cbranch_scc1 L_diag")
    if P["TS"]:
        e("s_waitcnt vmcnt(0)")
        ts.stamp("end")
        e(f"s_lshl_b32 s{sT}, s2, 3", f"s_add_u32 s{sT}, s{sT}, s3", f"s_lshl_b32 s{sT}, s{sT}, 8", f"s_add_u32 s{sT}, s{sT}, {WS_TS}")
        e(f"v_lshl_add_u32 v{T}, v{LANE}, 2, s{sT}", f"global_store_dword v{T}, v{TSV}, s[14:15]")
        if P["DBG"]:
            e(f"s_cmp_lg_u32 s2, {P['DBG']}", "s_cbranch_scc1 L_done", "s_cmp_lg_u32 s3, 0", "s_cbranch_scc1 L_done")
            e("s_load_dwordx2 s[4:5], s[0:1], 72", f"v_readlane_b32 s{sT}, v{TSV}, 0", f"v_lshlrev_b32 v{T}, 2, v{LANE}")
            e(f"v_subrev_u32 v{TSV}, s{sT}, v{TSV}", "s_waitcnt lgkmcnt(0)", f"global_store_dword v{T}, v{TSV}, s[4:5]")
    e.label("L_done")
    e("s_endpgm")
    e.label("L_again")
    e("s_waitcnt vmcnt(0) lgkmcnt(0)", "s_barrier")
    init_round(False)
    e(f"v_add_u32 v{RLEN}, v{RLEN}, v{RBASE}", f"v_subrev_u32 v{RLEN}, {CAPW}, v{RLEN}", f"v_max_i32 v{RLEN}, 0, v{RLEN}")
    e(f"v_subrev_u32 v{RBASE}, {CAPW}, v{RBASE}", f"v_max_i32 v{RBASE}, 0, v{RBASE}", f"v_sub_u32 v{RLEN}, v{RLEN}, v{RBASE}")
    e(f"v_add_u32 v{RG0}, {CAPW}, v{RG0}", f"s_sub_i32 s{sNW}, s{sNW}, {CAPW}", f"v_lshl_add_u32 v{T}, v{RBASE}, 2, v{cMAPW}")
    e("s_waitcnt lgkmcnt(0)", "s_barrier")
    e.label("L_clip")
    e(f"v_add_u32 v{T+2}, v{RBASE}, v{RLEN}", f"v_min_i32 v{T+2}, {CAPW}, v{T+2}", f"v_sub_u32 v{T+2}, v{T+2}, v{RBASE}", f"v_add_u32 v{T+2}, v{T+2}, v{cODD}")
    e.label("L_masks")
    e(*cmps)
    e("s_nop 0", "s_branch L_mapw")
    e.label("L_map2")
    e(f"v_add_u32 v{T}, {8*MU}, v{T}", f"v_subrev_u32 v{T+2}, {2*MU}, v{T+2}")
    e("s_branch L_masks")
    e.label("L_r1")
    e(f"ds_read_b32 v{G1+3}, v{cMAP1} offset:768", f"ds_read_b32 v{G2+6}, v{cMAP2} offset:768")
    e("s_waitcnt lgkmcnt(0)")
    skld(3)
    for i in (6,):
        e(f"v_lshl_add_u32 v{G2+i}, v{G2+i}, 5, v{X16}")
        bea1(i)
    e("s_branch L_r1b")
    e.label("L_r2")
    count(3)
    entry(3)
    e("s_branch L_r2b")
    e.label("L_r3")
    e(f"ds_read_b32 v{CA+3}, v{CA+3} offset:{CNT2}", "s_waitcnt lgkmcnt(0)")
    e(*place(3))
    e(f"ds_read_b32 v{G1+3}, v{G1+3} offset:{START}", "s_waitcnt lgkmcnt(0)")
    scatter(3)
    e("s_branch L_r3b")
    if NS:
        e.label("L_guard")
        e(f"s_movk_i32 s{sNW}, 64")
        if P["GP"] == 0:
            e(f"v_cmp_ne_u32 vcc, s{sTAG}, v{SG+1}", "s_cbranch_vccz L_guarded")
        e.label("L_guard2")
        e(gpoll, f"s_sub_u32 s{sNW}, s{sNW}, 1", "s_cbranch_scc1 L_guarded", "s_waitcnt vmcnt(0)")
        e(f"v_cmp_ne_u32 vcc, s{sTAG}, v{SG+1}", "s_cbranch_vccnz L_guard2", "s_branch L_guarded")
    e.label("L_two", pad=8)
    e(*post(1, P['LASTPOL']))
    e("s_branch L_stored")
    e.label("L_poll")
    e(poll1, f"s_sub_u32 s{sCNT}, s{sCNT}, 1", "s_cbranch_scc1 L_done", "s_waitcnt vmcnt(0)")
    tagcheck()
    e("s_cbranch_execnz L_poll", "s_branch L_polled")
    e.label("L_rank2")
    for j in range(5):
        e(f"ds_read_b32 v{CN+j}, v{cROW} offset:{CNT2 + 128*j}")
    bea(5)
    e("s_waitcnt lgkmcnt(0)")
    e.label("L_end")
    e("s_branch L_ranked")
    return e.text(), LDS, 256, 102


HEADER = """; Kernarg layout for this problem (88 bytes, ptrs only, base s[0:1]):
"""


def generate(**kw):
    P = dict(DEF)
    P.update(kw)
    k, lds, v, s = gen(P)
    n = NAME + "_kernel"
    out = HEADER
    tiny = ""
    if P["DIAGL"]:
        t = "; @launch kernel=tiny_kernel grid=(1,1,1) block=(64,1,1) lds=0\n"
        m = f"; @launch kernel={n} grid=(256,1,1) block=(512,1,1) lds={lds}\n"
        out += t + m if P["DIAGL"] == 1 else m + t
        tiny = ".globl tiny_kernel\n.p2align 8\n.type tiny_kernel,@function\ntiny_kernel:\ns_memrealtime s[4:5]\ns_load_dwordx2 s[14:15], s[0:1], 80\ns_waitcnt lgkmcnt(0)\n"
        if P["DIAGL"] == 1:
            tiny += f"v_mov_b32 v1, s4\nv_mov_b32 v2, {WS_TS}\nglobal_store_dword v2, v1, s[14:15]\ns_endpgm\n"
        else:
            tiny += f"s_add_u32 s8, s14, {WS_TS}\ns_addc_u32 s9, s15, 0\ns_load_dword s6, s[8:9], 0\ns_waitcnt lgkmcnt(0)\nL_td:\ns_memrealtime s[4:5]\ns_waitcnt lgkmcnt(0)\ns_sub_u32 s4, s4, s6\ns_cmp_lt_u32 s4, 4000\ns_cbranch_scc1 L_td\ns_endpgm\n"
    else:
        out += f"; @launch grid=(256,1,1) block=(512,1,1) lds={lds}\n"
    out += '.amdgcn_target "amdgcn-amd-amdhsa--gfx950"\n.text\n' + tiny
    out += f".globl {n}\n.p2align 8\n.type {n},@function\n{n}:\n{k}"
    out += '.section .rodata,"a"\n'
    out += (f".p2align 6\n.amdhsa_kernel {n}\n  .amdhsa_next_free_vgpr {v}\n  .amdhsa_next_free_sgpr {s}\n"
            f"  .amdhsa_accum_offset {(v+3)//4*4}\n  .amdhsa_group_segment_fixed_size 0\n  .amdhsa_kernarg_size 88\n"
            f"  .amdhsa_user_sgpr_count 2\n  .amdhsa_user_sgpr_kernarg_segment_ptr 1\n  .amdhsa_system_sgpr_workgroup_id_x 1\n"
            f"  .amdhsa_float_denorm_mode_32 3\n.end_amdhsa_kernel\n")
    if tiny:
        out += (".p2align 6\n.amdhsa_kernel tiny_kernel\n  .amdhsa_next_free_vgpr 8\n  .amdhsa_next_free_sgpr 32\n  .amdhsa_accum_offset 8\n"
                "  .amdhsa_group_segment_fixed_size 0\n  .amdhsa_kernarg_size 88\n  .amdhsa_user_sgpr_count 2\n  .amdhsa_user_sgpr_kernarg_segment_ptr 1\n"
                "  .amdhsa_system_sgpr_workgroup_id_x 1\n.end_amdhsa_kernel\n")
    return out


if __name__ == "__main__":
    kw = {}
    for a in sys.argv[1:]:
        k, v = a.split("=", 1)
        kw[k] = int(v) if v.lstrip("-").isdigit() else v
    sys.stdout.write(generate(**kw))
```

```python
import sys, os
sys.path.insert(0, os.path.dirname(os.path.abspath(__file__)))
from emit import Emitter

NAME = "gather_scatter__tensor_product_equiv_mace__graph"
N, E = 10000, 320000
CH, NCH, CS = 1250, 256, 1280
WS_TAB, WS_W, WS_SK, WS_EA, WS_TS = 0, 0x80000, 0x100000, 0x500000, 0x2000000
CAPW, GAP = 224, 16
CAP = 8 * CAPW
SPIN = 200000

DEF = dict(PW=0, WFPRE=16, WFK=6, LASTPOL='sc1', EPRIO=0, BIAS=30, EAF=1, SCH=2, ALIGN=1, PRIO=1, DIAGW=0, DIAGK=0, DIAGAT='tab', D=6, TS=0, DBG=0, APOL="nt", AEA="00222", BEA="011222", SKBAR=1, ABAR=2, XPF=18, CPF=2, MU=7, OUTPOL="sc1", LDPOL="sc1", WST=3, WOST=3, ACCZ=2, CPOS=2, WGN=0)

PART39 = [[3, 11, 21, 31, 36], [5, 8, 20, 27, 38], [0, 6, 7, 13, 39], [9, 14, 18, 25, 34], [10, 16, 19, 24, 32], [4, 12, 26, 29, 33], [1, 17, 23, 28, 37], [2, 15, 22, 30, 35]]
PART40 = [[1, 10, 15, 30, 39], [2, 9, 21, 28, 37], [4, 14, 22, 27, 31], [6, 12, 18, 24, 35], [3, 8, 16, 29, 38], [5, 13, 17, 26, 34], [0, 20, 23, 32, 36], [7, 11, 19, 25, 33]]
PARTS = {0: (PART39, PART40)}
PARTS[12] = ([[12, 16, 24, 26, 30], [8, 14, 15, 31, 36], [2, 10, 23, 34, 37], [5, 17, 18, 22, 38], [0, 1, 7, 19, 39], [3, 11, 20, 29, 35], [6, 9, 25, 27, 32], [4, 13, 21, 28, 33]],
    [[9, 12, 19, 28, 32], [3, 10, 22, 29, 37], [7, 8, 23, 26, 36], [0, 18, 20, 34, 38], [5, 6, 14, 21, 39], [4, 11, 16, 24, 35], [1, 15, 25, 27, 31], [2, 13, 17, 30, 33]])
PARTS[20] = ([[13, 17, 24, 26, 31], [4, 16, 25, 29, 36], [5, 19, 23, 28, 35], [1, 6, 8, 10, 39], [7, 9, 20, 27, 32], [3, 12, 14, 33, 34], [2, 15, 18, 22, 37], [0, 11, 21, 30, 38]],
    [[11, 12, 17, 20, 38], [3, 16, 26, 28, 34], [8, 10, 19, 29, 36], [7, 14, 25, 27, 31], [6, 13, 15, 24, 30], [0, 9, 22, 23, 39], [2, 4, 21, 32, 35], [1, 5, 18, 33, 37]])
PARTS[30] = ([[12, 16, 25, 29, 32], [0, 5, 9, 20, 39], [1, 18, 27, 34, 37], [7, 19, 22, 30, 35], [2, 6, 24, 26, 36], [4, 11, 13, 31, 33], [10, 15, 17, 21, 28], [3, 8, 14, 23, 38]],
    [[6, 9, 26, 28, 37], [1, 11, 24, 35, 38], [5, 17, 23, 31, 33], [8, 12, 21, 29, 36], [2, 4, 15, 22, 39], [7, 10, 14, 18, 34], [0, 16, 20, 30, 32], [3, 13, 19, 25, 27]])
PARTS[40] = ([[7, 13, 28, 29, 37], [10, 17, 22, 30, 36], [1, 4, 6, 23, 39], [9, 19, 26, 31, 33], [5, 12, 15, 18, 35], [2, 11, 16, 27, 34], [0, 8, 24, 25, 38], [3, 14, 20, 21, 32]],
    [[8, 17, 25, 31, 32], [3, 19, 22, 28, 38], [6, 15, 18, 33, 37], [2, 14, 24, 29, 39], [0, 12, 21, 27, 34], [1, 9, 13, 26, 36], [5, 7, 10, 23, 35], [4, 11, 16, 20, 30]])
PARTS[50] = ([[2, 19, 28, 35, 37], [0, 6, 11, 24, 39], [15, 17, 27, 29, 34], [1, 20, 30, 32, 38], [4, 7, 18, 23, 33], [9, 10, 12, 21, 31], [5, 13, 16, 25, 26], [3, 8, 14, 22, 36]],
    [[7, 15, 27, 30, 36], [8, 18, 19, 28, 38], [4, 14, 31, 33, 35], [6, 13, 20, 29, 39], [2, 3, 22, 23, 34], [0, 11, 12, 26, 37], [1, 9, 17, 24, 32], [5, 10, 16, 21, 25]])


def vr(a, n):
    return f"v[{a}:{a+n-1}]" if n > 1 else f"v{a}"


def sr(a, n=4):
    return f"s[{a}:{a+n-1}]"


def scan_dpp(e, v, full):
    for k in (1, 2, 4, 8):
        e(f"v_add_u32_dpp v{v}, v{v}, v{v} row_shr:{k} row_mask:0xf bank_mask:0xf")
    e(f"v_add_u32_dpp v{v}, v{v}, v{v} row_bcast:15 row_mask:0xa bank_mask:0xf")
    if full:
        e(f"v_add_u32_dpp v{v}, v{v}, v{v} row_bcast:31 row_mask:0xc bank_mask:0xf")


class TS:
    last = None

    def __init__(self, e, on, pair, vreg):
        self.e, self.on, self.pair, self.v, self.names = e, on, pair, vreg, []
        TS.last = self

    diag = None

    def stamp(self, name):
        if self.diag and self.diag[0] == name:
            self.e("s_memrealtime s[4:5]", "s_waitcnt lgkmcnt(0)", f"s_sub_u32 s4, s4, s{self.pair}", f"s_mul_i32 s{self.pair+1}, s4, {self.diag[1]}")
        if self.on and (self.on == 1 or name in str(self.on).split(",") or name in ("start", "end")):
            e, p = self.e, self.pair
            e(f"s_memrealtime s[{p}:{p+1}]", "s_waitcnt lgkmcnt(0)", f"v_writelane_b32 v{self.v}, s{p}, {len(self.names)}")
            self.names.append(name)


class VQ:
    def __init__(self, e):
        self.e, self.q = e, []

    def op(self, tag, text):
        self.e(text)
        self.q.append(tag)

    def n(self, tag):
        idx = max(i for i, t in enumerate(self.q) if t == tag)
        return len(self.q) - 1 - idx

    def wait(self, tag, extra=""):
        self.e(f"s_waitcnt vmcnt({self.n(tag)}) {extra}".strip())


def gen(P):
    e = Emitter()
    vq = VQ(e)
    D = P["D"]
    R = 8
    MAP, CNT2, WB, DEG, TOT, NODEOF, START, WR, WO = 0, 8192, 13312, 14336, 15360, 15616, 16384, 17408, 46080
    LIST = WO + 32768
    SHST = LIST + (CAP + 8 * GAP + 128) * 4
    EAST = SHST + CAP * 8
    assert SHST + CAP * 8 <= EAST
    ZERO = EAST + CAP * 32
    LDS = ZERO + 64
    AGL = 0
    ACNT, ASTART, AINV, ASKS = 23552, 24576, 25600, 30720
    assert ASKS + CS * 12 <= WO and LDS <= 163840
    LANE, X16, RLEN, RBASE, RG0, ONE, PFV = 1, 2, 3, 4, 5, 6, 7
    T = 8
    ACC, RW, XR, TP, AGN, PQ, EA0, EA1, WRF, CGF, ENT = 16, 64, 96, 128, 144, 160, 164, 168, 172, 188, 192
    MP, MQ = CGF + 2, CGF + 3
    SIX, ZAD = EA1, EA1 + 1
    K, KN, LA, LB, EAC, LAC, LBC, RT, TSV = 196, 197, 198, 199, 200, 201, 202, 203, 204
    cODD, cMAPW, cMAP1, cMAP2, cL12, cDEG, cSH, cR21, cROW, cTIE, cBIN, cNOD, cLST = range(240, 253)
    e.idx_range = {("v", i) for i in range(ACC, ACC + 48)}
    sX, sTAB, sSK, sEA, sA0, sA1, sOUT = 16, 20, 24, 28, 32, 36, 40
    sB, sNB, sNCNT, sN, sROFF, sNR, sNV, sBASE, sEM, sCNT, sT, sT2 = 44, 45, 46, 47, 48, 49, 50, 51, 52, 53, 54, 55
    sNODE = 56
    sOFF = 61
    sTAG, sTAG2 = 62, 63
    SK = 64
    sV = 80
    sM0 = 86
    sASG = [90, 91, 92, 93, 94]
    sNW, sK4 = 95, 98
    sA2, sTSP = 96, 100
    ts = TS(e, P["TS"], sTSP, TSV)
    if P["DIAGW"]:
        ts.diag = (P["DIAGAT"], P["DIAGK"])
    apol, ldpol = P["APOL"], P["LDPOL"]
    astage = [int(c) for c in str(P["AEA"]).zfill(5)]
    bstage = [int(c) for c in str(P["BEA"]).zfill(6)]

    def srd(s, lo, hi, off, size):
        if off is None:
            e(f"s_mov_b32 s{s}, s{lo}", f"s_mov_b32 s{s+1}, s{hi}")
        else:
            e(f"s_add_u32 s{s}, s{lo}, {off}", f"s_addc_u32 s{s+1}, s{hi}, 0")
        e(f"s_mov_b32 s{s+2}, {size}", f"s_mov_b32 s{s+3}, 0x20000")

    def init_round(first):
        e(f"v_lshlrev_b32 v{T+3}, 2, v0", f"v_mov_b32 v{T+4}, 0x00700000", f"v_mov_b32 v{T+5}, 0")
        for i in range(4):
            e(f"ds_write_b32 v{T+3}, v{T+4} offset:{MAP + i*2048}")
        for i in range(4 if first else 3):
            e(f"ds_write_b32 v{T+3}, v{T+5} offset:{CNT2 + i*2048}")

    DSTV, SRCV, SHV, BK, BA, RK, NL, KEY, CT, ST, PS = 64, 68, 72, 80, 84, 88, 92, 96, 100, 104, 108
    TABV = 112
    OUTV = 128
    IV = 156
    CGR = 120
    if P["TS"]:
        e("s_memrealtime s[92:93]")
    e("s_cmp_ge_u32 s2, 256", "s_cbranch_scc1 L_done")
    e("s_load_dwordx4 s[4:7], s[0:1], 8")
    e("s_load_dwordx4 s[8:11], s[0:1], 24")
    e("s_load_dwordx2 s[14:15], s[0:1], 80")
    e(f"s_load_dwordx2 s[{SK}:{SK+1}], s[0:1], 0")
    e(f"s_load_dwordx2 s[{SK+2}:{SK+3}], s[0:1], 40")
    e(f"s_load_dwordx4 s[{SK+4}:{SK+7}], s[0:1], 48")
    e("s_load_dwordx2 s[12:13], s[0:1], 64")

    def cpf():
        e(f"s_getpc_b64 s[{sV}:{sV+1}]")
        e.label("L_pc")
        e(f"s_and_b32 s{sB}, s2, 0xf8", f"s_lshl_b32 s{sB}, s{sB}, 6")
        e(f"v_and_b32 v{T+3}, 0x180, v{T+2}", f"v_add_u32 v{T+3}, s{sB}, v{T+3}", f"v_min_u32 v{T+3}, L_end-L_pc, v{T+3}")
        e(f"v_mov_b32 v{TABV+1}, s{sV+1}", f"v_add_co_u32 v{TABV}, vcc, s{sV}, v{T+3}", f"v_addc_co_u32 v{TABV+1}, vcc, 0, v{TABV+1}, vcc")
        vq.op("cpf", f"global_load_dword v{TSV+1}, {vr(TABV,2)}, off")

    def srd_hi(s, size):
        e(f"s_mov_b32 s{s+2}, {size}", f"s_mov_b32 s{s+3}, 0x20000")

    def srd_lo(s, lo, off):
        e(f"s_add_u32 s{s}, s{lo}, {off}", f"s_addc_u32 s{s+1}, s{lo+1}, 0")

    e(f"v_lshlrev_b32 v{T+2}, 3, v0")
    if P["CPF"] == 2:
        cpf()
    e(f"v_lshrrev_b32 v{T}, 6, v0", f"v_and_b32 v{LANE}, 63, v0", f"v_lshlrev_b32 v{T+1}, 2, v0", f"v_mov_b32 v{T+5}, 0")
    e(f"v_readfirstlane_b32 s3, v{T}")
    e(f"ds_write_b32 v{T+1}, v{T+5} offset:{ACNT}", f"ds_write_b32 v{T+1}, v{T+5} offset:{AINV+3072}")
    e(f"s_mul_i32 s{sT}, s2, {CH*4}", f"s_mul_i32 s{sT2}, s2, {CH*8}", f"s_mul_i32 s{sOFF}, s2, {CH*32}")
    e(f"v_lshlrev_b32 v{X16}, 4, v{LANE}", f"v_lshlrev_b32 v{T+7}, 4, v0", f"v_mov_b32 v{ONE}, 1")
    e(f"s_lshl_b32 s{sEM}, s3, 10", f"s_add_u32 s{sEM}, s{sEM}, {EAST}", f"s_movk_i32 s{sCNT}, 4096", f"s_movk_i32 s{sNV}, 8192")
    srd_hi(sA0, CH * 4); srd_hi(sA1, CH * 4); srd_hi(sA2, CH * 8); srd_hi(sEA, CH * 32)
    if P["DIAGW"]:
        e(f"s_memrealtime s[{sTSP}:{sTSP+1}]")
    e("s_waitcnt lgkmcnt(0)")
    if P["TS"]:
        e(f"v_writelane_b32 v{TSV}, s92, 0")
        ts.names.append("first")
    ts.stamp("start")
    srd_lo(sA0, 6, f"s{sT}")
    for i in range(3):
        o = f"0 offen offset:{2048*i}" if i < 2 else f"s{sCNT} offen"
        vq.op("dst", f"buffer_load_dword v{DSTV+i}, v{T+1}, {sr(sA0)}, {o} {apol}")
    srd_lo(sA1, 4, f"s{sT}")
    if P["ABAR"] == 2:
        e("s_barrier")
    for i in range(3):
        o = f"0 offen offset:{2048*i}" if i < 2 else f"s{sCNT} offen"
        vq.op("src", f"buffer_load_dword v{SRCV+i}, v{T+1}, {sr(sA1)}, {o} {apol}")
    e(f"s_load_dword s{sTAG}, s[14:15], {WS_W}")
    if P["CPF"] == 1:
        cpf()
    srd_lo(sA2, 8, f"s{sT2}")
    srd_lo(sEA, 10, f"s{sOFF}")
    if P["ABAR"] == 1:
        e("s_barrier")
    for i, o in enumerate(("0", f"s{sCNT}", f"s{sNV}")):
        vq.op("sh", f"buffer_load_dwordx2 {vr(SHV+2*i,2)}, v{T+2}, {sr(sA2)}, {o} offen {apol}")

    def aea(p):
        for i in range(5):
            if astage[i] == p:
                e(f"s_add_u32 m0, s{sEM}, {8192*i}", f"s_mov_b32 s{sT}, {8192*i}")
                vq.op("ea", f"buffer_load_dwordx4 v{T+7}, {sr(sEA)}, s{sT} offen {apol} lds")
        if P["WST"] == p:
            weights()
        if P["WOST"] == p:
            wout()

    def weights():
        e("s_cmp_lt_u32 s3, 4")
        e(f"s_cselect_b32 s{sX}, s{SK+4}, s{SK+2}", f"s_cselect_b32 s{sX+1}, s{SK+5}, s{SK+3}", f"s_movk_i32 s{sT}, 128",
          f"s_cselect_b32 s{sX+2}, s{sCNT}, s{sT}", f"s_mov_b32 s{sX+3}, 0x20000")
        e(f"s_min_u32 s{sT}, s3, 5", f"s_lshl_b32 s{sT}, s{sT}, 10", f"s_add_u32 m0, s{sT}, {WR}", f"s_and_b32 s{sT}, s{sT}, 0xc00")
        vq.op("w", f"buffer_load_dwordx4 v{X16}, {sr(sX)}, s{sT} offen lds")

    def wout():
        srd(sOUT, SK + 6, SK + 7, None, 32768)
        e(f"s_lshl_b32 s{sT2}, s3, 12", f"s_add_u32 m0, s{sT2}, {WO}")
        for i in range(4):
            vq.op("w", f"buffer_load_dwordx4 v{X16}, {sr(sOUT)}, s{sT2} offen offset:{i*1024} lds")

    aea(0)
    if not P["ABAR"]:
        e("s_barrier")
    e(f"s_mov_b32 s{SK+8}, 109951168", f"s_movk_i32 s{SK+9}, 625", f"s_movk_i32 s{SK+10}, 838")
    e(f"v_cmp_gt_u32 s[{sV+4}:{sV+5}], {CH-1024}, v0") if CH - 1024 <= 64 else e(f"s_movk_i32 s{sT}, {CH-1024}", f"v_cmp_gt_u32 s[{sV+4}:{sV+5}], s{sT}, v0")
    srd(sTAB, 14, 15, None, WS_W + 64)
    init_round(True)
    if P["ACCZ"] == 9:
        for i in range(48):
            e(f"v_mov_b32 v{ACC+i}, 0")
    vq.wait("dst")
    ts.stamp("dst")
    for k in range(3):
        e(f"v_mul_hi_u32 v{BK+k}, v{DSTV+k}, s{SK+8}")
    for k in range(3):
        e(f"v_lshlrev_b32 v{BA+k}, 2, v{BK+k}")
        if k == 2:
            e(f"s_mov_b64 exec, s[{sV+4}:{sV+5}]")
        e(f"ds_add_rtn_u32 v{RK+k}, v{BA+k}, v{ONE} offset:{ACNT}")
    e("s_mov_b64 exec, -1")
    e("s_waitcnt lgkmcnt(0)", "s_barrier")
    ts.stamp("hist")
    e(f"ds_read_b128 {vr(CT,4)}, v{X16} offset:{ACNT}")
    e(f"s_mul_i32 s{sTAG}, s{sTAG}, 0x9e3779b1", f"s_add_u32 s{sTAG}, s{sTAG}, 0x7f4a7c15")
    e(f"s_mul_i32 s{sTAG2}, s{sTAG}, 0x85ebca6b", f"s_and_b32 s{sTAG2}, s{sTAG2}, 0xffc00000")
    aea(1)
    for k in range(3):
        e(f"v_mad_u32_u24 v{NL+k}, v{BK+k}, s{SK+9}, 15", f"v_lshrrev_b32 v{NL+k}, 4, v{NL+k}", f"v_sub_u32 v{NL+k}, v{DSTV+k}, v{NL+k}")
    e("s_waitcnt lgkmcnt(0)")
    e(f"v_add_u32 v{T+3}, v{CT}, v{CT+1}", f"v_add3_u32 v{T+3}, v{T+3}, v{CT+2}, v{CT+3}", f"v_mov_b32 v{T+4}, v{T+3}")
    scan_dpp(e, T + 4, True)
    e(f"v_sub_u32 v{ST}, v{T+4}, v{T+3}")
    for k in range(3):
        e(f"v_add_u32 v{ST+1+k}, v{ST+k}, v{CT+k}")
    e(f"ds_write_b128 v{X16}, {vr(ST,4)} offset:{ASTART}")
    for k in range(3):
        e(f"ds_read_b32 v{PS+k}, v{BA+k} offset:{ASTART}")
    vq.wait("src")
    for k in range(3):
        e(f"v_mul_u32_u24 v{KEY+k}, s{SK+10}, v{SRCV+k}", f"v_bfe_u32 v{KEY+k}, v{KEY+k}, 18, 5")
        e(f"v_lshl_or_b32 v{KEY+k}, v{NL+k}, 5, v{KEY+k}",
          f"v_lshlrev_b32 v{KEY+k}, 21, v{KEY+k}", f"v_lshl_or_b32 v{KEY+k}, v{SRCV+k}, 7, v{KEY+k}")
    e(f"v_lshlrev_b32 v{NL}, 5, v0", f"v_add_u32 v{NL+1}, {512*32}, v{NL}", f"v_add_u32 v{NL+2}, {1024*32}, v{NL}")
    e(f"s_mov_b32 s{sT2}, {ASKS}")
    vq.wait("sh", "lgkmcnt(0)")
    for k in range(3):
        e(f"v_add_u32 v{PS+k}, v{PS+k}, v{RK+k}")
        e(f"v_lshlrev_b32 v{BA+k}, 2, v{PS+k}", f"v_mad_u32_u24 v{PS+k}, v{PS+k}, 12, s{sT2}")
        if k == 2:
            e(f"s_mov_b64 exec, s[{sV+4}:{sV+5}]")
        e(f"ds_write_b32 v{BA+k}, v{NL+k} offset:{AINV}")
        e(f"ds_write2_b32 v{PS+k}, v{SHV+2*k}, v{SHV+2*k+1} offset0:0 offset1:1")
        e(f"ds_write_b32 v{PS+k}, v{KEY+k} offset:8")
    e("s_mov_b64 exec, -1")
    aea(2)
    e(f"s_lshl_b32 s{sT}, s3, 7", f"v_lshl_add_u32 v{T+3}, v{LANE}, 3, s{sT}")
    e(f"ds_read_b64 {vr(CT,2)}, v{T+3} offset:{ACNT}", f"ds_read_b64 {vr(ST,2)}, v{T+3} offset:{ASTART}")
    e(f"s_mul_i32 s{sT}, s2, {CS*12}", f"s_add_u32 s{sT}, s{sT}, {WS_SK}")
    srd(sA0, 14, 15, f"s{sT}", CS * 12)
    e(f"s_mul_i32 s{sT}, s2, {CS*32}", f"s_add_u32 s{sT}, s{sT}, {WS_EA}")
    srd(sA1, 14, 15, f"s{sT}", CH * 32)
    e(f"v_lshrrev_b32 v{T+3}, 1, v0", f"v_lshlrev_b32 v{T+3}, 2, v{T+3}")
    e(f"v_and_b32 v{T+4}, 1, v0", f"v_lshlrev_b32 v{T+4}, 4, v{T+4}", f"v_add_u32 v{T+4}, {EAST}, v{T+4}", f"v_add_u32 v{T+6}, {ASKS}, v{T+7}")
    e("s_waitcnt lgkmcnt(0)", "s_barrier")
    ts.stamp("scat")
    e(f"ds_read_b128 {vr(OUTV,4)}, v{T+6}", f"ds_read_b128 {vr(OUTV+4,4)}, v{T+6} offset:8192")
    for i in range(5):
        e(f"ds_read_b32 v{IV+i}, v{T+3} offset:{AINV + i*1024}")
    aea(3)

    def skst():
        vq.op("skst", f"buffer_store_dwordx4 {vr(OUTV,4)}, v{T+7}, {sr(sA0)}, 0 offen sc1")
        vq.op("skst", f"buffer_store_dwordx4 {vr(OUTV+4,4)}, v{T+7}, {sr(sA0)}, s{sNV} offen sc1")

    def frag_r(F0, t0, t1, t2):
        e(f"v_lshrrev_b32 v{t0}, 5, v{LANE}", f"v_lshlrev_b32 v{t0}, 10, v{t0}", f"v_and_b32 v{t1}, 15, v{LANE}", f"v_lshl_add_u32 v{t0}, v{t1}, 4, v{t0}")
        for i in range(8):
            e(f"ds_read_b128 {vr(F0+4*i,4)}, v{t0} offset:{WR + 2048*(i//4) + 256*(i%4)}")
        e(f"v_lshrrev_b32 v{t0}, 4, v{LANE}", f"v_lshlrev_b32 v{t0}, 5, v{t0}", f"v_and_b32 v{t1}, 3, v{LANE}", f"v_lshl_add_u32 v{t0}, v{t1}, 1, v{t0}")
        for v in range(4):
            e(f"ds_read_u16 v{F0+32+v}, v{t0} offset:{WR + 4096 + 8*v}")
        e(f"v_bfe_i32 v{t2}, v{LANE}, 4, 1", f"v_and_b32 v{t2}, 0x02020202, v{t2}", f"v_add_u32 v{t2}, 0x05040100, v{t2}")
        e("s_waitcnt lgkmcnt(0)")
        for h in range(2):
            for t in range(2):
                for ip in range(4):
                    e(f"v_perm_b32 v{WRF+8*h+2*ip+t}, v{F0+4*(2*ip+1)+t+2*h}, v{F0+4*(2*ip)+t+2*h}, v{t2}")
        e(f"v_lshl_or_b32 v{CGF}, v{F0+33}, 16, v{F0+32}", f"v_lshl_or_b32 v{CGF+1}, v{F0+35}, 16, v{F0+34}")

    def frag_o(F0, F1, t0, t1, sM):
        e(f"v_and_b32 v{t1}, 7, v{LANE}", f"v_lshrrev_b32 v{t0}, 4, v{LANE}", f"v_lshlrev_b32 v{t0}, 13, v{t0}", f"v_lshl_add_u32 v{t0}, v{t1}, 4, v{t0}",
          f"v_and_b32 v{t1}, 8, v{LANE}", f"s_and_b32 s{sM}, s3, 3", f"s_lshl_b32 s{sM}, s{sM}, 8", f"s_lshr_b32 s{sM+1}, s3, 2", f"s_lshl_b32 s{sM+1}, s{sM+1}, 7",
          f"s_add_u32 s{sM}, s{sM}, s{sM+1}", f"s_add_u32 s{sM}, s{sM}, {WO}", f"v_add3_u32 v{t0}, v{t0}, v{t1}, s{sM}")
        for ip in range(4):
            e(f"ds_read2st64_b64 {vr(F0+4*ip,4)}, v{t0} offset0:{4*ip} offset1:{4*ip+2}")
        e(f"s_mov_b32 s{sM}, 0x05040100", f"s_mov_b32 s{sM+1}, 0x07060302")
        for ip in range(4):
            e(f"s_waitcnt lgkmcnt({3-ip})")
            for t in range(4):
                e(f"v_perm_b32 v{F1+4*t+ip}, v{F0+4*ip+2+t//2}, v{F0+4*ip+t//2}, s{sM+t%2}")

    def consts():
        e(f"s_and_b32 s{sB}, s2, 7", f"s_lshl_b32 s{sB}, s{sB}, 5", f"s_lshr_b32 s{sT}, s2, 3", f"s_add_u32 s{sB}, s{sB}, s{sT}")
        e(f"s_mul_i32 s{sNB}, s{sB}, 625", f"s_add_u32 s{sNCNT}, s{sNB}, 640", f"s_add_u32 s{sNB}, s{sNB}, 15",
          f"s_lshr_b32 s{sNB}, s{sNB}, 4", f"s_lshr_b32 s{sNCNT}, s{sNCNT}, 4", f"s_sub_u32 s{sNCNT}, s{sNCNT}, s{sNB}")
        e(f"v_bfe_i32 v{SIX}, v{LANE}, 2, 1", f"v_and_b32 v{SIX}, 0xaaaa, v{SIX}", f"v_add_u32 v{SIX}, 0x4444, v{SIX}")
        e(f"v_mov_b32 v{ZAD}, {ZERO}", f"v_and_b32 v{T+3}, 60, v{T+1}", f"v_add_u32 v{T+3}, v{T+3}, v{ZAD}", f"ds_write_b32 v{T+3}, v{T+5}")
        e(f"v_and_b32 v{T+3}, 4, v{LANE}", f"v_lshlrev_b32 v{T+3}, 2, v{T+3}", f"v_mov_b32 v{T+4}, 0xffff", f"v_lshlrev_b32 v{T+4}, v{T+3}, v{T+4}")
        e(f"v_bfe_i32 v{T+3}, v{LANE}, 3, 1", f"v_and_b32 v{MQ}, v{T+3}, v{T+4}", f"v_xor_b32 v{MP}, v{MQ}, v{T+4}")
        e(f"v_lshrrev_b32 v{EAC}, 5, v{LANE}", f"v_lshlrev_b32 v{EAC}, 4, v{EAC}", f"v_add_u32 v{EAC}, {EAST}, v{EAC}")
        e(f"v_and_b32 v{LAC}, 15, v{LANE}", f"v_lshlrev_b32 v{LAC}, 2, v{LAC}")
        e(f"v_bfe_u32 v{T+3}, v{LANE}, 3, 2", f"v_and_b32 v{T+4}, 3, v{LANE}", f"v_lshl_add_u32 v{T+3}, v{T+3}, 2, v{T+4}", f"v_lshlrev_b32 v{LBC}, 2, v{T+3}")
        e(f"v_bfe_i32 v{cODD}, v0, 0, 1", f"s_lshl_b32 s{sT}, s3, 10", f"v_and_b32 v{cMAPW}, 4, v{cODD}", f"v_add_u32 v{cMAPW}, s{sT}, v{cMAPW}")
        e(f"v_lshl_add_u32 v{cMAP1}, v{LANE}, 2, s{sT}", f"v_lshrrev_b32 v{cMAP2}, 1, v{LANE}", f"v_lshl_add_u32 v{cMAP2}, v{cMAP2}, 2, s{sT}")
        e(f"v_mul_u32_u24 v{cL12}, 12, v{LANE}", f"v_and_b32 v{cDEG}, 12, v{cMAP1}", f"v_and_b32 v{cBIN}, 124, v{cMAP1}")
        e(f"s_mul_i32 s{sT}, s3, {CAPW}", f"v_add_u32 v{cR21}, s{sT}, v{LANE}", f"v_lshlrev_b32 v{cSH}, 3, v{cR21}", f"v_add_u32 v{cSH}, {SHST}, v{cSH}", f"v_lshlrev_b32 v{cR21}, 21, v{cR21}")
        e(f"s_mul_i32 s{sT}, s3, 640", f"v_add_u32 v{cROW}, s{sT}, v{cBIN}", f"v_sub_u32 v{cTIE}, 63, v{LANE}")
        e(f"s_getreg_b32 s{sM0}, hwreg(HW_REG_XCC_ID, 0, 3)", f"s_lshl_b32 s{sT}, s{sM0}, 4", f"v_subrev_u32 v{cBIN}, s{sT}, v{cBIN}", f"v_and_b32 v{cBIN}, 124, v{cBIN}")
        e(f"s_lshl_b32 s{sT}, s3, 5", f"v_lshl_add_u32 v{cNOD}, v{LANE}, 2, s{sT}")
        e(f"v_lshrrev_b32 v{cLST}, 3, v{LANE}", f"v_mul_u32_u24 v{cLST}, {GAP*4}, v{cLST}", f"v_add_u32 v{cLST}, {LIST}, v{cLST}")
        e(f"s_cmp_eq_u32 s{sNCNT}, 40")
        tabs = []
        for part in PARTS[P["BIAS"]]:
            t = [0] * 40
            for w, p in enumerate(part):
                for sl, r in enumerate(p):
                    t[r] = w * 8 + sl
            tabs.append([sum(t[5 * q + i] << (6 * i) for i in range(5)) for q in range(8)])
        e(f"v_mov_b32 v{RT}, 0")
        for q in range(8):
            e(f"s_mov_b32 s{sT}, {tabs[0][q]}", f"s_cselect_b32 s{sT}, {tabs[1][q]}, s{sT}")
            m = 31 << (5 * q)
            e(f"s_mov_b32 exec_lo, {m & 0xffffffff}", f"s_mov_b32 exec_hi, {m >> 32}", f"v_mov_b32 v{RT}, s{sT}")
        e("s_mov_b64 exec, -1")
        e(f"v_mul_u32_u24 v{T+3}, 52, v{LANE}", f"v_lshrrev_b32 v{T+3}, 8, v{T+3}", f"v_mad_i32_i24 v{T+3}, v{T+3}, -5, v{LANE}",
          f"v_mul_u32_u24 v{T+3}, 6, v{T+3}", f"v_lshrrev_b32 v{RT}, v{T+3}, v{RT}")
        e(f"v_and_b32 v{T+3}, 7, v{RT}", f"v_bfe_u32 v{RT}, v{RT}, 3, 3", f"v_lshlrev_b32 v{T+3}, 12, v{T+3}", f"v_lshl_or_b32 v{RT}, v{RT}, 7, v{T+3}")
        srd(sSK, 14, 15, WS_SK, NCH * CS * 12)

    def extra(pos):
        if P["CPOS"] == pos:
            consts()
        if P["ACCZ"] == pos:
            for i in range(48):
                e(f"v_mov_b32 v{ACC+i}, 0")

    e("s_waitcnt lgkmcnt(0)")
    for i in range(5):
        e(f"v_add_u32 v{IV+i}, v{T+4}, v{IV+i}")
    for k in range(2):
        e(f"v_lshl_or_b32 v{TABV+2*k}, v{CT+k}, 11, v{ST+k}", f"v_or_b32 v{TABV+2*k}, s{sTAG2}, v{TABV+2*k}", f"v_mov_b32 v{TABV+2*k+1}, s{sTAG}")
    extra(0)
    e(f"s_waitcnt vmcnt({min(vq.n('w') + P['WGN'], vq.n('ea'))})")
    e("s_barrier")
    ts.stamp("land")
    for i in range(5):
        e(f"ds_read_b128 {vr(OUTV+8+4*i,4)}, v{IV+i}")
    extra(1)
    ts.stamp("guard")
    skst()
    for i in range(5):
        e(f"s_mov_b32 s{sT}, {8192*i}", f"s_waitcnt lgkmcnt({4-i})")
        vq.op("st", f"buffer_store_dwordx4 {vr(OUTV+8+4*i,4)}, v{T+7}, {sr(sA1)}, s{sT} offen sc1")
    aea(4)
    ts.stamp("issued")

    extra(2)
    e(f"s_lshl_b32 s{sT}, s2, 3", f"s_add_u32 s{sT}, s{sT}, s3", f"s_lshl_b32 s{sT}, s{sT}, 8")
    srd(sX, SK, SK + 1, None, N * 1024)
    srd(sEA, 14, 15, WS_EA, NCH * CS * 32)
    if P["XPF"]:
        n = P["XPF"]
        e(f"s_and_b32 s{sBASE}, s{sM0}, 7", f"s_mul_i32 s{sBASE}, s{sBASE}, {1252*1024}", f"s_and_b32 s{sT2}, s2, 0xf8",
          f"s_add_u32 s{sT2}, s{sT2}, s3", f"s_mul_i32 s{sT2}, s{sT2}, {n*128}", f"s_add_u32 s{sBASE}, s{sBASE}, s{sT2}")
        e(f"v_min_u32 v{T+6}, {n-1}, v{LANE}", f"v_lshlrev_b32 v{T+6}, 7, v{T+6}")
    e("s_waitcnt vmcnt(0)", "s_barrier")
    ts.stamp("drained")
    e("s_mov_b64 exec, 0xffff")
    e(f"buffer_store_dwordx4 {vr(TABV,4)}, v{X16}, {sr(sTAB)}, s{sT} offen sc1")
    e("s_mov_b64 exec, -1")
    if P["XPF"]:
        e(f"buffer_load_dword v{PFV}, v{T+6}, {sr(sX)}, s{sBASE} offen")
    e(f"s_lshl_b32 s{sT}, s{sNB}, 10", f"s_add_u32 s{sOUT}, s12, s{sT}", f"s_addc_u32 s{sOUT+1}, s13, 0",
      f"s_lshl_b32 s{sOUT+2}, s{sNCNT}, 10", f"s_mov_b32 s{sOUT+3}, 0x20000")
    frag_r(RW, T, T + 1, T + 2)
    frag_o(128, 144, T, T + 1, SK + 8)
    e(f"s_lshl_b32 s{sT}, s3, 12", f"v_add_u32 v{T}, s{sT}, v{X16}")
    extra(3)
    e(f"v_lshrrev_b32 v{T+1}, 1, v0", f"v_lshlrev_b32 v{T+2}, 11, v{T+1}", f"s_lshl_b32 s{sNR}, s{sB}, 3")
    e(f"v_mul_u32_u24 v{RG0}, {CS}, v{T+1}", f"s_mov_b32 s{sROFF}, 0", f"s_mov_b32 s{sCNT}, {SPIN}", f"s_mov_b32 s{sT2}, 0xffc00000")
    e(f"s_mul_i32 s{sEM}, s3, {CAPW*32}", f"s_add_u32 s{sEM}, s{sEM}, {EAST}", f"s_movk_i32 s{sK4}, 4096")
    e(f"s_waitcnt vmcnt({P['PW']})", "s_barrier")
    ts.stamp("frag")
    PL = 206
    poll1 = f"buffer_load_dwordx2 {vr(PL,2)}, v{T+2}, {sr(sTAB)}, s{sNR} offen sc1"

    def tagcheck():
        e(f"v_xor_b32 v{T+3}, s{sTAG2}, v{PL}", f"v_xor_b32 v{T+4}, s{sTAG}, v{PL+1}", f"v_and_or_b32 v{T+3}, v{T+3}, s{sT2}, v{T+4}")
        e(f"v_cmpx_ne_u32 vcc, 0, v{T+3}")

    e(poll1)
    for t in range(4):
        e(f"ds_write_b128 v{T}, {vr(144+4*t,4)} offset:{WO + 1024*t}")
    e("s_waitcnt vmcnt(0)")
    tagcheck()
    e("s_cbranch_execnz L_poll")
    e.label("L_polled")
    e("s_mov_b64 exec, -1")
    ts.stamp("tab")
    G1, G2, SKR, RNK, CA = RW, RW + 4, RW + 12, TP, TP + 4
    MU = P["MU"]
    sVm = [sV, sV + 2, sV + 4, sA2]

    def bea1(i):
        e(f"s_add_u32 m0, s{sEM}, {4096*(i//4)}")
        vq.op("ea", f"buffer_load_dwordx4 v{G2+i}, {sr(sEA)}, {'0' if i < 4 else 's%d' % sK4} offen offset:{1024*(i%4)} {ldpol} lds")

    def bea(p):
        for i in range(6):
            if bstage[i] == p:
                bea1(i)

    def skld(i):
        e(f"v_mad_u32_u24 v{G1+i}, v{G1+i}, 12, v{cL12}")
        vq.op(f"sk{i}", f"buffer_load_dwordx3 {vr(SKR+4*i,3)}, v{G1+i}, {sr(sSK)}, 0 offen offset:{768*i} {ldpol}")

    cmps = [f"v_cmp_lt_i32 s[{SK+2*i}:{SK+2*i+1}], {2*i}, v{T+2}" for i in range(MU + 1)]
    e(f"v_bfe_u32 v{RLEN}, v{PL}, 11, 11", f"v_and_b32 v{RBASE}, v{RLEN}, v{cODD}", f"v_add_u32 v{T+2}, v{RLEN}, v{cODD}")
    fill = [f"v_and_b32 v{T+3}, 0x7ff, v{PL}"] + cmps + [f"v_add_u32 v{RG0}, v{RG0}, v{T+3}"]
    e(fill.pop(0))
    for mod in ("row_shr:1 row_mask:0xf", "row_shr:2 row_mask:0xf", "row_shr:4 row_mask:0xf", "row_shr:8 row_mask:0xf", "row_bcast:15 row_mask:0xa", "row_bcast:31 row_mask:0xc"):
        e(f"v_add_u32_dpp v{RBASE}, v{RBASE}, v{RBASE} {mod} bank_mask:0xf")
        e(*fill[:2]); fill = fill[2:]
    e(f"v_readlane_b32 s{sNW}, v{RBASE}, 63")
    e(f"v_mov_b32_dpp v{RBASE}, v{RBASE} quad_perm:[0,0,2,2] row_mask:0xf bank_mask:0xf")
    e(f"v_sub_u32 v{RG0}, v{RG0}, v{RBASE}")
    e(f"v_lshl_add_u32 v{T}, v{RBASE}, 2, v{cMAPW}")
    e(f"s_cmp_gt_u32 s{sNW}, {CAPW}", "s_cbranch_scc1 L_clip")
    e.label("L_mapw")
    for i in range(MU):
        e(f"s_mov_b64 exec, s[{SK+2*i}:{SK+2*i+1}]")
        e(f"ds_write_b32 v{T}, v{RG0} offset:{8*i}")
    e("s_mov_b64 exec, -1")
    e(f"s_cmp_lg_u64 s[{SK+2*MU}:{SK+2*MU+1}], 0", "s_cbranch_scc1 L_map2")
    for i in range(3):
        e(f"ds_read_b32 v{G1+i}, v{cMAP1} offset:{256*i}")
    for i in range(6):
        e(f"ds_read_b32 v{G2+i}, v{cMAP2} offset:{128*i}")
    e(f"s_cmp_gt_i32 s{sNW}, 192", "s_cbranch_scc1 L_r1")
    e.label("L_r1b")
    e("s_waitcnt lgkmcnt(6)")
    ts.stamp("map")
    for i in range(3):
        skld(i)
    e(f"v_mov_b32 v{T+3}, s{sNW}", "s_mov_b64 exec, 1", f"ds_max_i32 v{T+5}, v{T+3} offset:{TOT}", "s_mov_b64 exec, -1")
    e("s_waitcnt lgkmcnt(1)")
    for i in range(6):
        e(f"v_lshl_add_u32 v{G2+i}, v{G2+i}, 5, v{X16}")
    if P["SKBAR"]:
        e("s_barrier")
    ts.stamp("skiss")
    bea(0)
    for i in range(4):
        e(f"v_add_u32 v{T+3}, {64*i}, v{LANE}", f"v_cmp_gt_i32 s[{sVm[i]}:{sVm[i]+1}], s{sNW}, v{T+3}")
    e(f"s_mov_b32 s{sT2}, 0x1fff80", f"s_mul_i32 s{sOFF}, s3, 5", f"s_mov_b32 s{sVm[3]+1}, 0")

    def count(i):
        key = SKR + 4 * i + 2
        e(f"v_lshrrev_b32 v{CA+i}, 21, v{key}", f"v_lshlrev_b32 v{CA+i}, 2, v{CA+i}")
        e(f"v_lshrrev_b32 v{T+3}, 26, v{key}", f"v_lshl_or_b32 v{T+3}, v{T+3}, 4, v{cDEG}")
        e(f"s_mov_b64 exec, s[{sVm[i]}:{sVm[i]+1}]")
        e(f"ds_add_rtn_u32 v{RNK+i}, v{CA+i}, v{ONE} offset:{CNT2}")
        e(f"ds_add_u32 v{T+3}, v{ONE} offset:{DEG}")
        e("s_mov_b64 exec, -1")

    def entry(i):
        key = SKR + 4 * i + 2
        if i == 3:
            e("s_mov_b32 exec_hi, 0")
        e(f"ds_write_b64 v{cSH}, {vr(SKR+4*i,2)} offset:{512*i}")
        if i == 3:
            e("s_mov_b32 exec_hi, -1")
        e(f"v_and_or_b32 v{key}, v{key}, s{sT2}, v{cR21}")
        if i:
            e(f"v_add_u32 v{key}, {64*i << 21}, v{key}")

    for i in range(3):
        vq.wait(f"sk{i}")
        if i == 0:
            ts.stamp("sk")
        count(i)
    e(f"s_cmp_gt_i32 s{sNW}, 192", "s_cbranch_scc1 L_r2")
    e.label("L_r2b")
    for i in range(3):
        entry(i)
    ts.stamp("atom")
    bea(1)
    e("s_waitcnt lgkmcnt(3)", "s_barrier")
    ts.stamp("b1")
    CN, CAD = XR, XR + 8
    e(f"s_cmp_lg_u32 s{sROFF}, 0", "s_cbranch_scc1 L_rank2")
    e(f"ds_read_b128 {vr(CAD,4)}, v{X16} offset:{DEG}")
    for j in range(5):
        e(f"ds_read_b32 v{CN+j}, v{cROW} offset:{CNT2 + 128*j}")
    e(f"ds_read_b32 v{T+6}, v{T+5} offset:{TOT}")
    bea(5)
    for j in range(1, 5):
        e(f"s_add_u32 s{SK+j}, s{sOFF}, {j}")
    e("s_waitcnt lgkmcnt(6)")
    e(f"v_add_u32 v{T+1}, v{CAD}, v{CAD+1}", f"v_add3_u32 v{T+1}, v{T+1}, v{CAD+2}, v{CAD+3}")
    e(f"v_lshl_or_b32 v{T+1}, v{T+1}, 6, v{cTIE}")
    for j in range(5):
        e(f"v_readlane_b32 s{SK+j}, v{T+1}, s{SK+j if j else sOFF}")
    for j in range(5):
        e(f"v_cmp_lt_u32 s[{SK+6+2*j}:{SK+7+2*j}], s{SK+j}, v{T+1}")
    for j in range(5):
        e(f"s_bcnt1_i32_b64 s{SK+j}, s[{SK+6+2*j}:{SK+7+2*j}]")
    e("s_waitcnt lgkmcnt(0)")
    for j in range(5):
        e(f"v_readlane_b32 s{sASG[j]}, v{RT}, s{SK+j}")
    e(f"v_readfirstlane_b32 s{sN}, v{T+6}")
    e.label("L_ranked")
    e("s_mov_b32 exec_hi, 0")
    for j in range(5):
        e(f"s_and_b32 s{sT}, s{sASG[j]}, 0x380")
        e(f"v_add_u32 v{CAD+j}, s{sT}, v{cBIN}")
        e(f"ds_add_rtn_u32 v{CN+j}, v{CAD+j}, v{CN+j} offset:{WB}")
    for j in range(5):
        e(f"v_or_b32 v{CAD+j}, s{sASG[j]}, v{CAD+j}")
    for j in range(5):
        e(f"v_writelane_b32 v{T+3}, s{sASG[j]}, {j}")
    for j in range(5):
        e("s_waitcnt lgkmcnt(4)")
        e(f"v_lshl_or_b32 v{CN+j}, v{CN+j}, 16, v{CAD+j}")
        e(f"ds_write_b32 v{cROW}, v{CN+j} offset:{CNT2 + 128*j}")
    e(f"v_add_lshl_u32 v{T+4}, v{LANE}, s{sOFF}, 7")
    e(f"v_lshrrev_b32 v{T+1}, 10, v{T+3}", f"v_bfe_u32 v{T+3}, v{T+3}, 2, 8", f"v_or_b32 v{T+3}, v{T+3}, v{T+1}")
    e("s_mov_b32 exec_lo, 31")
    e(f"ds_write_b32 v{T+3}, v{T+4} offset:{NODEOF}")
    e("s_mov_b64 exec, -1")
    ts.stamp("rank")
    bea(2)
    e(f"s_lshl_b32 s{sT}, s3, 3", f"s_add_u32 s{sT2}, s{sT}, 7")
    e("s_waitcnt lgkmcnt(0)", "s_barrier")
    ts.stamp("b2")
    e(f"ds_read_b128 {vr(CN,4)}, v{X16} offset:{WB}")
    for i in range(3):
        e(f"ds_read_b32 v{CA+i}, v{CA+i} offset:{CNT2}")
    e(f"ds_read_b32 v{T+3}, v{cNOD} offset:{NODEOF}")
    bea(6)
    e("s_waitcnt lgkmcnt(4)")
    e(f"v_add_u32 v{T+1}, v{CN}, v{CN+1}", f"v_add3_u32 v{T+1}, v{T+1}, v{CN+2}, v{CN+3}", f"v_mov_b32 v{T+2}, v{T+1}")
    e("s_waitcnt lgkmcnt(1)")

    def place(i):
        key = SKR + 4 * i + 2
        return [f"v_bfe_u32 v{T+7}, v{CA+i}, 12, 3", f"v_or_b32 v{key}, v{T+7}, v{key}", f"v_and_b32 v{G1+i}, 0x3ff, v{CA+i}",
                f"v_lshrrev_b32 v{CA+i}, 16, v{CA+i}", f"v_add_u32 v{CA+i}, v{CA+i}, v{RNK+i}"]

    fill = place(0) + place(1) + place(2)
    e(fill.pop(0))
    for mod in ("row_shr:1 row_mask:0xf", "row_shr:2 row_mask:0xf", "row_shr:4 row_mask:0xf", "row_shr:8 row_mask:0xf", "row_bcast:15 row_mask:0xa", "row_bcast:31 row_mask:0xc"):
        e(f"v_add_u32_dpp v{T+2}, v{T+2}, v{T+2} {mod} bank_mask:0xf")
        e(*fill[:2]); fill = fill[2:]
    e(f"v_sub_u32 v{T+1}, v{T+2}, v{T+1}")
    e(f"v_lshl_add_u32 v{CAD}, v{T+1}, 2, v{cLST}")
    for k in range(3):
        e(f"v_lshl_add_u32 v{CAD+1+k}, v{CN+k}, 2, v{CAD+k}")
    e(f"ds_write_b128 v{X16}, {vr(CAD,4)} offset:{START}")
    for i in range(3):
        e(f"ds_read_b32 v{G1+i}, v{G1+i} offset:{START}")
    e(*fill)
    e(f"v_readlane_b32 s{sNV}, v{T+2}, s{sT2}", f"v_readlane_b32 s{sCNT}, v{T+1}, s{sT}", f"v_readlane_b32 s{sBASE}, v{CAD}, s{sT}")
    e(f"v_mov_b32 v{T+4}, {(0x3fff << 7) | 5}")
    e(f"s_sub_u32 s{sNV}, s{sNV}, s{sCNT}", f"s_lshl_b32 s{sT}, s{sNV}, 2")
    e(f"v_add_u32 v{LA}, s{sBASE}, v{LAC}", f"v_add_u32 v{LB}, s{sBASE}, v{LBC}", f"v_add_u32 v{T+1}, s{sT}, v{LA}")

    def scatter(i):
        e(f"v_lshl_add_u32 v{CA+i}, v{CA+i}, 2, v{G1+i}")
        e(f"s_mov_b64 exec, s[{sVm[i]}:{sVm[i]+1}]")
        e(f"ds_write_b32 v{CA+i}, v{SKR+4*i+2}")
        e("s_mov_b64 exec, -1")

    for i in range(3):
        e("s_waitcnt lgkmcnt(2)")
        scatter(i)
    e(f"ds_write_b32 v{T+1}, v{T+4}")
    e(f"s_cmp_gt_i32 s{sNW}, 192", "s_cbranch_scc1 L_r3")
    e.label("L_r3b")
    bea(3)
    for j in range(5):
        e(f"v_readlane_b32 s{sNODE+j}, v{T+3}, {j}")
    ts.stamp("list")
    eAG, eFR, eST, eWF, sEO = [208, 209, 210, 211, 212], 213, 214, 215, 99
    e(f"v_lshlrev_b32 v{T}, 2, v{LANE}")
    for s in range(5):
        e(f"s_mul_i32 s{sT}, s{sNODE+s}, 9", f"v_add_u32 v{eAG[s]}, s{sT}, v{T}")
    e(f"s_lshr_b32 s{sEO}, s3, 1", f"s_mul_i32 s{sEO}, s{sEO}, 3", f"s_min_u32 s{sEO}, s{sEO}, 8", f"s_mul_i32 s{sT2}, s{sEO}, 4608")
    e(f"v_and_b32 v{T}, 15, v{LANE}", f"v_lshrrev_b32 v{T+1}, 4, v{LANE}")
    e(f"v_mul_u32_u24 v{eFR}, 288, v{T}", f"v_lshl_add_u32 v{eFR}, v{T+1}, 4, v{eFR}", f"v_add_u32 v{eFR}, s{sT2}, v{eFR}")
    e(f"v_lshrrev_b32 v{T+1}, 3, v{LANE}", f"v_lshlrev_b32 v{T+1}, 9, v{T+1}", f"v_and_b32 v{T}, 7, v{LANE}", f"v_lshl_add_u32 v{eST}, v{T}, 4, v{T+1}")
    e(f"s_lshl_b32 s{sEO}, s{sEO}, 12", f"s_and_b32 s{sT2}, s3, 1", f"s_lshl_b32 s{sT}, s{sT2}, 7", f"s_add_u32 s{sEO}, s{sEO}, s{sT}",
      f"s_lshl_b32 s{sT2}, s{sT2}, 14", f"s_add_u32 s{sT2}, s{sT2}, {WO}", f"v_add_u32 v{eWF}, s{sT2}, v{X16}")
    for i in range(32):
        e(f"v_mov_b32 v{RW+i}, 0")
    NK = P["WFK"]
    WF = [216 + 4 * q for q in range(NK)] + [96 + 4 * q for q in range(16 - NK)]
    for q in range(NK):
        e(f"ds_read_b128 {vr(WF[q],4)}, v{eWF} offset:{1024*q}")
    assert D == 6
    sP0 = sT
    e(f"s_add_u32 s{sP0}, s{sNV}, 1", f"s_and_b32 s{sP0}, s{sP0}, -2", f"s_add_u32 s{sCNT}, s{sP0}, 15", f"s_lshr_b32 s{sCNT}, s{sCNT}, 4",
      f"s_sub_u32 s{sP0}, 0, s{sP0}", f"s_and_b32 s{sP0}, s{sP0}, 15", f"s_sub_u32 s{sCNT}, s{sCNT}, 1", f"s_cmp_gt_i32 s{sCNT}, 0", f"s_cselect_b32 s{sP0}, s{sP0}, 0")
    e(f"s_lshl_b32 s{sOFF}, s{sP0}, 2", f"v_subrev_u32 v{LA}, s{sOFF}, v{LA}", f"v_subrev_u32 v{LB}, s{sOFF}, v{LB}",
      f"s_and_b32 s{sOFF}, s{sOFF}, 32", f"v_add_u32 v{T+4}, s{sOFF}, v{LA}", f"s_and_b32 s{SK+8}, s{sP0}, 6")
    e(f"s_mov_b32 s{sT2}, 0x00fffc38", f"s_mov_b32 s{sNR}, 0xffffff00", f"s_mov_b32 s{sBASE}, {SHST}")
    if P["PRIO"] == 1:
        e("s_cmp_lt_u32 s3, 4", "s_cbranch_scc1 L_np", "s_setprio 1")
        e.label("L_np")
    e("s_waitcnt vmcnt(0) lgkmcnt(0)", "s_barrier")
    ts.stamp("b4")
    e(f"ds_read_b32 v{K}, v{T+4}", f"ds_read_b32 v{ENT+2}, v{LB}", f"ds_read_b32 v{KN}, v{LA} offset:{4*D}")
    e(f"s_cmp_eq_u32 s{sNV}, 0", "s_cbranch_scc1 L_swept")
    AL = P["ALIGN"]

    def al():
        if AL:
            e(".p2align 3")

    def ea_reads():
        e(f"v_lshrrev_b32 v{T}, 21, v{ENT+2}", f"v_lshl_add_u32 v{T+3}, v{T}, 3, s{sBASE}", f"v_lshl_add_u32 v{T}, v{T}, 5, v{EAC}")
        e(f"ds_read_b64 {vr(ENT,2)}, v{T+3}")
        e(f"ds_read_b128 {vr(EA0,4)}, v{T}")

    def zq(q):
        e(f"ds_read_b128 {vr(RW+4*q,4)}, v{ZAD}", f"ds_read_b128 {vr(RW+16+4*q,4)}, v{ZAD}")

    def pq(j):
        p = PQ + 2 * (j % 2)
        return [f"v_cvt_pk_bf16_f32 v{T+1+j%2}, v{AGN+j}, v{AGN+j}", f"v_and_b32 v{p}, v{MP}, v{T+1+j%2}", f"v_and_b32 v{p+1}, v{MQ}, v{T+1+j%2}"]

    def head(kind):
        e(f"s_waitcnt lgkmcnt({0 if kind == 'first' else 2})"); al()
        for q in range(4):
            e(f"v_mfma_f32_4x4x4_16b_bf16 {vr(AGN+4*q,4)}, {vr(ENT,2)}, {vr(CGF,2)}, 0 cbsz:4 abid:{2*q}")
        e(f"v_lshlrev_b32 v{K}, 3, v{KN}", f"v_and_b32 v{K}, s{sT2}, v{K}")
        rd = []
        if kind != "last":
            e(f"v_add_u32 v{LA}, 64, v{LA}", f"v_add_u32 v{LB}, 64, v{LB}")
            rd = [f"ds_read_b32 v{KN}, v{LA} offset:{4*D}", f"ds_read_b32 v{ENT+2}, v{LB}"]
        if kind != "first":
            e("s_waitcnt lgkmcnt(0)"); al()
        groups = [rd + (pq(0) if kind != "first" else []), []]
        for h in range(2):
            e(f"v_smfmac_f32_32x32x32_bf16 {vr(RW+16*h,16)}, {vr(EA0,4)}, {vr(WRF+8*h,8)}, v{SIX}")
            e(*groups[h])

    def pks(j):
        t = TP + 8 * (j % 2)
        for h in range(2):
            r = RW + 16 * h + j
            rp = r & ~1
            sel = "op_sel:[0,1,0] op_sel_hi:[1,1,1]" if r & 1 else "op_sel_hi:[1,0,1]"
            for q in range(2):
                a = ACC + 4 * h + 2 * q
                e(f"v_pk_fma_f32 {vr(a,2)}, {vr(t+4*h+2*q,2)}, {vr(rp,2)}, {vr(a,2)} {sel}")

    def mf(j, h):
        t, p, s = TP + 8 * (j % 2), PQ + 2 * (j % 2), XR + 4 * (j % R)
        e(f"v_mfma_f32_16x16x16_bf16 {vr(t+4*h,4)}, {vr(p,2)}, {vr(s+2*h,2)}, 0")

    def rl(q, lane):
        e(f"v_readlane_b32 s{SK + q % 8}, v{K}, {lane}")

    def sand(q):
        e(f"s_and_b32 s{sOFF}, s{SK + q % 8}, s{sNR}")

    def xl(q):
        e(f"buffer_load_dwordx4 {vr(XR + 4 * (q % R),4)}, v{X16}, {sr(sX)}, s{sOFF} offen")

    def body(last):
        for j in range(0, 16, 2):
            ld = not last or j + D < 16
            if not last or j == 0:
                e.label(f"L_{'f' if last else 'j'}{j}")
            nx = pq(j + 1)
            e(f"s_waitcnt vmcnt({D-1 if ld else 15-j})"); al()
            mf(j, 0)
            if ld:
                rl(j + D, j)
            e(*nx[:1]); mf(j, 1); e(*nx[1:])
            if ld and P["SCH"] == 2:
                sand(j + D); e(f"s_waitcnt vmcnt({D-2})"); xl(j + D)
            elif ld:
                sand(j + D); xl(j + D); e(f"s_waitcnt vmcnt({D-1})")
            else:
                e(f"s_waitcnt vmcnt({14-j})"); al()
            nx = pq(j + 2) if j < 14 else []
            mf(j + 1, 0)
            if ld:
                rl(j + 1 + D, j + 1)
            e(*nx[:1]); mf(j + 1, 1); e(*nx[1:])
            if j == 2 and not last:
                e("s_waitcnt lgkmcnt(0)")
                ea_reads(); al()
            if ld:
                sand(j + 1 + D)
            e(f"s_set_gpr_idx_on s{SK + j % 8}, gpr_idx(SRC2,DST)")
            xl(j + 1 + D) if ld else al()
            pks(j)
            e(f"s_set_gpr_idx_idx s{SK + (j + 1) % 8}")
            if j == 14 and not last:
                e(f"s_sub_u32 s{sCNT}, s{sCNT}, 1")
            al()
            pks(j + 1)
            if j % 4 == 2 and not last:
                zq(j // 4)
            e("s_set_gpr_idx_off")

    e("s_waitcnt lgkmcnt(1)")
    e(f"v_lshlrev_b32 v{K}, 3, v{K}", f"v_and_b32 v{K}, s{sT2}, v{K}")
    if P["EAF"]:
        ea_reads()
    for q in (2, 4, 6):
        e(f"s_cmp_eq_u32 s{SK+8}, {q}", f"s_cbranch_scc1 L_p{q}")
    for q in range(0, 12, 2):
        e.label(f"L_p{q}")
        rl(q, q); rl(q + 1, q + 1)
        sand(q); xl(q); sand(q + 1); xl(q + 1)
        if 4 <= q < 10:
            e(f"s_cmp_eq_u32 s{SK+8}, {q-4}", "s_cbranch_scc1 L_pd")
    e.label("L_pd")
    if not P["EAF"]:
        ea_reads()
    ts.stamp("b5")
    head("first")
    e(f"s_set_gpr_idx_on s{sP0}, gpr_idx(SRC0,SRC1)")
    e.idx_range, keep = {("v", i) for i in range(AGN, AGN + 16)}, e.idx_range
    e(pq(0)[0])
    e.idx_range = keep
    e("s_set_gpr_idx_off")
    e(*pq(0)[1:])
    e("s_waitcnt lgkmcnt(0)")
    ea_reads()
    e(f"s_cmp_eq_u32 s{sCNT}, 0", "s_cbranch_scc1 L_f0")
    for j in range(0, 14, 2):
        e(f"s_cmp_eq_u32 s{sP0}, {j}", f"s_cbranch_scc1 L_j{j}")
        if j % 4 == 2:
            zq(j // 4)
    e("s_branch L_j14")
    e(".p2align 3")
    e.label("L_loop")
    head("mid")
    body(False)
    e(f"s_cmp_lg_u32 s{sCNT}, 0", "s_cbranch_scc1 L_loop")
    head("last")
    body(True)
    e.label("L_swept")
    ts.stamp("swept")
    e(f"s_add_u32 s{sROFF}, s{sROFF}, {CAPW}", f"s_cmp_lt_u32 s{sROFF}, s{sN}", "s_cbranch_scc1 L_again")
    AF, DD, OB, OT = ACC, 160, 64, 80
    if P["EPRIO"] >= 0:
        e(f"s_setprio {P['EPRIO']}")
    for s in range(5):
        for w in range(4):
            e(f"v_cvt_pk_bf16_f32 v{RW+4*s+w}, v{ACC+8*s+w}, v{ACC+8*s+4+w}")
        for w in (0, 2):
            e(f"ds_write2_b32 v{eAG[s]}, v{RW+4*s+w}, v{RW+4*s+w+1} offset0:{72*w} offset1:{72*w+72}")
    NPRE = P["WFPRE"]
    for q in range(NK, NPRE):
        e(f"ds_read_b128 {vr(WF[q],4)}, v{eWF} offset:{1024*q}")
    e(f"s_waitcnt lgkmcnt({NPRE - NK})", "s_barrier")
    ts.stamp("agb")
    lq = [f"w{q}" for q in range(NPRE)]

    def lop(tag, text):
        e(text); lq.append(tag)

    def lwait(*tags):
        n = len(lq) - 1 - max(lq.index(t) for t in tags)
        e(f"s_waitcnt lgkmcnt({min(n, 15)})")

    def afrag(k, ss=range(4)):
        for s in ss:
            lop(f"a{k}{s}", f"ds_read_b128 {vr(AF+16*k+4*s,4)}, v{eFR} offset:{AGL + 4608*k + 64*s}")

    def post(k, pol=P['OUTPOL']):
        d, o = DD + 16 * (k % 2), OB + 8 * (k % 2)
        x = []
        for r in range(2):
            for c in range(2):
                x.append(f"v_cvt_pk_bf16_f32 v{o+4*r+c}, v{d+8*c+r}, v{d+8*c+4+r}")
                x.append(f"v_cvt_pk_bf16_f32 v{OT+2*r+c}, v{d+8*c+r}, v{d+8*c+4+r}")
                x.append(f"v_cvt_pk_bf16_f32 v{o+4*r+2+c}, v{d+8*c+r+2}, v{d+8*c+4+r+2}")
            for c in range(2):
                x.append(f"v_mov_b32_dpp v{o+4*r+c}, v{o+4*r+2+c} row_ror:8 row_mask:0xf bank_mask:0xc")
            for c in range(2):
                x.append(f"v_mov_b32_dpp v{o+4*r+2+c}, v{OT+2*r+c} row_ror:8 row_mask:0xf bank_mask:0x3")
            x.append(f"buffer_store_dwordx4 {vr(o+4*r,4)}, v{eST}, {sr(sOUT)}, s{sEO} offen offset:{256*r} {pol}")
        x.append(f"s_add_u32 s{sEO}, s{sEO}, 4096")
        return x

    def tile(k, pend):
        d = DD + 16 * (k % 2)
        for s in range(4):
            if k == 0:
                lwait(f"a0{s}", f"w{4*s+3}")
            elif s == 0:
                lwait(f"a{k}3")
            for t in range(4):
                c = "0" if s == 0 else vr(d + 4 * t, 4)
                e(f"v_mfma_f32_16x16x32_bf16 {vr(d+4*t,4)}, {vr(AF+16*k+4*s,4)}, {vr(WF[4*s+t],4)}, {c}")
                if 4 * s + t >= 4:
                    e(*pend[:2]); pend = pend[2:]
            if k == 0 and s == 0:
                afrag(1)
            if k == 0 and s == 1:
                afrag(2)
        e(*pend)

    for s in range(4):
        afrag(0, [s])
        for q in range(max(NPRE, 4 * s), 4 * s + 4):
            lop(f"w{q}", f"ds_read_b128 {vr(WF[q],4)}, v{eWF} offset:{1024*q}")
    tile(0, [])
    tile(1, post(0))
    e("s_cmp_ge_u32 s3, 4", "s_cbranch_scc1 L_two")
    tile(2, post(1))
    e(*post(2, P['LASTPOL']))
    e.label("L_stored")
    ts.stamp("stored")
    e("s_or_b32 s4, s2, s3", "s_cbranch_scc1 L_notag")
    e(f"v_mov_b32 v{T}, s{sTAG}", f"v_lshlrev_b32 v{T+2}, 2, v{LANE}", f"s_mov_b32 s{sT}, {WS_W}")
    e(f"buffer_store_dword v{T}, v{T+2}, {sr(sTAB)}, s{sT} offen sc1")
    e.label("L_notag")
    if P["DIAGW"] and P["DIAGAT"] == "fin":
        e("s_waitcnt vmcnt(0)")
        ts.stamp("fin")
    if P["DIAGW"]:
        e(f"s_add_u32 s6, s{sTSP+1}, {P['DIAGW']}", "s_min_u32 s6, s6, 30000")
        e.label("L_diag")
        e("s_memrealtime s[4:5]", "s_waitcnt lgkmcnt(0)", f"s_sub_u32 s4, s4, s{sTSP}", "s_cmp_lt_u32 s4, s6", "s_cbranch_scc1 L_diag")
    if P["TS"]:
        e("s_waitcnt vmcnt(0)")
        ts.stamp("end")
        e(f"s_lshl_b32 s{sT}, s2, 3", f"s_add_u32 s{sT}, s{sT}, s3", f"s_lshl_b32 s{sT}, s{sT}, 8", f"s_add_u32 s{sT}, s{sT}, {WS_TS}")
        e(f"v_lshl_add_u32 v{T}, v{LANE}, 2, s{sT}", f"global_store_dword v{T}, v{TSV}, s[14:15]")
        if P["DBG"]:
            e(f"s_cmp_lg_u32 s2, {P['DBG']}", "s_cbranch_scc1 L_done", "s_cmp_lg_u32 s3, 0", "s_cbranch_scc1 L_done")
            e("s_load_dwordx2 s[4:5], s[0:1], 72", f"v_readlane_b32 s{sT}, v{TSV}, 0", f"v_lshlrev_b32 v{T}, 2, v{LANE}")
            e(f"v_subrev_u32 v{TSV}, s{sT}, v{TSV}", "s_waitcnt lgkmcnt(0)", f"global_store_dword v{T}, v{TSV}, s[4:5]")
    e.label("L_done")
    e("s_endpgm")
    e.label("L_again")
    e("s_waitcnt vmcnt(0) lgkmcnt(0)", "s_barrier")
    init_round(False)
    e(f"v_add_u32 v{RLEN}, v{RLEN}, v{RBASE}", f"v_subrev_u32 v{RLEN}, {CAPW}, v{RLEN}", f"v_max_i32 v{RLEN}, 0, v{RLEN}")
    e(f"v_subrev_u32 v{RBASE}, {CAPW}, v{RBASE}", f"v_max_i32 v{RBASE}, 0, v{RBASE}", f"v_sub_u32 v{RLEN}, v{RLEN}, v{RBASE}")
    e(f"v_add_u32 v{RG0}, {CAPW}, v{RG0}", f"s_sub_i32 s{sNW}, s{sNW}, {CAPW}", f"v_lshl_add_u32 v{T}, v{RBASE}, 2, v{cMAPW}")
    e("s_waitcnt lgkmcnt(0)", "s_barrier")
    e.label("L_clip")
    e(f"v_add_u32 v{T+2}, v{RBASE}, v{RLEN}", f"v_min_i32 v{T+2}, {CAPW}, v{T+2}", f"v_sub_u32 v{T+2}, v{T+2}, v{RBASE}", f"v_add_u32 v{T+2}, v{T+2}, v{cODD}")
    e.label("L_masks")
    e(*cmps)
    e("s_nop 0", "s_branch L_mapw")
    e.label("L_map2")
    e(f"v_add_u32 v{T}, {8*MU}, v{T}", f"v_subrev_u32 v{T+2}, {2*MU}, v{T+2}")
    e("s_branch L_masks")
    e.label("L_r1")
    e(f"ds_read_b32 v{G1+3}, v{cMAP1} offset:768", f"ds_read_b32 v{G2+6}, v{cMAP2} offset:768")
    e("s_waitcnt lgkmcnt(0)")
    skld(3)
    for i in (6,):
        e(f"v_lshl_add_u32 v{G2+i}, v{G2+i}, 5, v{X16}")
        bea1(i)
    e("s_branch L_r1b")
    e.label("L_r2")
    count(3)
    entry(3)
    e("s_branch L_r2b")
    e.label("L_r3")
    e(f"ds_read_b32 v{CA+3}, v{CA+3} offset:{CNT2}", "s_waitcnt lgkmcnt(0)")
    e(*place(3))
    e(f"ds_read_b32 v{G1+3}, v{G1+3} offset:{START}", "s_waitcnt lgkmcnt(0)")
    scatter(3)
    e("s_branch L_r3b")
    e.label("L_two", pad=8)
    e(*post(1, P['LASTPOL']))
    e("s_branch L_stored")
    e.label("L_poll")
    e(poll1, f"s_sub_u32 s{sCNT}, s{sCNT}, 1", "s_cbranch_scc1 L_done", "s_waitcnt vmcnt(0)")
    tagcheck()
    e("s_cbranch_execnz L_poll", "s_branch L_polled")
    e.label("L_rank2")
    for j in range(5):
        e(f"ds_read_b32 v{CN+j}, v{cROW} offset:{CNT2 + 128*j}")
    bea(5)
    e("s_waitcnt lgkmcnt(0)")
    e.label("L_end")
    e("s_branch L_ranked")
    return e.text(), LDS, 256, 102


HEADER = """; Kernarg layout for this problem (88 bytes, ptrs only, base s[0:1]):
"""


def generate(**kw):
    P = dict(DEF)
    P.update(kw)
    k, lds, v, s = gen(P)
    n = NAME + "_kernel"
    out = HEADER
    out += f"; @launch grid=(256,1,1) block=(512,1,1) lds={lds}\n"
    out += '.amdgcn_target "amdgcn-amd-amdhsa--gfx950"\n.text\n'
    out += f".globl {n}\n.p2align 8\n.type {n},@function\n{n}:\n{k}"
    out += '.section .rodata,"a"\n'
    out += (f".p2align 6\n.amdhsa_kernel {n}\n  .amdhsa_next_free_vgpr {v}\n  .amdhsa_next_free_sgpr {s}\n"
            f"  .amdhsa_accum_offset {(v+3)//4*4}\n  .amdhsa_group_segment_fixed_size 0\n  .amdhsa_kernarg_size 88\n"
            f"  .amdhsa_user_sgpr_count 2\n  .amdhsa_user_sgpr_kernarg_segment_ptr 1\n  .amdhsa_system_sgpr_workgroup_id_x 1\n"
            f"  .amdhsa_float_denorm_mode_32 3\n.end_amdhsa_kernel\n")
    return out


if __name__ == "__main__":
    kw = {}
    for a in sys.argv[1:]:
        k, v = a.split("=", 1)
        kw[k] = int(v) if v.lstrip("-").isdigit() else v
    sys.stdout.write(generate(**kw))
```

```python
import sys, os
sys.path.insert(0, os.path.dirname(os.path.abspath(__file__)))
from emit import Emitter

NAME = "gather_scatter__tensor_product_equiv_mace__graph"
N, E = 10000, 320000
CH, NCH, CS = 1250, 256, 1280
WS_TAB, WS_W, WS_SK, WS_EA, WS_TS = 0, 0x80000, 0x100000, 0x500000, 0x2000000
CAPW, GAP = 224, 16
CAP = 8 * CAPW
SPIN = 200000

DEF = dict(ENP=0, PW=0, WFPRE=16, WFK=6, LASTPOL='sc1', EPRIO=0, BIAS=30, SCH=2, ALIGN=1, PRIO=1, DIAGW=0, DIAGK=0, DIAGAT='tab', D=6, TS=0, DBG=0, APOL="nt", AEA="00011", BEA="001223", SKBAR=1, ABAR=2, XPF=18, CPF=2, MU=7, OUTPOL="sc1", LDPOL="sc1", WST=3, WOST=3, ACCZ=2, CPOS=2, WGN=0)

PART39 = [[3, 11, 21, 31, 36], [5, 8, 20, 27, 38], [0, 6, 7, 13, 39], [9, 14, 18, 25, 34], [10, 16, 19, 24, 32], [4, 12, 26, 29, 33], [1, 17, 23, 28, 37], [2, 15, 22, 30, 35]]
PART40 = [[1, 10, 15, 30, 39], [2, 9, 21, 28, 37], [4, 14, 22, 27, 31], [6, 12, 18, 24, 35], [3, 8, 16, 29, 38], [5, 13, 17, 26, 34], [0, 20, 23, 32, 36], [7, 11, 19, 25, 33]]
PARTS = {0: (PART39, PART40)}
PARTS[12] = ([[12, 16, 24, 26, 30], [8, 14, 15, 31, 36], [2, 10, 23, 34, 37], [5, 17, 18, 22, 38], [0, 1, 7, 19, 39], [3, 11, 20, 29, 35], [6, 9, 25, 27, 32], [4, 13, 21, 28, 33]],
    [[9, 12, 19, 28, 32], [3, 10, 22, 29, 37], [7, 8, 23, 26, 36], [0, 18, 20, 34, 38], [5, 6, 14, 21, 39], [4, 11, 16, 24, 35], [1, 15, 25, 27, 31], [2, 13, 17, 30, 33]])
PARTS[20] = ([[13, 17, 24, 26, 31], [4, 16, 25, 29, 36], [5, 19, 23, 28, 35], [1, 6, 8, 10, 39], [7, 9, 20, 27, 32], [3, 12, 14, 33, 34], [2, 15, 18, 22, 37], [0, 11, 21, 30, 38]],
    [[11, 12, 17, 20, 38], [3, 16, 26, 28, 34], [8, 10, 19, 29, 36], [7, 14, 25, 27, 31], [6, 13, 15, 24, 30], [0, 9, 22, 23, 39], [2, 4, 21, 32, 35], [1, 5, 18, 33, 37]])
PARTS[30] = ([[12, 16, 25, 29, 32], [0, 5, 9, 20, 39], [1, 18, 27, 34, 37], [7, 19, 22, 30, 35], [2, 6, 24, 26, 36], [4, 11, 13, 31, 33], [10, 15, 17, 21, 28], [3, 8, 14, 23, 38]],
    [[6, 9, 26, 28, 37], [1, 11, 24, 35, 38], [5, 17, 23, 31, 33], [8, 12, 21, 29, 36], [2, 4, 15, 22, 39], [7, 10, 14, 18, 34], [0, 16, 20, 30, 32], [3, 13, 19, 25, 27]])
PARTS[40] = ([[7, 13, 28, 29, 37], [10, 17, 22, 30, 36], [1, 4, 6, 23, 39], [9, 19, 26, 31, 33], [5, 12, 15, 18, 35], [2, 11, 16, 27, 34], [0, 8, 24, 25, 38], [3, 14, 20, 21, 32]],
    [[8, 17, 25, 31, 32], [3, 19, 22, 28, 38], [6, 15, 18, 33, 37], [2, 14, 24, 29, 39], [0, 12, 21, 27, 34], [1, 9, 13, 26, 36], [5, 7, 10, 23, 35], [4, 11, 16, 20, 30]])
PARTS[50] = ([[2, 19, 28, 35, 37], [0, 6, 11, 24, 39], [15, 17, 27, 29, 34], [1, 20, 30, 32, 38], [4, 7, 18, 23, 33], [9, 10, 12, 21, 31], [5, 13, 16, 25, 26], [3, 8, 14, 22, 36]],
    [[7, 15, 27, 30, 36], [8, 18, 19, 28, 38], [4, 14, 31, 33, 35], [6, 13, 20, 29, 39], [2, 3, 22, 23, 34], [0, 11, 12, 26, 37], [1, 9, 17, 24, 32], [5, 10, 16, 21, 25]])


def vr(a, n):
    return f"v[{a}:{a+n-1}]" if n > 1 else f"v{a}"


def sr(a, n=4):
    return f"s[{a}:{a+n-1}]"


def scan_dpp(e, v, full):
    for k in (1, 2, 4, 8):
        e(f"v_add_u32_dpp v{v}, v{v}, v{v} row_shr:{k} row_mask:0xf bank_mask:0xf")
    e(f"v_add_u32_dpp v{v}, v{v}, v{v} row_bcast:15 row_mask:0xa bank_mask:0xf")
    if full:
        e(f"v_add_u32_dpp v{v}, v{v}, v{v} row_bcast:31 row_mask:0xc bank_mask:0xf")


class TS:
    last = None

    def __init__(self, e, on, pair, vreg):
        self.e, self.on, self.pair, self.v, self.names = e, on, pair, vreg, []
        TS.last = self

    diag = None

    def stamp(self, name):
        if self.diag and self.diag[0] == name:
            self.e("s_memrealtime s[4:5]", "s_waitcnt lgkmcnt(0)", f"s_sub_u32 s4, s4, s{self.pair}", f"s_mul_i32 s{self.pair+1}, s4, {self.diag[1]}")
        if self.on and (self.on == 1 or name in str(self.on).split(",") or name in ("start", "end")):
            e, p = self.e, self.pair
            e(f"s_memrealtime s[{p}:{p+1}]", "s_waitcnt lgkmcnt(0)", f"v_writelane_b32 v{self.v}, s{p}, {len(self.names)}")
            self.names.append(name)


class VQ:
    def __init__(self, e):
        self.e, self.q = e, []

    def op(self, tag, text):
        self.e(text)
        self.q.append(tag)

    def n(self, tag):
        idx = max(i for i, t in enumerate(self.q) if t == tag)
        return len(self.q) - 1 - idx

    def wait(self, tag, extra=""):
        self.e(f"s_waitcnt vmcnt({self.n(tag)}) {extra}".strip())


def gen(P):
    e = Emitter()
    vq = VQ(e)
    D = P["D"]
    R = 8
    MAP, CNT2, WB, DEG, TOT, NODEOF, START, WR, WO = 0, 8192, 13312, 14336, 15360, 15616, 16384, 17408, 46080
    LIST = WO + 32768
    SHST = LIST + (CAP + 8 * GAP + 128) * 4
    EAST = SHST + CAP * 8
    assert SHST + CAP * 8 <= EAST
    ZERO = EAST + CAP * 32
    LDS = ZERO + 64
    AGL = 0
    ACNT, ASTART, AINV, ASKS = 23552, 24576, 25600, 30720
    assert ASKS + CS * 12 <= WO and LDS <= 163840
    LANE, X16, RLEN, RBASE, RG0, ONE, PFV = 1, 2, 3, 4, 5, 6, 7
    T = 8
    ACC, RW, XR, TP, AGN, PQ, EA0, EA1, WRF, CGF, ENT = 16, 64, 96, 128, 144, 160, 164, 168, 172, 188, 192
    MP, MQ = CGF + 2, CGF + 3
    SIX, ZAD = EA1, EA1 + 1
    eAG, eFR, eST, eWF, NOD = [208, 209, 210, 211, 212], 213, 214, 215, 205
    NK = P["WFK"]
    WF = [216 + 4 * q for q in range(NK)] + [96 + 4 * q for q in range(16 - NK)]
    K, KN, LA, LB, EAC, LAC, LBC, RT, TSV = 196, 197, 198, 199, 200, 201, 202, 203, 204
    cODD, cMAPW, cMAP1, cMAP2, cL12, cDEG, cSH, cR21, cROW, cTIE, cBIN, cNOD, cLST, c380 = range(240, 254)
    e.idx_range = {("v", i) for i in range(ACC, ACC + 48)}
    sX, sTAB, sSK, sEA, sA0, sA1, sOUT = 16, 20, 24, 28, 32, 36, 40
    sB, sNB, sNCNT, sN, sROFF, sNR, sNV, sBASE, sEM, sCNT, sT, sT2 = 44, 45, 46, 47, 48, 49, 50, 51, 52, 53, 54, 55
    sNODE = 56
    sOFF = 61
    sTAG, sTAG2 = 62, 63
    SK = 64
    sV = 80
    sM0, sEO = 86, 87
    sASG = [90, 91, 92, 93, 94]
    sNW, sK4 = 95, 98
    sA2, sTSP = 96, 100
    ts = TS(e, P["TS"], sTSP, TSV)
    if P["DIAGW"]:
        ts.diag = (P["DIAGAT"], P["DIAGK"])
    apol, ldpol = P["APOL"], P["LDPOL"]
    astage = [int(c) for c in str(P["AEA"]).zfill(5)]
    bstage = [int(c) for c in str(P["BEA"]).zfill(6)]

    def srd(s, lo, hi, off, size):
        if off is None:
            e(f"s_mov_b32 s{s}, s{lo}", f"s_mov_b32 s{s+1}, s{hi}")
        else:
            e(f"s_add_u32 s{s}, s{lo}, {off}", f"s_addc_u32 s{s+1}, s{hi}, 0")
        e(f"s_mov_b32 s{s+2}, {size}", f"s_mov_b32 s{s+3}, 0x20000")

    def init_round(first):
        e(f"v_lshlrev_b32 v{T+3}, 2, v0", f"v_mov_b32 v{T+4}, 0x00700000", f"v_mov_b32 v{T+5}, 0")
        for i in range(4):
            e(f"ds_write_b32 v{T+3}, v{T+4} offset:{MAP + i*2048}")
        for i in range(4 if first else 3):
            e(f"ds_write_b32 v{T+3}, v{T+5} offset:{CNT2 + i*2048}")

    DSTV, SRCV, SHV, BK, BA, RK, NL, KEY, CT, ST, PS = 64, 68, 72, 80, 84, 88, 92, 96, 100, 104, 108
    TABV = 112
    OUTV = 128
    IV = 156
    CGR = 120
    if P["TS"]:
        e("s_memrealtime s[92:93]")
    e("s_cmp_ge_u32 s2, 256", "s_cbranch_scc1 L_done")
    e("s_load_dwordx4 s[4:7], s[0:1], 8")
    e("s_load_dwordx4 s[8:11], s[0:1], 24")
    e("s_load_dwordx2 s[14:15], s[0:1], 80")
    e(f"s_load_dwordx2 s[{SK}:{SK+1}], s[0:1], 0")
    e(f"s_load_dwordx2 s[{SK+2}:{SK+3}], s[0:1], 40")
    e(f"s_load_dwordx4 s[{SK+4}:{SK+7}], s[0:1], 48")
    e("s_load_dwordx2 s[12:13], s[0:1], 64")

    def cpf():
        e(f"s_getpc_b64 s[{sV}:{sV+1}]")
        e.label("L_pc")
        e(f"s_and_b32 s{sB}, s2, 0xf8", f"s_lshl_b32 s{sB}, s{sB}, 6")
        e(f"v_and_b32 v{T+3}, 0x180, v{T+2}", f"v_add_u32 v{T+3}, s{sB}, v{T+3}", f"v_min_u32 v{T+3}, L_end-L_pc, v{T+3}")
        e(f"v_mov_b32 v{TABV+1}, s{sV+1}", f"v_add_co_u32 v{TABV}, vcc, s{sV}, v{T+3}", f"v_addc_co_u32 v{TABV+1}, vcc, 0, v{TABV+1}, vcc")
        vq.op("cpf", f"global_load_dword v{TSV+1}, {vr(TABV,2)}, off")

    def srd_hi(s, size):
        e(f"s_mov_b32 s{s+2}, {size}", f"s_mov_b32 s{s+3}, 0x20000")

    def srd_lo(s, lo, off):
        e(f"s_add_u32 s{s}, s{lo}, {off}", f"s_addc_u32 s{s+1}, s{lo+1}, 0")

    e(f"v_lshlrev_b32 v{T+2}, 3, v0")
    if P["CPF"] == 2:
        cpf()
    e(f"v_lshrrev_b32 v{T}, 6, v0", f"v_and_b32 v{LANE}, 63, v0", f"v_lshlrev_b32 v{T+1}, 2, v0", f"v_mov_b32 v{T+5}, 0")
    e(f"v_readfirstlane_b32 s3, v{T}")
    e(f"ds_write_b32 v{T+1}, v{T+5} offset:{ACNT}", f"ds_write_b32 v{T+1}, v{T+5} offset:{AINV+3072}")
    e(f"s_mul_i32 s{sT}, s2, {CH*4}", f"s_mul_i32 s{sT2}, s2, {CH*8}", f"s_mul_i32 s{sOFF}, s2, {CH*32}")
    e(f"v_lshlrev_b32 v{X16}, 4, v{LANE}", f"v_lshlrev_b32 v{T+7}, 4, v0", f"v_mov_b32 v{ONE}, 1")
    e(f"s_lshl_b32 s{sEM}, s3, 10", f"s_add_u32 s{sEM}, s{sEM}, {EAST}", f"s_movk_i32 s{sCNT}, 4096", f"s_movk_i32 s{sNV}, 8192")
    srd_hi(sA0, CH * 4); srd_hi(sA1, CH * 4); srd_hi(sA2, CH * 8); srd_hi(sEA, CH * 32)
    if P["DIAGW"]:
        e(f"s_memrealtime s[{sTSP}:{sTSP+1}]")
    e("s_waitcnt lgkmcnt(0)")
    if P["TS"]:
        e(f"v_writelane_b32 v{TSV}, s92, 0")
        ts.names.append("first")
    ts.stamp("start")
    srd_lo(sA0, 6, f"s{sT}")
    for i in range(3):
        o = f"0 offen offset:{2048*i}" if i < 2 else f"s{sCNT} offen"
        vq.op("dst", f"buffer_load_dword v{DSTV+i}, v{T+1}, {sr(sA0)}, {o} {apol}")
    srd_lo(sA1, 4, f"s{sT}")
    if P["ABAR"] == 2:
        e("s_barrier")
    for i in range(3):
        o = f"0 offen offset:{2048*i}" if i < 2 else f"s{sCNT} offen"
        vq.op("src", f"buffer_load_dword v{SRCV+i}, v{T+1}, {sr(sA1)}, {o} {apol}")
    e(f"s_load_dword s{sTAG}, s[14:15], {WS_W}")
    if P["CPF"] == 1:
        cpf()
    srd_lo(sA2, 8, f"s{sT2}")
    srd_lo(sEA, 10, f"s{sOFF}")
    if P["ABAR"] == 1:
        e("s_barrier")
    for i, o in enumerate(("0", f"s{sCNT}", f"s{sNV}")):
        vq.op("sh", f"buffer_load_dwordx2 {vr(SHV+2*i,2)}, v{T+2}, {sr(sA2)}, {o} offen {apol}")

    def aea(p):
        for i in range(5):
            if astage[i] == p:
                e(f"s_add_u32 m0, s{sEM}, {8192*i}", f"s_mov_b32 s{sT}, {8192*i}")
                vq.op("ea", f"buffer_load_dwordx4 v{T+7}, {sr(sEA)}, s{sT} offen {apol} lds")
        if P["WST"] == p:
            weights()
        if P["WOST"] == p:
            wout()

    def weights():
        e("s_cmp_lt_u32 s3, 4")
        e(f"s_cselect_b32 s{sX}, s{SK+4}, s{SK+2}", f"s_cselect_b32 s{sX+1}, s{SK+5}, s{SK+3}", f"s_movk_i32 s{sT}, 128",
          f"s_cselect_b32 s{sX+2}, s{sCNT}, s{sT}", f"s_mov_b32 s{sX+3}, 0x20000")
        e(f"s_min_u32 s{sT}, s3, 5", f"s_lshl_b32 s{sT}, s{sT}, 10", f"s_add_u32 m0, s{sT}, {WR}", f"s_and_b32 s{sT}, s{sT}, 0xc00")
        vq.op("w", f"buffer_load_dwordx4 v{X16}, {sr(sX)}, s{sT} offen lds")

    def wout():
        srd(sOUT, SK + 6, SK + 7, None, 32768)
        e(f"s_lshl_b32 s{sT2}, s3, 12", f"s_add_u32 m0, s{sT2}, {WO}")
        for i in range(4):
            vq.op("w", f"buffer_load_dwordx4 v{X16}, {sr(sOUT)}, s{sT2} offen offset:{i*1024} lds")

    aea(0)
    if not P["ABAR"]:
        e("s_barrier")
    e(f"s_mov_b32 s{SK+8}, 109951168", f"s_movk_i32 s{SK+9}, 625", f"s_movk_i32 s{SK+10}, 838")
    e(f"v_cmp_gt_u32 s[{sV+4}:{sV+5}], {CH-1024}, v0") if CH - 1024 <= 64 else e(f"s_movk_i32 s{sT}, {CH-1024}", f"v_cmp_gt_u32 s[{sV+4}:{sV+5}], s{sT}, v0")
    srd(sTAB, 14, 15, None, WS_W + 64)
    init_round(True)
    if P["ACCZ"] == 9:
        for i in range(48):
            e(f"v_mov_b32 v{ACC+i}, 0")
    vq.wait("dst")
    ts.stamp("dst")
    for k in range(3):
        e(f"v_mul_hi_u32 v{BK+k}, v{DSTV+k}, s{SK+8}")
    for k in range(3):
        e(f"v_lshlrev_b32 v{BA+k}, 2, v{BK+k}")
        if k == 2:
            e(f"s_mov_b64 exec, s[{sV+4}:{sV+5}]")
        e(f"ds_add_rtn_u32 v{RK+k}, v{BA+k}, v{ONE} offset:{ACNT}")
    e("s_mov_b64 exec, -1")
    e("s_waitcnt lgkmcnt(0)", "s_barrier")
    ts.stamp("hist")
    e(f"ds_read_b128 {vr(CT,4)}, v{X16} offset:{ACNT}")
    e(f"s_mul_i32 s{sTAG}, s{sTAG}, 0x9e3779b1", f"s_add_u32 s{sTAG}, s{sTAG}, 0x7f4a7c15")
    e(f"s_mul_i32 s{sTAG2}, s{sTAG}, 0x85ebca6b", f"s_and_b32 s{sTAG2}, s{sTAG2}, 0xffc00000")
    aea(1)
    for k in range(3):
        e(f"v_mad_u32_u24 v{NL+k}, v{BK+k}, s{SK+9}, 15", f"v_lshrrev_b32 v{NL+k}, 4, v{NL+k}", f"v_sub_u32 v{NL+k}, v{DSTV+k}, v{NL+k}")
    e("s_waitcnt lgkmcnt(0)")
    e(f"v_add_u32 v{T+3}, v{CT}, v{CT+1}", f"v_add3_u32 v{T+3}, v{T+3}, v{CT+2}, v{CT+3}", f"v_mov_b32 v{T+4}, v{T+3}")
    scan_dpp(e, T + 4, True)
    e(f"v_sub_u32 v{ST}, v{T+4}, v{T+3}")
    for k in range(3):
        e(f"v_add_u32 v{ST+1+k}, v{ST+k}, v{CT+k}")
    e(f"ds_write_b128 v{X16}, {vr(ST,4)} offset:{ASTART}")
    for k in range(3):
        e(f"ds_read_b32 v{PS+k}, v{BA+k} offset:{ASTART}")
    vq.wait("src")
    for k in range(3):
        e(f"v_mul_u32_u24 v{KEY+k}, s{SK+10}, v{SRCV+k}", f"v_bfe_u32 v{KEY+k}, v{KEY+k}, 18, 5")
        e(f"v_lshl_or_b32 v{KEY+k}, v{NL+k}, 5, v{KEY+k}",
          f"v_lshlrev_b32 v{KEY+k}, 21, v{KEY+k}", f"v_lshl_or_b32 v{KEY+k}, v{SRCV+k}, 7, v{KEY+k}")
    e(f"v_lshlrev_b32 v{NL}, 5, v0", f"v_add_u32 v{NL+1}, {512*32}, v{NL}", f"v_add_u32 v{NL+2}, {1024*32}, v{NL}")
    e(f"s_mov_b32 s{sT2}, {ASKS}")
    vq.wait("sh", "lgkmcnt(0)")
    for k in range(3):
        e(f"v_add_u32 v{PS+k}, v{PS+k}, v{RK+k}")
        e(f"v_lshlrev_b32 v{BA+k}, 2, v{PS+k}", f"v_mad_u32_u24 v{PS+k}, v{PS+k}, 12, s{sT2}")
        if k == 2:
            e(f"s_mov_b64 exec, s[{sV+4}:{sV+5}]")
        e(f"ds_write_b32 v{BA+k}, v{NL+k} offset:{AINV}")
        e(f"ds_write2_b32 v{PS+k}, v{SHV+2*k}, v{SHV+2*k+1} offset0:0 offset1:1")
        e(f"ds_write_b32 v{PS+k}, v{KEY+k} offset:8")
    e("s_mov_b64 exec, -1")
    aea(2)
    e(f"s_lshl_b32 s{sT}, s3, 7", f"v_lshl_add_u32 v{T+3}, v{LANE}, 3, s{sT}")
    e(f"ds_read_b64 {vr(CT,2)}, v{T+3} offset:{ACNT}", f"ds_read_b64 {vr(ST,2)}, v{T+3} offset:{ASTART}")
    e(f"s_mul_i32 s{sT}, s2, {CS*12}", f"s_add_u32 s{sT}, s{sT}, {WS_SK}")
    srd(sA0, 14, 15, f"s{sT}", CS * 12)
    e(f"s_mul_i32 s{sT}, s2, {CS*32}", f"s_add_u32 s{sT}, s{sT}, {WS_EA}")
    srd(sA1, 14, 15, f"s{sT}", CH * 32)
    e(f"v_lshrrev_b32 v{T+3}, 1, v0", f"v_lshlrev_b32 v{T+3}, 2, v{T+3}")
    e(f"v_and_b32 v{T+4}, 1, v0", f"v_lshlrev_b32 v{T+4}, 4, v{T+4}", f"v_add_u32 v{T+4}, {EAST}, v{T+4}", f"v_add_u32 v{T+6}, {ASKS}, v{T+7}")
    e("s_waitcnt lgkmcnt(0)", "s_barrier")
    ts.stamp("scat")
    e(f"ds_read_b128 {vr(OUTV,4)}, v{T+6}", f"ds_read_b128 {vr(OUTV+4,4)}, v{T+6} offset:8192")
    for i in range(5):
        e(f"ds_read_b32 v{IV+i}, v{T+3} offset:{AINV + i*1024}")
    aea(3)

    def skst():
        vq.op("skst", f"buffer_store_dwordx4 {vr(OUTV,4)}, v{T+7}, {sr(sA0)}, 0 offen sc1")
        vq.op("skst", f"buffer_store_dwordx4 {vr(OUTV+4,4)}, v{T+7}, {sr(sA0)}, s{sNV} offen sc1")

    def frag_r(F0, t0, t1, t2):
        e(f"v_lshrrev_b32 v{t0}, 5, v{LANE}", f"v_lshlrev_b32 v{t0}, 10, v{t0}", f"v_and_b32 v{t1}, 15, v{LANE}", f"v_lshl_add_u32 v{t0}, v{t1}, 4, v{t0}")
        for i in range(8):
            e(f"ds_read_b128 {vr(F0+4*i,4)}, v{t0} offset:{WR + 2048*(i//4) + 256*(i%4)}")
        e(f"v_lshrrev_b32 v{t0}, 4, v{LANE}", f"v_lshlrev_b32 v{t0}, 5, v{t0}", f"v_and_b32 v{t1}, 3, v{LANE}", f"v_lshl_add_u32 v{t0}, v{t1}, 1, v{t0}")
        for v in range(4):
            e(f"ds_read_u16 v{F0+32+v}, v{t0} offset:{WR + 4096 + 8*v}")
        e(f"v_bfe_i32 v{t2}, v{LANE}, 4, 1", f"v_and_b32 v{t2}, 0x02020202, v{t2}", f"v_add_u32 v{t2}, 0x05040100, v{t2}")
        e("s_waitcnt lgkmcnt(0)")
        for h in range(2):
            for t in range(2):
                for ip in range(4):
                    e(f"v_perm_b32 v{WRF+8*h+2*ip+t}, v{F0+4*(2*ip+1)+t+2*h}, v{F0+4*(2*ip)+t+2*h}, v{t2}")
        e(f"v_lshl_or_b32 v{CGF}, v{F0+33}, 16, v{F0+32}", f"v_lshl_or_b32 v{CGF+1}, v{F0+35}, 16, v{F0+34}")

    def frag_o(F0, F1, t0, t1, sM):
        e(f"v_and_b32 v{t1}, 7, v{LANE}", f"v_lshrrev_b32 v{t0}, 4, v{LANE}", f"v_lshlrev_b32 v{t0}, 13, v{t0}", f"v_lshl_add_u32 v{t0}, v{t1}, 4, v{t0}",
          f"v_and_b32 v{t1}, 8, v{LANE}", f"s_and_b32 s{sM}, s3, 3", f"s_lshl_b32 s{sM}, s{sM}, 8", f"s_lshr_b32 s{sM+1}, s3, 2", f"s_lshl_b32 s{sM+1}, s{sM+1}, 7",
          f"s_add_u32 s{sM}, s{sM}, s{sM+1}", f"s_add_u32 s{sM}, s{sM}, {WO}", f"v_add3_u32 v{t0}, v{t0}, v{t1}, s{sM}")
        for ip in range(4):
            e(f"ds_read2st64_b64 {vr(F0+4*ip,4)}, v{t0} offset0:{4*ip} offset1:{4*ip+2}")
        e(f"s_mov_b32 s{sM}, 0x05040100", f"s_mov_b32 s{sM+1}, 0x07060302")
        for ip in range(4):
            e(f"s_waitcnt lgkmcnt({3-ip})")
            for t in range(4):
                e(f"v_perm_b32 v{F1+4*t+ip}, v{F0+4*ip+2+t//2}, v{F0+4*ip+t//2}, s{sM+t%2}")

    def consts():
        e(f"s_and_b32 s{sB}, s2, 7", f"s_lshl_b32 s{sB}, s{sB}, 5", f"s_lshr_b32 s{sT}, s2, 3", f"s_add_u32 s{sB}, s{sB}, s{sT}")
        e(f"s_mul_i32 s{sNB}, s{sB}, 625", f"s_add_u32 s{sNCNT}, s{sNB}, 640", f"s_add_u32 s{sNB}, s{sNB}, 15",
          f"s_lshr_b32 s{sNB}, s{sNB}, 4", f"s_lshr_b32 s{sNCNT}, s{sNCNT}, 4", f"s_sub_u32 s{sNCNT}, s{sNCNT}, s{sNB}")
        e(f"v_bfe_i32 v{SIX}, v{LANE}, 2, 1", f"v_and_b32 v{SIX}, 0xaaaa, v{SIX}", f"v_add_u32 v{SIX}, 0x4444, v{SIX}")
        e(f"v_mov_b32 v{ZAD}, {ZERO}", f"v_and_b32 v{T+3}, 60, v{T+1}", f"v_add_u32 v{T+3}, v{T+3}, v{ZAD}", f"ds_write_b32 v{T+3}, v{T+5}")
        e(f"v_and_b32 v{T+3}, 4, v{LANE}", f"v_lshlrev_b32 v{T+3}, 2, v{T+3}", f"v_mov_b32 v{T+4}, 0xffff", f"v_lshlrev_b32 v{T+4}, v{T+3}, v{T+4}")
        e(f"v_bfe_i32 v{T+3}, v{LANE}, 3, 1", f"v_and_b32 v{MQ}, v{T+3}, v{T+4}", f"v_xor_b32 v{MP}, v{MQ}, v{T+4}")
        e(f"v_lshrrev_b32 v{EAC}, 5, v{LANE}", f"v_lshlrev_b32 v{EAC}, 4, v{EAC}", f"v_add_u32 v{EAC}, {EAST}, v{EAC}")
        e(f"v_and_b32 v{LAC}, 15, v{LANE}", f"v_lshlrev_b32 v{LAC}, 2, v{LAC}")
        e(f"v_bfe_u32 v{T+3}, v{LANE}, 3, 2", f"v_and_b32 v{T+4}, 3, v{LANE}", f"v_lshl_add_u32 v{T+3}, v{T+3}, 2, v{T+4}", f"v_lshlrev_b32 v{LBC}, 2, v{T+3}")
        e(f"v_bfe_i32 v{cODD}, v0, 0, 1", f"s_lshl_b32 s{sT}, s3, 10", f"v_and_b32 v{cMAPW}, 4, v{cODD}", f"v_add_u32 v{cMAPW}, s{sT}, v{cMAPW}")
        e(f"v_lshl_add_u32 v{cMAP1}, v{LANE}, 2, s{sT}", f"v_lshrrev_b32 v{cMAP2}, 1, v{LANE}", f"v_lshl_add_u32 v{cMAP2}, v{cMAP2}, 2, s{sT}")
        e(f"v_mul_u32_u24 v{cL12}, 12, v{LANE}", f"v_and_b32 v{cDEG}, 12, v{cMAP1}", f"v_and_b32 v{cBIN}, 124, v{cMAP1}")
        e(f"s_mul_i32 s{sT}, s3, {CAPW}", f"v_add_u32 v{cR21}, s{sT}, v{LANE}", f"v_lshlrev_b32 v{cSH}, 3, v{cR21}", f"v_add_u32 v{cSH}, {SHST}, v{cSH}", f"v_lshlrev_b32 v{cR21}, 21, v{cR21}")
        e(f"s_mul_i32 s{sT}, s3, 640", f"v_add_u32 v{cROW}, s{sT}, v{cBIN}", f"v_sub_u32 v{cTIE}, 63, v{LANE}")
        e(f"s_getreg_b32 s{sM0}, hwreg(HW_REG_XCC_ID, 0, 3)", f"s_lshl_b32 s{sT}, s{sM0}, 4", f"v_subrev_u32 v{cBIN}, s{sT}, v{cBIN}", f"v_and_b32 v{cBIN}, 124, v{cBIN}")
        e(f"v_min_u32 v{cNOD}, 39, v{LANE}", f"v_lshlrev_b32 v{cNOD}, 7, v{cNOD}", f"v_mov_b32 v{c380}, 0x380")
        e(f"v_lshrrev_b32 v{cLST}, 3, v{LANE}", f"v_mul_u32_u24 v{cLST}, {GAP*4}, v{cLST}", f"v_add_u32 v{cLST}, {LIST}, v{cLST}")
        e(f"s_lshr_b32 s{sEO}, s3, 1", f"s_mul_i32 s{sEO}, s{sEO}, 3", f"s_min_u32 s{sEO}, s{sEO}, 8", f"s_mul_i32 s{sT}, s{sEO}, 4608")
        e(f"v_and_b32 v{T+3}, 15, v{LANE}", f"v_lshrrev_b32 v{T+4}, 4, v{LANE}")
        e(f"v_mul_u32_u24 v{eFR}, 288, v{T+3}", f"v_lshl_add_u32 v{eFR}, v{T+4}, 4, v{eFR}", f"v_add_u32 v{eFR}, s{sT}, v{eFR}")
        e(f"v_lshrrev_b32 v{T+4}, 3, v{LANE}", f"v_lshlrev_b32 v{T+4}, 9, v{T+4}", f"v_and_b32 v{T+3}, 7, v{LANE}", f"v_lshl_add_u32 v{eST}, v{T+3}, 4, v{T+4}")
        e(f"s_lshl_b32 s{sEO}, s{sEO}, 12", f"s_and_b32 s{sT}, s3, 1", f"s_lshl_b32 s{sT}, s{sT}, 7", f"s_add_u32 s{sEO}, s{sEO}, s{sT}",
          f"s_lshl_b32 s{sT}, s{sT}, 7", f"s_add_u32 s{sT}, s{sT}, {WO}", f"v_add_u32 v{eWF}, s{sT}, v{X16}")
        e(f"s_cmp_eq_u32 s{sNCNT}, 40")
        tabs = []
        for part in PARTS[P["BIAS"]]:
            t = [0] * 40
            for w, p in enumerate(part):
                for sl, r in enumerate(p):
                    t[r] = w * 8 + sl
            tabs.append([sum(t[5 * q + i] << (6 * i) for i in range(5)) for q in range(8)])
        e(f"v_mov_b32 v{RT}, 0")
        for q in range(8):
            e(f"s_mov_b32 s{sT}, {tabs[0][q]}", f"s_cselect_b32 s{sT}, {tabs[1][q]}, s{sT}")
            m = 31 << (5 * q)
            e(f"s_mov_b32 exec_lo, {m & 0xffffffff}", f"s_mov_b32 exec_hi, {m >> 32}", f"v_mov_b32 v{RT}, s{sT}")
        e("s_mov_b64 exec, -1")
        e(f"v_mul_u32_u24 v{T+3}, 52, v{LANE}", f"v_lshrrev_b32 v{T+3}, 8, v{T+3}", f"v_mad_i32_i24 v{T+3}, v{T+3}, -5, v{LANE}",
          f"v_mul_u32_u24 v{T+3}, 6, v{T+3}", f"v_lshrrev_b32 v{RT}, v{T+3}, v{RT}")
        e(f"v_and_b32 v{T+3}, 7, v{RT}", f"v_bfe_u32 v{RT}, v{RT}, 3, 3", f"v_lshlrev_b32 v{T+3}, 12, v{T+3}", f"v_lshl_or_b32 v{RT}, v{RT}, 7, v{T+3}")
        srd(sSK, 14, 15, WS_SK, NCH * CS * 12)

    def extra(pos):
        if P["CPOS"] == pos:
            consts()
        if P["ACCZ"] == pos:
            for i in range(48):
                e(f"v_mov_b32 v{ACC+i}, 0")

    e("s_waitcnt lgkmcnt(0)")
    for i in range(5):
        e(f"v_add_u32 v{IV+i}, v{T+4}, v{IV+i}")
    for k in range(2):
        e(f"v_lshl_or_b32 v{TABV+2*k}, v{CT+k}, 11, v{ST+k}", f"v_or_b32 v{TABV+2*k}, s{sTAG2}, v{TABV+2*k}", f"v_mov_b32 v{TABV+2*k+1}, s{sTAG}")
    extra(0)
    e(f"s_waitcnt vmcnt({min(vq.n('w') + P['WGN'], vq.n('ea'))})")
    e("s_barrier")
    ts.stamp("land")
    for i in range(5):
        e(f"ds_read_b128 {vr(OUTV+8+4*i,4)}, v{IV+i}")
    extra(1)
    ts.stamp("guard")
    skst()
    for i in range(5):
        e(f"s_mov_b32 s{sT}, {8192*i}", f"s_waitcnt lgkmcnt({4-i})")
        vq.op("st", f"buffer_store_dwordx4 {vr(OUTV+8+4*i,4)}, v{T+7}, {sr(sA1)}, s{sT} offen sc1")
    aea(4)
    ts.stamp("issued")

    extra(2)
    e(f"s_lshl_b32 s{sT}, s2, 3", f"s_add_u32 s{sT}, s{sT}, s3", f"s_lshl_b32 s{sT}, s{sT}, 8")
    srd(sX, SK, SK + 1, None, N * 1024)
    srd(sEA, 14, 15, WS_EA, NCH * CS * 32)
    if P["XPF"]:
        n = P["XPF"]
        e(f"s_and_b32 s{sBASE}, s{sM0}, 7", f"s_mul_i32 s{sBASE}, s{sBASE}, {1252*1024}", f"s_and_b32 s{sT2}, s2, 0xf8",
          f"s_add_u32 s{sT2}, s{sT2}, s3", f"s_mul_i32 s{sT2}, s{sT2}, {n*128}", f"s_add_u32 s{sBASE}, s{sBASE}, s{sT2}")
        e(f"v_min_u32 v{T+6}, {n-1}, v{LANE}", f"v_lshlrev_b32 v{T+6}, 7, v{T+6}")
    e("s_waitcnt vmcnt(0)", "s_barrier")
    ts.stamp("drained")
    e("s_mov_b64 exec, 0xffff")
    e(f"buffer_store_dwordx4 {vr(TABV,4)}, v{X16}, {sr(sTAB)}, s{sT} offen sc1")
    e("s_mov_b64 exec, -1")
    if P["XPF"]:
        e(f"buffer_load_dword v{PFV}, v{T+6}, {sr(sX)}, s{sBASE} offen")
    e(f"s_lshl_b32 s{sT}, s{sNB}, 10", f"s_add_u32 s{sOUT}, s12, s{sT}", f"s_addc_u32 s{sOUT+1}, s13, 0",
      f"s_lshl_b32 s{sOUT+2}, s{sNCNT}, 10", f"s_mov_b32 s{sOUT+3}, 0x20000")
    frag_r(RW, T, T + 1, T + 2)
    frag_o(128, 144, T, T + 1, SK + 8)
    for i in range(32):
        e(f"v_mov_b32 v{RW+i}, 0")
    e(f"s_lshl_b32 s{sT}, s3, 12", f"v_add_u32 v{T}, s{sT}, v{X16}")
    extra(3)
    e(f"v_lshrrev_b32 v{T+1}, 1, v0", f"v_lshlrev_b32 v{T+2}, 11, v{T+1}", f"s_lshl_b32 s{sNR}, s{sB}, 3")
    e(f"v_mul_u32_u24 v{RG0}, {CS}, v{T+1}", f"s_mov_b32 s{sROFF}, 0", f"s_mov_b32 s{sCNT}, {SPIN}", f"s_mov_b32 s{sT2}, 0xffc00000")
    e(f"s_mul_i32 s{sEM}, s3, {CAPW*32}", f"s_add_u32 s{sEM}, s{sEM}, {EAST}", f"s_movk_i32 s{sK4}, 4096")
    e(f"s_waitcnt vmcnt({P['PW']})", "s_barrier")
    ts.stamp("frag")
    PL = 206
    poll1 = f"buffer_load_dwordx2 {vr(PL,2)}, v{T+2}, {sr(sTAB)}, s{sNR} offen sc1"

    def tagcheck():
        e(f"v_xor_b32 v{T+3}, s{sTAG2}, v{PL}", f"v_xor_b32 v{T+4}, s{sTAG}, v{PL+1}", f"v_and_or_b32 v{T+3}, v{T+3}, s{sT2}, v{T+4}")
        e(f"v_cmpx_ne_u32 vcc, 0, v{T+3}")

    e(poll1)
    for t in range(4):
        e(f"ds_write_b128 v{T}, {vr(144+4*t,4)} offset:{WO + 1024*t}")
    e("s_waitcnt vmcnt(0)")
    tagcheck()
    e("s_cbranch_execnz L_poll")
    e.label("L_polled")
    e("s_mov_b64 exec, -1")
    ts.stamp("tab")
    G1, G2, SKR, RNK, CA = TP + 8, TP + 12, TP + 20, TP, TP + 4
    MU = P["MU"]
    sVm = [sV, sV + 2, sV + 4, sA2]

    m0st = [None]

    def bea1(i):
        if m0st[0] != i // 4 or i == 6:
            e(f"s_add_u32 m0, s{sEM}, {4096*(i//4)}")
        m0st[0] = i // 4
        vq.op("ea", f"buffer_load_dwordx4 v{G2+i}, {sr(sEA)}, {'0' if i < 4 else 's%d' % sK4} offen offset:{1024*(i%4)} {ldpol} lds")

    def bea(p):
        for i in range(6):
            if bstage[i] == p:
                bea1(i)

    def skld(i):
        e(f"v_mad_u32_u24 v{G1+i}, v{G1+i}, 12, v{cL12}")
        vq.op(f"sk{i}", f"buffer_load_dwordx3 {vr(SKR+4*i,3)}, v{G1+i}, {sr(sSK)}, 0 offen offset:{768*i} {ldpol}")

    cmps = [f"v_cmp_lt_i32 s[{SK+2*i}:{SK+2*i+1}], {2*i}, v{T+2}" for i in range(MU + 1)]
    e(f"v_bfe_u32 v{RLEN}, v{PL}, 11, 11", f"v_and_b32 v{RBASE}, v{RLEN}, v{cODD}", f"v_add_u32 v{T+2}, v{RLEN}, v{cODD}")
    fill = [f"v_and_b32 v{T+3}, 0x7ff, v{PL}"] + cmps + [f"v_add_u32 v{RG0}, v{RG0}, v{T+3}"]
    e(fill.pop(0))
    for mod in ("row_shr:1 row_mask:0xf", "row_shr:2 row_mask:0xf", "row_shr:4 row_mask:0xf", "row_shr:8 row_mask:0xf", "row_bcast:15 row_mask:0xa", "row_bcast:31 row_mask:0xc"):
        e(f"v_add_u32_dpp v{RBASE}, v{RBASE}, v{RBASE} {mod} bank_mask:0xf")
        e(*fill[:2]); fill = fill[2:]
    e(f"v_readlane_b32 s{sNW}, v{RBASE}, 63")
    e(f"v_mov_b32_dpp v{RBASE}, v{RBASE} quad_perm:[0,0,2,2] row_mask:0xf bank_mask:0xf")
    e(f"v_sub_u32 v{RG0}, v{RG0}, v{RBASE}")
    e(f"v_lshl_add_u32 v{T}, v{RBASE}, 2, v{cMAPW}")
    e(f"s_cmp_gt_u32 s{sNW}, {CAPW}", "s_cbranch_scc1 L_clip")
    e.label("L_mapw")
    for i in range(MU):
        e(f"s_mov_b64 exec, s[{SK+2*i}:{SK+2*i+1}]")
        e(f"ds_write_b32 v{T}, v{RG0} offset:{8*i}")
    e("s_mov_b64 exec, -1")
    e(f"s_cmp_lg_u64 s[{SK+2*MU}:{SK+2*MU+1}], 0", "s_cbranch_scc1 L_map2")
    for i in range(3):
        e(f"ds_read_b32 v{G1+i}, v{cMAP1} offset:{256*i}")
    for i in range(6):
        e(f"ds_read_b32 v{G2+i}, v{cMAP2} offset:{128*i}")
    e(f"s_cmp_gt_i32 s{sNW}, 192", "s_cbranch_scc1 L_r1")
    e.label("L_r1b")
    e("s_waitcnt lgkmcnt(6)")
    ts.stamp("map")
    for i in range(3):
        skld(i)
    e(f"v_mov_b32 v{T+3}, s{sNW}", "s_mov_b64 exec, 1", f"ds_max_i32 v{T+5}, v{T+3} offset:{TOT}", "s_mov_b64 exec, -1")
    e("s_waitcnt lgkmcnt(1)")
    for i in range(6):
        e(f"v_lshl_add_u32 v{G2+i}, v{G2+i}, 5, v{X16}")
    if P["SKBAR"]:
        e("s_barrier")
    ts.stamp("skiss")
    bea(0)
    assert 5 not in bstage
    e(f"s_min_i32 s{sT}, s{sNW}, {CAPW}")
    for i in range(4):
        e(f"v_cmp_gt_i32 s[{sVm[i]}:{sVm[i]+1}], s{sT}, v{LANE}", f"s_sub_i32 s{sT}, s{sT}, 64")
    e(f"s_mov_b32 s{sT2}, 0x1fff80", f"s_mul_i32 s{sOFF}, s3, 5")
    assert P["SKBAR"]
    for q in range(NK):
        e(f"ds_read_b128 {vr(WF[q],4)}, v{eWF} offset:{1024*q}")

    def count(i):
        key = SKR + 4 * i + 2
        e(f"v_lshrrev_b32 v{CA+i}, 21, v{key}", f"v_lshlrev_b32 v{CA+i}, 2, v{CA+i}")
        e(f"v_lshrrev_b32 v{T+3}, 26, v{key}", f"v_lshl_or_b32 v{T+3}, v{T+3}, 4, v{cDEG}")
        e(f"s_mov_b64 exec, s[{sVm[i]}:{sVm[i]+1}]")
        e(f"ds_add_rtn_u32 v{RNK+i}, v{CA+i}, v{ONE} offset:{CNT2}")
        e(f"ds_add_u32 v{T+3}, v{ONE} offset:{DEG}")
        e("s_mov_b64 exec, -1")

    def entry(i):
        key = SKR + 4 * i + 2
        if i == 3:
            e("s_mov_b32 exec_hi, 0")
        e(f"ds_write_b64 v{cSH}, {vr(SKR+4*i,2)} offset:{512*i}")
        if i == 3:
            e("s_mov_b32 exec_hi, -1")
        e(f"v_and_or_b32 v{key}, v{key}, s{sT2}, v{cR21}")
        if i:
            e(f"v_add_u32 v{key}, {64*i << 21}, v{key}")

    for i in range(3):
        vq.wait(f"sk{i}")
        if i == 0:
            ts.stamp("sk")
        count(i)
    e(f"s_cmp_gt_i32 s{sNW}, 192", "s_cbranch_scc1 L_r2")
    e.label("L_r2b")
    ts.stamp("atom")
    bea(1)
    for j in range(1, 5):
        e(f"s_add_u32 s{SK+j}, s{sOFF}, {j}")
    e("s_waitcnt lgkmcnt(0)", "s_barrier")
    ts.stamp("b1")
    CN, CAD = XR, XR + 8
    e(f"s_cmp_lg_u32 s{sROFF}, 0", "s_cbranch_scc1 L_rank2")
    e(f"ds_read_b128 {vr(CAD,4)}, v{X16} offset:{DEG}")
    for j in range(5):
        e(f"ds_read_b32 v{CN+j}, v{cROW} offset:{CNT2 + 128*j}")
    e(f"ds_read_b32 v{T+6}, v{T+5} offset:{TOT}")
    if P["ENP"] == 0:
        for i in range(3):
            entry(i)
    e(f"s_waitcnt lgkmcnt({9 if P['ENP'] == 0 else 6})")
    e(f"v_add_u32 v{T+1}, v{CAD}, v{CAD+1}", f"v_add3_u32 v{T+1}, v{T+1}, v{CAD+2}, v{CAD+3}")
    e(f"v_lshl_or_b32 v{T+1}, v{T+1}, 6, v{cTIE}")
    for j in range(5):
        e(f"v_readlane_b32 s{SK+j}, v{T+1}, s{SK+j if j else sOFF}")
    for j in range(5):
        e(f"v_cmp_lt_u32 s[{SK+6+2*j}:{SK+7+2*j}], s{SK+j}, v{T+1}")
    for j in range(5):
        e(f"s_bcnt1_i32_b64 s{SK+j}, s[{SK+6+2*j}:{SK+7+2*j}]")
    e(f"s_waitcnt lgkmcnt({3 if P['ENP'] == 0 else 0})")
    for j in range(5):
        e(f"v_readlane_b32 s{sASG[j]}, v{RT}, s{SK+j}")
    e(f"v_readfirstlane_b32 s{sN}, v{T+6}")
    e.label("L_ranked")
    e("s_mov_b32 exec_hi, 0")
    for j in range(5):
        e(f"v_and_or_b32 v{CAD+j}, s{sASG[j]}, v{c380}, v{cBIN}")
        e(f"ds_add_rtn_u32 v{CN+j}, v{CAD+j}, v{CN+j} offset:{WB}")
    for j in range(5):
        e(f"v_or_b32 v{CAD+j}, s{sASG[j]}, v{cBIN}")
    e(f"s_lshl_b32 s{sT}, s3, 3", f"s_add_u32 s{sOFF}, s{sT}, 7")
    for j in range(5):
        if j in (0, 2):
            e(f"s_waitcnt lgkmcnt({3 if j == 0 else 2})")
        e(f"v_lshl_or_b32 v{CN+j}, v{CN+j}, 16, v{CAD+j}")
        e(f"ds_write_b32 v{cROW}, v{CN+j} offset:{CNT2 + 128*j}")
    e("s_mov_b32 exec_hi, -1")
    ts.stamp("rank")
    bea(2)
    if P["ENP"] == 1:
        for i in range(3):
            entry(i)
    e(f"s_waitcnt lgkmcnt({3 if P['ENP'] == 1 else 0})", "s_barrier")
    ts.stamp("b2")
    e(f"ds_read_b128 {vr(CN,4)}, v{X16} offset:{WB}")
    for i in range(3):
        e(f"ds_read_b32 v{CA+i}, v{CA+i} offset:{CNT2}")
    bea(6)
    e("s_waitcnt lgkmcnt(3)")
    e(f"v_add_u32 v{T+1}, v{CN}, v{CN+1}", f"v_add3_u32 v{T+1}, v{T+1}, v{CN+2}, v{CN+3}", f"v_mov_b32 v{T+2}, v{T+1}")
    e("s_waitcnt lgkmcnt(0)")

    def place(i):
        key = SKR + 4 * i + 2
        return [f"v_bfe_u32 v{T+7}, v{CA+i}, 12, 3", f"v_or_b32 v{key}, v{T+7}, v{key}", f"v_and_b32 v{G1+i}, 0x3ff, v{CA+i}",
                f"v_lshrrev_b32 v{CA+i}, 16, v{CA+i}", f"v_add_u32 v{CA+i}, v{CA+i}, v{RNK+i}"]

    fill = place(0) + place(1) + place(2)
    e(fill.pop(0))
    for mod in ("row_shr:1 row_mask:0xf", "row_shr:2 row_mask:0xf", "row_shr:4 row_mask:0xf", "row_shr:8 row_mask:0xf", "row_bcast:15 row_mask:0xa", "row_bcast:31 row_mask:0xc"):
        e(f"v_add_u32_dpp v{T+2}, v{T+2}, v{T+2} {mod} bank_mask:0xf")
        e(*fill[:2]); fill = fill[2:]
    e(f"v_sub_u32 v{T+1}, v{T+2}, v{T+1}")
    e(f"v_lshl_add_u32 v{CAD}, v{T+1}, 2, v{cLST}")
    for k in range(3):
        e(f"v_lshl_add_u32 v{CAD+1+k}, v{CN+k}, 2, v{CAD+k}")
    e(f"ds_write_b128 v{X16}, {vr(CAD,4)} offset:{START}")
    for i in range(3):
        e(f"ds_read_b32 v{G1+i}, v{G1+i} offset:{START}")
    e(*fill)
    e(f"v_readlane_b32 s{sNV}, v{T+2}, s{sOFF}", f"v_readlane_b32 s{sCNT}, v{T+1}, s{sT}", f"v_readlane_b32 s{sBASE}, v{CAD}, s{sT}")
    e(f"v_mov_b32 v{T+6}, {(0x3fff << 7) | 5}")
    e(f"s_sub_u32 s{sNV}, s{sNV}, s{sCNT}", f"s_lshl2_add_u32 s{sT2}, s{sNV}, s{sBASE}", f"v_add_u32 v{T+1}, s{sT2}, v{LAC}")
    e(f"ds_write_b32 v{T+1}, v{T+6}")
    assert D == 6
    sP0 = sT
    e(f"s_add_u32 s{sCNT}, s{sNV}, 15", f"s_lshr_b32 s{sCNT}, s{sCNT}, 4", f"s_sub_u32 s{sP0}, 0, s{sNV}", f"s_and_b32 s{sP0}, s{sP0}, 14",
      f"s_sub_u32 s{sCNT}, s{sCNT}, 1", f"s_cmp_gt_i32 s{sCNT}, 0", f"s_cselect_b32 s{sP0}, s{sP0}, 0", f"s_lshl_b32 s{sOFF}, s{sP0}, 2",
      f"s_sub_u32 s{sBASE}, s{sBASE}, s{sOFF}")

    def scatter(i):
        e(f"s_mov_b64 exec, s[{sVm[i]}:{sVm[i]+1}]")
        e(f"ds_write_b32 v{CA+i}, v{SKR+4*i+2}")

    e("s_waitcnt lgkmcnt(1)")
    for i in range(3):
        e(f"v_lshl_add_u32 v{CA+i}, v{CA+i}, 2, v{G1+i}")
    for i in range(3):
        scatter(i)
    e("s_mov_b64 exec, -1")
    e(f"s_cmp_gt_i32 s{sNW}, 192", "s_cbranch_scc1 L_r3")
    e.label("L_r3b")
    bea(3)
    ts.stamp("list")
    e(f"v_add_u32 v{LA}, s{sBASE}, v{LAC}", f"v_add_u32 v{LB}, s{sBASE}, v{LBC}",
      f"s_and_b32 s{sOFF}, s{sOFF}, 32", f"v_add_u32 v{T+4}, s{sOFF}, v{LA}", f"s_and_b32 s{SK+8}, s{sP0}, 6")
    e(f"s_mov_b32 s{sT2}, 0x00fffc38", f"s_mov_b32 s{sNR}, 0xffffff00", f"s_mov_b32 s{sBASE}, {SHST}")
    if P["PRIO"] == 1:
        e("s_cmp_lt_u32 s3, 4", "s_cbranch_scc1 L_np", "s_setprio 1")
        e.label("L_np")
    e("s_waitcnt lgkmcnt(0)", "s_barrier")
    ts.stamp("b4")
    e(f"ds_read_b32 v{K}, v{T+4}", f"ds_read_b32 v{ENT+2}, v{LB}", f"ds_read_b32 v{KN}, v{LA} offset:{4*D}", f"ds_read_b32 v{NOD}, v{cNOD} offset:{CNT2}")
    e(f"s_cmp_eq_u32 s{sNV}, 0", "s_cbranch_scc1 L_empty")

    def agaddr():
        e(f"v_lshlrev_b32 v{T+4}, 2, v{LANE}", f"s_lshl_b32 s{sOFF}, s3, 7")
        e(f"v_and_b32 v{NOD}, 0x7380, v{NOD}", f"v_xor_b32 v{NOD}, s{sOFF}, v{NOD}")
        e(f"v_alignbit_b32 v{NOD}, v{NOD}, v{NOD}, 12")
        m = [f"s[{q}:{q+1}]" for q in sVm] + ["vcc"]
        for j in range(5):
            e(f"v_cmp_eq_u32 {m[j]}, {j}, v{NOD}")
        for j in range(5):
            e(f"s_ff1_i32_b64 s{sNODE+j}, {m[j]}", f"s_mul_i32 s{sNODE+j}, s{sNODE+j}, 1152", f"v_add_u32 v{eAG[j]}, s{sNODE+j}, v{T+4}")

    AL = P["ALIGN"]

    def al():
        if AL:
            e(".p2align 3")

    def ea_reads():
        e(f"v_lshrrev_b32 v{T}, 21, v{ENT+2}", f"v_lshl_add_u32 v{T+3}, v{T}, 3, s{sBASE}", f"v_lshl_add_u32 v{T}, v{T}, 5, v{EAC}")
        e(f"ds_read_b64 {vr(ENT,2)}, v{T+3}")
        e(f"ds_read_b128 {vr(EA0,4)}, v{T}")

    def zq(q):
        e(f"ds_read_b128 {vr(RW+4*q,4)}, v{ZAD}", f"ds_read_b128 {vr(RW+16+4*q,4)}, v{ZAD}")

    def pq(j):
        p = PQ + 2 * (j % 2)
        return [f"v_cvt_pk_bf16_f32 v{T+1+j%2}, v{AGN+j}, v{AGN+j}", f"v_and_b32 v{p}, v{MP}, v{T+1+j%2}", f"v_and_b32 v{p+1}, v{MQ}, v{T+1+j%2}"]

    def head(kind):
        e(f"s_waitcnt lgkmcnt({0 if kind == 'first' else 2})"); al()
        for q in range(4):
            e(f"v_mfma_f32_4x4x4_16b_bf16 {vr(AGN+4*q,4)}, {vr(ENT,2)}, {vr(CGF,2)}, 0 cbsz:4 abid:{2*q}")
        e(f"v_lshlrev_b32 v{K}, 3, v{KN}", f"v_and_b32 v{K}, s{sT2}, v{K}")
        rd = []
        if kind != "last":
            e(f"v_add_u32 v{LA}, 64, v{LA}", f"v_add_u32 v{LB}, 64, v{LB}")
            rd = [f"ds_read_b32 v{KN}, v{LA} offset:{4*D}", f"ds_read_b32 v{ENT+2}, v{LB}"]
        if kind != "first":
            e("s_waitcnt lgkmcnt(0)"); al()
        groups = [rd + (pq(0) if kind != "first" else []), []]
        for h in range(2):
            e(f"v_smfmac_f32_32x32x32_bf16 {vr(RW+16*h,16)}, {vr(EA0,4)}, {vr(WRF+8*h,8)}, v{SIX}")
            e(*groups[h])

    def pks(j):
        t = TP + 8 * (j % 2)
        for h in range(2):
            r = RW + 16 * h + j
            rp = r & ~1
            sel = "op_sel:[0,1,0] op_sel_hi:[1,1,1]" if r & 1 else "op_sel_hi:[1,0,1]"
            for q in range(2):
                a = ACC + 4 * h + 2 * q
                e(f"v_pk_fma_f32 {vr(a,2)}, {vr(t+4*h+2*q,2)}, {vr(rp,2)}, {vr(a,2)} {sel}")

    def mf(j, h):
        t, p, s = TP + 8 * (j % 2), PQ + 2 * (j % 2), XR + 4 * (j % R)
        e(f"v_mfma_f32_16x16x16_bf16 {vr(t+4*h,4)}, {vr(p,2)}, {vr(s+2*h,2)}, 0")

    def rl(q, lane):
        e(f"v_readlane_b32 s{SK + q % 8}, v{K}, {lane}")

    def sand(q):
        e(f"s_and_b32 s{sOFF}, s{SK + q % 8}, s{sNR}")

    def xl(q):
        e(f"buffer_load_dwordx4 {vr(XR + 4 * (q % R),4)}, v{X16}, {sr(sX)}, s{sOFF} offen")

    def body(last):
        for j in range(0, 16, 2):
            ld = not last or j + D < 16
            if not last or j == 0:
                e.label(f"L_{'f' if last else 'j'}{j}")
            nx = pq(j + 1)
            e(f"s_waitcnt vmcnt({D-1 if ld else 15-j})"); al()
            mf(j, 0)
            if ld:
                rl(j + D, j)
            e(*nx[:1]); mf(j, 1); e(*nx[1:])
            if ld and P["SCH"] == 2:
                sand(j + D); e(f"s_waitcnt vmcnt({D-2})"); xl(j + D)
            elif ld:
                sand(j + D); xl(j + D); e(f"s_waitcnt vmcnt({D-1})")
            else:
                e(f"s_waitcnt vmcnt({14-j})"); al()
            nx = pq(j + 2) if j < 14 else []
            mf(j + 1, 0)
            if ld:
                rl(j + 1 + D, j + 1)
            e(*nx[:1]); mf(j + 1, 1); e(*nx[1:])
            if j == 2 and not last:
                e("s_waitcnt lgkmcnt(0)")
                ea_reads(); al()
            if ld:
                sand(j + 1 + D)
            e(f"s_set_gpr_idx_on s{SK + j % 8}, gpr_idx(SRC2,DST)")
            xl(j + 1 + D) if ld else al()
            pks(j)
            e(f"s_set_gpr_idx_idx s{SK + (j + 1) % 8}")
            if j == 14 and not last:
                e(f"s_sub_u32 s{sCNT}, s{sCNT}, 1")
            al()
            pks(j + 1)
            if j % 4 == 2 and not last:
                zq(j // 4)
            e("s_set_gpr_idx_off")

    e("s_waitcnt lgkmcnt(3)")
    e(f"v_lshlrev_b32 v{K}, 3, v{K}", f"v_and_b32 v{K}, s{sT2}, v{K}")
    for q in (2, 4, 6):
        e(f"s_cmp_eq_u32 s{SK+8}, {q}", f"s_cbranch_scc1 L_p{q}")
    for q in range(0, 12, 2):
        e.label(f"L_p{q}")
        rl(q, q); rl(q + 1, q + 1)
        sand(q); xl(q); sand(q + 1); xl(q + 1)
        if 4 <= q < 10:
            e(f"s_cmp_eq_u32 s{SK+8}, {q-4}", "s_cbranch_scc1 L_pd")
    e.label("L_pd")
    e(f"s_waitcnt vmcnt({D}) lgkmcnt(0)", "s_barrier")
    ea_reads()
    agaddr()
    ts.stamp("b5")
    head("first")
    e(f"s_set_gpr_idx_on s{sP0}, gpr_idx(SRC0,SRC1)")
    e.idx_range, keep = {("v", i) for i in range(AGN, AGN + 16)}, e.idx_range
    e(pq(0)[0])
    e.idx_range = keep
    e("s_set_gpr_idx_off")
    e(*pq(0)[1:])
    e("s_waitcnt lgkmcnt(0)")
    ea_reads()
    e(f"s_cmp_eq_u32 s{sCNT}, 0", "s_cbranch_scc1 L_f0")
    for j in range(0, 14, 2):
        e(f"s_cmp_eq_u32 s{sP0}, {j}", f"s_cbranch_scc1 L_j{j}")
        if j % 4 == 2:
            zq(j // 4)
    e("s_branch L_j14")
    e(".p2align 3")
    e.label("L_loop")
    head("mid")
    body(False)
    e(f"s_cmp_lg_u32 s{sCNT}, 0", "s_cbranch_scc1 L_loop")
    head("last")
    body(True)
    e.label("L_swept")
    ts.stamp("swept")
    e(f"s_add_u32 s{sROFF}, s{sROFF}, {CAPW}", f"s_cmp_lt_u32 s{sROFF}, s{sN}", "s_cbranch_scc1 L_again")
    AF, DD, OB, OT = ACC, 160, 64, 80
    if P["EPRIO"] >= 0:
        e(f"s_setprio {P['EPRIO']}")
    for s in range(5):
        for w in range(4):
            e(f"v_cvt_pk_bf16_f32 v{RW+4*s+w}, v{ACC+8*s+w}, v{ACC+8*s+4+w}")
        for w in (0, 2):
            e(f"ds_write2_b32 v{eAG[s]}, v{RW+4*s+w}, v{RW+4*s+w+1} offset0:{72*w} offset1:{72*w+72}")
    NPRE = P["WFPRE"]
    for q in range(NK, NPRE):
        e(f"ds_read_b128 {vr(WF[q],4)}, v{eWF} offset:{1024*q}")
    e(f"s_waitcnt lgkmcnt({NPRE - NK})", "s_barrier")
    ts.stamp("agb")
    lq = [f"w{q}" for q in range(NPRE)]

    def lop(tag, text):
        e(text); lq.append(tag)

    def lwait(*tags):
        n = len(lq) - 1 - max(lq.index(t) for t in tags)
        e(f"s_waitcnt lgkmcnt({min(n, 15)})")

    def afrag(k, ss=range(4)):
        for s in ss:
            lop(f"a{k}{s}", f"ds_read_b128 {vr(AF+16*k+4*s,4)}, v{eFR} offset:{AGL + 4608*k + 64*s}")

    def post(k, pol=P['OUTPOL']):
        d, o = DD + 16 * (k % 2), OB + 8 * (k % 2)
        x = []
        for r in range(2):
            for c in range(2):
                x.append(f"v_cvt_pk_bf16_f32 v{o+4*r+c}, v{d+8*c+r}, v{d+8*c+4+r}")
                x.append(f"v_cvt_pk_bf16_f32 v{OT+2*r+c}, v{d+8*c+r}, v{d+8*c+4+r}")
                x.append(f"v_cvt_pk_bf16_f32 v{o+4*r+2+c}, v{d+8*c+r+2}, v{d+8*c+4+r+2}")
            for c in range(2):
                x.append(f"v_mov_b32_dpp v{o+4*r+c}, v{o+4*r+2+c} row_ror:8 row_mask:0xf bank_mask:0xc")
            for c in range(2):
                x.append(f"v_mov_b32_dpp v{o+4*r+2+c}, v{OT+2*r+c} row_ror:8 row_mask:0xf bank_mask:0x3")
            x.append(f"buffer_store_dwordx4 {vr(o+4*r,4)}, v{eST}, {sr(sOUT)}, s{sEO} offen offset:{256*r} {pol}")
        x.append(f"s_add_u32 s{sEO}, s{sEO}, 4096")
        return x

    def tile(k, pend):
        d = DD + 16 * (k % 2)
        for s in range(4):
            if k == 0:
                lwait(f"a0{s}", f"w{4*s+3}")
            elif s == 0:
                lwait(f"a{k}3")
            for t in range(4):
                c = "0" if s == 0 else vr(d + 4 * t, 4)
                e(f"v_mfma_f32_16x16x32_bf16 {vr(d+4*t,4)}, {vr(AF+16*k+4*s,4)}, {vr(WF[4*s+t],4)}, {c}")
                if 4 * s + t >= 4:
                    e(*pend[:2]); pend = pend[2:]
            if k == 0 and s == 0:
                afrag(1)
            if k == 0 and s == 1:
                afrag(2)
        e(*pend)

    for s in range(4):
        afrag(0, [s])
        for q in range(max(NPRE, 4 * s), 4 * s + 4):
            lop(f"w{q}", f"ds_read_b128 {vr(WF[q],4)}, v{eWF} offset:{1024*q}")
    tile(0, [])
    tile(1, post(0))
    e("s_cmp_ge_u32 s3, 4", "s_cbranch_scc1 L_two")
    tile(2, post(1))
    e(*post(2, P['LASTPOL']))
    e.label("L_stored")
    ts.stamp("stored")
    e("s_or_b32 s4, s2, s3", "s_cbranch_scc1 L_notag")
    e(f"v_mov_b32 v{T}, s{sTAG}", f"v_lshlrev_b32 v{T+2}, 2, v{LANE}", f"s_mov_b32 s{sT}, {WS_W}")
    e(f"buffer_store_dword v{T}, v{T+2}, {sr(sTAB)}, s{sT} offen sc1")
    e.label("L_notag")
    if P["DIAGW"] and P["DIAGAT"] == "fin":
        e("s_waitcnt vmcnt(0)")
        ts.stamp("fin")
    if P["DIAGW"]:
        e(f"s_add_u32 s6, s{sTSP+1}, {P['DIAGW']}", "s_min_u32 s6, s6, 30000")
        e.label("L_diag")
        e("s_memrealtime s[4:5]", "s_waitcnt lgkmcnt(0)", f"s_sub_u32 s4, s4, s{sTSP}", "s_cmp_lt_u32 s4, s6", "s_cbranch_scc1 L_diag")
    if P["TS"]:
        e("s_waitcnt vmcnt(0)")
        ts.stamp("end")
        e(f"s_lshl_b32 s{sT}, s2, 3", f"s_add_u32 s{sT}, s{sT}, s3", f"s_lshl_b32 s{sT}, s{sT}, 8", f"s_add_u32 s{sT}, s{sT}, {WS_TS}")
        e(f"v_lshl_add_u32 v{T}, v{LANE}, 2, s{sT}", f"global_store_dword v{T}, v{TSV}, s[14:15]")
        if P["DBG"]:
            e(f"s_cmp_lg_u32 s2, {P['DBG']}", "s_cbranch_scc1 L_done", "s_cmp_lg_u32 s3, 0", "s_cbranch_scc1 L_done")
            e("s_load_dwordx2 s[4:5], s[0:1], 72", f"v_readlane_b32 s{sT}, v{TSV}, 0", f"v_lshlrev_b32 v{T}, 2, v{LANE}")
            e(f"v_subrev_u32 v{TSV}, s{sT}, v{TSV}", "s_waitcnt lgkmcnt(0)", f"global_store_dword v{T}, v{TSV}, s[4:5]")
    e.label("L_done")
    e("s_endpgm")
    e.label("L_again")
    e("s_waitcnt vmcnt(0) lgkmcnt(0)", "s_barrier")
    init_round(False)
    for i in range(32):
        e(f"v_mov_b32 v{RW+i}, 0")
    e(f"v_add_u32 v{RLEN}, v{RLEN}, v{RBASE}", f"v_subrev_u32 v{RLEN}, {CAPW}, v{RLEN}", f"v_max_i32 v{RLEN}, 0, v{RLEN}")
    e(f"v_subrev_u32 v{RBASE}, {CAPW}, v{RBASE}", f"v_max_i32 v{RBASE}, 0, v{RBASE}", f"v_sub_u32 v{RLEN}, v{RLEN}, v{RBASE}")
    e(f"v_add_u32 v{RG0}, {CAPW}, v{RG0}", f"s_sub_i32 s{sNW}, s{sNW}, {CAPW}", f"v_lshl_add_u32 v{T}, v{RBASE}, 2, v{cMAPW}")
    e("s_waitcnt lgkmcnt(0)", "s_barrier")
    e.label("L_clip")
    e(f"v_add_u32 v{T+2}, v{RBASE}, v{RLEN}", f"v_min_i32 v{T+2}, {CAPW}, v{T+2}", f"v_sub_u32 v{T+2}, v{T+2}, v{RBASE}", f"v_add_u32 v{T+2}, v{T+2}, v{cODD}")
    e.label("L_masks")
    e(*cmps)
    e("s_nop 0", "s_branch L_mapw")
    e.label("L_map2")
    e(f"v_add_u32 v{T}, {8*MU}, v{T}", f"v_subrev_u32 v{T+2}, {2*MU}, v{T+2}")
    e("s_branch L_masks")
    e.label("L_r1")
    e(f"ds_read_b32 v{G1+3}, v{cMAP1} offset:768", f"ds_read_b32 v{G2+6}, v{cMAP2} offset:768")
    e("s_waitcnt lgkmcnt(0)")
    skld(3)
    for i in (6,):
        e(f"v_lshl_add_u32 v{G2+i}, v{G2+i}, 5, v{X16}")
        bea1(i)
    e("s_branch L_r1b")
    e.label("L_r2")
    count(3)
    entry(3)
    e("s_branch L_r2b")
    e.label("L_r3")
    e(f"ds_read_b32 v{CA+3}, v{CA+3} offset:{CNT2}", "s_waitcnt lgkmcnt(0)")
    e(*place(3))
    e(f"ds_read_b32 v{G1+3}, v{G1+3} offset:{START}", "s_waitcnt lgkmcnt(0)")
    e(f"v_lshl_add_u32 v{CA+3}, v{CA+3}, 2, v{G1+3}")
    scatter(3)
    e("s_mov_b64 exec, -1", "s_branch L_r3b")
    e.label("L_empty")
    e("s_waitcnt vmcnt(0) lgkmcnt(0)", "s_barrier")
    agaddr()
    e("s_branch L_swept")
    e.label("L_two", pad=8)
    e(*post(1, P['LASTPOL']))
    e("s_branch L_stored")
    e.label("L_poll")
    e(poll1, f"s_sub_u32 s{sCNT}, s{sCNT}, 1", "s_cbranch_scc1 L_done", "s_waitcnt vmcnt(0)")
    tagcheck()
    e("s_cbranch_execnz L_poll", "s_branch L_polled")
    e.label("L_rank2")
    for j in range(5):
        e(f"ds_read_b32 v{CN+j}, v{cROW} offset:{CNT2 + 128*j}")
    if P["ENP"] == 0:
        for i in range(3):
            entry(i)
    e("s_waitcnt lgkmcnt(0)")
    e.label("L_end")
    e("s_branch L_ranked")
    return e.text(), LDS, 256, 102


HEADER = """; Kernarg layout for this problem (88 bytes, ptrs only, base s[0:1]):
"""


def generate(**kw):
    P = dict(DEF)
    P.update(kw)
    k, lds, v, s = gen(P)
    n = NAME + "_kernel"
    out = HEADER
    out += f"; @launch grid=(256,1,1) block=(512,1,1) lds={lds}\n"
    out += '.amdgcn_target "amdgcn-amd-amdhsa--gfx950"\n.text\n'
    out += f".globl {n}\n.p2align 8\n.type {n},@function\n{n}:\n{k}"
    out += '.section .rodata,"a"\n'
    out += (f".p2align 6\n.amdhsa_kernel {n}\n  .amdhsa_next_free_vgpr {v}\n  .amdhsa_next_free_sgpr {s}\n"
            f"  .amdhsa_accum_offset {(v+3)//4*4}\n  .amdhsa_group_segment_fixed_size 0\n  .amdhsa_kernarg_size 88\n"
            f"  .amdhsa_user_sgpr_count 2\n  .amdhsa_user_sgpr_kernarg_segment_ptr 1\n  .amdhsa_system_sgpr_workgroup_id_x 1\n"
            f"  .amdhsa_float_denorm_mode_32 3\n.end_amdhsa_kernel\n")
    return out


if __name__ == "__main__":
    kw = {}
    for a in sys.argv[1:]:
        k, v = a.split("=", 1)
        kw[k] = int(v) if v.lstrip("-").isdigit() else v
    sys.stdout.write(generate(**kw))
```

```python
import sys, os
sys.path.insert(0, os.path.dirname(os.path.abspath(__file__)))
from emit import Emitter

NAME = "gather_scatter__tensor_product_equiv_mace__graph"
N, E = 10000, 320000
CH, NCH, CS = 1250, 256, 1280
WS_TAB, WS_W, WS_SK, WS_EA, WS_TS = 0, 0x80000, 0x100000, 0x500000, 0x2000000
CAPW, GAP = 224, 16
CAP = 8 * CAPW
SPIN = 200000

DEF = dict(NB5=1, AGP=2, ENP=0, PW=0, WFT=1, WFK=6, LASTPOL='sc1', EPRIO=0, BIAS=30, SCH=2, ALIGN=1, PRIO=1, DIAGW=0, DIAGK=0, DIAGAT='tab', D=6, TS=0, DBG=0, APOL="nt", AEA="00011", BEA="001223", SKBAR=1, ABAR=2, XPF=18, CPF=2, MU=7, OUTPOL="sc1", LDPOL="sc1", WST=3, WOST=3, ACCZ=2, CPOS=2, WGN=0)

PART39 = [[3, 11, 21, 31, 36], [5, 8, 20, 27, 38], [0, 6, 7, 13, 39], [9, 14, 18, 25, 34], [10, 16, 19, 24, 32], [4, 12, 26, 29, 33], [1, 17, 23, 28, 37], [2, 15, 22, 30, 35]]
PART40 = [[1, 10, 15, 30, 39], [2, 9, 21, 28, 37], [4, 14, 22, 27, 31], [6, 12, 18, 24, 35], [3, 8, 16, 29, 38], [5, 13, 17, 26, 34], [0, 20, 23, 32, 36], [7, 11, 19, 25, 33]]
PARTS = {0: (PART39, PART40)}
PARTS[12] = ([[12, 16, 24, 26, 30], [8, 14, 15, 31, 36], [2, 10, 23, 34, 37], [5, 17, 18, 22, 38], [0, 1, 7, 19, 39], [3, 11, 20, 29, 35], [6, 9, 25, 27, 32], [4, 13, 21, 28, 33]],
    [[9, 12, 19, 28, 32], [3, 10, 22, 29, 37], [7, 8, 23, 26, 36], [0, 18, 20, 34, 38], [5, 6, 14, 21, 39], [4, 11, 16, 24, 35], [1, 15, 25, 27, 31], [2, 13, 17, 30, 33]])
PARTS[20] = ([[13, 17, 24, 26, 31], [4, 16, 25, 29, 36], [5, 19, 23, 28, 35], [1, 6, 8, 10, 39], [7, 9, 20, 27, 32], [3, 12, 14, 33, 34], [2, 15, 18, 22, 37], [0, 11, 21, 30, 38]],
    [[11, 12, 17, 20, 38], [3, 16, 26, 28, 34], [8, 10, 19, 29, 36], [7, 14, 25, 27, 31], [6, 13, 15, 24, 30], [0, 9, 22, 23, 39], [2, 4, 21, 32, 35], [1, 5, 18, 33, 37]])
PARTS[30] = ([[12, 16, 25, 29, 32], [0, 5, 9, 20, 39], [1, 18, 27, 34, 37], [7, 19, 22, 30, 35], [2, 6, 24, 26, 36], [4, 11, 13, 31, 33], [10, 15, 17, 21, 28], [3, 8, 14, 23, 38]],
    [[6, 9, 26, 28, 37], [1, 11, 24, 35, 38], [5, 17, 23, 31, 33], [8, 12, 21, 29, 36], [2, 4, 15, 22, 39], [7, 10, 14, 18, 34], [0, 16, 20, 30, 32], [3, 13, 19, 25, 27]])
PARTS[40] = ([[7, 13, 28, 29, 37], [10, 17, 22, 30, 36], [1, 4, 6, 23, 39], [9, 19, 26, 31, 33], [5, 12, 15, 18, 35], [2, 11, 16, 27, 34], [0, 8, 24, 25, 38], [3, 14, 20, 21, 32]],
    [[8, 17, 25, 31, 32], [3, 19, 22, 28, 38], [6, 15, 18, 33, 37], [2, 14, 24, 29, 39], [0, 12, 21, 27, 34], [1, 9, 13, 26, 36], [5, 7, 10, 23, 35], [4, 11, 16, 20, 30]])
PARTS[50] = ([[2, 19, 28, 35, 37], [0, 6, 11, 24, 39], [15, 17, 27, 29, 34], [1, 20, 30, 32, 38], [4, 7, 18, 23, 33], [9, 10, 12, 21, 31], [5, 13, 16, 25, 26], [3, 8, 14, 22, 36]],
    [[7, 15, 27, 30, 36], [8, 18, 19, 28, 38], [4, 14, 31, 33, 35], [6, 13, 20, 29, 39], [2, 3, 22, 23, 34], [0, 11, 12, 26, 37], [1, 9, 17, 24, 32], [5, 10, 16, 21, 25]])


def vr(a, n):
    return f"v[{a}:{a+n-1}]" if n > 1 else f"v{a}"


def sr(a, n=4):
    return f"s[{a}:{a+n-1}]"


def scan_dpp(e, v, full):
    for k in (1, 2, 4, 8):
        e(f"v_add_u32_dpp v{v}, v{v}, v{v} row_shr:{k} row_mask:0xf bank_mask:0xf")
    e(f"v_add_u32_dpp v{v}, v{v}, v{v} row_bcast:15 row_mask:0xa bank_mask:0xf")
    if full:
        e(f"v_add_u32_dpp v{v}, v{v}, v{v} row_bcast:31 row_mask:0xc bank_mask:0xf")


class TS:
    last = None

    def __init__(self, e, on, pair, vreg):
        self.e, self.on, self.pair, self.v, self.names = e, on, pair, vreg, []
        TS.last = self

    diag = None

    def stamp(self, name):
        if self.diag and self.diag[0] == name:
            self.e("s_memrealtime s[4:5]", "s_waitcnt lgkmcnt(0)", f"s_sub_u32 s4, s4, s{self.pair}", f"s_mul_i32 s{self.pair+1}, s4, {self.diag[1]}")
        if self.on and (self.on == 1 or name in str(self.on).split(",") or name in ("start", "end")):
            e, p = self.e, self.pair
            e(f"s_memrealtime s[{p}:{p+1}]", "s_waitcnt lgkmcnt(0)", f"v_writelane_b32 v{self.v}, s{p}, {len(self.names)}")
            self.names.append(name)


class VQ:
    def __init__(self, e):
        self.e, self.q = e, []

    def op(self, tag, text):
        self.e(text)
        self.q.append(tag)

    def n(self, tag):
        idx = max(i for i, t in enumerate(self.q) if t == tag)
        return len(self.q) - 1 - idx

    def wait(self, tag, extra=""):
        self.e(f"s_waitcnt vmcnt({self.n(tag)}) {extra}".strip())


def gen(P):
    e = Emitter()
    vq = VQ(e)
    D = P["D"]
    R = 8
    MAP, CNT2, WB, DEG, TOT, NODEOF, START, WR, WO = 0, 8192, 13312, 14336, 15360, 15616, 16384, 17408, 46080
    LIST = WO + 32768
    SHST = LIST + (CAP + 8 * GAP + 128) * 4
    EAST = SHST + CAP * 8
    assert SHST + CAP * 8 <= EAST
    ZERO = EAST + CAP * 32
    LDS = ZERO + 64
    AGL = 0
    ACNT, ASTART, AINV, ASKS = 23552, 24576, 25600, 30720
    assert ASKS + CS * 12 <= WO and LDS <= 163840
    LANE, X16, RLEN, RBASE, RG0, ONE, PFV = 1, 2, 3, 4, 5, 6, 7
    T = 8
    ACC, RW, XR, TP, AGN, PQ, EA0, EA1, WRF, CGF, ENT = 16, 64, 96, 128, 144, 160, 164, 168, 172, 188, 192
    MP, MQ = CGF + 2, CGF + 3
    SIX, ZAD = EA1, EA1 + 1
    eAG, eFR, eST, eWF, NOD = [208, 209, 210, 211, 212], 213, 214, 215, 205
    NK = P["WFK"]
    assert NK == 6
    WF = [216 + 4 * q for q in range(NK)] + [XR + 4 * q for q in range(8)] + [AGN, AGN + 4]
    K, KN, LA, LB, EAC, LAC, LBC, RT, TSV = 196, 197, 198, 199, 200, 201, 202, 203, 204
    cODD, cMAPW, cMAP1, cMAP2, cL12, cDEG, cSH, cR21, cROW, cTIE, cBIN, cNOD, cLST, c380 = range(240, 254)
    e.idx_range = {("v", i) for i in range(ACC, ACC + 48)}
    sX, sTAB, sSK, sEA, sA0, sA1, sOUT = 16, 20, 24, 28, 32, 36, 40
    sB, sNB, sNCNT, sN, sROFF, sNR, sNV, sBASE, sEM, sCNT, sT, sT2 = 44, 45, 46, 47, 48, 49, 50, 51, 52, 53, 54, 55
    sNODE = 56
    sOFF = 61
    sTAG, sTAG2 = 62, 63
    SK = 64
    sV = 80
    sM0, sEO = 86, 87
    sASG = [90, 91, 92, 93, 94]
    sNW, sK4 = 95, 98
    sA2, sTSP = 96, 100
    ts = TS(e, P["TS"], sTSP, TSV)
    if P["DIAGW"]:
        ts.diag = (P["DIAGAT"], P["DIAGK"])
    apol, ldpol = P["APOL"], P["LDPOL"]
    astage = [int(c) for c in str(P["AEA"]).zfill(5)]
    bstage = [int(c) for c in str(P["BEA"]).zfill(6)]

    def srd(s, lo, hi, off, size):
        if off is None:
            e(f"s_mov_b32 s{s}, s{lo}", f"s_mov_b32 s{s+1}, s{hi}")
        else:
            e(f"s_add_u32 s{s}, s{lo}, {off}", f"s_addc_u32 s{s+1}, s{hi}, 0")
        e(f"s_mov_b32 s{s+2}, {size}", f"s_mov_b32 s{s+3}, 0x20000")

    def init_round(first):
        e(f"v_lshlrev_b32 v{T+3}, 2, v0", f"v_mov_b32 v{T+4}, 0x00700000", f"v_mov_b32 v{T+5}, 0")
        for i in range(4):
            e(f"ds_write_b32 v{T+3}, v{T+4} offset:{MAP + i*2048}")
        for i in range(4 if first else 3):
            e(f"ds_write_b32 v{T+3}, v{T+5} offset:{CNT2 + i*2048}")

    DSTV, SRCV, SHV, BK, BA, RK, NL, KEY, CT, ST, PS = 64, 68, 72, 80, 84, 88, 92, 96, 100, 104, 108
    TABV = 112
    OUTV = 128
    IV = 156
    CGR = 120
    if P["TS"]:
        e("s_memrealtime s[92:93]")
    e("s_cmp_ge_u32 s2, 256", "s_cbranch_scc1 L_done")
    e("s_load_dwordx4 s[4:7], s[0:1], 8")
    e("s_load_dwordx4 s[8:11], s[0:1], 24")
    e("s_load_dwordx2 s[14:15], s[0:1], 80")
    e(f"s_load_dwordx2 s[{SK}:{SK+1}], s[0:1], 0")
    e(f"s_load_dwordx2 s[{SK+2}:{SK+3}], s[0:1], 40")
    e(f"s_load_dwordx4 s[{SK+4}:{SK+7}], s[0:1], 48")
    e("s_load_dwordx2 s[12:13], s[0:1], 64")

    def cpf():
        e(f"s_getpc_b64 s[{sV}:{sV+1}]")
        e.label("L_pc")
        e(f"s_and_b32 s{sB}, s2, 0xf8", f"s_lshl_b32 s{sB}, s{sB}, 6")
        e(f"v_and_b32 v{T+3}, 0x180, v{T+2}", f"v_add_u32 v{T+3}, s{sB}, v{T+3}", f"v_min_u32 v{T+3}, L_end-L_pc, v{T+3}")
        e(f"v_mov_b32 v{TABV+1}, s{sV+1}", f"v_add_co_u32 v{TABV}, vcc, s{sV}, v{T+3}", f"v_addc_co_u32 v{TABV+1}, vcc, 0, v{TABV+1}, vcc")
        vq.op("cpf", f"global_load_dword v{TSV+1}, {vr(TABV,2)}, off")

    def srd_hi(s, size):
        e(f"s_mov_b32 s{s+2}, {size}", f"s_mov_b32 s{s+3}, 0x20000")

    def srd_lo(s, lo, off):
        e(f"s_add_u32 s{s}, s{lo}, {off}", f"s_addc_u32 s{s+1}, s{lo+1}, 0")

    e(f"v_lshlrev_b32 v{T+2}, 3, v0")
    if P["CPF"] == 2:
        cpf()
    e(f"v_lshrrev_b32 v{T}, 6, v0", f"v_and_b32 v{LANE}, 63, v0", f"v_lshlrev_b32 v{T+1}, 2, v0", f"v_mov_b32 v{T+5}, 0")
    e(f"v_readfirstlane_b32 s3, v{T}")
    e(f"ds_write_b32 v{T+1}, v{T+5} offset:{ACNT}", f"ds_write_b32 v{T+1}, v{T+5} offset:{AINV+3072}")
    e(f"s_mul_i32 s{sT}, s2, {CH*4}", f"s_mul_i32 s{sT2}, s2, {CH*8}", f"s_mul_i32 s{sOFF}, s2, {CH*32}")
    e(f"v_lshlrev_b32 v{X16}, 4, v{LANE}", f"v_lshlrev_b32 v{T+7}, 4, v0", f"v_mov_b32 v{ONE}, 1")
    e(f"s_lshl_b32 s{sEM}, s3, 10", f"s_add_u32 s{sEM}, s{sEM}, {EAST}", f"s_movk_i32 s{sCNT}, 4096", f"s_movk_i32 s{sNV}, 8192")
    srd_hi(sA0, CH * 4); srd_hi(sA1, CH * 4); srd_hi(sA2, CH * 8); srd_hi(sEA, CH * 32)
    if P["DIAGW"]:
        e(f"s_memrealtime s[{sTSP}:{sTSP+1}]")
    e("s_waitcnt lgkmcnt(0)")
    if P["TS"]:
        e(f"v_writelane_b32 v{TSV}, s92, 0")
        ts.names.append("first")
    ts.stamp("start")
    srd_lo(sA0, 6, f"s{sT}")
    for i in range(3):
        o = f"0 offen offset:{2048*i}" if i < 2 else f"s{sCNT} offen"
        vq.op("dst", f"buffer_load_dword v{DSTV+i}, v{T+1}, {sr(sA0)}, {o} {apol}")
    srd_lo(sA1, 4, f"s{sT}")
    if P["ABAR"] == 2:
        e("s_barrier")
    for i in range(3):
        o = f"0 offen offset:{2048*i}" if i < 2 else f"s{sCNT} offen"
        vq.op("src", f"buffer_load_dword v{SRCV+i}, v{T+1}, {sr(sA1)}, {o} {apol}")
    e(f"s_load_dword s{sTAG}, s[14:15], {WS_W}")
    if P["CPF"] == 1:
        cpf()
    srd_lo(sA2, 8, f"s{sT2}")
    srd_lo(sEA, 10, f"s{sOFF}")
    if P["ABAR"] == 1:
        e("s_barrier")
    for i, o in enumerate(("0", f"s{sCNT}", f"s{sNV}")):
        vq.op("sh", f"buffer_load_dwordx2 {vr(SHV+2*i,2)}, v{T+2}, {sr(sA2)}, {o} offen {apol}")

    def aea(p):
        for i in range(5):
            if astage[i] == p:
                e(f"s_add_u32 m0, s{sEM}, {8192*i}", f"s_mov_b32 s{sT}, {8192*i}")
                vq.op("ea", f"buffer_load_dwordx4 v{T+7}, {sr(sEA)}, s{sT} offen {apol} lds")
        if P["WST"] == p:
            weights()
        if P["WOST"] == p:
            wout()

    def weights():
        e("s_cmp_lt_u32 s3, 4")
        e(f"s_cselect_b32 s{sX}, s{SK+4}, s{SK+2}", f"s_cselect_b32 s{sX+1}, s{SK+5}, s{SK+3}", f"s_movk_i32 s{sT}, 128",
          f"s_cselect_b32 s{sX+2}, s{sCNT}, s{sT}", f"s_mov_b32 s{sX+3}, 0x20000")
        e(f"s_min_u32 s{sT}, s3, 5", f"s_lshl_b32 s{sT}, s{sT}, 10", f"s_add_u32 m0, s{sT}, {WR}", f"s_and_b32 s{sT}, s{sT}, 0xc00")
        vq.op("w", f"buffer_load_dwordx4 v{X16}, {sr(sX)}, s{sT} offen lds")

    def wout():
        srd(sOUT, SK + 6, SK + 7, None, 32768)
        e(f"s_lshl_b32 s{sT2}, s3, 12", f"s_add_u32 m0, s{sT2}, {WO}")
        for i in range(4):
            vq.op("w", f"buffer_load_dwordx4 v{X16}, {sr(sOUT)}, s{sT2} offen offset:{i*1024} lds")

    aea(0)
    if not P["ABAR"]:
        e("s_barrier")
    e(f"s_mov_b32 s{SK+8}, 109951168", f"s_movk_i32 s{SK+9}, 625", f"s_movk_i32 s{SK+10}, 838")
    e(f"v_cmp_gt_u32 s[{sV+4}:{sV+5}], {CH-1024}, v0") if CH - 1024 <= 64 else e(f"s_movk_i32 s{sT}, {CH-1024}", f"v_cmp_gt_u32 s[{sV+4}:{sV+5}], s{sT}, v0")
    srd(sTAB, 14, 15, None, WS_W + 64)
    init_round(True)
    if P["ACCZ"] == 9:
        for i in range(48):
            e(f"v_mov_b32 v{ACC+i}, 0")
    vq.wait("dst")
    ts.stamp("dst")
    for k in range(3):
        e(f"v_mul_hi_u32 v{BK+k}, v{DSTV+k}, s{SK+8}")
    for k in range(3):
        e(f"v_lshlrev_b32 v{BA+k}, 2, v{BK+k}")
        if k == 2:
            e(f"s_mov_b64 exec, s[{sV+4}:{sV+5}]")
        e(f"ds_add_rtn_u32 v{RK+k}, v{BA+k}, v{ONE} offset:{ACNT}")
    e("s_mov_b64 exec, -1")
    e("s_waitcnt lgkmcnt(0)", "s_barrier")
    ts.stamp("hist")
    e(f"ds_read_b128 {vr(CT,4)}, v{X16} offset:{ACNT}")
    e(f"s_mul_i32 s{sTAG}, s{sTAG}, 0x9e3779b1", f"s_add_u32 s{sTAG}, s{sTAG}, 0x7f4a7c15")
    e(f"s_mul_i32 s{sTAG2}, s{sTAG}, 0x85ebca6b", f"s_and_b32 s{sTAG2}, s{sTAG2}, 0xffc00000")
    aea(1)
    for k in range(3):
        e(f"v_mad_u32_u24 v{NL+k}, v{BK+k}, s{SK+9}, 15", f"v_lshrrev_b32 v{NL+k}, 4, v{NL+k}", f"v_sub_u32 v{NL+k}, v{DSTV+k}, v{NL+k}")
    e("s_waitcnt lgkmcnt(0)")
    e(f"v_add_u32 v{T+3}, v{CT}, v{CT+1}", f"v_add3_u32 v{T+3}, v{T+3}, v{CT+2}, v{CT+3}", f"v_mov_b32 v{T+4}, v{T+3}")
    scan_dpp(e, T + 4, True)
    e(f"v_sub_u32 v{ST}, v{T+4}, v{T+3}")
    for k in range(3):
        e(f"v_add_u32 v{ST+1+k}, v{ST+k}, v{CT+k}")
    e(f"ds_write_b128 v{X16}, {vr(ST,4)} offset:{ASTART}")
    for k in range(3):
        e(f"ds_read_b32 v{PS+k}, v{BA+k} offset:{ASTART}")
    vq.wait("src")
    for k in range(3):
        e(f"v_mul_u32_u24 v{KEY+k}, s{SK+10}, v{SRCV+k}", f"v_bfe_u32 v{KEY+k}, v{KEY+k}, 18, 5")
        e(f"v_lshl_or_b32 v{KEY+k}, v{NL+k}, 5, v{KEY+k}",
          f"v_lshlrev_b32 v{KEY+k}, 21, v{KEY+k}", f"v_lshl_or_b32 v{KEY+k}, v{SRCV+k}, 7, v{KEY+k}")
    e(f"v_lshlrev_b32 v{NL}, 5, v0", f"v_add_u32 v{NL+1}, {512*32}, v{NL}", f"v_add_u32 v{NL+2}, {1024*32}, v{NL}")
    e(f"s_mov_b32 s{sT2}, {ASKS}")
    vq.wait("sh", "lgkmcnt(0)")
    for k in range(3):
        e(f"v_add_u32 v{PS+k}, v{PS+k}, v{RK+k}")
        e(f"v_lshlrev_b32 v{BA+k}, 2, v{PS+k}", f"v_mad_u32_u24 v{PS+k}, v{PS+k}, 12, s{sT2}")
        if k == 2:
            e(f"s_mov_b64 exec, s[{sV+4}:{sV+5}]")
        e(f"ds_write_b32 v{BA+k}, v{NL+k} offset:{AINV}")
        e(f"ds_write2_b32 v{PS+k}, v{SHV+2*k}, v{SHV+2*k+1} offset0:0 offset1:1")
        e(f"ds_write_b32 v{PS+k}, v{KEY+k} offset:8")
    e("s_mov_b64 exec, -1")
    aea(2)
    e(f"s_lshl_b32 s{sT}, s3, 7", f"v_lshl_add_u32 v{T+3}, v{LANE}, 3, s{sT}")
    e(f"ds_read_b64 {vr(CT,2)}, v{T+3} offset:{ACNT}", f"ds_read_b64 {vr(ST,2)}, v{T+3} offset:{ASTART}")
    e(f"s_mul_i32 s{sT}, s2, {CS*12}", f"s_add_u32 s{sT}, s{sT}, {WS_SK}")
    srd(sA0, 14, 15, f"s{sT}", CS * 12)
    e(f"s_mul_i32 s{sT}, s2, {CS*32}", f"s_add_u32 s{sT}, s{sT}, {WS_EA}")
    srd(sA1, 14, 15, f"s{sT}", CH * 32)
    e(f"v_lshrrev_b32 v{T+3}, 1, v0", f"v_lshlrev_b32 v{T+3}, 2, v{T+3}")
    e(f"v_and_b32 v{T+4}, 1, v0", f"v_lshlrev_b32 v{T+4}, 4, v{T+4}", f"v_add_u32 v{T+4}, {EAST}, v{T+4}", f"v_add_u32 v{T+6}, {ASKS}, v{T+7}")
    e("s_waitcnt lgkmcnt(0)", "s_barrier")
    ts.stamp("scat")
    e(f"ds_read_b128 {vr(OUTV,4)}, v{T+6}", f"ds_read_b128 {vr(OUTV+4,4)}, v{T+6} offset:8192")
    for i in range(5):
        e(f"ds_read_b32 v{IV+i}, v{T+3} offset:{AINV + i*1024}")
    aea(3)

    def skst():
        vq.op("skst", f"buffer_store_dwordx4 {vr(OUTV,4)}, v{T+7}, {sr(sA0)}, 0 offen sc1")
        vq.op("skst", f"buffer_store_dwordx4 {vr(OUTV+4,4)}, v{T+7}, {sr(sA0)}, s{sNV} offen sc1")

    def frag_r(F0, t0, t1, t2):
        e(f"v_lshrrev_b32 v{t0}, 5, v{LANE}", f"v_lshlrev_b32 v{t0}, 10, v{t0}", f"v_and_b32 v{t1}, 15, v{LANE}", f"v_lshl_add_u32 v{t0}, v{t1}, 4, v{t0}")
        for i in range(8):
            e(f"ds_read_b128 {vr(F0+4*i,4)}, v{t0} offset:{WR + 2048*(i//4) + 256*(i%4)}")
        e(f"v_lshrrev_b32 v{t0}, 4, v{LANE}", f"v_lshlrev_b32 v{t0}, 5, v{t0}", f"v_and_b32 v{t1}, 3, v{LANE}", f"v_lshl_add_u32 v{t0}, v{t1}, 1, v{t0}")
        for v in range(4):
            e(f"ds_read_u16 v{F0+32+v}, v{t0} offset:{WR + 4096 + 8*v}")
        e(f"v_bfe_i32 v{t2}, v{LANE}, 4, 1", f"v_and_b32 v{t2}, 0x02020202, v{t2}", f"v_add_u32 v{t2}, 0x05040100, v{t2}")
        e("s_waitcnt lgkmcnt(0)")
        for h in range(2):
            for t in range(2):
                for ip in range(4):
                    e(f"v_perm_b32 v{WRF+8*h+2*ip+t}, v{F0+4*(2*ip+1)+t+2*h}, v{F0+4*(2*ip)+t+2*h}, v{t2}")
        e(f"v_lshl_or_b32 v{CGF}, v{F0+33}, 16, v{F0+32}", f"v_lshl_or_b32 v{CGF+1}, v{F0+35}, 16, v{F0+34}")

    def frag_o(F0, F1, t0, t1, sM):
        e(f"v_and_b32 v{t1}, 7, v{LANE}", f"v_lshrrev_b32 v{t0}, 4, v{LANE}", f"v_lshlrev_b32 v{t0}, 13, v{t0}", f"v_lshl_add_u32 v{t0}, v{t1}, 4, v{t0}",
          f"v_and_b32 v{t1}, 8, v{LANE}", f"s_and_b32 s{sM}, s3, 3", f"s_lshl_b32 s{sM}, s{sM}, 8", f"s_lshr_b32 s{sM+1}, s3, 2", f"s_lshl_b32 s{sM+1}, s{sM+1}, 7",
          f"s_add_u32 s{sM}, s{sM}, s{sM+1}", f"s_add_u32 s{sM}, s{sM}, {WO}", f"v_add3_u32 v{t0}, v{t0}, v{t1}, s{sM}")
        for ip in range(4):
            e(f"ds_read2st64_b64 {vr(F0+4*ip,4)}, v{t0} offset0:{4*ip} offset1:{4*ip+2}")
        e(f"s_mov_b32 s{sM}, 0x05040100", f"s_mov_b32 s{sM+1}, 0x07060302")
        for ip in range(4):
            e(f"s_waitcnt lgkmcnt({3-ip})")
            for t in range(4):
                e(f"v_perm_b32 v{F1+4*t+ip}, v{F0+4*ip+2+t//2}, v{F0+4*ip+t//2}, s{sM+t%2}")

    def consts():
        e(f"s_and_b32 s{sB}, s2, 7", f"s_lshl_b32 s{sB}, s{sB}, 5", f"s_lshr_b32 s{sT}, s2, 3", f"s_add_u32 s{sB}, s{sB}, s{sT}")
        e(f"s_mul_i32 s{sNB}, s{sB}, 625", f"s_add_u32 s{sNCNT}, s{sNB}, 640", f"s_add_u32 s{sNB}, s{sNB}, 15",
          f"s_lshr_b32 s{sNB}, s{sNB}, 4", f"s_lshr_b32 s{sNCNT}, s{sNCNT}, 4", f"s_sub_u32 s{sNCNT}, s{sNCNT}, s{sNB}")
        e(f"v_bfe_i32 v{SIX}, v{LANE}, 2, 1", f"v_and_b32 v{SIX}, 0xaaaa, v{SIX}", f"v_add_u32 v{SIX}, 0x4444, v{SIX}")
        e(f"v_mov_b32 v{ZAD}, {ZERO}", f"v_and_b32 v{T+3}, 60, v{T+1}", f"v_add_u32 v{T+3}, v{T+3}, v{ZAD}", f"ds_write_b32 v{T+3}, v{T+5}")
        e(f"v_and_b32 v{T+3}, 4, v{LANE}", f"v_lshlrev_b32 v{T+3}, 2, v{T+3}", f"v_mov_b32 v{T+4}, 0xffff", f"v_lshlrev_b32 v{T+4}, v{T+3}, v{T+4}")
        e(f"v_bfe_i32 v{T+3}, v{LANE}, 3, 1", f"v_and_b32 v{MQ}, v{T+3}, v{T+4}", f"v_xor_b32 v{MP}, v{MQ}, v{T+4}")
        e(f"v_lshrrev_b32 v{EAC}, 5, v{LANE}", f"v_lshlrev_b32 v{EAC}, 4, v{EAC}", f"v_add_u32 v{EAC}, {EAST}, v{EAC}")
        e(f"v_and_b32 v{LAC}, 15, v{LANE}", f"v_lshlrev_b32 v{LAC}, 2, v{LAC}")
        e(f"v_bfe_u32 v{T+3}, v{LANE}, 3, 2", f"v_and_b32 v{T+4}, 3, v{LANE}", f"v_lshl_add_u32 v{T+3}, v{T+3}, 2, v{T+4}", f"v_lshlrev_b32 v{LBC}, 2, v{T+3}")
        e(f"v_bfe_i32 v{cODD}, v0, 0, 1", f"s_lshl_b32 s{sT}, s3, 10", f"v_and_b32 v{cMAPW}, 4, v{cODD}", f"v_add_u32 v{cMAPW}, s{sT}, v{cMAPW}")
        e(f"v_lshl_add_u32 v{cMAP1}, v{LANE}, 2, s{sT}", f"v_lshrrev_b32 v{cMAP2}, 1, v{LANE}", f"v_lshl_add_u32 v{cMAP2}, v{cMAP2}, 2, s{sT}")
        e(f"v_mul_u32_u24 v{cL12}, 12, v{LANE}", f"v_and_b32 v{cDEG}, 12, v{cMAP1}", f"v_and_b32 v{cBIN}, 124, v{cMAP1}")
        e(f"s_mul_i32 s{sT}, s3, {CAPW}", f"v_add_u32 v{cR21}, s{sT}, v{LANE}", f"v_lshlrev_b32 v{cSH}, 3, v{cR21}", f"v_add_u32 v{cSH}, {SHST}, v{cSH}", f"v_lshlrev_b32 v{cR21}, 21, v{cR21}")
        e(f"s_mul_i32 s{sT}, s3, 640", f"v_add_u32 v{cROW}, s{sT}, v{cBIN}", f"v_sub_u32 v{cTIE}, 63, v{LANE}")
        e(f"s_getreg_b32 s{sM0}, hwreg(HW_REG_XCC_ID, 0, 3)", f"s_lshl_b32 s{sT}, s{sM0}, 4", f"v_subrev_u32 v{cBIN}, s{sT}, v{cBIN}", f"v_and_b32 v{cBIN}, 124, v{cBIN}")
        e(f"v_min_u32 v{cNOD}, 39, v{LANE}", f"v_lshlrev_b32 v{cNOD}, 7, v{cNOD}", f"v_mov_b32 v{c380}, 0x380")
        e(f"v_lshrrev_b32 v{cLST}, 3, v{LANE}", f"v_mul_u32_u24 v{cLST}, {GAP*4}, v{cLST}", f"v_add_u32 v{cLST}, {LIST}, v{cLST}")
        e(f"s_lshr_b32 s{sEO}, s3, 1", f"s_mul_i32 s{sEO}, s{sEO}, 3", f"s_min_u32 s{sEO}, s{sEO}, 8", f"s_mul_i32 s{sT}, s{sEO}, 4608")
        e(f"v_and_b32 v{T+3}, 15, v{LANE}", f"v_lshrrev_b32 v{T+4}, 4, v{LANE}")
        e(f"v_mul_u32_u24 v{eFR}, 288, v{T+3}", f"v_lshl_add_u32 v{eFR}, v{T+4}, 4, v{eFR}", f"v_add_u32 v{eFR}, s{sT}, v{eFR}")
        e(f"v_lshrrev_b32 v{T+4}, 3, v{LANE}", f"v_lshlrev_b32 v{T+4}, 9, v{T+4}", f"v_and_b32 v{T+3}, 7, v{LANE}", f"v_lshl_add_u32 v{eST}, v{T+3}, 4, v{T+4}")
        e(f"s_lshl_b32 s{sEO}, s{sEO}, 12", f"s_and_b32 s{sT}, s3, 1", f"s_lshl_b32 s{sT}, s{sT}, 7", f"s_add_u32 s{sEO}, s{sEO}, s{sT}",
          f"s_lshl_b32 s{sT}, s{sT}, 7", f"s_add_u32 s{sT}, s{sT}, {WO}", f"v_add_u32 v{eWF}, s{sT}, v{X16}")
        e(f"s_cmp_eq_u32 s{sNCNT}, 40")
        tabs = []
        for part in PARTS[P["BIAS"]]:
            t = [0] * 40
            for w, p in enumerate(part):
                for sl, r in enumerate(p):
                    t[r] = w * 8 + sl
            tabs.append([sum(t[5 * q + i] << (6 * i) for i in range(5)) for q in range(8)])
        e(f"v_mov_b32 v{RT}, 0")
        for q in range(8):
            e(f"s_mov_b32 s{sT}, {tabs[0][q]}", f"s_cselect_b32 s{sT}, {tabs[1][q]}, s{sT}")
            m = 31 << (5 * q)
            e(f"s_mov_b32 exec_lo, {m & 0xffffffff}", f"s_mov_b32 exec_hi, {m >> 32}", f"v_mov_b32 v{RT}, s{sT}")
        e("s_mov_b64 exec, -1")
        e(f"v_mul_u32_u24 v{T+3}, 52, v{LANE}", f"v_lshrrev_b32 v{T+3}, 8, v{T+3}", f"v_mad_i32_i24 v{T+3}, v{T+3}, -5, v{LANE}",
          f"v_mul_u32_u24 v{T+3}, 6, v{T+3}", f"v_lshrrev_b32 v{RT}, v{T+3}, v{RT}")
        e(f"v_and_b32 v{T+3}, 7, v{RT}", f"v_bfe_u32 v{RT}, v{RT}, 3, 3", f"v_lshlrev_b32 v{T+3}, 12, v{T+3}", f"v_lshl_or_b32 v{RT}, v{RT}, 7, v{T+3}")
        srd(sSK, 14, 15, WS_SK, NCH * CS * 12)

    def extra(pos):
        if P["CPOS"] == pos:
            consts()
        if P["ACCZ"] == pos:
            for i in range(48):
                e(f"v_mov_b32 v{ACC+i}, 0")

    e("s_waitcnt lgkmcnt(0)")
    for i in range(5):
        e(f"v_add_u32 v{IV+i}, v{T+4}, v{IV+i}")
    for k in range(2):
        e(f"v_lshl_or_b32 v{TABV+2*k}, v{CT+k}, 11, v{ST+k}", f"v_or_b32 v{TABV+2*k}, s{sTAG2}, v{TABV+2*k}", f"v_mov_b32 v{TABV+2*k+1}, s{sTAG}")
    extra(0)
    e(f"s_waitcnt vmcnt({min(vq.n('w') + P['WGN'], vq.n('ea'))})")
    e("s_barrier")
    ts.stamp("land")
    for i in range(5):
        e(f"ds_read_b128 {vr(OUTV+8+4*i,4)}, v{IV+i}")
    extra(1)
    ts.stamp("guard")
    skst()
    for i in range(5):
        e(f"s_mov_b32 s{sT}, {8192*i}", f"s_waitcnt lgkmcnt({4-i})")
        vq.op("st", f"buffer_store_dwordx4 {vr(OUTV+8+4*i,4)}, v{T+7}, {sr(sA1)}, s{sT} offen sc1")
    aea(4)
    ts.stamp("issued")

    extra(2)
    e(f"s_lshl_b32 s{sT}, s2, 3", f"s_add_u32 s{sT}, s{sT}, s3", f"s_lshl_b32 s{sT}, s{sT}, 8")
    srd(sX, SK, SK + 1, None, N * 1024)
    srd(sEA, 14, 15, WS_EA, NCH * CS * 32)
    if P["XPF"]:
        n = P["XPF"]
        e(f"s_and_b32 s{sBASE}, s{sM0}, 7", f"s_mul_i32 s{sBASE}, s{sBASE}, {1252*1024}", f"s_and_b32 s{sT2}, s2, 0xf8",
          f"s_add_u32 s{sT2}, s{sT2}, s3", f"s_mul_i32 s{sT2}, s{sT2}, {n*128}", f"s_add_u32 s{sBASE}, s{sBASE}, s{sT2}")
        e(f"v_min_u32 v{T+6}, {n-1}, v{LANE}", f"v_lshlrev_b32 v{T+6}, 7, v{T+6}")
    e("s_waitcnt vmcnt(0)", "s_barrier")
    ts.stamp("drained")
    e("s_mov_b64 exec, 0xffff")
    e(f"buffer_store_dwordx4 {vr(TABV,4)}, v{X16}, {sr(sTAB)}, s{sT} offen sc1")
    e("s_mov_b64 exec, -1")
    if P["XPF"]:
        e(f"buffer_load_dword v{PFV}, v{T+6}, {sr(sX)}, s{sBASE} offen")
    e(f"s_lshl_b32 s{sT}, s{sNB}, 10", f"s_add_u32 s{sOUT}, s12, s{sT}", f"s_addc_u32 s{sOUT+1}, s13, 0",
      f"s_lshl_b32 s{sOUT+2}, s{sNCNT}, 10", f"s_mov_b32 s{sOUT+3}, 0x20000")
    frag_r(RW, T, T + 1, T + 2)
    frag_o(128, 144, T, T + 1, SK + 8)
    for i in range(32):
        e(f"v_mov_b32 v{RW+i}, 0")
    e(f"s_lshl_b32 s{sT}, s3, 12", f"v_add_u32 v{T}, s{sT}, v{X16}")
    extra(3)
    e(f"v_lshrrev_b32 v{T+1}, 1, v0", f"v_lshlrev_b32 v{T+2}, 11, v{T+1}", f"s_lshl_b32 s{sNR}, s{sB}, 3")
    e(f"v_mul_u32_u24 v{RG0}, {CS}, v{T+1}", f"s_mov_b32 s{sROFF}, 0", f"s_mov_b32 s{sCNT}, {SPIN}", f"s_mov_b32 s{sT2}, 0xffc00000")
    e(f"s_mul_i32 s{sEM}, s3, {CAPW*32}", f"s_add_u32 s{sEM}, s{sEM}, {EAST}", f"s_movk_i32 s{sK4}, 4096")
    e(f"s_waitcnt vmcnt({P['PW']})", "s_barrier")
    ts.stamp("frag")
    PL = 206
    poll1 = f"buffer_load_dwordx2 {vr(PL,2)}, v{T+2}, {sr(sTAB)}, s{sNR} offen sc1"

    def tagcheck():
        e(f"v_xor_b32 v{T+3}, s{sTAG2}, v{PL}", f"v_xor_b32 v{T+4}, s{sTAG}, v{PL+1}", f"v_and_or_b32 v{T+3}, v{T+3}, s{sT2}, v{T+4}")
        e(f"v_cmpx_ne_u32 vcc, 0, v{T+3}")

    e(poll1)
    for t in range(4):
        e(f"ds_write_b128 v{T}, {vr(144+4*t,4)} offset:{WO + 1024*t}")
    e("s_waitcnt vmcnt(0)")
    tagcheck()
    e("s_cbranch_execnz L_poll")
    e.label("L_polled")
    e("s_mov_b64 exec, -1")
    ts.stamp("tab")
    G1, G2, SKR, RNK, CA = TP + 8, TP + 12, TP + 20, TP, TP + 4
    MU = P["MU"]
    sVm = [sV, sV + 2, sV + 4, sA2]

    m0st = [None]

    def bea1(i):
        if m0st[0] != i // 4 or i == 6:
            e(f"s_add_u32 m0, s{sEM}, {4096*(i//4)}")
        m0st[0] = i // 4
        vq.op("ea", f"buffer_load_dwordx4 v{G2+i}, {sr(sEA)}, {'0' if i < 4 else 's%d' % sK4} offen offset:{1024*(i%4)} {ldpol} lds")

    def bea(p):
        for i in range(6):
            if bstage[i] == p:
                bea1(i)

    def skld(i):
        e(f"v_mad_u32_u24 v{G1+i}, v{G1+i}, 12, v{cL12}")
        vq.op(f"sk{i}", f"buffer_load_dwordx3 {vr(SKR+4*i,3)}, v{G1+i}, {sr(sSK)}, 0 offen offset:{768*i} {ldpol}")

    cmps = [f"v_cmp_lt_i32 s[{SK+2*i}:{SK+2*i+1}], {2*i}, v{T+2}" for i in range(MU + 1)]
    e(f"v_bfe_u32 v{RLEN}, v{PL}, 11, 11", f"v_and_b32 v{RBASE}, v{RLEN}, v{cODD}", f"v_add_u32 v{T+2}, v{RLEN}, v{cODD}")
    fill = [f"v_and_b32 v{T+3}, 0x7ff, v{PL}"] + cmps + [f"v_add_u32 v{RG0}, v{RG0}, v{T+3}"]
    e(fill.pop(0))
    for mod in ("row_shr:1 row_mask:0xf", "row_shr:2 row_mask:0xf", "row_shr:4 row_mask:0xf", "row_shr:8 row_mask:0xf", "row_bcast:15 row_mask:0xa", "row_bcast:31 row_mask:0xc"):
        e(f"v_add_u32_dpp v{RBASE}, v{RBASE}, v{RBASE} {mod} bank_mask:0xf")
        e(*fill[:2]); fill = fill[2:]
    e(f"v_readlane_b32 s{sNW}, v{RBASE}, 63")
    e(f"v_mov_b32_dpp v{RBASE}, v{RBASE} quad_perm:[0,0,2,2] row_mask:0xf bank_mask:0xf")
    e(f"v_sub_u32 v{RG0}, v{RG0}, v{RBASE}")
    e(f"v_lshl_add_u32 v{T}, v{RBASE}, 2, v{cMAPW}")
    e(f"s_cmp_gt_u32 s{sNW}, {CAPW}", "s_cbranch_scc1 L_clip")
    e.label("L_mapw")
    for i in range(MU):
        e(f"s_mov_b64 exec, s[{SK+2*i}:{SK+2*i+1}]")
        e(f"ds_write_b32 v{T}, v{RG0} offset:{8*i}")
    e("s_mov_b64 exec, -1")
    e(f"s_cmp_lg_u64 s[{SK+2*MU}:{SK+2*MU+1}], 0", "s_cbranch_scc1 L_map2")
    for i in range(3):
        e(f"ds_read_b32 v{G1+i}, v{cMAP1} offset:{256*i}")
    for i in range(6):
        e(f"ds_read_b32 v{G2+i}, v{cMAP2} offset:{128*i}")
    e(f"s_cmp_gt_i32 s{sNW}, 192", "s_cbranch_scc1 L_r1")
    e.label("L_r1b")
    e("s_waitcnt lgkmcnt(6)")
    ts.stamp("map")
    for i in range(3):
        skld(i)
    e(f"v_mov_b32 v{T+3}, s{sNW}", "s_mov_b64 exec, 1", f"ds_max_i32 v{T+5}, v{T+3} offset:{TOT}", "s_mov_b64 exec, -1")
    e("s_waitcnt lgkmcnt(1)")
    for i in range(6):
        e(f"v_lshl_add_u32 v{G2+i}, v{G2+i}, 5, v{X16}")
    if P["SKBAR"]:
        e("s_barrier")
    ts.stamp("skiss")
    bea(0)
    assert 5 not in bstage
    e(f"s_min_i32 s{sT}, s{sNW}, {CAPW}")
    for i in range(4):
        e(f"v_cmp_gt_i32 s[{sVm[i]}:{sVm[i]+1}], s{sT}, v{LANE}", f"s_sub_i32 s{sT}, s{sT}, 64")
    e(f"s_mov_b32 s{sT2}, 0x1fff80", f"s_mul_i32 s{sOFF}, s3, 5")
    assert P["SKBAR"]
    for q in range(NK):
        e(f"ds_read_b128 {vr(WF[q],4)}, v{eWF} offset:{1024*q}")

    def count(i):
        key = SKR + 4 * i + 2
        e(f"v_lshrrev_b32 v{CA+i}, 21, v{key}", f"v_lshlrev_b32 v{CA+i}, 2, v{CA+i}")
        e(f"v_lshrrev_b32 v{T+3}, 26, v{key}", f"v_lshl_or_b32 v{T+3}, v{T+3}, 4, v{cDEG}")
        e(f"s_mov_b64 exec, s[{sVm[i]}:{sVm[i]+1}]")
        e(f"ds_add_rtn_u32 v{RNK+i}, v{CA+i}, v{ONE} offset:{CNT2}")
        e(f"ds_add_u32 v{T+3}, v{ONE} offset:{DEG}")
        e("s_mov_b64 exec, -1")

    def entry(i):
        key = SKR + 4 * i + 2
        if i == 3:
            e("s_mov_b32 exec_hi, 0")
        e(f"ds_write_b64 v{cSH}, {vr(SKR+4*i,2)} offset:{512*i}")
        if i == 3:
            e("s_mov_b32 exec_hi, -1")
        e(f"v_and_or_b32 v{key}, v{key}, s{sT2}, v{cR21}")
        if i:
            e(f"v_add_u32 v{key}, {64*i << 21}, v{key}")

    for i in range(3):
        vq.wait(f"sk{i}")
        if i == 0:
            ts.stamp("sk")
        count(i)
    e(f"s_cmp_gt_i32 s{sNW}, 192", "s_cbranch_scc1 L_r2")
    e.label("L_r2b")
    ts.stamp("atom")
    bea(1)
    for j in range(1, 5):
        e(f"s_add_u32 s{SK+j}, s{sOFF}, {j}")
    e("s_waitcnt lgkmcnt(0)", "s_barrier")
    ts.stamp("b1")
    CN, CAD = XR, XR + 8
    e(f"s_cmp_lg_u32 s{sROFF}, 0", "s_cbranch_scc1 L_rank2")
    e(f"ds_read_b128 {vr(CAD,4)}, v{X16} offset:{DEG}")
    for j in range(5):
        e(f"ds_read_b32 v{CN+j}, v{cROW} offset:{CNT2 + 128*j}")
    e(f"ds_read_b32 v{T+6}, v{T+5} offset:{TOT}")
    if P["ENP"] == 0:
        for i in range(3):
            entry(i)
    e(f"s_waitcnt lgkmcnt({9 if P['ENP'] == 0 else 6})")
    e(f"v_add_u32 v{T+1}, v{CAD}, v{CAD+1}", f"v_add3_u32 v{T+1}, v{T+1}, v{CAD+2}, v{CAD+3}")
    e(f"v_lshl_or_b32 v{T+1}, v{T+1}, 6, v{cTIE}")
    for j in range(5):
        e(f"v_readlane_b32 s{SK+j}, v{T+1}, s{SK+j if j else sOFF}")
    for j in range(5):
        e(f"v_cmp_lt_u32 s[{SK+6+2*j}:{SK+7+2*j}], s{SK+j}, v{T+1}")
    for j in range(5):
        e(f"s_bcnt1_i32_b64 s{SK+j}, s[{SK+6+2*j}:{SK+7+2*j}]")
    e(f"s_waitcnt lgkmcnt({3 if P['ENP'] == 0 else 0})")
    for j in range(5):
        e(f"v_readlane_b32 s{sASG[j]}, v{RT}, s{SK+j}")
    e(f"v_readfirstlane_b32 s{sN}, v{T+6}")
    e.label("L_ranked")
    e("s_mov_b32 exec_hi, 0")
    for j in range(5):
        e(f"v_and_or_b32 v{CAD+j}, s{sASG[j]}, v{c380}, v{cBIN}")
        e(f"ds_add_rtn_u32 v{CN+j}, v{CAD+j}, v{CN+j} offset:{WB}")
    for j in range(5):
        e(f"v_or_b32 v{CAD+j}, s{sASG[j]}, v{cBIN}")
    e(f"s_lshl_b32 s{sT}, s3, 3", f"s_add_u32 s{sOFF}, s{sT}, 7")
    for j in range(5):
        if j in (0, 2):
            e(f"s_waitcnt lgkmcnt({3 if j == 0 else 2})")
        e(f"v_lshl_or_b32 v{CN+j}, v{CN+j}, 16, v{CAD+j}")
        e(f"ds_write_b32 v{cROW}, v{CN+j} offset:{CNT2 + 128*j}")
    e("s_mov_b32 exec_hi, -1")
    ts.stamp("rank")
    bea(2)
    if P["ENP"] == 1:
        for i in range(3):
            entry(i)
    e(f"s_waitcnt lgkmcnt({3 if P['ENP'] == 1 else 0})", "s_barrier")
    ts.stamp("b2")
    e(f"ds_read_b128 {vr(CN,4)}, v{X16} offset:{WB}")
    for i in range(3):
        e(f"ds_read_b32 v{CA+i}, v{CA+i} offset:{CNT2}")
    bea(6)
    e("s_waitcnt lgkmcnt(3)")
    e(f"v_add_u32 v{T+1}, v{CN}, v{CN+1}", f"v_add3_u32 v{T+1}, v{T+1}, v{CN+2}, v{CN+3}", f"v_mov_b32 v{T+2}, v{T+1}")
    e("s_waitcnt lgkmcnt(0)")

    def place(i):
        key = SKR + 4 * i + 2
        return [f"v_bfe_u32 v{T+7}, v{CA+i}, 12, 3", f"v_or_b32 v{key}, v{T+7}, v{key}", f"v_and_b32 v{G1+i}, 0x3ff, v{CA+i}",
                f"v_lshrrev_b32 v{CA+i}, 16, v{CA+i}", f"v_add_u32 v{CA+i}, v{CA+i}, v{RNK+i}"]

    fill = place(0) + place(1) + place(2)
    e(fill.pop(0))
    for mod in ("row_shr:1 row_mask:0xf", "row_shr:2 row_mask:0xf", "row_shr:4 row_mask:0xf", "row_shr:8 row_mask:0xf", "row_bcast:15 row_mask:0xa", "row_bcast:31 row_mask:0xc"):
        e(f"v_add_u32_dpp v{T+2}, v{T+2}, v{T+2} {mod} bank_mask:0xf")
        e(*fill[:2]); fill = fill[2:]
    e(f"v_sub_u32 v{T+1}, v{T+2}, v{T+1}")
    e(f"v_lshl_add_u32 v{CAD}, v{T+1}, 2, v{cLST}")
    for k in range(3):
        e(f"v_lshl_add_u32 v{CAD+1+k}, v{CN+k}, 2, v{CAD+k}")
    e(f"ds_write_b128 v{X16}, {vr(CAD,4)} offset:{START}")
    for i in range(3):
        e(f"ds_read_b32 v{G1+i}, v{G1+i} offset:{START}")
    e(*fill)
    e(f"v_readlane_b32 s{sNV}, v{T+2}, s{sOFF}", f"v_readlane_b32 s{sCNT}, v{T+1}, s{sT}", f"v_readlane_b32 s{sBASE}, v{CAD}, s{sT}")
    e(f"v_mov_b32 v{T+6}, {(0x3fff << 7) | 5}")
    e(f"s_sub_u32 s{sNV}, s{sNV}, s{sCNT}", f"s_lshl2_add_u32 s{sT2}, s{sNV}, s{sBASE}", f"v_add_u32 v{T+1}, s{sT2}, v{LAC}")
    e(f"ds_write_b32 v{T+1}, v{T+6}")
    assert D == 6
    sP0 = sT
    e(f"s_add_u32 s{sCNT}, s{sNV}, 15", f"s_lshr_b32 s{sCNT}, s{sCNT}, 4", f"s_sub_u32 s{sP0}, 0, s{sNV}", f"s_and_b32 s{sP0}, s{sP0}, 14",
      f"s_sub_u32 s{sCNT}, s{sCNT}, 1", f"s_cmp_gt_i32 s{sCNT}, 0", f"s_cselect_b32 s{sP0}, s{sP0}, 0", f"s_lshl_b32 s{sOFF}, s{sP0}, 2",
      f"s_sub_u32 s{sBASE}, s{sBASE}, s{sOFF}")

    def scatter(i):
        e(f"s_mov_b64 exec, s[{sVm[i]}:{sVm[i]+1}]")
        e(f"ds_write_b32 v{CA+i}, v{SKR+4*i+2}")

    e("s_waitcnt lgkmcnt(1)")
    for i in range(3):
        e(f"v_lshl_add_u32 v{CA+i}, v{CA+i}, 2, v{G1+i}")
    for i in range(3):
        scatter(i)
    e("s_mov_b64 exec, -1")
    e(f"s_cmp_gt_i32 s{sNW}, 192", "s_cbranch_scc1 L_r3")
    e.label("L_r3b")
    bea(3)
    ts.stamp("list")
    e(f"v_add_u32 v{LA}, s{sBASE}, v{LAC}", f"v_add_u32 v{LB}, s{sBASE}, v{LBC}",
      f"s_and_b32 s{sOFF}, s{sOFF}, 32", f"v_add_u32 v{T+4}, s{sOFF}, v{LA}", f"s_and_b32 s{SK+8}, s{sP0}, 6")
    e(f"s_mov_b32 s{sT2}, 0x00fffc38", f"s_mov_b32 s{sNR}, 0xffffff00", f"s_mov_b32 s{sBASE}, {SHST}")
    if P["PRIO"] == 1:
        e("s_cmp_lt_u32 s3, 4", "s_cbranch_scc1 L_np", "s_setprio 1")
        e.label("L_np")
    e("s_waitcnt lgkmcnt(0)", "s_barrier")
    ts.stamp("b4")
    e(f"ds_read_b32 v{K}, v{T+4}", f"ds_read_b32 v{ENT+2}, v{LB}", f"ds_read_b32 v{KN}, v{LA} offset:{4*D}", f"ds_read_b32 v{NOD}, v{cNOD} offset:{CNT2}")
    e(f"s_cmp_eq_u32 s{sNV}, 0", "s_cbranch_scc1 L_empty")

    def agaddr():
        e(f"v_lshlrev_b32 v{T+4}, 2, v{LANE}", f"s_lshl_b32 s{sOFF}, s3, 7")
        e(f"v_and_b32 v{NOD}, 0x7380, v{NOD}", f"v_xor_b32 v{NOD}, s{sOFF}, v{NOD}")
        e(f"v_alignbit_b32 v{NOD}, v{NOD}, v{NOD}, 12")
        m = [f"s[{q}:{q+1}]" for q in sVm] + ["vcc"]
        for j in range(5):
            e(f"v_cmp_eq_u32 {m[j]}, {j}, v{NOD}")
        for j in range(5):
            e(f"s_ff1_i32_b64 s{sNODE+j}, {m[j]}", f"s_mul_i32 s{sNODE+j}, s{sNODE+j}, 1152", f"v_add_u32 v{eAG[j]}, s{sNODE+j}, v{T+4}")

    AL = P["ALIGN"]

    def al():
        if AL:
            e(".p2align 3")

    def ea_reads():
        e(f"v_lshrrev_b32 v{T}, 21, v{ENT+2}", f"v_lshl_add_u32 v{T+3}, v{T}, 3, s{sBASE}", f"v_lshl_add_u32 v{T}, v{T}, 5, v{EAC}")
        e(f"ds_read_b64 {vr(ENT,2)}, v{T+3}")
        e(f"ds_read_b128 {vr(EA0,4)}, v{T}")

    def wfr(*qs):
        for q in qs:
            e(f"ds_read_b128 {vr(WF[q],4)}, v{eWF} offset:{1024*q}")

    def zq(q):
        e(f"ds_read_b128 {vr(RW+4*q,4)}, v{ZAD}", f"ds_read_b128 {vr(RW+16+4*q,4)}, v{ZAD}")

    def pq(j):
        p = PQ + 2 * (j % 2)
        return [f"v_cvt_pk_bf16_f32 v{T+1+j%2}, v{AGN+j}, v{AGN+j}", f"v_and_b32 v{p}, v{MP}, v{T+1+j%2}", f"v_and_b32 v{p+1}, v{MQ}, v{T+1+j%2}"]

    def head(kind):
        e(f"s_waitcnt lgkmcnt({0 if kind == 'first' else 2})"); al()
        for q in range(4):
            e(f"v_mfma_f32_4x4x4_16b_bf16 {vr(AGN+4*q,4)}, {vr(ENT,2)}, {vr(CGF,2)}, 0 cbsz:4 abid:{2*q}")
        e(f"v_lshlrev_b32 v{K}, 3, v{KN}", f"v_and_b32 v{K}, s{sT2}, v{K}")
        rd = []
        if kind != "last":
            e(f"v_add_u32 v{LA}, 64, v{LA}", f"v_add_u32 v{LB}, 64, v{LB}")
            rd = [f"ds_read_b32 v{KN}, v{LA} offset:{4*D}", f"ds_read_b32 v{ENT+2}, v{LB}"]
        if kind != "first":
            e("s_waitcnt lgkmcnt(0)"); al()
        groups = [rd + (pq(0) if kind != "first" else []), []]
        for h in range(2):
            e(f"v_smfmac_f32_32x32x32_bf16 {vr(RW+16*h,16)}, {vr(EA0,4)}, {vr(WRF+8*h,8)}, v{SIX}")
            e(*groups[h])

    def pks(j):
        t = TP + 8 * (j % 2)
        for h in range(2):
            r = RW + 16 * h + j
            rp = r & ~1
            sel = "op_sel:[0,1,0] op_sel_hi:[1,1,1]" if r & 1 else "op_sel_hi:[1,0,1]"
            for q in range(2):
                a = ACC + 4 * h + 2 * q
                e(f"v_pk_fma_f32 {vr(a,2)}, {vr(t+4*h+2*q,2)}, {vr(rp,2)}, {vr(a,2)} {sel}")

    def mf(j, h):
        t, p, s = TP + 8 * (j % 2), PQ + 2 * (j % 2), XR + 4 * (j % R)
        e(f"v_mfma_f32_16x16x16_bf16 {vr(t+4*h,4)}, {vr(p,2)}, {vr(s+2*h,2)}, 0")

    def rl(q, lane):
        e(f"v_readlane_b32 s{SK + q % 8}, v{K}, {lane}")

    def sand(q):
        e(f"s_and_b32 s{sOFF}, s{SK + q % 8}, s{sNR}")

    def xl(q):
        e(f"buffer_load_dwordx4 {vr(XR + 4 * (q % R),4)}, v{X16}, {sr(sX)}, s{sOFF} offen")

    def body(last):
        for j in range(0, 16, 2):
            ld = not last or j + D < 16
            if not last or j == 0:
                e.label(f"L_{'f' if last else 'j'}{j}")
            nx = pq(j + 1)
            e(f"s_waitcnt vmcnt({D-1 if ld else 15-j})"); al()
            mf(j, 0)
            if ld:
                rl(j + D, j)
            e(*nx[:1]); mf(j, 1); e(*nx[1:])
            if ld and P["SCH"] == 2:
                sand(j + D); e(f"s_waitcnt vmcnt({D-2})"); xl(j + D)
            elif ld:
                sand(j + D); xl(j + D); e(f"s_waitcnt vmcnt({D-1})")
            else:
                e(f"s_waitcnt vmcnt({14-j})"); al()
            nx = pq(j + 2) if j < 14 else []
            mf(j + 1, 0)
            if ld:
                rl(j + 1 + D, j + 1)
            e(*nx[:1]); mf(j + 1, 1); e(*nx[1:])
            if last and j == 2 and P["AGP"] == 2:
                agaddr(); al()
            if j == 2 and not last:
                e("s_waitcnt lgkmcnt(0)")
                ea_reads(); al()
            if ld:
                sand(j + 1 + D)
            e(f"s_set_gpr_idx_on s{SK + j % 8}, gpr_idx(SRC2,DST)")
            xl(j + 1 + D) if ld else al()
            pks(j)
            e(f"s_set_gpr_idx_idx s{SK + (j + 1) % 8}")
            if j == 14 and not last:
                e(f"s_sub_u32 s{sCNT}, s{sCNT}, 1")
            al()
            pks(j + 1)
            if j % 4 == 2 and not last:
                zq(j // 4)
            if last and j >= 6 and P["WFT"]:
                wfr(*((14, 15) if j == 6 else (j - 2, j - 1)))
            e("s_set_gpr_idx_off")

    e("s_waitcnt lgkmcnt(3)")
    e(f"v_lshlrev_b32 v{K}, 3, v{K}", f"v_and_b32 v{K}, s{sT2}, v{K}")
    NB5 = P["NB5"]

    def pair(q):
        rl(q, q); rl(q + 1, q + 1)
        sand(q); xl(q); sand(q + 1); xl(q + 1)

    for q in (2, 4, 6):
        e(f"s_cmp_eq_u32 s{SK+8}, {q}", f"s_cbranch_scc1 L_p{q}")
    for q0 in (0, 2, 4, 6):
        e.label(f"L_p{q0}")
        for i in range(NB5):
            pair(q0 + 2 * i)
        if P["AGP"] == 0:
            e("s_waitcnt lgkmcnt(0)")
            agaddr()
        e(f"s_waitcnt vmcnt({2*NB5}) lgkmcnt(0)", "s_barrier")
        ea_reads()
        for i in range(NB5, 3):
            pair(q0 + 2 * i)
        if q0 < 6:
            e("s_branch L_pd")
    e.label("L_pd")
    if P["AGP"] == 1:
        agaddr()
    ts.stamp("b5")
    head("first")
    e(f"s_set_gpr_idx_on s{sP0}, gpr_idx(SRC0,SRC1)")
    e.idx_range, keep = {("v", i) for i in range(AGN, AGN + 16)}, e.idx_range
    e(pq(0)[0])
    e.idx_range = keep
    e("s_set_gpr_idx_off")
    e(*pq(0)[1:])
    e("s_waitcnt lgkmcnt(0)")
    ea_reads()
    e(f"s_cmp_eq_u32 s{sCNT}, 0", "s_cbranch_scc1 L_f0")
    for j in range(0, 14, 2):
        e(f"s_cmp_eq_u32 s{sP0}, {j}", f"s_cbranch_scc1 L_j{j}")
        if j % 4 == 2:
            zq(j // 4)
    e("s_branch L_j14")
    e(".p2align 3")
    e.label("L_loop")
    head("mid")
    body(False)
    e(f"s_cmp_lg_u32 s{sCNT}, 0", "s_cbranch_scc1 L_loop")
    head("last")
    body(True)
    e.label("L_swept")
    ts.stamp("swept")
    e(f"s_add_u32 s{sROFF}, s{sROFF}, {CAPW}", f"s_cmp_lt_u32 s{sROFF}, s{sN}", "s_cbranch_scc1 L_again")
    AF, DD, OB, OT = ACC, 160, 64, 80
    if P["EPRIO"] >= 0:
        e(f"s_setprio {P['EPRIO']}")
    for s in range(5):
        for w in range(4):
            e(f"v_cvt_pk_bf16_f32 v{RW+4*s+w}, v{ACC+8*s+w}, v{ACC+8*s+4+w}")
        for w in (0, 2):
            e(f"ds_write2_b32 v{eAG[s]}, v{RW+4*s+w}, v{RW+4*s+w+1} offset0:{72*w} offset1:{72*w+72}")
    NPRE = 16
    if not P["WFT"]:
        wfr(*range(NK, 16))
    e(f"s_waitcnt lgkmcnt({0 if P['WFT'] else NPRE - NK})", "s_barrier")
    ts.stamp("agb")
    lq = [f"w{q}" for q in range(NPRE)]

    def lop(tag, text):
        e(text); lq.append(tag)

    def lwait(*tags):
        n = len(lq) - 1 - max(lq.index(t) for t in tags)
        e(f"s_waitcnt lgkmcnt({min(n, 15)})")

    def afrag(k, ss=range(4)):
        for s in ss:
            lop(f"a{k}{s}", f"ds_read_b128 {vr(AF+16*k+4*s,4)}, v{eFR} offset:{AGL + 4608*k + 64*s}")

    def post(k, pol=P['OUTPOL']):
        d, o = DD + 16 * (k % 2), OB + 8 * (k % 2)
        x = []
        for r in range(2):
            for c in range(2):
                x.append(f"v_cvt_pk_bf16_f32 v{o+4*r+c}, v{d+8*c+r}, v{d+8*c+4+r}")
                x.append(f"v_cvt_pk_bf16_f32 v{OT+2*r+c}, v{d+8*c+r}, v{d+8*c+4+r}")
                x.append(f"v_cvt_pk_bf16_f32 v{o+4*r+2+c}, v{d+8*c+r+2}, v{d+8*c+4+r+2}")
            for c in range(2):
                x.append(f"v_mov_b32_dpp v{o+4*r+c}, v{o+4*r+2+c} row_ror:8 row_mask:0xf bank_mask:0xc")
            for c in range(2):
                x.append(f"v_mov_b32_dpp v{o+4*r+2+c}, v{OT+2*r+c} row_ror:8 row_mask:0xf bank_mask:0x3")
            x.append(f"buffer_store_dwordx4 {vr(o+4*r,4)}, v{eST}, {sr(sOUT)}, s{sEO} offen offset:{256*r} {pol}")
        x.append(f"s_add_u32 s{sEO}, s{sEO}, 4096")
        return x

    def tile(k, pend):
        d = DD + 16 * (k % 2)
        for s in range(4):
            if k == 0:
                lwait(f"a0{s}", f"w{4*s+3}")
            elif s == 0:
                lwait(f"a{k}3")
            for t in range(4):
                c = "0" if s == 0 else vr(d + 4 * t, 4)
                e(f"v_mfma_f32_16x16x32_bf16 {vr(d+4*t,4)}, {vr(AF+16*k+4*s,4)}, {vr(WF[4*s+t],4)}, {c}")
                if 4 * s + t >= 4:
                    e(*pend[:2]); pend = pend[2:]
            if k == 0 and s == 0:
                afrag(1)
            if k == 0 and s == 1:
                afrag(2)
        e(*pend)

    for s in range(4):
        afrag(0, [s])
        for q in range(max(NPRE, 4 * s), 4 * s + 4):
            lop(f"w{q}", f"ds_read_b128 {vr(WF[q],4)}, v{eWF} offset:{1024*q}")
    tile(0, [])
    tile(1, post(0))
    e("s_cmp_ge_u32 s3, 4", "s_cbranch_scc1 L_two")
    tile(2, post(1))
    e(*post(2, P['LASTPOL']))
    e.label("L_stored")
    ts.stamp("stored")
    e("s_or_b32 s4, s2, s3", "s_cbranch_scc1 L_notag")
    e(f"v_mov_b32 v{T}, s{sTAG}", f"v_lshlrev_b32 v{T+2}, 2, v{LANE}", f"s_mov_b32 s{sT}, {WS_W}")
    e(f"buffer_store_dword v{T}, v{T+2}, {sr(sTAB)}, s{sT} offen sc1")
    e.label("L_notag")
    if P["DIAGW"] and P["DIAGAT"] == "fin":
        e("s_waitcnt vmcnt(0)")
        ts.stamp("fin")
    if P["DIAGW"]:
        e(f"s_add_u32 s6, s{sTSP+1}, {P['DIAGW']}", "s_min_u32 s6, s6, 30000")
        e.label("L_diag")
        e("s_memrealtime s[4:5]", "s_waitcnt lgkmcnt(0)", f"s_sub_u32 s4, s4, s{sTSP}", "s_cmp_lt_u32 s4, s6", "s_cbranch_scc1 L_diag")
    if P["TS"]:
        e("s_waitcnt vmcnt(0)")
        ts.stamp("end")
        e(f"s_lshl_b32 s{sT}, s2, 3", f"s_add_u32 s{sT}, s{sT}, s3", f"s_lshl_b32 s{sT}, s{sT}, 8", f"s_add_u32 s{sT}, s{sT}, {WS_TS}")
        e(f"v_lshl_add_u32 v{T}, v{LANE}, 2, s{sT}", f"global_store_dword v{T}, v{TSV}, s[14:15]")
        if P["DBG"]:
            e(f"s_cmp_lg_u32 s2, {P['DBG']}", "s_cbranch_scc1 L_done", "s_cmp_lg_u32 s3, 0", "s_cbranch_scc1 L_done")
            e("s_load_dwordx2 s[4:5], s[0:1], 72", f"v_readlane_b32 s{sT}, v{TSV}, 0", f"v_lshlrev_b32 v{T}, 2, v{LANE}")
            e(f"v_subrev_u32 v{TSV}, s{sT}, v{TSV}", "s_waitcnt lgkmcnt(0)", f"global_store_dword v{T}, v{TSV}, s[4:5]")
    e.label("L_done")
    e("s_endpgm")
    e.label("L_again")
    e("s_waitcnt vmcnt(0) lgkmcnt(0)", "s_barrier")
    init_round(False)
    for i in range(32):
        e(f"v_mov_b32 v{RW+i}, 0")
    e(f"v_add_u32 v{RLEN}, v{RLEN}, v{RBASE}", f"v_subrev_u32 v{RLEN}, {CAPW}, v{RLEN}", f"v_max_i32 v{RLEN}, 0, v{RLEN}")
    e(f"v_subrev_u32 v{RBASE}, {CAPW}, v{RBASE}", f"v_max_i32 v{RBASE}, 0, v{RBASE}", f"v_sub_u32 v{RLEN}, v{RLEN}, v{RBASE}")
    e(f"v_add_u32 v{RG0}, {CAPW}, v{RG0}", f"s_sub_i32 s{sNW}, s{sNW}, {CAPW}", f"v_lshl_add_u32 v{T}, v{RBASE}, 2, v{cMAPW}")
    e("s_waitcnt lgkmcnt(0)", "s_barrier")
    e.label("L_clip")
    e(f"v_add_u32 v{T+2}, v{RBASE}, v{RLEN}", f"v_min_i32 v{T+2}, {CAPW}, v{T+2}", f"v_sub_u32 v{T+2}, v{T+2}, v{RBASE}", f"v_add_u32 v{T+2}, v{T+2}, v{cODD}")
    e.label("L_masks")
    e(*cmps)
    e("s_nop 0", "s_branch L_mapw")
    e.label("L_map2")
    e(f"v_add_u32 v{T}, {8*MU}, v{T}", f"v_subrev_u32 v{T+2}, {2*MU}, v{T+2}")
    e("s_branch L_masks")
    e.label("L_r1")
    e(f"ds_read_b32 v{G1+3}, v{cMAP1} offset:768", f"ds_read_b32 v{G2+6}, v{cMAP2} offset:768")
    e("s_waitcnt lgkmcnt(0)")
    skld(3)
    for i in (6,):
        e(f"v_lshl_add_u32 v{G2+i}, v{G2+i}, 5, v{X16}")
        bea1(i)
    e("s_branch L_r1b")
    e.label("L_r2")
    count(3)
    entry(3)
    e("s_branch L_r2b")
    e.label("L_r3")
    e(f"ds_read_b32 v{CA+3}, v{CA+3} offset:{CNT2}", "s_waitcnt lgkmcnt(0)")
    e(*place(3))
    e(f"ds_read_b32 v{G1+3}, v{G1+3} offset:{START}", "s_waitcnt lgkmcnt(0)")
    e(f"v_lshl_add_u32 v{CA+3}, v{CA+3}, 2, v{G1+3}")
    scatter(3)
    e("s_mov_b64 exec, -1", "s_branch L_r3b")
    e.label("L_empty")
    e("s_waitcnt vmcnt(0) lgkmcnt(0)", "s_barrier")
    agaddr()
    if P["WFT"]:
        wfr(*range(NK, 16))
    e("s_branch L_swept")
    e.label("L_two", pad=8)
    e(*post(1, P['LASTPOL']))
    e("s_branch L_stored")
    e.label("L_poll")
    e(poll1, f"s_sub_u32 s{sCNT}, s{sCNT}, 1", "s_cbranch_scc1 L_done", "s_waitcnt vmcnt(0)")
    tagcheck()
    e("s_cbranch_execnz L_poll", "s_branch L_polled")
    e.label("L_rank2")
    for j in range(5):
        e(f"ds_read_b32 v{CN+j}, v{cROW} offset:{CNT2 + 128*j}")
    if P["ENP"] == 0:
        for i in range(3):
            entry(i)
    e("s_waitcnt lgkmcnt(0)")
    e.label("L_end")
    e("s_branch L_ranked")
    return e.text(), LDS, 256, 102


HEADER = """; Kernarg layout for this problem (88 bytes, ptrs only, base s[0:1]):
"""


def generate(**kw):
    P = dict(DEF)
    P.update(kw)
    k, lds, v, s = gen(P)
    n = NAME + "_kernel"
    out = HEADER
    out += f"; @launch grid=(256,1,1) block=(512,1,1) lds={lds}\n"
    out += '.amdgcn_target "amdgcn-amd-amdhsa--gfx950"\n.text\n'
    out += f".globl {n}\n.p2align 8\n.type {n},@function\n{n}:\n{k}"
    out += '.section .rodata,"a"\n'
    out += (f".p2align 6\n.amdhsa_kernel {n}\n  .amdhsa_next_free_vgpr {v}\n  .amdhsa_next_free_sgpr {s}\n"
            f"  .amdhsa_accum_offset {(v+3)//4*4}\n  .amdhsa_group_segment_fixed_size 0\n  .amdhsa_kernarg_size 88\n"
            f"  .amdhsa_user_sgpr_count 2\n  .amdhsa_user_sgpr_kernarg_segment_ptr 1\n  .amdhsa_system_sgpr_workgroup_id_x 1\n"
            f"  .amdhsa_float_denorm_mode_32 3\n.end_amdhsa_kernel\n")
    return out


if __name__ == "__main__":
    kw = {}
    for a in sys.argv[1:]:
        k, v = a.split("=", 1)
        kw[k] = int(v) if v.lstrip("-").isdigit() else v
    sys.stdout.write(generate(**kw))
```

```python
import sys, os
sys.path.insert(0, os.path.dirname(os.path.abspath(__file__)))
from emit import Emitter

NAME = "gather_scatter__tensor_product_equiv_mace__graph"
N, E = 10000, 320000
CH, NCH, CS = 1250, 256, 1280
WS_TAB, WS_W, WS_SK, WS_EA, WS_TS = 0, 0x80000, 0x100000, 0x500000, 0x2000000
CAPW, GAP = 224, 16
CAP = 8 * CAPW
SPIN = 200000

DEF = dict(XPOS=0, PQP=1, NB5=1, AGP=2, ENP=0, PW=0, WFT=1, WFK=6, LASTPOL='sc1', EPRIO=0, BIAS=30, SCH=2, ALIGN=0, PRIO=1, DIAGW=0, DIAGK=0, DIAGAT='tab', D=6, TS=0, DBG=0, APOL="nt", AEA="00011", BEA="001223", SKBAR=1, ABAR=2, XPF=18, CPF=2, MU=7, OUTPOL="sc1", LDPOL="sc1", WST=3, WOST=3, ACCZ=2, CPOS=2, WGN=0)

PART39 = [[3, 11, 21, 31, 36], [5, 8, 20, 27, 38], [0, 6, 7, 13, 39], [9, 14, 18, 25, 34], [10, 16, 19, 24, 32], [4, 12, 26, 29, 33], [1, 17, 23, 28, 37], [2, 15, 22, 30, 35]]
PART40 = [[1, 10, 15, 30, 39], [2, 9, 21, 28, 37], [4, 14, 22, 27, 31], [6, 12, 18, 24, 35], [3, 8, 16, 29, 38], [5, 13, 17, 26, 34], [0, 20, 23, 32, 36], [7, 11, 19, 25, 33]]
PARTS = {0: (PART39, PART40)}
PARTS[12] = ([[12, 16, 24, 26, 30], [8, 14, 15, 31, 36], [2, 10, 23, 34, 37], [5, 17, 18, 22, 38], [0, 1, 7, 19, 39], [3, 11, 20, 29, 35], [6, 9, 25, 27, 32], [4, 13, 21, 28, 33]],
    [[9, 12, 19, 28, 32], [3, 10, 22, 29, 37], [7, 8, 23, 26, 36], [0, 18, 20, 34, 38], [5, 6, 14, 21, 39], [4, 11, 16, 24, 35], [1, 15, 25, 27, 31], [2, 13, 17, 30, 33]])
PARTS[20] = ([[13, 17, 24, 26, 31], [4, 16, 25, 29, 36], [5, 19, 23, 28, 35], [1, 6, 8, 10, 39], [7, 9, 20, 27, 32], [3, 12, 14, 33, 34], [2, 15, 18, 22, 37], [0, 11, 21, 30, 38]],
    [[11, 12, 17, 20, 38], [3, 16, 26, 28, 34], [8, 10, 19, 29, 36], [7, 14, 25, 27, 31], [6, 13, 15, 24, 30], [0, 9, 22, 23, 39], [2, 4, 21, 32, 35], [1, 5, 18, 33, 37]])
PARTS[30] = ([[12, 16, 25, 29, 32], [0, 5, 9, 20, 39], [1, 18, 27, 34, 37], [7, 19, 22, 30, 35], [2, 6, 24, 26, 36], [4, 11, 13, 31, 33], [10, 15, 17, 21, 28], [3, 8, 14, 23, 38]],
    [[6, 9, 26, 28, 37], [1, 11, 24, 35, 38], [5, 17, 23, 31, 33], [8, 12, 21, 29, 36], [2, 4, 15, 22, 39], [7, 10, 14, 18, 34], [0, 16, 20, 30, 32], [3, 13, 19, 25, 27]])
PARTS[40] = ([[7, 13, 28, 29, 37], [10, 17, 22, 30, 36], [1, 4, 6, 23, 39], [9, 19, 26, 31, 33], [5, 12, 15, 18, 35], [2, 11, 16, 27, 34], [0, 8, 24, 25, 38], [3, 14, 20, 21, 32]],
    [[8, 17, 25, 31, 32], [3, 19, 22, 28, 38], [6, 15, 18, 33, 37], [2, 14, 24, 29, 39], [0, 12, 21, 27, 34], [1, 9, 13, 26, 36], [5, 7, 10, 23, 35], [4, 11, 16, 20, 30]])
PARTS[50] = ([[2, 19, 28, 35, 37], [0, 6, 11, 24, 39], [15, 17, 27, 29, 34], [1, 20, 30, 32, 38], [4, 7, 18, 23, 33], [9, 10, 12, 21, 31], [5, 13, 16, 25, 26], [3, 8, 14, 22, 36]],
    [[7, 15, 27, 30, 36], [8, 18, 19, 28, 38], [4, 14, 31, 33, 35], [6, 13, 20, 29, 39], [2, 3, 22, 23, 34], [0, 11, 12, 26, 37], [1, 9, 17, 24, 32], [5, 10, 16, 21, 25]])


def vr(a, n):
    return f"v[{a}:{a+n-1}]" if n > 1 else f"v{a}"


def sr(a, n=4):
    return f"s[{a}:{a+n-1}]"


def scan_dpp(e, v, full):
    for k in (1, 2, 4, 8):
        e(f"v_add_u32_dpp v{v}, v{v}, v{v} row_shr:{k} row_mask:0xf bank_mask:0xf")
    e(f"v_add_u32_dpp v{v}, v{v}, v{v} row_bcast:15 row_mask:0xa bank_mask:0xf")
    if full:
        e(f"v_add_u32_dpp v{v}, v{v}, v{v} row_bcast:31 row_mask:0xc bank_mask:0xf")


class TS:
    last = None

    def __init__(self, e, on, pair, vreg):
        self.e, self.on, self.pair, self.v, self.names = e, on, pair, vreg, []
        TS.last = self

    diag = None

    def stamp(self, name):
        if self.diag and self.diag[0] == name:
            self.e("s_memrealtime s[4:5]", "s_waitcnt lgkmcnt(0)", f"s_sub_u32 s4, s4, s{self.pair}", f"s_mul_i32 s{self.pair+1}, s4, {self.diag[1]}")
        if self.on and (self.on == 1 or name in str(self.on).split(",") or name in ("start", "end")):
            e, p = self.e, self.pair
            e(f"s_memrealtime s[{p}:{p+1}]", "s_waitcnt lgkmcnt(0)", f"v_writelane_b32 v{self.v}, s{p}, {len(self.names)}")
            self.names.append(name)


class VQ:
    def __init__(self, e):
        self.e, self.q = e, []

    def op(self, tag, text):
        self.e(text)
        self.q.append(tag)

    def n(self, tag):
        idx = max(i for i, t in enumerate(self.q) if t == tag)
        return len(self.q) - 1 - idx

    def wait(self, tag, extra=""):
        self.e(f"s_waitcnt vmcnt({self.n(tag)}) {extra}".strip())


def gen(P):
    e = Emitter()
    vq = VQ(e)
    D = P["D"]
    R = 8
    MAP, CNT2, WB, DEG, TOT, NODEOF, START, WR, WO = 0, 8192, 13312, 14336, 15360, 15616, 16384, 17408, 46080
    LIST = WO + 32768
    SHST = LIST + (CAP + 8 * GAP + 128) * 4
    EAST = SHST + CAP * 8
    assert SHST + CAP * 8 <= EAST
    ZERO = EAST + CAP * 32
    LDS = ZERO + 64
    AGL = 0
    ACNT, ASTART, AINV, ASKS = 23552, 24576, 25600, 30720
    assert ASKS + CS * 12 <= WO and LDS <= 163840
    LANE, X16, RLEN, RBASE, RG0, ONE, PFV = 1, 2, 3, 4, 5, 6, 7
    T = 8
    ACC, RW, XR, TP, AGN, PQ, EA0, EA1, WRF, CGF, ENT = 16, 64, 96, 128, 144, 160, 164, 168, 172, 188, 192
    MP, MQ = CGF + 2, CGF + 3
    SIX, ZAD = EA1, EA1 + 1
    eAG, eFR, eST, eWF, NOD = [208, 209, 210, 211, 212], 213, 214, 215, 205
    NK = P["WFK"]
    assert NK == 6
    WF = [216 + 4 * q for q in range(NK)] + [XR + 4 * q for q in range(8)] + [AGN, AGN + 4]
    K, KN, LA, LB, EAC, LAC, LBC, RT, TSV = 196, 197, 198, 199, 200, 201, 202, 203, 204
    cODD, cMAPW, cMAP1, cMAP2, cL12, cDEG, cSH, cR21, cROW, cTIE, cBIN, cNOD, cLST, c380 = range(240, 254)
    e.idx_range = {("v", i) for i in range(ACC, ACC + 48)}
    sX, sTAB, sSK, sEA, sA0, sA1, sOUT = 16, 20, 24, 28, 32, 36, 40
    sB, sNB, sNCNT, sN, sROFF, sNR, sNV, sBASE, sEM, sCNT, sT, sT2 = 44, 45, 46, 47, 48, 49, 50, 51, 52, 53, 54, 55
    sNODE = 56
    sOFF = 61
    sTAG, sTAG2 = 62, 63
    SK = 64
    sV = 80
    sM0, sEO = 86, 87
    sASG = [90, 91, 92, 93, 94]
    sNW, sK4 = 95, 98
    sA2, sTSP = 96, 100
    ts = TS(e, P["TS"], sTSP, TSV)
    if P["DIAGW"]:
        ts.diag = (P["DIAGAT"], P["DIAGK"])
    apol, ldpol = P["APOL"], P["LDPOL"]
    astage = [int(c) for c in str(P["AEA"]).zfill(5)]
    bstage = [int(c) for c in str(P["BEA"]).zfill(6)]

    def srd(s, lo, hi, off, size):
        if off is None:
            e(f"s_mov_b32 s{s}, s{lo}", f"s_mov_b32 s{s+1}, s{hi}")
        else:
            e(f"s_add_u32 s{s}, s{lo}, {off}", f"s_addc_u32 s{s+1}, s{hi}, 0")
        e(f"s_mov_b32 s{s+2}, {size}", f"s_mov_b32 s{s+3}, 0x20000")

    def init_round(first):
        e(f"v_lshlrev_b32 v{T+3}, 2, v0", f"v_mov_b32 v{T+4}, 0x00700000", f"v_mov_b32 v{T+5}, 0")
        for i in range(4):
            e(f"ds_write_b32 v{T+3}, v{T+4} offset:{MAP + i*2048}")
        for i in range(4 if first else 3):
            e(f"ds_write_b32 v{T+3}, v{T+5} offset:{CNT2 + i*2048}")

    DSTV, SRCV, SHV, BK, BA, RK, NL, KEY, CT, ST, PS = 64, 68, 72, 80, 84, 88, 92, 96, 100, 104, 108
    TABV = 112
    OUTV = 128
    IV = 156
    CGR = 120
    if P["TS"]:
        e("s_memrealtime s[92:93]")
    e("s_cmp_ge_u32 s2, 256", "s_cbranch_scc1 L_done")
    e("s_load_dwordx4 s[4:7], s[0:1], 8")
    e("s_load_dwordx4 s[8:11], s[0:1], 24")
    e("s_load_dwordx2 s[14:15], s[0:1], 80")
    e(f"s_load_dwordx2 s[{SK}:{SK+1}], s[0:1], 0")
    e(f"s_load_dwordx2 s[{SK+2}:{SK+3}], s[0:1], 40")
    e(f"s_load_dwordx4 s[{SK+4}:{SK+7}], s[0:1], 48")
    e("s_load_dwordx2 s[12:13], s[0:1], 64")

    def cpf():
        e(f"s_getpc_b64 s[{sV}:{sV+1}]")
        e.label("L_pc")
        e(f"s_and_b32 s{sB}, s2, 0xf8", f"s_lshl_b32 s{sB}, s{sB}, 6")
        e(f"v_and_b32 v{T+3}, 0x180, v{T+2}", f"v_add_u32 v{T+3}, s{sB}, v{T+3}", f"v_min_u32 v{T+3}, L_end-L_pc, v{T+3}")
        e(f"v_mov_b32 v{TABV+1}, s{sV+1}", f"v_add_co_u32 v{TABV}, vcc, s{sV}, v{T+3}", f"v_addc_co_u32 v{TABV+1}, vcc, 0, v{TABV+1}, vcc")
        vq.op("cpf", f"global_load_dword v{TSV+1}, {vr(TABV,2)}, off")

    def srd_hi(s, size):
        e(f"s_mov_b32 s{s+2}, {size}", f"s_mov_b32 s{s+3}, 0x20000")

    def srd_lo(s, lo, off):
        e(f"s_add_u32 s{s}, s{lo}, {off}", f"s_addc_u32 s{s+1}, s{lo+1}, 0")

    e(f"v_lshlrev_b32 v{T+2}, 3, v0")
    if P["CPF"] == 2:
        cpf()
    e(f"v_lshrrev_b32 v{T}, 6, v0", f"v_and_b32 v{LANE}, 63, v0", f"v_lshlrev_b32 v{T+1}, 2, v0", f"v_mov_b32 v{T+5}, 0")
    e(f"v_readfirstlane_b32 s3, v{T}")
    e(f"ds_write_b32 v{T+1}, v{T+5} offset:{ACNT}", f"ds_write_b32 v{T+1}, v{T+5} offset:{AINV+3072}")
    e(f"s_mul_i32 s{sT}, s2, {CH*4}", f"s_mul_i32 s{sT2}, s2, {CH*8}", f"s_mul_i32 s{sOFF}, s2, {CH*32}")
    e(f"v_lshlrev_b32 v{X16}, 4, v{LANE}", f"v_lshlrev_b32 v{T+7}, 4, v0", f"v_mov_b32 v{ONE}, 1")
    e(f"s_lshl_b32 s{sEM}, s3, 10", f"s_add_u32 s{sEM}, s{sEM}, {EAST}", f"s_movk_i32 s{sCNT}, 4096", f"s_movk_i32 s{sNV}, 8192")
    srd_hi(sA0, CH * 4); srd_hi(sA1, CH * 4); srd_hi(sA2, CH * 8); srd_hi(sEA, CH * 32)
    if P["DIAGW"]:
        e(f"s_memrealtime s[{sTSP}:{sTSP+1}]")
    e("s_waitcnt lgkmcnt(0)")
    if P["TS"]:
        e(f"v_writelane_b32 v{TSV}, s92, 0")
        ts.names.append("first")
    ts.stamp("start")
    srd_lo(sA0, 6, f"s{sT}")
    for i in range(3):
        o = f"0 offen offset:{2048*i}" if i < 2 else f"s{sCNT} offen"
        vq.op("dst", f"buffer_load_dword v{DSTV+i}, v{T+1}, {sr(sA0)}, {o} {apol}")
    srd_lo(sA1, 4, f"s{sT}")
    if P["ABAR"] == 2:
        e("s_barrier")
    for i in range(3):
        o = f"0 offen offset:{2048*i}" if i < 2 else f"s{sCNT} offen"
        vq.op("src", f"buffer_load_dword v{SRCV+i}, v{T+1}, {sr(sA1)}, {o} {apol}")
    e(f"s_load_dword s{sTAG}, s[14:15], {WS_W}")
    if P["CPF"] == 1:
        cpf()
    srd_lo(sA2, 8, f"s{sT2}")
    srd_lo(sEA, 10, f"s{sOFF}")
    if P["ABAR"] == 1:
        e("s_barrier")
    for i, o in enumerate(("0", f"s{sCNT}", f"s{sNV}")):
        vq.op("sh", f"buffer_load_dwordx2 {vr(SHV+2*i,2)}, v{T+2}, {sr(sA2)}, {o} offen {apol}")

    def aea(p):
        for i in range(5):
            if astage[i] == p:
                e(f"s_add_u32 m0, s{sEM}, {8192*i}", f"s_mov_b32 s{sT}, {8192*i}")
                vq.op("ea", f"buffer_load_dwordx4 v{T+7}, {sr(sEA)}, s{sT} offen {apol} lds")
        if P["WST"] == p:
            weights()
        if P["WOST"] == p:
            wout()

    def weights():
        e("s_cmp_lt_u32 s3, 4")
        e(f"s_cselect_b32 s{sX}, s{SK+4}, s{SK+2}", f"s_cselect_b32 s{sX+1}, s{SK+5}, s{SK+3}", f"s_movk_i32 s{sT}, 128",
          f"s_cselect_b32 s{sX+2}, s{sCNT}, s{sT}", f"s_mov_b32 s{sX+3}, 0x20000")
        e(f"s_min_u32 s{sT}, s3, 5", f"s_lshl_b32 s{sT}, s{sT}, 10", f"s_add_u32 m0, s{sT}, {WR}", f"s_and_b32 s{sT}, s{sT}, 0xc00")
        vq.op("w", f"buffer_load_dwordx4 v{X16}, {sr(sX)}, s{sT} offen lds")

    def wout():
        srd(sOUT, SK + 6, SK + 7, None, 32768)
        e(f"s_lshl_b32 s{sT2}, s3, 12", f"s_add_u32 m0, s{sT2}, {WO}")
        for i in range(4):
            vq.op("w", f"buffer_load_dwordx4 v{X16}, {sr(sOUT)}, s{sT2} offen offset:{i*1024} lds")

    aea(0)
    if not P["ABAR"]:
        e("s_barrier")
    e(f"s_mov_b32 s{SK+8}, 109951168", f"s_movk_i32 s{SK+9}, 625", f"s_movk_i32 s{SK+10}, 838")
    e(f"v_cmp_gt_u32 s[{sV+4}:{sV+5}], {CH-1024}, v0") if CH - 1024 <= 64 else e(f"s_movk_i32 s{sT}, {CH-1024}", f"v_cmp_gt_u32 s[{sV+4}:{sV+5}], s{sT}, v0")
    srd(sTAB, 14, 15, None, WS_W + 64)
    init_round(True)
    if P["ACCZ"] == 9:
        for i in range(48):
            e(f"v_mov_b32 v{ACC+i}, 0")
    vq.wait("dst")
    ts.stamp("dst")
    for k in range(3):
        e(f"v_mul_hi_u32 v{BK+k}, v{DSTV+k}, s{SK+8}")
    for k in range(3):
        e(f"v_lshlrev_b32 v{BA+k}, 2, v{BK+k}")
        if k == 2:
            e(f"s_mov_b64 exec, s[{sV+4}:{sV+5}]")
        e(f"ds_add_rtn_u32 v{RK+k}, v{BA+k}, v{ONE} offset:{ACNT}")
    e("s_mov_b64 exec, -1")
    e("s_waitcnt lgkmcnt(0)", "s_barrier")
    ts.stamp("hist")
    e(f"ds_read_b128 {vr(CT,4)}, v{X16} offset:{ACNT}")
    e(f"s_mul_i32 s{sTAG}, s{sTAG}, 0x9e3779b1", f"s_add_u32 s{sTAG}, s{sTAG}, 0x7f4a7c15")
    e(f"s_mul_i32 s{sTAG2}, s{sTAG}, 0x85ebca6b", f"s_and_b32 s{sTAG2}, s{sTAG2}, 0xffc00000")
    aea(1)
    for k in range(3):
        e(f"v_mad_u32_u24 v{NL+k}, v{BK+k}, s{SK+9}, 15", f"v_lshrrev_b32 v{NL+k}, 4, v{NL+k}", f"v_sub_u32 v{NL+k}, v{DSTV+k}, v{NL+k}")
    e("s_waitcnt lgkmcnt(0)")
    e(f"v_add_u32 v{T+3}, v{CT}, v{CT+1}", f"v_add3_u32 v{T+3}, v{T+3}, v{CT+2}, v{CT+3}", f"v_mov_b32 v{T+4}, v{T+3}")
    scan_dpp(e, T + 4, True)
    e(f"v_sub_u32 v{ST}, v{T+4}, v{T+3}")
    for k in range(3):
        e(f"v_add_u32 v{ST+1+k}, v{ST+k}, v{CT+k}")
    e(f"ds_write_b128 v{X16}, {vr(ST,4)} offset:{ASTART}")
    for k in range(3):
        e(f"ds_read_b32 v{PS+k}, v{BA+k} offset:{ASTART}")
    vq.wait("src")
    for k in range(3):
        e(f"v_mul_u32_u24 v{KEY+k}, s{SK+10}, v{SRCV+k}", f"v_bfe_u32 v{KEY+k}, v{KEY+k}, 18, 5")
        e(f"v_lshl_or_b32 v{KEY+k}, v{NL+k}, 5, v{KEY+k}",
          f"v_lshlrev_b32 v{KEY+k}, 21, v{KEY+k}", f"v_lshl_or_b32 v{KEY+k}, v{SRCV+k}, 7, v{KEY+k}")
    e(f"v_lshlrev_b32 v{NL}, 5, v0", f"v_add_u32 v{NL+1}, {512*32}, v{NL}", f"v_add_u32 v{NL+2}, {1024*32}, v{NL}")
    e(f"s_mov_b32 s{sT2}, {ASKS}")
    vq.wait("sh", "lgkmcnt(0)")
    for k in range(3):
        e(f"v_add_u32 v{PS+k}, v{PS+k}, v{RK+k}")
        e(f"v_lshlrev_b32 v{BA+k}, 2, v{PS+k}", f"v_mad_u32_u24 v{PS+k}, v{PS+k}, 12, s{sT2}")
        if k == 2:
            e(f"s_mov_b64 exec, s[{sV+4}:{sV+5}]")
        e(f"ds_write_b32 v{BA+k}, v{NL+k} offset:{AINV}")
        e(f"ds_write2_b32 v{PS+k}, v{SHV+2*k}, v{SHV+2*k+1} offset0:0 offset1:1")
        e(f"ds_write_b32 v{PS+k}, v{KEY+k} offset:8")
    e("s_mov_b64 exec, -1")
    aea(2)
    e(f"s_lshl_b32 s{sT}, s3, 7", f"v_lshl_add_u32 v{T+3}, v{LANE}, 3, s{sT}")
    e(f"ds_read_b64 {vr(CT,2)}, v{T+3} offset:{ACNT}", f"ds_read_b64 {vr(ST,2)}, v{T+3} offset:{ASTART}")
    e(f"s_mul_i32 s{sT}, s2, {CS*12}", f"s_add_u32 s{sT}, s{sT}, {WS_SK}")
    srd(sA0, 14, 15, f"s{sT}", CS * 12)
    e(f"s_mul_i32 s{sT}, s2, {CS*32}", f"s_add_u32 s{sT}, s{sT}, {WS_EA}")
    srd(sA1, 14, 15, f"s{sT}", CH * 32)
    e(f"v_lshrrev_b32 v{T+3}, 1, v0", f"v_lshlrev_b32 v{T+3}, 2, v{T+3}")
    e(f"v_and_b32 v{T+4}, 1, v0", f"v_lshlrev_b32 v{T+4}, 4, v{T+4}", f"v_add_u32 v{T+4}, {EAST}, v{T+4}", f"v_add_u32 v{T+6}, {ASKS}, v{T+7}")
    e("s_waitcnt lgkmcnt(0)", "s_barrier")
    ts.stamp("scat")
    e(f"ds_read_b128 {vr(OUTV,4)}, v{T+6}", f"ds_read_b128 {vr(OUTV+4,4)}, v{T+6} offset:8192")
    for i in range(5):
        e(f"ds_read_b32 v{IV+i}, v{T+3} offset:{AINV + i*1024}")
    aea(3)

    def skst():
        vq.op("skst", f"buffer_store_dwordx4 {vr(OUTV,4)}, v{T+7}, {sr(sA0)}, 0 offen sc1")
        vq.op("skst", f"buffer_store_dwordx4 {vr(OUTV+4,4)}, v{T+7}, {sr(sA0)}, s{sNV} offen sc1")

    def frag_r(F0, t0, t1, t2):
        e(f"v_lshrrev_b32 v{t0}, 5, v{LANE}", f"v_lshlrev_b32 v{t0}, 10, v{t0}", f"v_and_b32 v{t1}, 15, v{LANE}", f"v_lshl_add_u32 v{t0}, v{t1}, 4, v{t0}")
        for i in range(8):
            e(f"ds_read_b128 {vr(F0+4*i,4)}, v{t0} offset:{WR + 2048*(i//4) + 256*(i%4)}")
        e(f"v_lshrrev_b32 v{t0}, 4, v{LANE}", f"v_lshlrev_b32 v{t0}, 5, v{t0}", f"v_and_b32 v{t1}, 3, v{LANE}", f"v_lshl_add_u32 v{t0}, v{t1}, 1, v{t0}")
        for v in range(4):
            e(f"ds_read_u16 v{F0+32+v}, v{t0} offset:{WR + 4096 + 8*v}")
        e(f"v_bfe_i32 v{t2}, v{LANE}, 4, 1", f"v_and_b32 v{t2}, 0x02020202, v{t2}", f"v_add_u32 v{t2}, 0x05040100, v{t2}")
        e("s_waitcnt lgkmcnt(0)")
        for h in range(2):
            for t in range(2):
                for ip in range(4):
                    e(f"v_perm_b32 v{WRF+8*h+2*ip+t}, v{F0+4*(2*ip+1)+t+2*h}, v{F0+4*(2*ip)+t+2*h}, v{t2}")
        e(f"v_lshl_or_b32 v{CGF}, v{F0+33}, 16, v{F0+32}", f"v_lshl_or_b32 v{CGF+1}, v{F0+35}, 16, v{F0+34}")

    def frag_o(F0, F1, t0, t1, sM):
        e(f"v_and_b32 v{t1}, 7, v{LANE}", f"v_lshrrev_b32 v{t0}, 4, v{LANE}", f"v_lshlrev_b32 v{t0}, 13, v{t0}", f"v_lshl_add_u32 v{t0}, v{t1}, 4, v{t0}",
          f"v_and_b32 v{t1}, 8, v{LANE}", f"s_and_b32 s{sM}, s3, 3", f"s_lshl_b32 s{sM}, s{sM}, 8", f"s_lshr_b32 s{sM+1}, s3, 2", f"s_lshl_b32 s{sM+1}, s{sM+1}, 7",
          f"s_add_u32 s{sM}, s{sM}, s{sM+1}", f"s_add_u32 s{sM}, s{sM}, {WO}", f"v_add3_u32 v{t0}, v{t0}, v{t1}, s{sM}")
        for ip in range(4):
            e(f"ds_read2st64_b64 {vr(F0+4*ip,4)}, v{t0} offset0:{4*ip} offset1:{4*ip+2}")
        e(f"s_mov_b32 s{sM}, 0x05040100", f"s_mov_b32 s{sM+1}, 0x07060302")
        for ip in range(4):
            e(f"s_waitcnt lgkmcnt({3-ip})")
            for t in range(4):
                e(f"v_perm_b32 v{F1+4*t+ip}, v{F0+4*ip+2+t//2}, v{F0+4*ip+t//2}, s{sM+t%2}")

    def consts():
        e(f"s_and_b32 s{sB}, s2, 7", f"s_lshl_b32 s{sB}, s{sB}, 5", f"s_lshr_b32 s{sT}, s2, 3", f"s_add_u32 s{sB}, s{sB}, s{sT}")
        e(f"s_mul_i32 s{sNB}, s{sB}, 625", f"s_add_u32 s{sNCNT}, s{sNB}, 640", f"s_add_u32 s{sNB}, s{sNB}, 15",
          f"s_lshr_b32 s{sNB}, s{sNB}, 4", f"s_lshr_b32 s{sNCNT}, s{sNCNT}, 4", f"s_sub_u32 s{sNCNT}, s{sNCNT}, s{sNB}")
        e(f"v_bfe_i32 v{SIX}, v{LANE}, 2, 1", f"v_and_b32 v{SIX}, 0xaaaa, v{SIX}", f"v_add_u32 v{SIX}, 0x4444, v{SIX}")
        e(f"v_mov_b32 v{ZAD}, {ZERO}", f"v_and_b32 v{T+3}, 60, v{T+1}", f"v_add_u32 v{T+3}, v{T+3}, v{ZAD}", f"ds_write_b32 v{T+3}, v{T+5}")
        e(f"v_and_b32 v{T+3}, 4, v{LANE}", f"v_lshlrev_b32 v{T+3}, 2, v{T+3}", f"v_mov_b32 v{T+4}, 0xffff", f"v_lshlrev_b32 v{T+4}, v{T+3}, v{T+4}")
        e(f"v_bfe_i32 v{T+3}, v{LANE}, 3, 1", f"v_and_b32 v{MQ}, v{T+3}, v{T+4}", f"v_xor_b32 v{MP}, v{MQ}, v{T+4}")
        if P["PQP"]:
            e(f"v_mov_b32 v{T+3}, 0x0c0c0c0c", f"v_mov_b32 v{T+4}, 0x03020302")
            e(f"v_bfi_b32 v254, v{MP}, v{T+4}, v{T+3}", f"v_bfi_b32 v255, v{MQ}, v{T+4}, v{T+3}", f"v_mov_b32 v{T+4}, 0x01000100")
            e(f"v_bfi_b32 v{MP}, v{MP}, v{T+4}, v{T+3}", f"v_bfi_b32 v{MQ}, v{MQ}, v{T+4}, v{T+3}")
        e(f"v_lshrrev_b32 v{EAC}, 5, v{LANE}", f"v_lshlrev_b32 v{EAC}, 4, v{EAC}", f"v_add_u32 v{EAC}, {EAST}, v{EAC}")
        e(f"v_and_b32 v{LAC}, 15, v{LANE}", f"v_lshlrev_b32 v{LAC}, 2, v{LAC}")
        e(f"v_bfe_u32 v{T+3}, v{LANE}, 3, 2", f"v_and_b32 v{T+4}, 3, v{LANE}", f"v_lshl_add_u32 v{T+3}, v{T+3}, 2, v{T+4}", f"v_lshlrev_b32 v{LBC}, 2, v{T+3}")
        e(f"v_bfe_i32 v{cODD}, v0, 0, 1", f"s_lshl_b32 s{sT}, s3, 10", f"v_and_b32 v{cMAPW}, 4, v{cODD}", f"v_add_u32 v{cMAPW}, s{sT}, v{cMAPW}")
        e(f"v_lshl_add_u32 v{cMAP1}, v{LANE}, 2, s{sT}", f"v_lshrrev_b32 v{cMAP2}, 1, v{LANE}", f"v_lshl_add_u32 v{cMAP2}, v{cMAP2}, 2, s{sT}")
        e(f"v_mul_u32_u24 v{cL12}, 12, v{LANE}", f"v_and_b32 v{cDEG}, 12, v{cMAP1}", f"v_and_b32 v{cBIN}, 124, v{cMAP1}")
        e(f"s_mul_i32 s{sT}, s3, {CAPW}", f"v_add_u32 v{cR21}, s{sT}, v{LANE}", f"v_lshlrev_b32 v{cSH}, 3, v{cR21}", f"v_add_u32 v{cSH}, {SHST}, v{cSH}", f"v_lshlrev_b32 v{cR21}, 21, v{cR21}")
        e(f"s_mul_i32 s{sT}, s3, 640", f"v_add_u32 v{cROW}, s{sT}, v{cBIN}", f"v_sub_u32 v{cTIE}, 63, v{LANE}")
        e(f"s_getreg_b32 s{sM0}, hwreg(HW_REG_XCC_ID, 0, 3)", f"s_lshl_b32 s{sT}, s{sM0}, 4", f"v_subrev_u32 v{cBIN}, s{sT}, v{cBIN}", f"v_and_b32 v{cBIN}, 124, v{cBIN}")
        e(f"v_min_u32 v{cNOD}, 39, v{LANE}", f"v_lshlrev_b32 v{cNOD}, 7, v{cNOD}", f"v_mov_b32 v{c380}, 0x380")
        e(f"v_lshrrev_b32 v{cLST}, 3, v{LANE}", f"v_mul_u32_u24 v{cLST}, {GAP*4}, v{cLST}", f"v_add_u32 v{cLST}, {LIST}, v{cLST}")
        e(f"s_lshr_b32 s{sEO}, s3, 1", f"s_mul_i32 s{sEO}, s{sEO}, 3", f"s_min_u32 s{sEO}, s{sEO}, 8", f"s_mul_i32 s{sT}, s{sEO}, 4608")
        e(f"v_and_b32 v{T+3}, 15, v{LANE}", f"v_lshrrev_b32 v{T+4}, 4, v{LANE}")
        e(f"v_mul_u32_u24 v{eFR}, 288, v{T+3}", f"v_lshl_add_u32 v{eFR}, v{T+4}, 4, v{eFR}", f"v_add_u32 v{eFR}, s{sT}, v{eFR}")
        e(f"v_lshrrev_b32 v{T+4}, 3, v{LANE}", f"v_lshlrev_b32 v{T+4}, 9, v{T+4}", f"v_and_b32 v{T+3}, 7, v{LANE}", f"v_lshl_add_u32 v{eST}, v{T+3}, 4, v{T+4}")
        e(f"s_lshl_b32 s{sEO}, s{sEO}, 12", f"s_and_b32 s{sT}, s3, 1", f"s_lshl_b32 s{sT}, s{sT}, 7", f"s_add_u32 s{sEO}, s{sEO}, s{sT}",
          f"s_lshl_b32 s{sT}, s{sT}, 7", f"s_add_u32 s{sT}, s{sT}, {WO}", f"v_add_u32 v{eWF}, s{sT}, v{X16}")
        e(f"s_cmp_eq_u32 s{sNCNT}, 40")
        tabs = []
        for part in PARTS[P["BIAS"]]:
            t = [0] * 40
            for w, p in enumerate(part):
                for sl, r in enumerate(p):
                    t[r] = w * 8 + sl
            tabs.append([sum(t[5 * q + i] << (6 * i) for i in range(5)) for q in range(8)])
        e(f"v_mov_b32 v{RT}, 0")
        for q in range(8):
            e(f"s_mov_b32 s{sT}, {tabs[0][q]}", f"s_cselect_b32 s{sT}, {tabs[1][q]}, s{sT}")
            m = 31 << (5 * q)
            e(f"s_mov_b32 exec_lo, {m & 0xffffffff}", f"s_mov_b32 exec_hi, {m >> 32}", f"v_mov_b32 v{RT}, s{sT}")
        e("s_mov_b64 exec, -1")
        e(f"v_mul_u32_u24 v{T+3}, 52, v{LANE}", f"v_lshrrev_b32 v{T+3}, 8, v{T+3}", f"v_mad_i32_i24 v{T+3}, v{T+3}, -5, v{LANE}",
          f"v_mul_u32_u24 v{T+3}, 6, v{T+3}", f"v_lshrrev_b32 v{RT}, v{T+3}, v{RT}")
        e(f"v_and_b32 v{T+3}, 7, v{RT}", f"v_bfe_u32 v{RT}, v{RT}, 3, 3", f"v_lshlrev_b32 v{T+3}, 12, v{T+3}", f"v_lshl_or_b32 v{RT}, v{RT}, 7, v{T+3}")
        srd(sSK, 14, 15, WS_SK, NCH * CS * 12)

    def extra(pos):
        if P["CPOS"] == pos:
            consts()
        if P["ACCZ"] == pos:
            for i in range(48):
                e(f"v_mov_b32 v{ACC+i}, 0")

    e("s_waitcnt lgkmcnt(0)")
    for i in range(5):
        e(f"v_add_u32 v{IV+i}, v{T+4}, v{IV+i}")
    for k in range(2):
        e(f"v_lshl_or_b32 v{TABV+2*k}, v{CT+k}, 11, v{ST+k}", f"v_or_b32 v{TABV+2*k}, s{sTAG2}, v{TABV+2*k}", f"v_mov_b32 v{TABV+2*k+1}, s{sTAG}")
    extra(0)
    e(f"s_waitcnt vmcnt({min(vq.n('w') + P['WGN'], vq.n('ea'))})")
    e("s_barrier")
    ts.stamp("land")
    for i in range(5):
        e(f"ds_read_b128 {vr(OUTV+8+4*i,4)}, v{IV+i}")
    extra(1)
    ts.stamp("guard")
    skst()
    for i in range(5):
        e(f"s_mov_b32 s{sT}, {8192*i}", f"s_waitcnt lgkmcnt({4-i})")
        vq.op("st", f"buffer_store_dwordx4 {vr(OUTV+8+4*i,4)}, v{T+7}, {sr(sA1)}, s{sT} offen sc1")
    aea(4)
    ts.stamp("issued")

    extra(2)
    e(f"s_lshl_b32 s{sT}, s2, 3", f"s_add_u32 s{sT}, s{sT}, s3", f"s_lshl_b32 s{sT}, s{sT}, 8")
    srd(sX, SK, SK + 1, None, N * 1024)
    srd(sEA, 14, 15, WS_EA, NCH * CS * 32)
    if P["XPF"]:
        n = P["XPF"]
        e(f"s_and_b32 s{sBASE}, s{sM0}, 7", f"s_mul_i32 s{sBASE}, s{sBASE}, {1252*1024}", f"s_and_b32 s{sT2}, s2, 0xf8",
          f"s_add_u32 s{sT2}, s{sT2}, s3", f"s_mul_i32 s{sT2}, s{sT2}, {n*128}", f"s_add_u32 s{sBASE}, s{sBASE}, s{sT2}")
        e(f"v_min_u32 v{T+6}, {n-1}, v{LANE}", f"v_lshlrev_b32 v{T+6}, 7, v{T+6}")
    e("s_waitcnt vmcnt(0)", "s_barrier")
    ts.stamp("drained")
    e("s_mov_b64 exec, 0xffff")
    e(f"buffer_store_dwordx4 {vr(TABV,4)}, v{X16}, {sr(sTAB)}, s{sT} offen sc1")
    e("s_mov_b64 exec, -1")
    xpf = f"buffer_load_dword v{PFV}, v{T+6}, {sr(sX)}, s{sBASE} offen"
    if P["XPF"] and P["XPOS"] == 0:
        e(xpf)
    e(f"s_lshl_b32 s{sT}, s{sNB}, 10", f"s_add_u32 s{sOUT}, s12, s{sT}", f"s_addc_u32 s{sOUT+1}, s13, 0",
      f"s_lshl_b32 s{sOUT+2}, s{sNCNT}, 10", f"s_mov_b32 s{sOUT+3}, 0x20000")
    frag_r(RW, T, T + 1, T + 2)
    if P["XPF"] and P["XPOS"] == 1:
        e(xpf)
    frag_o(128, 144, T, T + 1, SK + 8)
    for i in range(32):
        e(f"v_mov_b32 v{RW+i}, 0")
    e(f"s_lshl_b32 s{sT}, s3, 12", f"v_add_u32 v{T}, s{sT}, v{X16}")
    extra(3)
    if P["XPF"] and P["XPOS"] == 3:
        e("s_waitcnt vmcnt(0)")
    if P["XPF"] and P["XPOS"] >= 2:
        e(xpf)
    e(f"v_lshrrev_b32 v{T+1}, 1, v0", f"v_lshlrev_b32 v{T+2}, 11, v{T+1}", f"s_lshl_b32 s{sNR}, s{sB}, 3")
    e(f"v_mul_u32_u24 v{RG0}, {CS}, v{T+1}", f"s_mov_b32 s{sROFF}, 0", f"s_mov_b32 s{sCNT}, {SPIN}", f"s_mov_b32 s{sT2}, 0xffc00000")
    e(f"s_mul_i32 s{sEM}, s3, {CAPW*32}", f"s_add_u32 s{sEM}, s{sEM}, {EAST}", f"s_movk_i32 s{sK4}, 4096")
    e(f"s_waitcnt vmcnt({P['PW']})", "s_barrier")
    ts.stamp("frag")
    PL = 206
    poll1 = f"buffer_load_dwordx2 {vr(PL,2)}, v{T+2}, {sr(sTAB)}, s{sNR} offen sc1"

    def tagcheck():
        e(f"v_xor_b32 v{T+3}, s{sTAG2}, v{PL}", f"v_xor_b32 v{T+4}, s{sTAG}, v{PL+1}", f"v_and_or_b32 v{T+3}, v{T+3}, s{sT2}, v{T+4}")
        e(f"v_cmpx_ne_u32 vcc, 0, v{T+3}")

    e(poll1)
    for t in range(4):
        e(f"ds_write_b128 v{T}, {vr(144+4*t,4)} offset:{WO + 1024*t}")
    e("s_waitcnt vmcnt(0)")
    tagcheck()
    e("s_cbranch_execnz L_poll")
    e.label("L_polled")
    e("s_mov_b64 exec, -1")
    ts.stamp("tab")
    G1, G2, SKR, RNK, CA = TP + 8, TP + 12, TP + 20, TP, TP + 4
    MU = P["MU"]
    sVm = [sV, sV + 2, sV + 4, sA2]

    m0st = [None]

    def bea1(i):
        if m0st[0] != i // 4 or i == 6:
            e(f"s_add_u32 m0, s{sEM}, {4096*(i//4)}")
        m0st[0] = i // 4
        vq.op("ea", f"buffer_load_dwordx4 v{G2+i}, {sr(sEA)}, {'0' if i < 4 else 's%d' % sK4} offen offset:{1024*(i%4)} {ldpol} lds")

    def bea(p):
        for i in range(6):
            if bstage[i] == p:
                bea1(i)

    def skld(i):
        e(f"v_mad_u32_u24 v{G1+i}, v{G1+i}, 12, v{cL12}")
        vq.op(f"sk{i}", f"buffer_load_dwordx3 {vr(SKR+4*i,3)}, v{G1+i}, {sr(sSK)}, 0 offen offset:{768*i} {ldpol}")

    cmps = [f"v_cmp_lt_i32 s[{SK+2*i}:{SK+2*i+1}], {2*i}, v{T+2}" for i in range(MU + 1)]
    e(f"v_bfe_u32 v{RLEN}, v{PL}, 11, 11", f"v_and_b32 v{RBASE}, v{RLEN}, v{cODD}", f"v_add_u32 v{T+2}, v{RLEN}, v{cODD}")
    fill = [f"v_and_b32 v{T+3}, 0x7ff, v{PL}"] + cmps + [f"v_add_u32 v{RG0}, v{RG0}, v{T+3}"]
    e(fill.pop(0))
    for mod in ("row_shr:1 row_mask:0xf", "row_shr:2 row_mask:0xf", "row_shr:4 row_mask:0xf", "row_shr:8 row_mask:0xf", "row_bcast:15 row_mask:0xa", "row_bcast:31 row_mask:0xc"):
        e(f"v_add_u32_dpp v{RBASE}, v{RBASE}, v{RBASE} {mod} bank_mask:0xf")
        e(*fill[:2]); fill = fill[2:]
    e(f"v_readlane_b32 s{sNW}, v{RBASE}, 63")
    e(f"v_mov_b32_dpp v{RBASE}, v{RBASE} quad_perm:[0,0,2,2] row_mask:0xf bank_mask:0xf")
    e(f"v_sub_u32 v{RG0}, v{RG0}, v{RBASE}")
    e(f"v_lshl_add_u32 v{T}, v{RBASE}, 2, v{cMAPW}")
    e(f"s_cmp_gt_u32 s{sNW}, {CAPW}", "s_cbranch_scc1 L_clip")
    e.label("L_mapw")
    for i in range(MU):
        e(f"s_mov_b64 exec, s[{SK+2*i}:{SK+2*i+1}]")
        e(f"ds_write_b32 v{T}, v{RG0} offset:{8*i}")
    e("s_mov_b64 exec, -1")
    e(f"s_cmp_lg_u64 s[{SK+2*MU}:{SK+2*MU+1}], 0", "s_cbranch_scc1 L_map2")
    for i in range(3):
        e(f"ds_read_b32 v{G1+i}, v{cMAP1} offset:{256*i}")
    for i in range(6):
        e(f"ds_read_b32 v{G2+i}, v{cMAP2} offset:{128*i}")
    e(f"s_cmp_gt_i32 s{sNW}, 192", "s_cbranch_scc1 L_r1")
    e.label("L_r1b")
    e("s_waitcnt lgkmcnt(6)")
    ts.stamp("map")
    for i in range(3):
        skld(i)
    e(f"v_mov_b32 v{T+3}, s{sNW}", "s_mov_b64 exec, 1", f"ds_max_i32 v{T+5}, v{T+3} offset:{TOT}", "s_mov_b64 exec, -1")
    e("s_waitcnt lgkmcnt(1)")
    for i in range(6):
        e(f"v_lshl_add_u32 v{G2+i}, v{G2+i}, 5, v{X16}")
    if P["SKBAR"]:
        e("s_barrier")
    ts.stamp("skiss")
    bea(0)
    assert 5 not in bstage
    e(f"s_min_i32 s{sT}, s{sNW}, {CAPW}")
    for i in range(4):
        e(f"v_cmp_gt_i32 s[{sVm[i]}:{sVm[i]+1}], s{sT}, v{LANE}", f"s_sub_i32 s{sT}, s{sT}, 64")
    e(f"s_mov_b32 s{sT2}, 0x1fff80", f"s_mul_i32 s{sOFF}, s3, 5")
    assert P["SKBAR"]
    for q in range(NK):
        e(f"ds_read_b128 {vr(WF[q],4)}, v{eWF} offset:{1024*q}")

    def count(i):
        key = SKR + 4 * i + 2
        e(f"v_lshrrev_b32 v{CA+i}, 21, v{key}", f"v_lshlrev_b32 v{CA+i}, 2, v{CA+i}")
        e(f"v_lshrrev_b32 v{T+3}, 26, v{key}", f"v_lshl_or_b32 v{T+3}, v{T+3}, 4, v{cDEG}")
        e(f"s_mov_b64 exec, s[{sVm[i]}:{sVm[i]+1}]")
        e(f"ds_add_rtn_u32 v{RNK+i}, v{CA+i}, v{ONE} offset:{CNT2}")
        e(f"ds_add_u32 v{T+3}, v{ONE} offset:{DEG}")
        e("s_mov_b64 exec, -1")

    def entry(i):
        key = SKR + 4 * i + 2
        if i == 3:
            e("s_mov_b32 exec_hi, 0")
        e(f"ds_write_b64 v{cSH}, {vr(SKR+4*i,2)} offset:{512*i}")
        if i == 3:
            e("s_mov_b32 exec_hi, -1")
        e(f"v_and_or_b32 v{key}, v{key}, s{sT2}, v{cR21}")
        if i:
            e(f"v_add_u32 v{key}, {64*i << 21}, v{key}")

    for i in range(3):
        vq.wait(f"sk{i}")
        if i == 0:
            ts.stamp("sk")
        count(i)
    e(f"s_cmp_gt_i32 s{sNW}, 192", "s_cbranch_scc1 L_r2")
    e.label("L_r2b")
    ts.stamp("atom")
    bea(1)
    for j in range(1, 5):
        e(f"s_add_u32 s{SK+j}, s{sOFF}, {j}")
    e("s_waitcnt lgkmcnt(0)", "s_barrier")
    ts.stamp("b1")
    CN, CAD = XR, XR + 8
    e(f"s_cmp_lg_u32 s{sROFF}, 0", "s_cbranch_scc1 L_rank2")
    e(f"ds_read_b128 {vr(CAD,4)}, v{X16} offset:{DEG}")
    for j in range(5):
        e(f"ds_read_b32 v{CN+j}, v{cROW} offset:{CNT2 + 128*j}")
    e(f"ds_read_b32 v{T+6}, v{T+5} offset:{TOT}")
    if P["ENP"] == 0:
        for i in range(3):
            entry(i)
    e(f"s_waitcnt lgkmcnt({9 if P['ENP'] == 0 else 6})")
    e(f"v_add_u32 v{T+1}, v{CAD}, v{CAD+1}", f"v_add3_u32 v{T+1}, v{T+1}, v{CAD+2}, v{CAD+3}")
    e(f"v_lshl_or_b32 v{T+1}, v{T+1}, 6, v{cTIE}")
    for j in range(5):
        e(f"v_readlane_b32 s{SK+j}, v{T+1}, s{SK+j if j else sOFF}")
    for j in range(5):
        e(f"v_cmp_lt_u32 s[{SK+6+2*j}:{SK+7+2*j}], s{SK+j}, v{T+1}")
    for j in range(5):
        e(f"s_bcnt1_i32_b64 s{SK+j}, s[{SK+6+2*j}:{SK+7+2*j}]")
    e(f"s_waitcnt lgkmcnt({3 if P['ENP'] == 0 else 0})")
    for j in range(5):
        e(f"v_readlane_b32 s{sASG[j]}, v{RT}, s{SK+j}")
    e(f"v_readfirstlane_b32 s{sN}, v{T+6}")
    e.label("L_ranked")
    e("s_mov_b32 exec_hi, 0")
    for j in range(5):
        e(f"v_and_or_b32 v{CAD+j}, s{sASG[j]}, v{c380}, v{cBIN}")
        e(f"ds_add_rtn_u32 v{CN+j}, v{CAD+j}, v{CN+j} offset:{WB}")
    for j in range(5):
        e(f"v_or_b32 v{CAD+j}, s{sASG[j]}, v{cBIN}")
    e(f"s_lshl_b32 s{sT}, s3, 3", f"s_add_u32 s{sOFF}, s{sT}, 7")
    for j in range(5):
        if j in (0, 2):
            e(f"s_waitcnt lgkmcnt({3 if j == 0 else 2})")
        e(f"v_lshl_or_b32 v{CN+j}, v{CN+j}, 16, v{CAD+j}")
        e(f"ds_write_b32 v{cROW}, v{CN+j} offset:{CNT2 + 128*j}")
    e("s_mov_b32 exec_hi, -1")
    ts.stamp("rank")
    bea(2)
    if P["ENP"] == 1:
        for i in range(3):
            entry(i)
    e(f"s_waitcnt lgkmcnt({3 if P['ENP'] == 1 else 0})", "s_barrier")
    ts.stamp("b2")
    e(f"ds_read_b128 {vr(CN,4)}, v{X16} offset:{WB}")
    for i in range(3):
        e(f"ds_read_b32 v{CA+i}, v{CA+i} offset:{CNT2}")
    bea(6)
    e("s_waitcnt lgkmcnt(3)")
    e(f"v_add_u32 v{T+1}, v{CN}, v{CN+1}", f"v_add3_u32 v{T+1}, v{T+1}, v{CN+2}, v{CN+3}", f"v_mov_b32 v{T+2}, v{T+1}")
    e("s_waitcnt lgkmcnt(0)")

    def place(i):
        key = SKR + 4 * i + 2
        return [f"v_bfe_u32 v{T+7}, v{CA+i}, 12, 3", f"v_or_b32 v{key}, v{T+7}, v{key}", f"v_and_b32 v{G1+i}, 0x3ff, v{CA+i}",
                f"v_lshrrev_b32 v{CA+i}, 16, v{CA+i}", f"v_add_u32 v{CA+i}, v{CA+i}, v{RNK+i}"]

    fill = place(0) + place(1) + place(2)
    e(fill.pop(0))
    for mod in ("row_shr:1 row_mask:0xf", "row_shr:2 row_mask:0xf", "row_shr:4 row_mask:0xf", "row_shr:8 row_mask:0xf", "row_bcast:15 row_mask:0xa", "row_bcast:31 row_mask:0xc"):
        e(f"v_add_u32_dpp v{T+2}, v{T+2}, v{T+2} {mod} bank_mask:0xf")
        e(*fill[:2]); fill = fill[2:]
    e(f"v_sub_u32 v{T+1}, v{T+2}, v{T+1}")
    e(f"v_lshl_add_u32 v{CAD}, v{T+1}, 2, v{cLST}")
    for k in range(3):
        e(f"v_lshl_add_u32 v{CAD+1+k}, v{CN+k}, 2, v{CAD+k}")
    e(f"ds_write_b128 v{X16}, {vr(CAD,4)} offset:{START}")
    for i in range(3):
        e(f"ds_read_b32 v{G1+i}, v{G1+i} offset:{START}")
    e(*fill)
    e(f"v_readlane_b32 s{sNV}, v{T+2}, s{sOFF}", f"v_readlane_b32 s{sCNT}, v{T+1}, s{sT}", f"v_readlane_b32 s{sBASE}, v{CAD}, s{sT}")
    e(f"v_mov_b32 v{T+6}, {(0x3fff << 7) | 5}")
    e(f"s_sub_u32 s{sNV}, s{sNV}, s{sCNT}", f"s_lshl2_add_u32 s{sT2}, s{sNV}, s{sBASE}", f"v_add_u32 v{T+1}, s{sT2}, v{LAC}")
    e(f"ds_write_b32 v{T+1}, v{T+6}")
    assert D == 6
    sP0 = sT
    e(f"s_add_u32 s{sCNT}, s{sNV}, 15", f"s_lshr_b32 s{sCNT}, s{sCNT}, 4", f"s_sub_u32 s{sP0}, 0, s{sNV}", f"s_and_b32 s{sP0}, s{sP0}, 14",
      f"s_sub_u32 s{sCNT}, s{sCNT}, 1", f"s_cmp_gt_i32 s{sCNT}, 0", f"s_cselect_b32 s{sP0}, s{sP0}, 0", f"s_lshl_b32 s{sOFF}, s{sP0}, 2",
      f"s_sub_u32 s{sBASE}, s{sBASE}, s{sOFF}")

    def scatter(i):
        e(f"s_mov_b64 exec, s[{sVm[i]}:{sVm[i]+1}]")
        e(f"ds_write_b32 v{CA+i}, v{SKR+4*i+2}")

    e("s_waitcnt lgkmcnt(1)")
    for i in range(3):
        e(f"v_lshl_add_u32 v{CA+i}, v{CA+i}, 2, v{G1+i}")
    for i in range(3):
        scatter(i)
    e("s_mov_b64 exec, -1")
    e(f"s_cmp_gt_i32 s{sNW}, 192", "s_cbranch_scc1 L_r3")
    e.label("L_r3b")
    bea(3)
    ts.stamp("list")
    e(f"v_add_u32 v{LA}, s{sBASE}, v{LAC}", f"v_add_u32 v{LB}, s{sBASE}, v{LBC}",
      f"s_and_b32 s{sOFF}, s{sOFF}, 32", f"v_add_u32 v{T+4}, s{sOFF}, v{LA}", f"s_and_b32 s{SK+8}, s{sP0}, 6")
    e(f"s_mov_b32 s{sT2}, 0x00fffc38", f"s_mov_b32 s{sNR}, 0xffffff00", f"s_mov_b32 s{sBASE}, {SHST}")
    if P["PRIO"] == 1:
        e("s_cmp_lt_u32 s3, 4", "s_cbranch_scc1 L_np", "s_setprio 1")
        e.label("L_np")
    e("s_waitcnt lgkmcnt(0)", "s_barrier")
    ts.stamp("b4")
    e(f"ds_read_b32 v{K}, v{T+4}", f"ds_read_b32 v{ENT+2}, v{LB}", f"ds_read_b32 v{KN}, v{LA} offset:{4*D}", f"ds_read_b32 v{NOD}, v{cNOD} offset:{CNT2}")
    e(f"s_cmp_eq_u32 s{sNV}, 0", "s_cbranch_scc1 L_empty")

    def agaddr():
        e(f"v_lshlrev_b32 v{T+4}, 2, v{LANE}", f"s_lshl_b32 s{sOFF}, s3, 7")
        e(f"v_and_b32 v{NOD}, 0x7380, v{NOD}", f"v_xor_b32 v{NOD}, s{sOFF}, v{NOD}")
        e(f"v_alignbit_b32 v{NOD}, v{NOD}, v{NOD}, 12")
        m = [f"s[{q}:{q+1}]" for q in sVm] + ["vcc"]
        for j in range(5):
            e(f"v_cmp_eq_u32 {m[j]}, {j}, v{NOD}")
        for j in range(5):
            e(f"s_ff1_i32_b64 s{sNODE+j}, {m[j]}", f"s_mul_i32 s{sNODE+j}, s{sNODE+j}, 1152", f"v_add_u32 v{eAG[j]}, s{sNODE+j}, v{T+4}")

    AL = P["ALIGN"]

    def al():
        if AL:
            e(".p2align 3")

    def ea_reads():
        e(f"v_lshrrev_b32 v{T}, 21, v{ENT+2}", f"v_lshl_add_u32 v{T+3}, v{T}, 3, s{sBASE}", f"v_lshl_add_u32 v{T}, v{T}, 5, v{EAC}")
        e(f"ds_read_b64 {vr(ENT,2)}, v{T+3}")
        e(f"ds_read_b128 {vr(EA0,4)}, v{T}")

    def wfr(*qs):
        for q in qs:
            e(f"ds_read_b128 {vr(WF[q],4)}, v{eWF} offset:{1024*q}")

    def zq(q):
        e(f"ds_read_b128 {vr(RW+4*q,4)}, v{ZAD}", f"ds_read_b128 {vr(RW+16+4*q,4)}, v{ZAD}")

    def pq(j):
        p = PQ + 2 * (j % 2)
        if P["PQP"]:
            pr = [f"v_perm_b32 v{p}, v{T+1}, v{T+1}, v{(MP, 254)[j%2]}", f"v_perm_b32 v{p+1}, v{T+1}, v{T+1}, v{(MQ, 255)[j%2]}"]
            return pr if j % 2 else [f"v_cvt_pk_bf16_f32 v{T+1}, v{AGN+j}, v{AGN+j+1}"] + pr
        return [f"v_cvt_pk_bf16_f32 v{T+1+j%2}, v{AGN+j}, v{AGN+j}", f"v_and_b32 v{p}, v{MP}, v{T+1+j%2}", f"v_and_b32 v{p+1}, v{MQ}, v{T+1+j%2}"]

    def head(kind):
        e(f"s_waitcnt lgkmcnt({0 if kind == 'first' else 2})"); al()
        for q in range(4):
            e(f"v_mfma_f32_4x4x4_16b_bf16 {vr(AGN+4*q,4)}, {vr(ENT,2)}, {vr(CGF,2)}, 0 cbsz:4 abid:{2*q}")
        e(f"v_lshlrev_b32 v{K}, 3, v{KN}", f"v_and_b32 v{K}, s{sT2}, v{K}")
        rd = []
        if kind != "last":
            e(f"v_add_u32 v{LA}, 64, v{LA}", f"v_add_u32 v{LB}, 64, v{LB}")
            rd = [f"ds_read_b32 v{KN}, v{LA} offset:{4*D}", f"ds_read_b32 v{ENT+2}, v{LB}"]
        if kind != "first":
            e("s_waitcnt lgkmcnt(0)"); al()
        groups = [rd + (pq(0) if kind != "first" else []), []]
        for h in range(2):
            e(f"v_smfmac_f32_32x32x32_bf16 {vr(RW+16*h,16)}, {vr(EA0,4)}, {vr(WRF+8*h,8)}, v{SIX}")
            e(*groups[h])

    def pks(j):
        t = TP + 8 * (j % 2)
        for h in range(2):
            r = RW + 16 * h + j
            rp = r & ~1
            sel = "op_sel:[0,1,0] op_sel_hi:[1,1,1]" if r & 1 else "op_sel_hi:[1,0,1]"
            for q in range(2):
                a = ACC + 4 * h + 2 * q
                e(f"v_pk_fma_f32 {vr(a,2)}, {vr(t+4*h+2*q,2)}, {vr(rp,2)}, {vr(a,2)} {sel}")

    def mf(j, h):
        t, p, s = TP + 8 * (j % 2), PQ + 2 * (j % 2), XR + 4 * (j % R)
        e(f"v_mfma_f32_16x16x16_bf16 {vr(t+4*h,4)}, {vr(p,2)}, {vr(s+2*h,2)}, 0")

    def rl(q, lane):
        e(f"v_readlane_b32 s{SK + q % 8}, v{K}, {lane}")

    def sand(q):
        e(f"s_and_b32 s{sOFF}, s{SK + q % 8}, s{sNR}")

    def xl(q):
        e(f"buffer_load_dwordx4 {vr(XR + 4 * (q % R),4)}, v{X16}, {sr(sX)}, s{sOFF} offen")

    def body(last):
        for j in range(0, 16, 2):
            ld = not last or j + D < 16
            if not last or j == 0:
                e.label(f"L_{'f' if last else 'j'}{j}")
            nx = pq(j + 1)
            e(f"s_waitcnt vmcnt({D-1 if ld else 15-j})"); al()
            mf(j, 0)
            if ld:
                rl(j + D, j)
            e(*nx[:1]); mf(j, 1); e(*nx[1:])
            if ld and P["SCH"] == 2:
                sand(j + D); e(f"s_waitcnt vmcnt({D-2})"); xl(j + D)
            elif ld:
                sand(j + D); xl(j + D); e(f"s_waitcnt vmcnt({D-1})")
            else:
                e(f"s_waitcnt vmcnt({14-j})"); al()
            nx = pq(j + 2) if j < 14 else []
            mf(j + 1, 0)
            if ld:
                rl(j + 1 + D, j + 1)
            e(*nx[:1]); mf(j + 1, 1); e(*nx[1:])
            if last and j == 2 and P["AGP"] == 2:
                agaddr(); al()
            if j == 2 and not last:
                e("s_waitcnt lgkmcnt(0)")
                ea_reads(); al()
            if ld:
                sand(j + 1 + D)
            e(f"s_set_gpr_idx_on s{SK + j % 8}, gpr_idx(SRC2,DST)")
            xl(j + 1 + D) if ld else al()
            pks(j)
            e(f"s_set_gpr_idx_idx s{SK + (j + 1) % 8}")
            if j == 14 and not last:
                e(f"s_sub_u32 s{sCNT}, s{sCNT}, 1")
            al()
            pks(j + 1)
            if j % 4 == 2 and not last:
                zq(j // 4)
            if last and j >= 6 and P["WFT"]:
                wfr(*((14, 15) if j == 6 else (j - 2, j - 1)))
            e("s_set_gpr_idx_off")

    e("s_waitcnt lgkmcnt(3)")
    e(f"v_lshlrev_b32 v{K}, 3, v{K}", f"v_and_b32 v{K}, s{sT2}, v{K}")
    NB5 = P["NB5"]

    def pair(q):
        rl(q, q); rl(q + 1, q + 1)
        sand(q); xl(q); sand(q + 1); xl(q + 1)

    for q in (2, 4, 6):
        e(f"s_cmp_eq_u32 s{SK+8}, {q}", f"s_cbranch_scc1 L_p{q}")
    for q0 in (0, 2, 4, 6):
        e.label(f"L_p{q0}")
        for i in range(NB5):
            pair(q0 + 2 * i)
        if P["AGP"] == 0:
            e("s_waitcnt lgkmcnt(0)")
            agaddr()
        e(f"s_waitcnt vmcnt({2*NB5}) lgkmcnt(0)", "s_barrier")
        ea_reads()
        for i in range(NB5, 3):
            pair(q0 + 2 * i)
        if q0 < 6:
            e("s_branch L_pd")
    e.label("L_pd")
    if P["AGP"] == 1:
        agaddr()
    ts.stamp("b5")
    head("first")
    e(f"s_set_gpr_idx_on s{sP0}, gpr_idx(SRC0,SRC1)")
    e.idx_range, keep = {("v", i) for i in range(AGN, AGN + 16)}, e.idx_range
    e(pq(0)[0])
    e.idx_range = keep
    e("s_set_gpr_idx_off")
    e(*pq(0)[1:])
    e("s_waitcnt lgkmcnt(0)")
    ea_reads()
    e(f"s_cmp_eq_u32 s{sCNT}, 0", "s_cbranch_scc1 L_f0")
    for j in range(0, 14, 2):
        e(f"s_cmp_eq_u32 s{sP0}, {j}", f"s_cbranch_scc1 L_j{j}")
        if j % 4 == 2:
            zq(j // 4)
    e("s_branch L_j14")
    e(".p2align 3")
    e.label("L_loop")
    head("mid")
    body(False)
    e(f"s_cmp_lg_u32 s{sCNT}, 0", "s_cbranch_scc1 L_loop")
    head("last")
    body(True)
    e.label("L_swept")
    ts.stamp("swept")
    e(f"s_add_u32 s{sROFF}, s{sROFF}, {CAPW}", f"s_cmp_lt_u32 s{sROFF}, s{sN}", "s_cbranch_scc1 L_again")
    AF, DD, OB, OT = ACC, 160, 64, 80
    if P["EPRIO"] >= 0:
        e(f"s_setprio {P['EPRIO']}")
    for s in range(5):
        for w in range(4):
            e(f"v_cvt_pk_bf16_f32 v{RW+4*s+w}, v{ACC+8*s+w}, v{ACC+8*s+4+w}")
        for w in (0, 2):
            e(f"ds_write2_b32 v{eAG[s]}, v{RW+4*s+w}, v{RW+4*s+w+1} offset0:{72*w} offset1:{72*w+72}")
    NPRE = 16
    if not P["WFT"]:
        wfr(*range(NK, 16))
    e(f"s_waitcnt lgkmcnt({0 if P['WFT'] else NPRE - NK})", "s_barrier")
    ts.stamp("agb")
    lq = [f"w{q}" for q in range(NPRE)]

    def lop(tag, text):
        e(text); lq.append(tag)

    def lwait(*tags):
        n = len(lq) - 1 - max(lq.index(t) for t in tags)
        e(f"s_waitcnt lgkmcnt({min(n, 15)})")

    def afrag(k, ss=range(4)):
        for s in ss:
            lop(f"a{k}{s}", f"ds_read_b128 {vr(AF+16*k+4*s,4)}, v{eFR} offset:{AGL + 4608*k + 64*s}")

    def post(k, pol=P['OUTPOL']):
        d, o = DD + 16 * (k % 2), OB + 8 * (k % 2)
        x = []
        for r in range(2):
            for c in range(2):
                x.append(f"v_cvt_pk_bf16_f32 v{o+4*r+c}, v{d+8*c+r}, v{d+8*c+4+r}")
                x.append(f"v_cvt_pk_bf16_f32 v{OT+2*r+c}, v{d+8*c+r}, v{d+8*c+4+r}")
                x.append(f"v_cvt_pk_bf16_f32 v{o+4*r+2+c}, v{d+8*c+r+2}, v{d+8*c+4+r+2}")
            for c in range(2):
                x.append(f"v_mov_b32_dpp v{o+4*r+c}, v{o+4*r+2+c} row_ror:8 row_mask:0xf bank_mask:0xc")
            for c in range(2):
                x.append(f"v_mov_b32_dpp v{o+4*r+2+c}, v{OT+2*r+c} row_ror:8 row_mask:0xf bank_mask:0x3")
            x.append(f"buffer_store_dwordx4 {vr(o+4*r,4)}, v{eST}, {sr(sOUT)}, s{sEO} offen offset:{256*r} {pol}")
        x.append(f"s_add_u32 s{sEO}, s{sEO}, 4096")
        return x

    def tile(k, pend):
        d = DD + 16 * (k % 2)
        for s in range(4):
            if k == 0:
                lwait(f"a0{s}", f"w{4*s+3}")
            elif s == 0:
                lwait(f"a{k}3")
            for t in range(4):
                c = "0" if s == 0 else vr(d + 4 * t, 4)
                e(f"v_mfma_f32_16x16x32_bf16 {vr(d+4*t,4)}, {vr(AF+16*k+4*s,4)}, {vr(WF[4*s+t],4)}, {c}")
                if 4 * s + t >= 4:
                    e(*pend[:2]); pend = pend[2:]
            if k == 0 and s == 0:
                afrag(1)
            if k == 0 and s == 1:
                afrag(2)
        e(*pend)

    for s in range(4):
        afrag(0, [s])
        for q in range(max(NPRE, 4 * s), 4 * s + 4):
            lop(f"w{q}", f"ds_read_b128 {vr(WF[q],4)}, v{eWF} offset:{1024*q}")
    tile(0, [])
    tile(1, post(0))
    e("s_cmp_ge_u32 s3, 4", "s_cbranch_scc1 L_two")
    tile(2, post(1))
    e(*post(2, P['LASTPOL']))
    e.label("L_stored")
    ts.stamp("stored")
    e("s_or_b32 s4, s2, s3", "s_cbranch_scc1 L_notag")
    e(f"v_mov_b32 v{T}, s{sTAG}", f"v_lshlrev_b32 v{T+2}, 2, v{LANE}", f"s_mov_b32 s{sT}, {WS_W}")
    e(f"buffer_store_dword v{T}, v{T+2}, {sr(sTAB)}, s{sT} offen sc1")
    e.label("L_notag")
    if P["DIAGW"] and P["DIAGAT"] == "fin":
        e("s_waitcnt vmcnt(0)")
        ts.stamp("fin")
    if P["DIAGW"]:
        e(f"s_add_u32 s6, s{sTSP+1}, {P['DIAGW']}", "s_min_u32 s6, s6, 30000")
        e.label("L_diag")
        e("s_memrealtime s[4:5]", "s_waitcnt lgkmcnt(0)", f"s_sub_u32 s4, s4, s{sTSP}", "s_cmp_lt_u32 s4, s6", "s_cbranch_scc1 L_diag")
    if P["TS"]:
        e("s_waitcnt vmcnt(0)")
        ts.stamp("end")
        e(f"s_lshl_b32 s{sT}, s2, 3", f"s_add_u32 s{sT}, s{sT}, s3", f"s_lshl_b32 s{sT}, s{sT}, 8", f"s_add_u32 s{sT}, s{sT}, {WS_TS}")
        e(f"v_lshl_add_u32 v{T}, v{LANE}, 2, s{sT}", f"global_store_dword v{T}, v{TSV}, s[14:15]")
        if P["DBG"]:
            e(f"s_cmp_lg_u32 s2, {P['DBG']}", "s_cbranch_scc1 L_done", "s_cmp_lg_u32 s3, 0", "s_cbranch_scc1 L_done")
            e("s_load_dwordx2 s[4:5], s[0:1], 72", f"v_readlane_b32 s{sT}, v{TSV}, 0", f"v_lshlrev_b32 v{T}, 2, v{LANE}")
            e(f"v_subrev_u32 v{TSV}, s{sT}, v{TSV}", "s_waitcnt lgkmcnt(0)", f"global_store_dword v{T}, v{TSV}, s[4:5]")
    e.label("L_done")
    e("s_endpgm")
    e.label("L_again")
    e("s_waitcnt vmcnt(0) lgkmcnt(0)", "s_barrier")
    init_round(False)
    for i in range(32):
        e(f"v_mov_b32 v{RW+i}, 0")
    e(f"v_add_u32 v{RLEN}, v{RLEN}, v{RBASE}", f"v_subrev_u32 v{RLEN}, {CAPW}, v{RLEN}", f"v_max_i32 v{RLEN}, 0, v{RLEN}")
    e(f"v_subrev_u32 v{RBASE}, {CAPW}, v{RBASE}", f"v_max_i32 v{RBASE}, 0, v{RBASE}", f"v_sub_u32 v{RLEN}, v{RLEN}, v{RBASE}")
    e(f"v_add_u32 v{RG0}, {CAPW}, v{RG0}", f"s_sub_i32 s{sNW}, s{sNW}, {CAPW}", f"v_lshl_add_u32 v{T}, v{RBASE}, 2, v{cMAPW}")
    e("s_waitcnt lgkmcnt(0)", "s_barrier")
    e.label("L_clip")
    e(f"v_add_u32 v{T+2}, v{RBASE}, v{RLEN}", f"v_min_i32 v{T+2}, {CAPW}, v{T+2}", f"v_sub_u32 v{T+2}, v{T+2}, v{RBASE}", f"v_add_u32 v{T+2}, v{T+2}, v{cODD}")
    e.label("L_masks")
    e(*cmps)
    e("s_nop 0", "s_branch L_mapw")
    e.label("L_map2")
    e(f"v_add_u32 v{T}, {8*MU}, v{T}", f"v_subrev_u32 v{T+2}, {2*MU}, v{T+2}")
    e("s_branch L_masks")
    e.label("L_r1")
    e(f"ds_read_b32 v{G1+3}, v{cMAP1} offset:768", f"ds_read_b32 v{G2+6}, v{cMAP2} offset:768")
    e("s_waitcnt lgkmcnt(0)")
    skld(3)
    for i in (6,):
        e(f"v_lshl_add_u32 v{G2+i}, v{G2+i}, 5, v{X16}")
        bea1(i)
    e("s_branch L_r1b")
    e.label("L_r2")
    count(3)
    entry(3)
    e("s_branch L_r2b")
    e.label("L_r3")
    e(f"ds_read_b32 v{CA+3}, v{CA+3} offset:{CNT2}", "s_waitcnt lgkmcnt(0)")
    e(*place(3))
    e(f"ds_read_b32 v{G1+3}, v{G1+3} offset:{START}", "s_waitcnt lgkmcnt(0)")
    e(f"v_lshl_add_u32 v{CA+3}, v{CA+3}, 2, v{G1+3}")
    scatter(3)
    e("s_mov_b64 exec, -1", "s_branch L_r3b")
    e.label("L_empty")
    e("s_waitcnt vmcnt(0) lgkmcnt(0)", "s_barrier")
    agaddr()
    if P["WFT"]:
        wfr(*range(NK, 16))
    e("s_branch L_swept")
    e.label("L_two", pad=8)
    e(*post(1, P['LASTPOL']))
    e("s_branch L_stored")
    e.label("L_poll")
    e(poll1, f"s_sub_u32 s{sCNT}, s{sCNT}, 1", "s_cbranch_scc1 L_done", "s_waitcnt vmcnt(0)")
    tagcheck()
    e("s_cbranch_execnz L_poll", "s_branch L_polled")
    e.label("L_rank2")
    for j in range(5):
        e(f"ds_read_b32 v{CN+j}, v{cROW} offset:{CNT2 + 128*j}")
    if P["ENP"] == 0:
        for i in range(3):
            entry(i)
    e("s_waitcnt lgkmcnt(0)")
    e.label("L_end")
    e("s_branch L_ranked")
    return e.text(), LDS, 256, 102


HEADER = """; Kernarg layout for this problem (88 bytes, ptrs only, base s[0:1]):
"""


def generate(**kw):
    P = dict(DEF)
    P.update(kw)
    k, lds, v, s = gen(P)
    n = NAME + "_kernel"
    out = HEADER
    out += f"; @launch grid=(256,1,1) block=(512,1,1) lds={lds}\n"
    out += '.amdgcn_target "amdgcn-amd-amdhsa--gfx950"\n.text\n'
    out += f".globl {n}\n.p2align 8\n.type {n},@function\n{n}:\n{k}"
    out += '.section .rodata,"a"\n'
    out += (f".p2align 6\n.amdhsa_kernel {n}\n  .amdhsa_next_free_vgpr {v}\n  .amdhsa_next_free_sgpr {s}\n"
            f"  .amdhsa_accum_offset {(v+3)//4*4}\n  .amdhsa_group_segment_fixed_size 0\n  .amdhsa_kernarg_size 88\n"
            f"  .amdhsa_user_sgpr_count 2\n  .amdhsa_user_sgpr_kernarg_segment_ptr 1\n  .amdhsa_system_sgpr_workgroup_id_x 1\n"
            f"  .amdhsa_float_denorm_mode_32 3\n.end_amdhsa_kernel\n")
    return out


if __name__ == "__main__":
    kw = {}
    for a in sys.argv[1:]:
        k, v = a.split("=", 1)
        kw[k] = int(v) if v.lstrip("-").isdigit() else v
    sys.stdout.write(generate(**kw))
```

```python
import sys, os
sys.path.insert(0, os.path.dirname(os.path.abspath(__file__)))
from emit import Emitter

NAME = "gather_scatter__tensor_product_equiv_mace__graph"
N, E = 10000, 320000
CH, NCH, CS = 1250, 256, 1280
WS_TAB, WS_W, WS_SK, WS_EA, WS_TS = 0, 0x80000, 0x100000, 0x500000, 0x2000000
CAPW, GAP = 224, 16
CAP = 8 * CAPW
SPIN = 200000

DEF = dict(XPOS=0, PQP=1, NB5=1, AGP=2, ENP=0, PW=0, WFT=1, WFK=6, LASTPOL='sc1', EPRIO=0, BIAS=30, SCH=2, ALIGN=0, PRIO=1, DIAGW=0, DIAGK=0, DIAGAT='tab', D=6, TS=0, DBG=0, APOL="nt", AEA="00011", BEA="001223", SKBAR=1, ABAR=2, XPF=18, CPF=2, MU=7, OUTPOL="sc1", LDPOL="sc1", WST=3, WOST=3, ACCZ=2, CPOS=2, WGN=0)

PART39 = [[3, 11, 21, 31, 36], [5, 8, 20, 27, 38], [0, 6, 7, 13, 39], [9, 14, 18, 25, 34], [10, 16, 19, 24, 32], [4, 12, 26, 29, 33], [1, 17, 23, 28, 37], [2, 15, 22, 30, 35]]
PART40 = [[1, 10, 15, 30, 39], [2, 9, 21, 28, 37], [4, 14, 22, 27, 31], [6, 12, 18, 24, 35], [3, 8, 16, 29, 38], [5, 13, 17, 26, 34], [0, 20, 23, 32, 36], [7, 11, 19, 25, 33]]
PARTS = {0: (PART39, PART40)}
PARTS[12] = ([[12, 16, 24, 26, 30], [8, 14, 15, 31, 36], [2, 10, 23, 34, 37], [5, 17, 18, 22, 38], [0, 1, 7, 19, 39], [3, 11, 20, 29, 35], [6, 9, 25, 27, 32], [4, 13, 21, 28, 33]],
    [[9, 12, 19, 28, 32], [3, 10, 22, 29, 37], [7, 8, 23, 26, 36], [0, 18, 20, 34, 38], [5, 6, 14, 21, 39], [4, 11, 16, 24, 35], [1, 15, 25, 27, 31], [2, 13, 17, 30, 33]])
PARTS[20] = ([[13, 17, 24, 26, 31], [4, 16, 25, 29, 36], [5, 19, 23, 28, 35], [1, 6, 8, 10, 39], [7, 9, 20, 27, 32], [3, 12, 14, 33, 34], [2, 15, 18, 22, 37], [0, 11, 21, 30, 38]],
    [[11, 12, 17, 20, 38], [3, 16, 26, 28, 34], [8, 10, 19, 29, 36], [7, 14, 25, 27, 31], [6, 13, 15, 24, 30], [0, 9, 22, 23, 39], [2, 4, 21, 32, 35], [1, 5, 18, 33, 37]])
PARTS[30] = ([[12, 16, 25, 29, 32], [0, 5, 9, 20, 39], [1, 18, 27, 34, 37], [7, 19, 22, 30, 35], [2, 6, 24, 26, 36], [4, 11, 13, 31, 33], [10, 15, 17, 21, 28], [3, 8, 14, 23, 38]],
    [[6, 9, 26, 28, 37], [1, 11, 24, 35, 38], [5, 17, 23, 31, 33], [8, 12, 21, 29, 36], [2, 4, 15, 22, 39], [7, 10, 14, 18, 34], [0, 16, 20, 30, 32], [3, 13, 19, 25, 27]])
PARTS[40] = ([[7, 13, 28, 29, 37], [10, 17, 22, 30, 36], [1, 4, 6, 23, 39], [9, 19, 26, 31, 33], [5, 12, 15, 18, 35], [2, 11, 16, 27, 34], [0, 8, 24, 25, 38], [3, 14, 20, 21, 32]],
    [[8, 17, 25, 31, 32], [3, 19, 22, 28, 38], [6, 15, 18, 33, 37], [2, 14, 24, 29, 39], [0, 12, 21, 27, 34], [1, 9, 13, 26, 36], [5, 7, 10, 23, 35], [4, 11, 16, 20, 30]])
PARTS[50] = ([[2, 19, 28, 35, 37], [0, 6, 11, 24, 39], [15, 17, 27, 29, 34], [1, 20, 30, 32, 38], [4, 7, 18, 23, 33], [9, 10, 12, 21, 31], [5, 13, 16, 25, 26], [3, 8, 14, 22, 36]],
    [[7, 15, 27, 30, 36], [8, 18, 19, 28, 38], [4, 14, 31, 33, 35], [6, 13, 20, 29, 39], [2, 3, 22, 23, 34], [0, 11, 12, 26, 37], [1, 9, 17, 24, 32], [5, 10, 16, 21, 25]])


def vr(a, n):
    return f"v[{a}:{a+n-1}]" if n > 1 else f"v{a}"


def sr(a, n=4):
    return f"s[{a}:{a+n-1}]"


def scan_dpp(e, v, full):
    for k in (1, 2, 4, 8):
        e(f"v_add_u32_dpp v{v}, v{v}, v{v} row_shr:{k} row_mask:0xf bank_mask:0xf")
    e(f"v_add_u32_dpp v{v}, v{v}, v{v} row_bcast:15 row_mask:0xa bank_mask:0xf")
    if full:
        e(f"v_add_u32_dpp v{v}, v{v}, v{v} row_bcast:31 row_mask:0xc bank_mask:0xf")


class TS:
    last = None

    def __init__(self, e, on, pair, vreg):
        self.e, self.on, self.pair, self.v, self.names = e, on, pair, vreg, []
        TS.last = self

    diag = None

    def stamp(self, name):
        if self.diag and self.diag[0] == name:
            self.e("s_memrealtime s[4:5]", "s_waitcnt lgkmcnt(0)", f"s_sub_u32 s4, s4, s{self.pair}", f"s_mul_i32 s{self.pair+1}, s4, {self.diag[1]}")
        if self.on and (self.on == 1 or name in str(self.on).split(",") or name in ("start", "end")):
            e, p = self.e, self.pair
            e(f"s_memrealtime s[{p}:{p+1}]", "s_waitcnt lgkmcnt(0)", f"v_writelane_b32 v{self.v}, s{p}, {len(self.names)}")
            self.names.append(name)


class VQ:
    def __init__(self, e):
        self.e, self.q = e, []

    def op(self, tag, text):
        self.e(text)
        self.q.append(tag)

    def n(self, tag):
        idx = max(i for i, t in enumerate(self.q) if t == tag)
        return len(self.q) - 1 - idx

    def wait(self, tag, extra=""):
        self.e(f"s_waitcnt vmcnt({self.n(tag)}) {extra}".strip())


def gen(P):
    e = Emitter()
    vq = VQ(e)
    D = P["D"]
    R = 8
    MAP, CNT2, WB, DEG, TOT, NODEOF, START, WR, WO = 0, 8192, 13312, 14336, 15360, 15616, 16384, 17408, 46080
    LIST = WO + 32768
    SHST = LIST + (CAP + 8 * GAP + 128) * 4
    EAST = SHST + CAP * 8
    assert SHST + CAP * 8 <= EAST
    ZERO = EAST + CAP * 32
    LDS = ZERO + 64
    AGL = 0
    ACNT, ASTART, AINV, ASKS = 23552, 24576, 25600, 30720
    assert ASKS + CS * 12 <= WO and LDS <= 163840
    LANE, X16, RLEN, RBASE, RG0, ONE, PFV = 1, 2, 3, 4, 5, 6, 7
    T = 8
    ACC, RW, XR, TP, AGN, PQ, EA0, EA1, WRF, CGF, ENT = 16, 64, 96, 128, 144, 160, 164, 168, 172, 188, 192
    MP, MQ = CGF + 2, CGF + 3
    SIX, ZAD = EA1, EA1 + 1
    eAG, eFR, eST, eWF, NOD = [208, 209, 210, 211, 212], 213, 214, 215, 205
    NK = P["WFK"]
    assert NK == 6
    WF = [216 + 4 * q for q in range(NK)] + [XR + 4 * q for q in range(8)] + [AGN, AGN + 4]
    K, KN, LA, LB, EAC, LAC, LBC, RT, TSV = 196, 197, 198, 199, 200, 201, 202, 203, 204
    cODD, cMAPW, cMAP1, cMAP2, cL12, cDEG, cSH, cR21, cROW, cTIE, cBIN, cNOD, cLST, c380 = range(240, 254)
    e.idx_range = {("v", i) for i in range(ACC, ACC + 48)}
    sX, sTAB, sSK, sEA, sA0, sA1, sOUT = 16, 20, 24, 28, 32, 36, 40
    sB, sNB, sNCNT, sN, sROFF, sNR, sNV, sBASE, sEM, sCNT, sT, sT2 = 44, 45, 46, 47, 48, 49, 50, 51, 52, 53, 54, 55
    sNODE = 56
    sOFF = 61
    sTAG, sTAG2 = 62, 63
    SK = 64
    sV = 80
    sM0, sEO = 86, 87
    sASG = [90, 91, 92, 93, 94]
    sNW, sK4 = 95, 98
    sA2, sTSP = 96, 100
    ts = TS(e, P["TS"], sTSP, TSV)
    if P["DIAGW"]:
        ts.diag = (P["DIAGAT"], P["DIAGK"])
    apol, ldpol = P["APOL"], P["LDPOL"]
    astage = [int(c) for c in str(P["AEA"]).zfill(5)]
    bstage = [int(c) for c in str(P["BEA"]).zfill(6)]

    def srd(s, lo, hi, off, size):
        if off is None:
            e(f"s_mov_b32 s{s}, s{lo}", f"s_mov_b32 s{s+1}, s{hi}")
        else:
            e(f"s_add_u32 s{s}, s{lo}, {off}", f"s_addc_u32 s{s+1}, s{hi}, 0")
        e(f"s_mov_b32 s{s+2}, {size}", f"s_mov_b32 s{s+3}, 0x20000")

    def init_round(first):
        e(f"v_lshlrev_b32 v{T+3}, 2, v0", f"v_mov_b32 v{T+4}, 0x00700000", f"v_mov_b32 v{T+5}, 0")
        for i in range(4):
            e(f"ds_write_b32 v{T+3}, v{T+4} offset:{MAP + i*2048}")
        for i in range(4 if first else 3):
            e(f"ds_write_b32 v{T+3}, v{T+5} offset:{CNT2 + i*2048}")

    DSTV, SRCV, SHV, BK, BA, RK, NL, KEY, CT, ST, PS = 64, 68, 72, 80, 84, 88, 92, 96, 100, 104, 108
    TABV = 112
    OUTV = 128
    IV = 156
    CGR = 120
    if P["TS"]:
        e("s_memrealtime s[92:93]")
    e("s_cmp_ge_u32 s2, 256", "s_cbranch_scc1 L_done")
    e("s_load_dwordx4 s[4:7], s[0:1], 8")
    e("s_load_dwordx4 s[8:11], s[0:1], 24")
    e("s_load_dwordx2 s[14:15], s[0:1], 80")
    e(f"s_load_dwordx2 s[{SK}:{SK+1}], s[0:1], 0")
    e(f"s_load_dwordx2 s[{SK+2}:{SK+3}], s[0:1], 40")
    e(f"s_load_dwordx4 s[{SK+4}:{SK+7}], s[0:1], 48")
    e("s_load_dwordx2 s[12:13], s[0:1], 64")

    def cpf():
        e(f"s_getpc_b64 s[{sV}:{sV+1}]")
        e.label("L_pc")
        e(f"s_and_b32 s{sB}, s2, 0xf8", f"s_lshl_b32 s{sB}, s{sB}, 6")
        e(f"v_and_b32 v{T+3}, 0x180, v{T+2}", f"v_add_u32 v{T+3}, s{sB}, v{T+3}", f"v_min_u32 v{T+3}, L_end-L_pc, v{T+3}")
        e(f"v_mov_b32 v{TABV+1}, s{sV+1}", f"v_add_co_u32 v{TABV}, vcc, s{sV}, v{T+3}", f"v_addc_co_u32 v{TABV+1}, vcc, 0, v{TABV+1}, vcc")
        vq.op("cpf", f"global_load_dword v{TSV+1}, {vr(TABV,2)}, off")

    def srd_hi(s, size):
        e(f"s_mov_b32 s{s+2}, {size}", f"s_mov_b32 s{s+3}, 0x20000")

    def srd_lo(s, lo, off):
        e(f"s_add_u32 s{s}, s{lo}, {off}", f"s_addc_u32 s{s+1}, s{lo+1}, 0")

    e(f"v_lshlrev_b32 v{T+2}, 3, v0")
    if P["CPF"] == 2:
        cpf()
    e(f"v_lshrrev_b32 v{T}, 6, v0", f"v_and_b32 v{LANE}, 63, v0", f"v_lshlrev_b32 v{T+1}, 2, v0", f"v_mov_b32 v{T+5}, 0")
    e(f"v_readfirstlane_b32 s3, v{T}")
    e(f"ds_write_b32 v{T+1}, v{T+5} offset:{ACNT}", f"ds_write_b32 v{T+1}, v{T+5} offset:{AINV+3072}")
    e(f"s_mul_i32 s{sT}, s2, {CH*4}", f"s_mul_i32 s{sT2}, s2, {CH*8}", f"s_mul_i32 s{sOFF}, s2, {CH*32}")
    e(f"v_lshlrev_b32 v{X16}, 4, v{LANE}", f"v_lshlrev_b32 v{T+7}, 4, v0", f"v_mov_b32 v{ONE}, 1")
    e(f"s_lshl_b32 s{sEM}, s3, 10", f"s_add_u32 s{sEM}, s{sEM}, {EAST}", f"s_movk_i32 s{sCNT}, 4096", f"s_movk_i32 s{sNV}, 8192")
    srd_hi(sA0, CH * 4); srd_hi(sA1, CH * 4); srd_hi(sA2, CH * 8); srd_hi(sEA, CH * 32)
    if P["DIAGW"]:
        e(f"s_memrealtime s[{sTSP}:{sTSP+1}]")
    e("s_waitcnt lgkmcnt(0)")
    if P["TS"]:
        e(f"v_writelane_b32 v{TSV}, s92, 0")
        ts.names.append("first")
    ts.stamp("start")
    srd_lo(sA0, 6, f"s{sT}")
    for i in range(3):
        o = f"0 offen offset:{2048*i}" if i < 2 else f"s{sCNT} offen"
        vq.op("dst", f"buffer_load_dword v{DSTV+i}, v{T+1}, {sr(sA0)}, {o} {apol}")
    srd_lo(sA1, 4, f"s{sT}")
    if P["ABAR"] == 2:
        e("s_barrier")
    for i in range(3):
        o = f"0 offen offset:{2048*i}" if i < 2 else f"s{sCNT} offen"
        vq.op("src", f"buffer_load_dword v{SRCV+i}, v{T+1}, {sr(sA1)}, {o} {apol}")
    e(f"s_load_dword s{sTAG}, s[14:15], {WS_W}")
    if P["CPF"] == 1:
        cpf()
    srd_lo(sA2, 8, f"s{sT2}")
    srd_lo(sEA, 10, f"s{sOFF}")
    if P["ABAR"] == 1:
        e("s_barrier")
    for i, o in enumerate(("0", f"s{sCNT}", f"s{sNV}")):
        vq.op("sh", f"buffer_load_dwordx2 {vr(SHV+2*i,2)}, v{T+2}, {sr(sA2)}, {o} offen {apol}")

    def aea(p):
        for i in range(5):
            if astage[i] == p:
                e(f"s_add_u32 m0, s{sEM}, {8192*i}", f"s_mov_b32 s{sT}, {8192*i}")
                vq.op("ea", f"buffer_load_dwordx4 v{T+7}, {sr(sEA)}, s{sT} offen {apol} lds")
        if P["WST"] == p:
            weights()
        if P["WOST"] == p:
            wout()

    def weights():
        e("s_cmp_lt_u32 s3, 4")
        e(f"s_cselect_b32 s{sX}, s{SK+4}, s{SK+2}", f"s_cselect_b32 s{sX+1}, s{SK+5}, s{SK+3}", f"s_movk_i32 s{sT}, 128",
          f"s_cselect_b32 s{sX+2}, s{sCNT}, s{sT}", f"s_mov_b32 s{sX+3}, 0x20000")
        e(f"s_min_u32 s{sT}, s3, 5", f"s_lshl_b32 s{sT}, s{sT}, 10", f"s_add_u32 m0, s{sT}, {WR}", f"s_and_b32 s{sT}, s{sT}, 0xc00")
        vq.op("w", f"buffer_load_dwordx4 v{X16}, {sr(sX)}, s{sT} offen lds")

    def wout():
        srd(sOUT, SK + 6, SK + 7, None, 32768)
        e(f"s_lshl_b32 s{sT2}, s3, 12", f"s_add_u32 m0, s{sT2}, {WO}")
        for i in range(4):
            vq.op("w", f"buffer_load_dwordx4 v{X16}, {sr(sOUT)}, s{sT2} offen offset:{i*1024} lds")

    aea(0)
    if not P["ABAR"]:
        e("s_barrier")
    e(f"s_mov_b32 s{SK+8}, 109951168", f"s_movk_i32 s{SK+9}, 625", f"s_movk_i32 s{SK+10}, 838")
    e(f"v_cmp_gt_u32 s[{sV+4}:{sV+5}], {CH-1024}, v0") if CH - 1024 <= 64 else e(f"s_movk_i32 s{sT}, {CH-1024}", f"v_cmp_gt_u32 s[{sV+4}:{sV+5}], s{sT}, v0")
    srd(sTAB, 14, 15, None, WS_W + 64)
    init_round(True)
    if P["ACCZ"] == 9:
        for i in range(48):
            e(f"v_mov_b32 v{ACC+i}, 0")
    vq.wait("dst")
    ts.stamp("dst")
    for k in range(3):
        e(f"v_mul_hi_u32 v{BK+k}, v{DSTV+k}, s{SK+8}")
    for k in range(3):
        e(f"v_lshlrev_b32 v{BA+k}, 2, v{BK+k}")
        if k == 2:
            e(f"s_mov_b64 exec, s[{sV+4}:{sV+5}]")
        e(f"ds_add_rtn_u32 v{RK+k}, v{BA+k}, v{ONE} offset:{ACNT}")
    e("s_mov_b64 exec, -1")
    e("s_waitcnt lgkmcnt(0)", "s_barrier")
    ts.stamp("hist")
    e(f"ds_read_b128 {vr(CT,4)}, v{X16} offset:{ACNT}")
    e(f"s_mul_i32 s{sTAG}, s{sTAG}, 0x9e3779b1", f"s_add_u32 s{sTAG}, s{sTAG}, 0x7f4a7c15")
    e(f"s_mul_i32 s{sTAG2}, s{sTAG}, 0x85ebca6b", f"s_and_b32 s{sTAG2}, s{sTAG2}, 0xffc00000")
    aea(1)
    for k in range(3):
        e(f"v_mad_u32_u24 v{NL+k}, v{BK+k}, s{SK+9}, 15", f"v_lshrrev_b32 v{NL+k}, 4, v{NL+k}", f"v_sub_u32 v{NL+k}, v{DSTV+k}, v{NL+k}")
    e("s_waitcnt lgkmcnt(0)")
    e(f"v_add_u32 v{T+3}, v{CT}, v{CT+1}", f"v_add3_u32 v{T+3}, v{T+3}, v{CT+2}, v{CT+3}", f"v_mov_b32 v{T+4}, v{T+3}")
    scan_dpp(e, T + 4, True)
    e(f"v_sub_u32 v{ST}, v{T+4}, v{T+3}")
    for k in range(3):
        e(f"v_add_u32 v{ST+1+k}, v{ST+k}, v{CT+k}")
    e(f"ds_write_b128 v{X16}, {vr(ST,4)} offset:{ASTART}")
    for k in range(3):
        e(f"ds_read_b32 v{PS+k}, v{BA+k} offset:{ASTART}")
    vq.wait("src")
    for k in range(3):
        e(f"v_mul_u32_u24 v{KEY+k}, s{SK+10}, v{SRCV+k}", f"v_bfe_u32 v{KEY+k}, v{KEY+k}, 18, 5")
        e(f"v_lshl_or_b32 v{KEY+k}, v{NL+k}, 5, v{KEY+k}",
          f"v_lshlrev_b32 v{KEY+k}, 21, v{KEY+k}", f"v_lshl_or_b32 v{KEY+k}, v{SRCV+k}, 7, v{KEY+k}")
    e(f"v_lshlrev_b32 v{NL}, 5, v0", f"v_add_u32 v{NL+1}, {512*32}, v{NL}", f"v_add_u32 v{NL+2}, {1024*32}, v{NL}")
    e(f"s_mov_b32 s{sT2}, {ASKS}")
    vq.wait("sh", "lgkmcnt(0)")
    for k in range(3):
        e(f"v_add_u32 v{PS+k}, v{PS+k}, v{RK+k}")
        e(f"v_lshlrev_b32 v{BA+k}, 2, v{PS+k}", f"v_mad_u32_u24 v{PS+k}, v{PS+k}, 12, s{sT2}")
        if k == 2:
            e(f"s_mov_b64 exec, s[{sV+4}:{sV+5}]")
        e(f"ds_write_b32 v{BA+k}, v{NL+k} offset:{AINV}")
        e(f"ds_write2_b32 v{PS+k}, v{SHV+2*k}, v{SHV+2*k+1} offset0:0 offset1:1")
        e(f"ds_write_b32 v{PS+k}, v{KEY+k} offset:8")
    e("s_mov_b64 exec, -1")
    aea(2)
    e(f"s_lshl_b32 s{sT}, s3, 7", f"v_lshl_add_u32 v{T+3}, v{LANE}, 3, s{sT}")
    e(f"ds_read_b64 {vr(CT,2)}, v{T+3} offset:{ACNT}", f"ds_read_b64 {vr(ST,2)}, v{T+3} offset:{ASTART}")
    e(f"s_mul_i32 s{sT}, s2, {CS*12}", f"s_add_u32 s{sT}, s{sT}, {WS_SK}")
    srd(sA0, 14, 15, f"s{sT}", CS * 12)
    e(f"s_mul_i32 s{sT}, s2, {CS*32}", f"s_add_u32 s{sT}, s{sT}, {WS_EA}")
    srd(sA1, 14, 15, f"s{sT}", CH * 32)
    e(f"v_lshrrev_b32 v{T+3}, 1, v0", f"v_lshlrev_b32 v{T+3}, 2, v{T+3}")
    e(f"v_and_b32 v{T+4}, 1, v0", f"v_lshlrev_b32 v{T+4}, 4, v{T+4}", f"v_add_u32 v{T+4}, {EAST}, v{T+4}", f"v_add_u32 v{T+6}, {ASKS}, v{T+7}")
    e("s_waitcnt lgkmcnt(0)", "s_barrier")
    ts.stamp("scat")
    e(f"ds_read_b128 {vr(OUTV,4)}, v{T+6}", f"ds_read_b128 {vr(OUTV+4,4)}, v{T+6} offset:8192")
    for i in range(5):
        e(f"ds_read_b32 v{IV+i}, v{T+3} offset:{AINV + i*1024}")
    aea(3)

    def skst():
        vq.op("skst", f"buffer_store_dwordx4 {vr(OUTV,4)}, v{T+7}, {sr(sA0)}, 0 offen sc1")
        vq.op("skst", f"buffer_store_dwordx4 {vr(OUTV+4,4)}, v{T+7}, {sr(sA0)}, s{sNV} offen sc1")

    def frag_r(F0, t0, t1, t2):
        e(f"v_lshrrev_b32 v{t0}, 5, v{LANE}", f"v_lshlrev_b32 v{t0}, 10, v{t0}", f"v_and_b32 v{t1}, 15, v{LANE}", f"v_lshl_add_u32 v{t0}, v{t1}, 4, v{t0}")
        for i in range(8):
            e(f"ds_read_b128 {vr(F0+4*i,4)}, v{t0} offset:{WR + 2048*(i//4) + 256*(i%4)}")
        e(f"v_lshrrev_b32 v{t0}, 4, v{LANE}", f"v_lshlrev_b32 v{t0}, 5, v{t0}", f"v_and_b32 v{t1}, 3, v{LANE}", f"v_lshl_add_u32 v{t0}, v{t1}, 1, v{t0}")
        for v in range(4):
            e(f"ds_read_u16 v{F0+32+v}, v{t0} offset:{WR + 4096 + 8*v}")
        e(f"v_bfe_i32 v{t2}, v{LANE}, 4, 1", f"v_and_b32 v{t2}, 0x02020202, v{t2}", f"v_add_u32 v{t2}, 0x05040100, v{t2}")
        e("s_waitcnt lgkmcnt(0)")
        for h in range(2):
            for t in range(2):
                for ip in range(4):
                    e(f"v_perm_b32 v{WRF+8*h+2*ip+t}, v{F0+4*(2*ip+1)+t+2*h}, v{F0+4*(2*ip)+t+2*h}, v{t2}")
        e(f"v_lshl_or_b32 v{CGF}, v{F0+33}, 16, v{F0+32}", f"v_lshl_or_b32 v{CGF+1}, v{F0+35}, 16, v{F0+34}")

    def frag_o(F0, F1, t0, t1, sM):
        e(f"v_and_b32 v{t1}, 7, v{LANE}", f"v_lshrrev_b32 v{t0}, 4, v{LANE}", f"v_lshlrev_b32 v{t0}, 13, v{t0}", f"v_lshl_add_u32 v{t0}, v{t1}, 4, v{t0}",
          f"v_and_b32 v{t1}, 8, v{LANE}", f"s_and_b32 s{sM}, s3, 3", f"s_lshl_b32 s{sM}, s{sM}, 8", f"s_lshr_b32 s{sM+1}, s3, 2", f"s_lshl_b32 s{sM+1}, s{sM+1}, 7",
          f"s_add_u32 s{sM}, s{sM}, s{sM+1}", f"s_add_u32 s{sM}, s{sM}, {WO}", f"v_add3_u32 v{t0}, v{t0}, v{t1}, s{sM}")
        for ip in range(4):
            e(f"ds_read2st64_b64 {vr(F0+4*ip,4)}, v{t0} offset0:{4*ip} offset1:{4*ip+2}")
        e(f"s_mov_b32 s{sM}, 0x05040100", f"s_mov_b32 s{sM+1}, 0x07060302")
        for ip in range(4):
            e(f"s_waitcnt lgkmcnt({3-ip})")
            for t in range(4):
                e(f"v_perm_b32 v{F1+4*t+ip}, v{F0+4*ip+2+t//2}, v{F0+4*ip+t//2}, s{sM+t%2}")

    def consts():
        e(f"s_and_b32 s{sB}, s2, 7", f"s_lshl_b32 s{sB}, s{sB}, 5", f"s_lshr_b32 s{sT}, s2, 3", f"s_add_u32 s{sB}, s{sB}, s{sT}")
        e(f"s_mul_i32 s{sNB}, s{sB}, 625", f"s_add_u32 s{sNCNT}, s{sNB}, 640", f"s_add_u32 s{sNB}, s{sNB}, 15",
          f"s_lshr_b32 s{sNB}, s{sNB}, 4", f"s_lshr_b32 s{sNCNT}, s{sNCNT}, 4", f"s_sub_u32 s{sNCNT}, s{sNCNT}, s{sNB}")
        e(f"v_bfe_i32 v{SIX}, v{LANE}, 2, 1", f"v_and_b32 v{SIX}, 0xaaaa, v{SIX}", f"v_add_u32 v{SIX}, 0x4444, v{SIX}")
        e(f"v_mov_b32 v{ZAD}, {ZERO}", f"v_and_b32 v{T+3}, 60, v{T+1}", f"v_add_u32 v{T+3}, v{T+3}, v{ZAD}", f"ds_write_b32 v{T+3}, v{T+5}")
        e(f"v_and_b32 v{T+3}, 4, v{LANE}", f"v_lshlrev_b32 v{T+3}, 2, v{T+3}", f"v_mov_b32 v{T+4}, 0xffff", f"v_lshlrev_b32 v{T+4}, v{T+3}, v{T+4}")
        e(f"v_bfe_i32 v{T+3}, v{LANE}, 3, 1", f"v_and_b32 v{MQ}, v{T+3}, v{T+4}", f"v_xor_b32 v{MP}, v{MQ}, v{T+4}")
        if P["PQP"]:
            e(f"v_mov_b32 v{T+3}, 0x0c0c0c0c", f"v_mov_b32 v{T+4}, 0x03020302")
            e(f"v_bfi_b32 v254, v{MP}, v{T+4}, v{T+3}", f"v_bfi_b32 v255, v{MQ}, v{T+4}, v{T+3}", f"v_mov_b32 v{T+4}, 0x01000100")
            e(f"v_bfi_b32 v{MP}, v{MP}, v{T+4}, v{T+3}", f"v_bfi_b32 v{MQ}, v{MQ}, v{T+4}, v{T+3}")
        e(f"v_lshrrev_b32 v{EAC}, 5, v{LANE}", f"v_lshlrev_b32 v{EAC}, 4, v{EAC}", f"v_add_u32 v{EAC}, {EAST}, v{EAC}")
        e(f"v_and_b32 v{LAC}, 15, v{LANE}", f"v_lshlrev_b32 v{LAC}, 2, v{LAC}")
        e(f"v_bfe_u32 v{T+3}, v{LANE}, 3, 2", f"v_and_b32 v{T+4}, 3, v{LANE}", f"v_lshl_add_u32 v{T+3}, v{T+3}, 2, v{T+4}", f"v_lshlrev_b32 v{LBC}, 2, v{T+3}")
        e(f"v_bfe_i32 v{cODD}, v0, 0, 1", f"s_lshl_b32 s{sT}, s3, 10", f"v_and_b32 v{cMAPW}, 4, v{cODD}", f"v_add_u32 v{cMAPW}, s{sT}, v{cMAPW}")
        e(f"v_lshl_add_u32 v{cMAP1}, v{LANE}, 2, s{sT}", f"v_lshrrev_b32 v{cMAP2}, 1, v{LANE}", f"v_lshl_add_u32 v{cMAP2}, v{cMAP2}, 2, s{sT}")
        e(f"v_mul_u32_u24 v{cL12}, 12, v{LANE}", f"v_and_b32 v{cDEG}, 12, v{cMAP1}", f"v_and_b32 v{cBIN}, 124, v{cMAP1}")
        e(f"s_mul_i32 s{sT}, s3, {CAPW}", f"v_add_u32 v{cR21}, s{sT}, v{LANE}", f"v_lshlrev_b32 v{cSH}, 3, v{cR21}", f"v_add_u32 v{cSH}, {SHST}, v{cSH}", f"v_lshlrev_b32 v{cR21}, 21, v{cR21}")
        e(f"s_mul_i32 s{sT}, s3, 640", f"v_add_u32 v{cROW}, s{sT}, v{cBIN}", f"v_sub_u32 v{cTIE}, 63, v{LANE}")
        e(f"s_getreg_b32 s{sM0}, hwreg(HW_REG_XCC_ID, 0, 3)", f"s_lshl_b32 s{sT}, s{sM0}, 4", f"v_subrev_u32 v{cBIN}, s{sT}, v{cBIN}", f"v_and_b32 v{cBIN}, 124, v{cBIN}")
        e(f"v_min_u32 v{cNOD}, 39, v{LANE}", f"v_lshlrev_b32 v{cNOD}, 7, v{cNOD}", f"v_mov_b32 v{c380}, 0x380")
        e(f"v_lshrrev_b32 v{cLST}, 3, v{LANE}", f"v_mul_u32_u24 v{cLST}, {GAP*4}, v{cLST}", f"v_add_u32 v{cLST}, {LIST}, v{cLST}")
        e(f"s_lshr_b32 s{sEO}, s3, 1", f"s_mul_i32 s{sEO}, s{sEO}, 3", f"s_min_u32 s{sEO}, s{sEO}, 8", f"s_mul_i32 s{sT}, s{sEO}, 4608")
        e(f"v_and_b32 v{T+3}, 15, v{LANE}", f"v_lshrrev_b32 v{T+4}, 4, v{LANE}")
        e(f"v_mul_u32_u24 v{eFR}, 288, v{T+3}", f"v_lshl_add_u32 v{eFR}, v{T+4}, 4, v{eFR}", f"v_add_u32 v{eFR}, s{sT}, v{eFR}")
        e(f"v_lshrrev_b32 v{T+4}, 3, v{LANE}", f"v_lshlrev_b32 v{T+4}, 9, v{T+4}", f"v_and_b32 v{T+3}, 7, v{LANE}", f"v_lshl_add_u32 v{eST}, v{T+3}, 4, v{T+4}")
        e(f"s_lshl_b32 s{sEO}, s{sEO}, 12", f"s_and_b32 s{sT}, s3, 1", f"s_lshl_b32 s{sT}, s{sT}, 7", f"s_add_u32 s{sEO}, s{sEO}, s{sT}",
          f"s_lshl_b32 s{sT}, s{sT}, 7", f"s_add_u32 s{sT}, s{sT}, {WO}", f"v_add_u32 v{eWF}, s{sT}, v{X16}")
        e(f"s_cmp_eq_u32 s{sNCNT}, 40")
        tabs = []
        for part in PARTS[P["BIAS"]]:
            t = [0] * 40
            for w, p in enumerate(part):
                for sl, r in enumerate(p):
                    t[r] = w * 8 + sl
            tabs.append([sum(t[5 * q + i] << (6 * i) for i in range(5)) for q in range(8)])
        e(f"v_mov_b32 v{RT}, 0")
        for q in range(8):
            e(f"s_mov_b32 s{sT}, {tabs[0][q]}", f"s_cselect_b32 s{sT}, {tabs[1][q]}, s{sT}")
            m = 31 << (5 * q)
            e(f"s_mov_b32 exec_lo, {m & 0xffffffff}", f"s_mov_b32 exec_hi, {m >> 32}", f"v_mov_b32 v{RT}, s{sT}")
        e("s_mov_b64 exec, -1")
        e(f"v_mul_u32_u24 v{T+3}, 52, v{LANE}", f"v_lshrrev_b32 v{T+3}, 8, v{T+3}", f"v_mad_i32_i24 v{T+3}, v{T+3}, -5, v{LANE}",
          f"v_mul_u32_u24 v{T+3}, 6, v{T+3}", f"v_lshrrev_b32 v{RT}, v{T+3}, v{RT}")
        e(f"v_and_b32 v{T+3}, 7, v{RT}", f"v_bfe_u32 v{RT}, v{RT}, 3, 3", f"v_lshlrev_b32 v{T+3}, 12, v{T+3}", f"v_lshl_or_b32 v{RT}, v{RT}, 7, v{T+3}")
        srd(sSK, 14, 15, WS_SK, NCH * CS * 12)

    def extra(pos):
        if P["CPOS"] == pos:
            consts()
        if P["ACCZ"] == pos:
            for i in range(48):
                e(f"v_mov_b32 v{ACC+i}, 0")

    e("s_waitcnt lgkmcnt(0)")
    for i in range(5):
        e(f"v_add_u32 v{IV+i}, v{T+4}, v{IV+i}")
    for k in range(2):
        e(f"v_lshl_or_b32 v{TABV+2*k}, v{CT+k}, 11, v{ST+k}", f"v_or_b32 v{TABV+2*k}, s{sTAG2}, v{TABV+2*k}", f"v_mov_b32 v{TABV+2*k+1}, s{sTAG}")
    extra(0)
    e(f"s_waitcnt vmcnt({min(vq.n('w') + P['WGN'], vq.n('ea'))})")
    e("s_barrier")
    ts.stamp("land")
    for i in range(5):
        e(f"ds_read_b128 {vr(OUTV+8+4*i,4)}, v{IV+i}")
    extra(1)
    ts.stamp("guard")
    skst()
    for i in range(5):
        e(f"s_mov_b32 s{sT}, {8192*i}", f"s_waitcnt lgkmcnt({4-i})")
        vq.op("st", f"buffer_store_dwordx4 {vr(OUTV+8+4*i,4)}, v{T+7}, {sr(sA1)}, s{sT} offen sc1")
    aea(4)
    ts.stamp("issued")

    extra(2)
    e(f"s_lshl_b32 s{sT}, s2, 3", f"s_add_u32 s{sT}, s{sT}, s3", f"s_lshl_b32 s{sT}, s{sT}, 8")
    srd(sX, SK, SK + 1, None, N * 1024)
    srd(sEA, 14, 15, WS_EA, NCH * CS * 32)
    if P["XPF"]:
        n = P["XPF"]
        e(f"s_and_b32 s{sBASE}, s{sM0}, 7", f"s_mul_i32 s{sBASE}, s{sBASE}, {1252*1024}", f"s_and_b32 s{sT2}, s2, 0xf8",
          f"s_add_u32 s{sT2}, s{sT2}, s3", f"s_mul_i32 s{sT2}, s{sT2}, {n*128}", f"s_add_u32 s{sBASE}, s{sBASE}, s{sT2}")
        e(f"v_min_u32 v{T+6}, {n-1}, v{LANE}", f"v_lshlrev_b32 v{T+6}, 7, v{T+6}")
    xpf = f"buffer_load_dword v{PFV}, v{T+6}, {sr(sX)}, s{sBASE} offen"
    if P["XPF"] and P["XPOS"] < 0:
        e(f"s_waitcnt vmcnt({-P['XPOS']-1})", xpf, "s_waitcnt vmcnt(1)", "s_barrier")
    else:
        e("s_waitcnt vmcnt(0)", "s_barrier")
    ts.stamp("drained")
    e("s_mov_b64 exec, 0xffff")
    e(f"buffer_store_dwordx4 {vr(TABV,4)}, v{X16}, {sr(sTAB)}, s{sT} offen sc1")
    e("s_mov_b64 exec, -1")
    if P["XPF"] and P["XPOS"] == 0:
        e(xpf)
    e(f"s_lshl_b32 s{sT}, s{sNB}, 10", f"s_add_u32 s{sOUT}, s12, s{sT}", f"s_addc_u32 s{sOUT+1}, s13, 0",
      f"s_lshl_b32 s{sOUT+2}, s{sNCNT}, 10", f"s_mov_b32 s{sOUT+3}, 0x20000")
    frag_r(RW, T, T + 1, T + 2)
    if P["XPF"] and P["XPOS"] == 1:
        e(xpf)
    frag_o(128, 144, T, T + 1, SK + 8)
    for i in range(32):
        e(f"v_mov_b32 v{RW+i}, 0")
    e(f"s_lshl_b32 s{sT}, s3, 12", f"v_add_u32 v{T}, s{sT}, v{X16}")
    extra(3)
    if P["XPF"] and P["XPOS"] == 3:
        e("s_waitcnt vmcnt(0)")
    if P["XPF"] and P["XPOS"] >= 2:
        e(xpf)
    e(f"v_lshrrev_b32 v{T+1}, 1, v0", f"v_lshlrev_b32 v{T+2}, 11, v{T+1}", f"s_lshl_b32 s{sNR}, s{sB}, 3")
    e(f"v_mul_u32_u24 v{RG0}, {CS}, v{T+1}", f"s_mov_b32 s{sROFF}, 0", f"s_mov_b32 s{sCNT}, {SPIN}", f"s_mov_b32 s{sT2}, 0xffc00000")
    e(f"s_mul_i32 s{sEM}, s3, {CAPW*32}", f"s_add_u32 s{sEM}, s{sEM}, {EAST}", f"s_movk_i32 s{sK4}, 4096")
    e(f"s_waitcnt vmcnt({P['PW']})", "s_barrier")
    ts.stamp("frag")
    PL = 206
    poll1 = f"buffer_load_dwordx2 {vr(PL,2)}, v{T+2}, {sr(sTAB)}, s{sNR} offen sc1"

    def tagcheck():
        e(f"v_xor_b32 v{T+3}, s{sTAG2}, v{PL}", f"v_xor_b32 v{T+4}, s{sTAG}, v{PL+1}", f"v_and_or_b32 v{T+3}, v{T+3}, s{sT2}, v{T+4}")
        e(f"v_cmpx_ne_u32 vcc, 0, v{T+3}")

    e(poll1)
    for t in range(4):
        e(f"ds_write_b128 v{T}, {vr(144+4*t,4)} offset:{WO + 1024*t}")
    e("s_waitcnt vmcnt(0)")
    tagcheck()
    e("s_cbranch_execnz L_poll")
    e.label("L_polled")
    e("s_mov_b64 exec, -1")
    ts.stamp("tab")
    G1, G2, SKR, RNK, CA = TP + 8, TP + 12, TP + 20, TP, TP + 4
    MU = P["MU"]
    sVm = [sV, sV + 2, sV + 4, sA2]

    m0st = [None]

    def bea1(i):
        if m0st[0] != i // 4 or i == 6:
            e(f"s_add_u32 m0, s{sEM}, {4096*(i//4)}")
        m0st[0] = i // 4
        vq.op("ea", f"buffer_load_dwordx4 v{G2+i}, {sr(sEA)}, {'0' if i < 4 else 's%d' % sK4} offen offset:{1024*(i%4)} {ldpol} lds")

    def bea(p):
        for i in range(6):
            if bstage[i] == p:
                bea1(i)

    def skld(i):
        e(f"v_mad_u32_u24 v{G1+i}, v{G1+i}, 12, v{cL12}")
        vq.op(f"sk{i}", f"buffer_load_dwordx3 {vr(SKR+4*i,3)}, v{G1+i}, {sr(sSK)}, 0 offen offset:{768*i} {ldpol}")

    cmps = [f"v_cmp_lt_i32 s[{SK+2*i}:{SK+2*i+1}], {2*i}, v{T+2}" for i in range(MU + 1)]
    e(f"v_bfe_u32 v{RLEN}, v{PL}, 11, 11", f"v_and_b32 v{RBASE}, v{RLEN}, v{cODD}", f"v_add_u32 v{T+2}, v{RLEN}, v{cODD}")
    fill = [f"v_and_b32 v{T+3}, 0x7ff, v{PL}"] + cmps + [f"v_add_u32 v{RG0}, v{RG0}, v{T+3}"]
    e(fill.pop(0))
    for mod in ("row_shr:1 row_mask:0xf", "row_shr:2 row_mask:0xf", "row_shr:4 row_mask:0xf", "row_shr:8 row_mask:0xf", "row_bcast:15 row_mask:0xa", "row_bcast:31 row_mask:0xc"):
        e(f"v_add_u32_dpp v{RBASE}, v{RBASE}, v{RBASE} {mod} bank_mask:0xf")
        e(*fill[:2]); fill = fill[2:]
    e(f"v_readlane_b32 s{sNW}, v{RBASE}, 63")
    e(f"v_mov_b32_dpp v{RBASE}, v{RBASE} quad_perm:[0,0,2,2] row_mask:0xf bank_mask:0xf")
    e(f"v_sub_u32 v{RG0}, v{RG0}, v{RBASE}")
    e(f"v_lshl_add_u32 v{T}, v{RBASE}, 2, v{cMAPW}")
    e(f"s_cmp_gt_u32 s{sNW}, {CAPW}", "s_cbranch_scc1 L_clip")
    e.label("L_mapw")
    for i in range(MU):
        e(f"s_mov_b64 exec, s[{SK+2*i}:{SK+2*i+1}]")
        e(f"ds_write_b32 v{T}, v{RG0} offset:{8*i}")
    e("s_mov_b64 exec, -1")
    e(f"s_cmp_lg_u64 s[{SK+2*MU}:{SK+2*MU+1}], 0", "s_cbranch_scc1 L_map2")
    for i in range(3):
        e(f"ds_read_b32 v{G1+i}, v{cMAP1} offset:{256*i}")
    for i in range(6):
        e(f"ds_read_b32 v{G2+i}, v{cMAP2} offset:{128*i}")
    e(f"s_cmp_gt_i32 s{sNW}, 192", "s_cbranch_scc1 L_r1")
    e.label("L_r1b")
    e("s_waitcnt lgkmcnt(6)")
    ts.stamp("map")
    for i in range(3):
        skld(i)
    e(f"v_mov_b32 v{T+3}, s{sNW}", "s_mov_b64 exec, 1", f"ds_max_i32 v{T+5}, v{T+3} offset:{TOT}", "s_mov_b64 exec, -1")
    e("s_waitcnt lgkmcnt(1)")
    for i in range(6):
        e(f"v_lshl_add_u32 v{G2+i}, v{G2+i}, 5, v{X16}")
    if P["SKBAR"]:
        e("s_barrier")
    ts.stamp("skiss")
    bea(0)
    assert 5 not in bstage
    e(f"s_min_i32 s{sT}, s{sNW}, {CAPW}")
    for i in range(4):
        e(f"v_cmp_gt_i32 s[{sVm[i]}:{sVm[i]+1}], s{sT}, v{LANE}", f"s_sub_i32 s{sT}, s{sT}, 64")
    e(f"s_mov_b32 s{sT2}, 0x1fff80", f"s_mul_i32 s{sOFF}, s3, 5")
    assert P["SKBAR"]
    for q in range(NK):
        e(f"ds_read_b128 {vr(WF[q],4)}, v{eWF} offset:{1024*q}")

    def count(i):
        key = SKR + 4 * i + 2
        e(f"v_lshrrev_b32 v{CA+i}, 21, v{key}", f"v_lshlrev_b32 v{CA+i}, 2, v{CA+i}")
        e(f"v_lshrrev_b32 v{T+3}, 26, v{key}", f"v_lshl_or_b32 v{T+3}, v{T+3}, 4, v{cDEG}")
        e(f"s_mov_b64 exec, s[{sVm[i]}:{sVm[i]+1}]")
        e(f"ds_add_rtn_u32 v{RNK+i}, v{CA+i}, v{ONE} offset:{CNT2}")
        e(f"ds_add_u32 v{T+3}, v{ONE} offset:{DEG}")
        e("s_mov_b64 exec, -1")

    def entry(i):
        key = SKR + 4 * i + 2
        if i == 3:
            e("s_mov_b32 exec_hi, 0")
        e(f"ds_write_b64 v{cSH}, {vr(SKR+4*i,2)} offset:{512*i}")
        if i == 3:
            e("s_mov_b32 exec_hi, -1")
        e(f"v_and_or_b32 v{key}, v{key}, s{sT2}, v{cR21}")
        if i:
            e(f"v_add_u32 v{key}, {64*i << 21}, v{key}")

    for i in range(3):
        vq.wait(f"sk{i}")
        if i == 0:
            ts.stamp("sk")
        count(i)
    e(f"s_cmp_gt_i32 s{sNW}, 192", "s_cbranch_scc1 L_r2")
    e.label("L_r2b")
    ts.stamp("atom")
    bea(1)
    for j in range(1, 5):
        e(f"s_add_u32 s{SK+j}, s{sOFF}, {j}")
    e("s_waitcnt lgkmcnt(0)", "s_barrier")
    ts.stamp("b1")
    CN, CAD = XR, XR + 8
    e(f"s_cmp_lg_u32 s{sROFF}, 0", "s_cbranch_scc1 L_rank2")
    e(f"ds_read_b128 {vr(CAD,4)}, v{X16} offset:{DEG}")
    for j in range(5):
        e(f"ds_read_b32 v{CN+j}, v{cROW} offset:{CNT2 + 128*j}")
    e(f"ds_read_b32 v{T+6}, v{T+5} offset:{TOT}")
    if P["ENP"] == 0:
        for i in range(3):
            entry(i)
    e(f"s_waitcnt lgkmcnt({9 if P['ENP'] == 0 else 6})")
    e(f"v_add_u32 v{T+1}, v{CAD}, v{CAD+1}", f"v_add3_u32 v{T+1}, v{T+1}, v{CAD+2}, v{CAD+3}")
    e(f"v_lshl_or_b32 v{T+1}, v{T+1}, 6, v{cTIE}")
    for j in range(5):
        e(f"v_readlane_b32 s{SK+j}, v{T+1}, s{SK+j if j else sOFF}")
    for j in range(5):
        e(f"v_cmp_lt_u32 s[{SK+6+2*j}:{SK+7+2*j}], s{SK+j}, v{T+1}")
    for j in range(5):
        e(f"s_bcnt1_i32_b64 s{SK+j}, s[{SK+6+2*j}:{SK+7+2*j}]")
    e(f"s_waitcnt lgkmcnt({3 if P['ENP'] == 0 else 0})")
    for j in range(5):
        e(f"v_readlane_b32 s{sASG[j]}, v{RT}, s{SK+j}")
    e(f"v_readfirstlane_b32 s{sN}, v{T+6}")
    e.label("L_ranked")
    e("s_mov_b32 exec_hi, 0")
    for j in range(5):
        e(f"v_and_or_b32 v{CAD+j}, s{sASG[j]}, v{c380}, v{cBIN}")
        e(f"ds_add_rtn_u32 v{CN+j}, v{CAD+j}, v{CN+j} offset:{WB}")
    for j in range(5):
        e(f"v_or_b32 v{CAD+j}, s{sASG[j]}, v{cBIN}")
    e(f"s_lshl_b32 s{sT}, s3, 3", f"s_add_u32 s{sOFF}, s{sT}, 7")
    for j in range(5):
        if j in (0, 2):
            e(f"s_waitcnt lgkmcnt({3 if j == 0 else 2})")
        e(f"v_lshl_or_b32 v{CN+j}, v{CN+j}, 16, v{CAD+j}")
        e(f"ds_write_b32 v{cROW}, v{CN+j} offset:{CNT2 + 128*j}")
    e("s_mov_b32 exec_hi, -1")
    ts.stamp("rank")
    bea(2)
    if P["ENP"] == 1:
        for i in range(3):
            entry(i)
    e(f"s_waitcnt lgkmcnt({3 if P['ENP'] == 1 else 0})", "s_barrier")
    ts.stamp("b2")
    e(f"ds_read_b128 {vr(CN,4)}, v{X16} offset:{WB}")
    for i in range(3):
        e(f"ds_read_b32 v{CA+i}, v{CA+i} offset:{CNT2}")
    bea(6)
    e("s_waitcnt lgkmcnt(3)")
    e(f"v_add_u32 v{T+1}, v{CN}, v{CN+1}", f"v_add3_u32 v{T+1}, v{T+1}, v{CN+2}, v{CN+3}", f"v_mov_b32 v{T+2}, v{T+1}")
    e("s_waitcnt lgkmcnt(0)")

    def place(i):
        key = SKR + 4 * i + 2
        return [f"v_bfe_u32 v{T+7}, v{CA+i}, 12, 3", f"v_or_b32 v{key}, v{T+7}, v{key}", f"v_and_b32 v{G1+i}, 0x3ff, v{CA+i}",
                f"v_lshrrev_b32 v{CA+i}, 16, v{CA+i}", f"v_add_u32 v{CA+i}, v{CA+i}, v{RNK+i}"]

    fill = place(0) + place(1) + place(2)
    e(fill.pop(0))
    for mod in ("row_shr:1 row_mask:0xf", "row_shr:2 row_mask:0xf", "row_shr:4 row_mask:0xf", "row_shr:8 row_mask:0xf", "row_bcast:15 row_mask:0xa", "row_bcast:31 row_mask:0xc"):
        e(f"v_add_u32_dpp v{T+2}, v{T+2}, v{T+2} {mod} bank_mask:0xf")
        e(*fill[:2]); fill = fill[2:]
    e(f"v_sub_u32 v{T+1}, v{T+2}, v{T+1}")
    e(f"v_lshl_add_u32 v{CAD}, v{T+1}, 2, v{cLST}")
    for k in range(3):
        e(f"v_lshl_add_u32 v{CAD+1+k}, v{CN+k}, 2, v{CAD+k}")
    e(f"ds_write_b128 v{X16}, {vr(CAD,4)} offset:{START}")
    for i in range(3):
        e(f"ds_read_b32 v{G1+i}, v{G1+i} offset:{START}")
    e(*fill)
    e(f"v_readlane_b32 s{sNV}, v{T+2}, s{sOFF}", f"v_readlane_b32 s{sCNT}, v{T+1}, s{sT}", f"v_readlane_b32 s{sBASE}, v{CAD}, s{sT}")
    e(f"v_mov_b32 v{T+6}, {(0x3fff << 7) | 5}")
    e(f"s_sub_u32 s{sNV}, s{sNV}, s{sCNT}", f"s_lshl2_add_u32 s{sT2}, s{sNV}, s{sBASE}", f"v_add_u32 v{T+1}, s{sT2}, v{LAC}")
    e(f"ds_write_b32 v{T+1}, v{T+6}")
    assert D == 6
    sP0 = sT
    e(f"s_add_u32 s{sCNT}, s{sNV}, 15", f"s_lshr_b32 s{sCNT}, s{sCNT}, 4", f"s_sub_u32 s{sP0}, 0, s{sNV}", f"s_and_b32 s{sP0}, s{sP0}, 14",
      f"s_sub_u32 s{sCNT}, s{sCNT}, 1", f"s_cmp_gt_i32 s{sCNT}, 0", f"s_cselect_b32 s{sP0}, s{sP0}, 0", f"s_lshl_b32 s{sOFF}, s{sP0}, 2",
      f"s_sub_u32 s{sBASE}, s{sBASE}, s{sOFF}")

    def scatter(i):
        e(f"s_mov_b64 exec, s[{sVm[i]}:{sVm[i]+1}]")
        e(f"ds_write_b32 v{CA+i}, v{SKR+4*i+2}")

    e("s_waitcnt lgkmcnt(1)")
    for i in range(3):
        e(f"v_lshl_add_u32 v{CA+i}, v{CA+i}, 2, v{G1+i}")
    for i in range(3):
        scatter(i)
    e("s_mov_b64 exec, -1")
    e(f"s_cmp_gt_i32 s{sNW}, 192", "s_cbranch_scc1 L_r3")
    e.label("L_r3b")
    bea(3)
    ts.stamp("list")
    e(f"v_add_u32 v{LA}, s{sBASE}, v{LAC}", f"v_add_u32 v{LB}, s{sBASE}, v{LBC}",
      f"s_and_b32 s{sOFF}, s{sOFF}, 32", f"v_add_u32 v{T+4}, s{sOFF}, v{LA}", f"s_and_b32 s{SK+8}, s{sP0}, 6")
    e(f"s_mov_b32 s{sT2}, 0x00fffc38", f"s_mov_b32 s{sNR}, 0xffffff00", f"s_mov_b32 s{sBASE}, {SHST}")
    if P["PRIO"] == 1:
        e("s_cmp_lt_u32 s3, 4", "s_cbranch_scc1 L_np", "s_setprio 1")
        e.label("L_np")
    e("s_waitcnt lgkmcnt(0)", "s_barrier")
    ts.stamp("b4")
    e(f"ds_read_b32 v{K}, v{T+4}", f"ds_read_b32 v{ENT+2}, v{LB}", f"ds_read_b32 v{KN}, v{LA} offset:{4*D}", f"ds_read_b32 v{NOD}, v{cNOD} offset:{CNT2}")
    e(f"s_cmp_eq_u32 s{sNV}, 0", "s_cbranch_scc1 L_empty")

    def agaddr():
        e(f"v_lshlrev_b32 v{T+4}, 2, v{LANE}", f"s_lshl_b32 s{sOFF}, s3, 7")
        e(f"v_and_b32 v{NOD}, 0x7380, v{NOD}", f"v_xor_b32 v{NOD}, s{sOFF}, v{NOD}")
        e(f"v_alignbit_b32 v{NOD}, v{NOD}, v{NOD}, 12")
        m = [f"s[{q}:{q+1}]" for q in sVm] + ["vcc"]
        for j in range(5):
            e(f"v_cmp_eq_u32 {m[j]}, {j}, v{NOD}")
        for j in range(5):
            e(f"s_ff1_i32_b64 s{sNODE+j}, {m[j]}", f"s_mul_i32 s{sNODE+j}, s{sNODE+j}, 1152", f"v_add_u32 v{eAG[j]}, s{sNODE+j}, v{T+4}")

    AL = P["ALIGN"]

    def al():
        if AL:
            e(".p2align 3")

    def ea_reads():
        e(f"v_lshrrev_b32 v{T}, 21, v{ENT+2}", f"v_lshl_add_u32 v{T+3}, v{T}, 3, s{sBASE}", f"v_lshl_add_u32 v{T}, v{T}, 5, v{EAC}")
        e(f"ds_read_b64 {vr(ENT,2)}, v{T+3}")
        e(f"ds_read_b128 {vr(EA0,4)}, v{T}")

    def wfr(*qs):
        for q in qs:
            e(f"ds_read_b128 {vr(WF[q],4)}, v{eWF} offset:{1024*q}")

    def zq(q):
        e(f"ds_read_b128 {vr(RW+4*q,4)}, v{ZAD}", f"ds_read_b128 {vr(RW+16+4*q,4)}, v{ZAD}")

    def pq(j):
        p = PQ + 2 * (j % 2)
        if P["PQP"]:
            pr = [f"v_perm_b32 v{p}, v{T+1}, v{T+1}, v{(MP, 254)[j%2]}", f"v_perm_b32 v{p+1}, v{T+1}, v{T+1}, v{(MQ, 255)[j%2]}"]
            return pr if j % 2 else [f"v_cvt_pk_bf16_f32 v{T+1}, v{AGN+j}, v{AGN+j+1}"] + pr
        return [f"v_cvt_pk_bf16_f32 v{T+1+j%2}, v{AGN+j}, v{AGN+j}", f"v_and_b32 v{p}, v{MP}, v{T+1+j%2}", f"v_and_b32 v{p+1}, v{MQ}, v{T+1+j%2}"]

    def head(kind):
        e(f"s_waitcnt lgkmcnt({0 if kind == 'first' else 2})"); al()
        for q in range(4):
            e(f"v_mfma_f32_4x4x4_16b_bf16 {vr(AGN+4*q,4)}, {vr(ENT,2)}, {vr(CGF,2)}, 0 cbsz:4 abid:{2*q}")
        e(f"v_lshlrev_b32 v{K}, 3, v{KN}", f"v_and_b32 v{K}, s{sT2}, v{K}")
        rd = []
        if kind != "last":
            e(f"v_add_u32 v{LA}, 64, v{LA}", f"v_add_u32 v{LB}, 64, v{LB}")
            rd = [f"ds_read_b32 v{KN}, v{LA} offset:{4*D}", f"ds_read_b32 v{ENT+2}, v{LB}"]
        if kind != "first":
            e("s_waitcnt lgkmcnt(0)"); al()
        groups = [rd + (pq(0) if kind != "first" else []), []]
        for h in range(2):
            e(f"v_smfmac_f32_32x32x32_bf16 {vr(RW+16*h,16)}, {vr(EA0,4)}, {vr(WRF+8*h,8)}, v{SIX}")
            e(*groups[h])

    def pks(j):
        t = TP + 8 * (j % 2)
        for h in range(2):
            r = RW + 16 * h + j
            rp = r & ~1
            sel = "op_sel:[0,1,0] op_sel_hi:[1,1,1]" if r & 1 else "op_sel_hi:[1,0,1]"
            for q in range(2):
                a = ACC + 4 * h + 2 * q
                e(f"v_pk_fma_f32 {vr(a,2)}, {vr(t+4*h+2*q,2)}, {vr(rp,2)}, {vr(a,2)} {sel}")

    def mf(j, h):
        t, p, s = TP + 8 * (j % 2), PQ + 2 * (j % 2), XR + 4 * (j % R)
        e(f"v_mfma_f32_16x16x16_bf16 {vr(t+4*h,4)}, {vr(p,2)}, {vr(s+2*h,2)}, 0")

    def rl(q, lane):
        e(f"v_readlane_b32 s{SK + q % 8}, v{K}, {lane}")

    def sand(q):
        e(f"s_and_b32 s{sOFF}, s{SK + q % 8}, s{sNR}")

    def xl(q):
        e(f"buffer_load_dwordx4 {vr(XR + 4 * (q % R),4)}, v{X16}, {sr(sX)}, s{sOFF} offen")

    def body(last):
        for j in range(0, 16, 2):
            ld = not last or j + D < 16
            if not last or j == 0:
                e.label(f"L_{'f' if last else 'j'}{j}")
            nx = pq(j + 1)
            e(f"s_waitcnt vmcnt({D-1 if ld else 15-j})"); al()
            mf(j, 0)
            if ld:
                rl(j + D, j)
            e(*nx[:1]); mf(j, 1); e(*nx[1:])
            if ld and P["SCH"] == 2:
                sand(j + D); e(f"s_waitcnt vmcnt({D-2})"); xl(j + D)
            elif ld:
                sand(j + D); xl(j + D); e(f"s_waitcnt vmcnt({D-1})")
            else:
                e(f"s_waitcnt vmcnt({14-j})"); al()
            nx = pq(j + 2) if j < 14 else []
            mf(j + 1, 0)
            if ld:
                rl(j + 1 + D, j + 1)
            e(*nx[:1]); mf(j + 1, 1); e(*nx[1:])
            if last and j == 2 and P["AGP"] == 2:
                agaddr(); al()
            if j == 2 and not last:
                e("s_waitcnt lgkmcnt(0)")
                ea_reads(); al()
            if ld:
                sand(j + 1 + D)
            e(f"s_set_gpr_idx_on s{SK + j % 8}, gpr_idx(SRC2,DST)")
            xl(j + 1 + D) if ld else al()
            pks(j)
            e(f"s_set_gpr_idx_idx s{SK + (j + 1) % 8}")
            if j == 14 and not last:
                e(f"s_sub_u32 s{sCNT}, s{sCNT}, 1")
            al()
            pks(j + 1)
            if j % 4 == 2 and not last:
                zq(j // 4)
            if last and j >= 6 and P["WFT"]:
                wfr(*((14, 15) if j == 6 else (j - 2, j - 1)))
            e("s_set_gpr_idx_off")

    e("s_waitcnt lgkmcnt(3)")
    e(f"v_lshlrev_b32 v{K}, 3, v{K}", f"v_and_b32 v{K}, s{sT2}, v{K}")
    NB5 = P["NB5"]

    def pair(q):
        rl(q, q); rl(q + 1, q + 1)
        sand(q); xl(q); sand(q + 1); xl(q + 1)

    for q in (2, 4, 6):
        e(f"s_cmp_eq_u32 s{SK+8}, {q}", f"s_cbranch_scc1 L_p{q}")
    for q0 in (0, 2, 4, 6):
        e.label(f"L_p{q0}")
        for i in range(NB5):
            pair(q0 + 2 * i)
        if P["AGP"] == 0:
            e("s_waitcnt lgkmcnt(0)")
            agaddr()
        e(f"s_waitcnt vmcnt({2*NB5}) lgkmcnt(0)", "s_barrier")
        ea_reads()
        for i in range(NB5, 3):
            pair(q0 + 2 * i)
        if q0 < 6:
            e("s_branch L_pd")
    e.label("L_pd")
    if P["AGP"] == 1:
        agaddr()
    ts.stamp("b5")
    head("first")
    e(f"s_set_gpr_idx_on s{sP0}, gpr_idx(SRC0,SRC1)")
    e.idx_range, keep = {("v", i) for i in range(AGN, AGN + 16)}, e.idx_range
    e(pq(0)[0])
    e.idx_range = keep
    e("s_set_gpr_idx_off")
    e(*pq(0)[1:])
    e("s_waitcnt lgkmcnt(0)")
    ea_reads()
    e(f"s_cmp_eq_u32 s{sCNT}, 0", "s_cbranch_scc1 L_f0")
    for j in range(0, 14, 2):
        e(f"s_cmp_eq_u32 s{sP0}, {j}", f"s_cbranch_scc1 L_j{j}")
        if j % 4 == 2:
            zq(j // 4)
    e("s_branch L_j14")
    e(".p2align 3")
    e.label("L_loop")
    head("mid")
    body(False)
    e(f"s_cmp_lg_u32 s{sCNT}, 0", "s_cbranch_scc1 L_loop")
    head("last")
    body(True)
    e.label("L_swept")
    ts.stamp("swept")
    e(f"s_add_u32 s{sROFF}, s{sROFF}, {CAPW}", f"s_cmp_lt_u32 s{sROFF}, s{sN}", "s_cbranch_scc1 L_again")
    AF, DD, OB, OT = ACC, 160, 64, 80
    if P["EPRIO"] >= 0:
        e(f"s_setprio {P['EPRIO']}")
    for s in range(5):
        for w in range(4):
            e(f"v_cvt_pk_bf16_f32 v{RW+4*s+w}, v{ACC+8*s+w}, v{ACC+8*s+4+w}")
        for w in (0, 2):
            e(f"ds_write2_b32 v{eAG[s]}, v{RW+4*s+w}, v{RW+4*s+w+1} offset0:{72*w} offset1:{72*w+72}")
    NPRE = 16
    if not P["WFT"]:
        wfr(*range(NK, 16))
    e(f"s_waitcnt lgkmcnt({0 if P['WFT'] else NPRE - NK})", "s_barrier")
    ts.stamp("agb")
    lq = [f"w{q}" for q in range(NPRE)]

    def lop(tag, text):
        e(text); lq.append(tag)

    def lwait(*tags):
        n = len(lq) - 1 - max(lq.index(t) for t in tags)
        e(f"s_waitcnt lgkmcnt({min(n, 15)})")

    def afrag(k, ss=range(4)):
        for s in ss:
            lop(f"a{k}{s}", f"ds_read_b128 {vr(AF+16*k+4*s,4)}, v{eFR} offset:{AGL + 4608*k + 64*s}")

    def post(k, pol=P['OUTPOL']):
        d, o = DD + 16 * (k % 2), OB + 8 * (k % 2)
        x = []
        for r in range(2):
            for c in range(2):
                x.append(f"v_cvt_pk_bf16_f32 v{o+4*r+c}, v{d+8*c+r}, v{d+8*c+4+r}")
                x.append(f"v_cvt_pk_bf16_f32 v{OT+2*r+c}, v{d+8*c+r}, v{d+8*c+4+r}")
                x.append(f"v_cvt_pk_bf16_f32 v{o+4*r+2+c}, v{d+8*c+r+2}, v{d+8*c+4+r+2}")
            for c in range(2):
                x.append(f"v_mov_b32_dpp v{o+4*r+c}, v{o+4*r+2+c} row_ror:8 row_mask:0xf bank_mask:0xc")
            for c in range(2):
                x.append(f"v_mov_b32_dpp v{o+4*r+2+c}, v{OT+2*r+c} row_ror:8 row_mask:0xf bank_mask:0x3")
            x.append(f"buffer_store_dwordx4 {vr(o+4*r,4)}, v{eST}, {sr(sOUT)}, s{sEO} offen offset:{256*r} {pol}")
        x.append(f"s_add_u32 s{sEO}, s{sEO}, 4096")
        return x

    def tile(k, pend):
        d = DD + 16 * (k % 2)
        for s in range(4):
            if k == 0:
                lwait(f"a0{s}", f"w{4*s+3}")
            elif s == 0:
                lwait(f"a{k}3")
            for t in range(4):
                c = "0" if s == 0 else vr(d + 4 * t, 4)
                e(f"v_mfma_f32_16x16x32_bf16 {vr(d+4*t,4)}, {vr(AF+16*k+4*s,4)}, {vr(WF[4*s+t],4)}, {c}")
                if 4 * s + t >= 4:
                    e(*pend[:2]); pend = pend[2:]
            if k == 0 and s == 0:
                afrag(1)
            if k == 0 and s == 1:
                afrag(2)
        e(*pend)

    for s in range(4):
        afrag(0, [s])
        for q in range(max(NPRE, 4 * s), 4 * s + 4):
            lop(f"w{q}", f"ds_read_b128 {vr(WF[q],4)}, v{eWF} offset:{1024*q}")
    tile(0, [])
    tile(1, post(0))
    e("s_cmp_ge_u32 s3, 4", "s_cbranch_scc1 L_two")
    tile(2, post(1))
    e(*post(2, P['LASTPOL']))
    e.label("L_stored")
    ts.stamp("stored")
    e("s_or_b32 s4, s2, s3", "s_cbranch_scc1 L_notag")
    e(f"v_mov_b32 v{T}, s{sTAG}", f"v_lshlrev_b32 v{T+2}, 2, v{LANE}", f"s_mov_b32 s{sT}, {WS_W}")
    e(f"buffer_store_dword v{T}, v{T+2}, {sr(sTAB)}, s{sT} offen sc1")
    e.label("L_notag")
    if P["DIAGW"] and P["DIAGAT"] == "fin":
        e("s_waitcnt vmcnt(0)")
        ts.stamp("fin")
    if P["DIAGW"]:
        e(f"s_add_u32 s6, s{sTSP+1}, {P['DIAGW']}", "s_min_u32 s6, s6, 30000")
        e.label("L_diag")
        e("s_memrealtime s[4:5]", "s_waitcnt lgkmcnt(0)", f"s_sub_u32 s4, s4, s{sTSP}", "s_cmp_lt_u32 s4, s6", "s_cbranch_scc1 L_diag")
    if P["TS"]:
        e("s_waitcnt vmcnt(0)")
        ts.stamp("end")
        e(f"s_lshl_b32 s{sT}, s2, 3", f"s_add_u32 s{sT}, s{sT}, s3", f"s_lshl_b32 s{sT}, s{sT}, 8", f"s_add_u32 s{sT}, s{sT}, {WS_TS}")
        e(f"v_lshl_add_u32 v{T}, v{LANE}, 2, s{sT}", f"global_store_dword v{T}, v{TSV}, s[14:15]")
        if P["DBG"]:
            e(f"s_cmp_lg_u32 s2, {P['DBG']}", "s_cbranch_scc1 L_done", "s_cmp_lg_u32 s3, 0", "s_cbranch_scc1 L_done")
            e("s_load_dwordx2 s[4:5], s[0:1], 72", f"v_readlane_b32 s{sT}, v{TSV}, 0", f"v_lshlrev_b32 v{T}, 2, v{LANE}")
            e(f"v_subrev_u32 v{TSV}, s{sT}, v{TSV}", "s_waitcnt lgkmcnt(0)", f"global_store_dword v{T}, v{TSV}, s[4:5]")
    e.label("L_done")
    e("s_endpgm")
    e.label("L_again")
    e("s_waitcnt vmcnt(0) lgkmcnt(0)", "s_barrier")
    init_round(False)
    for i in range(32):
        e(f"v_mov_b32 v{RW+i}, 0")
    e(f"v_add_u32 v{RLEN}, v{RLEN}, v{RBASE}", f"v_subrev_u32 v{RLEN}, {CAPW}, v{RLEN}", f"v_max_i32 v{RLEN}, 0, v{RLEN}")
    e(f"v_subrev_u32 v{RBASE}, {CAPW}, v{RBASE}", f"v_max_i32 v{RBASE}, 0, v{RBASE}", f"v_sub_u32 v{RLEN}, v{RLEN}, v{RBASE}")
    e(f"v_add_u32 v{RG0}, {CAPW}, v{RG0}", f"s_sub_i32 s{sNW}, s{sNW}, {CAPW}", f"v_lshl_add_u32 v{T}, v{RBASE}, 2, v{cMAPW}")
    e("s_waitcnt lgkmcnt(0)", "s_barrier")
    e.label("L_clip")
    e(f"v_add_u32 v{T+2}, v{RBASE}, v{RLEN}", f"v_min_i32 v{T+2}, {CAPW}, v{T+2}", f"v_sub_u32 v{T+2}, v{T+2}, v{RBASE}", f"v_add_u32 v{T+2}, v{T+2}, v{cODD}")
    e.label("L_masks")
    e(*cmps)
    e("s_nop 0", "s_branch L_mapw")
    e.label("L_map2")
    e(f"v_add_u32 v{T}, {8*MU}, v{T}", f"v_subrev_u32 v{T+2}, {2*MU}, v{T+2}")
    e("s_branch L_masks")
    e.label("L_r1")
    e(f"ds_read_b32 v{G1+3}, v{cMAP1} offset:768", f"ds_read_b32 v{G2+6}, v{cMAP2} offset:768")
    e("s_waitcnt lgkmcnt(0)")
    skld(3)
    for i in (6,):
        e(f"v_lshl_add_u32 v{G2+i}, v{G2+i}, 5, v{X16}")
        bea1(i)
    e("s_branch L_r1b")
    e.label("L_r2")
    count(3)
    entry(3)
    e("s_branch L_r2b")
    e.label("L_r3")
    e(f"ds_read_b32 v{CA+3}, v{CA+3} offset:{CNT2}", "s_waitcnt lgkmcnt(0)")
    e(*place(3))
    e(f"ds_read_b32 v{G1+3}, v{G1+3} offset:{START}", "s_waitcnt lgkmcnt(0)")
    e(f"v_lshl_add_u32 v{CA+3}, v{CA+3}, 2, v{G1+3}")
    scatter(3)
    e("s_mov_b64 exec, -1", "s_branch L_r3b")
    e.label("L_empty")
    e("s_waitcnt vmcnt(0) lgkmcnt(0)", "s_barrier")
    agaddr()
    if P["WFT"]:
        wfr(*range(NK, 16))
    e("s_branch L_swept")
    e.label("L_two", pad=8)
    e(*post(1, P['LASTPOL']))
    e("s_branch L_stored")
    e.label("L_poll")
    e(poll1, f"s_sub_u32 s{sCNT}, s{sCNT}, 1", "s_cbranch_scc1 L_done", "s_waitcnt vmcnt(0)")
    tagcheck()
    e("s_cbranch_execnz L_poll", "s_branch L_polled")
    e.label("L_rank2")
    for j in range(5):
        e(f"ds_read_b32 v{CN+j}, v{cROW} offset:{CNT2 + 128*j}")
    if P["ENP"] == 0:
        for i in range(3):
            entry(i)
    e("s_waitcnt lgkmcnt(0)")
    e.label("L_end")
    e("s_branch L_ranked")
    return e.text(), LDS, 256, 102


HEADER = """; Kernarg layout for this problem (88 bytes, ptrs only, base s[0:1]):
"""


def generate(**kw):
    P = dict(DEF)
    P.update(kw)
    k, lds, v, s = gen(P)
    n = NAME + "_kernel"
    out = HEADER
    out += f"; @launch grid=(256,1,1) block=(512,1,1) lds={lds}\n"
    out += '.amdgcn_target "amdgcn-amd-amdhsa--gfx950"\n.text\n'
    out += f".globl {n}\n.p2align 8\n.type {n},@function\n{n}:\n{k}"
    out += '.section .rodata,"a"\n'
    out += (f".p2align 6\n.amdhsa_kernel {n}\n  .amdhsa_next_free_vgpr {v}\n  .amdhsa_next_free_sgpr {s}\n"
            f"  .amdhsa_accum_offset {(v+3)//4*4}\n  .amdhsa_group_segment_fixed_size 0\n  .amdhsa_kernarg_size 88\n"
            f"  .amdhsa_user_sgpr_count 2\n  .amdhsa_user_sgpr_kernarg_segment_ptr 1\n  .amdhsa_system_sgpr_workgroup_id_x 1\n"
            f"  .amdhsa_float_denorm_mode_32 3\n.end_amdhsa_kernel\n")
    return out


if __name__ == "__main__":
    kw = {}
    for a in sys.argv[1:]:
        k, v = a.split("=", 1)
        kw[k] = int(v) if v.lstrip("-").isdigit() else v
    sys.stdout.write(generate(**kw))
```

```python
import sys, os
sys.path.insert(0, os.path.dirname(os.path.abspath(__file__)))
from emit import Emitter

NAME = "gather_scatter__tensor_product_equiv_mace__graph"
N, E = 10000, 320000
CH, NCH, CS = 1250, 256, 1280
WS_TAB, WS_W, WS_SK, WS_EA, WS_TS = 0, 0x80000, 0x100000, 0x500000, 0x2000000
CAPW, GAP = 224, 16
CAP = 8 * CAPW
SPIN = 200000

DEF = dict(TL=0, XPOS=0, PQP=1, NB5=1, AGP=2, ENP=0, PW=0, WFT=1, WFK=6, LASTPOL='sc1', EPRIO=0, BIAS=30, SCH=2, ALIGN=0, PRIO=1, DIAGW=0, DIAGK=0, DIAGAT='tab', D=6, TS=0, DBG=0, APOL="nt", AEA="00011", BEA="001223", SKBAR=1, ABAR=2, XPF=18, CPF=2, MU=7, OUTPOL="sc1", LDPOL="sc1", WST=3, WOST=3, ACCZ=2, CPOS=2, WGN=0)

PART39 = [[3, 11, 21, 31, 36], [5, 8, 20, 27, 38], [0, 6, 7, 13, 39], [9, 14, 18, 25, 34], [10, 16, 19, 24, 32], [4, 12, 26, 29, 33], [1, 17, 23, 28, 37], [2, 15, 22, 30, 35]]
PART40 = [[1, 10, 15, 30, 39], [2, 9, 21, 28, 37], [4, 14, 22, 27, 31], [6, 12, 18, 24, 35], [3, 8, 16, 29, 38], [5, 13, 17, 26, 34], [0, 20, 23, 32, 36], [7, 11, 19, 25, 33]]
PARTS = {0: (PART39, PART40)}
PARTS[12] = ([[12, 16, 24, 26, 30], [8, 14, 15, 31, 36], [2, 10, 23, 34, 37], [5, 17, 18, 22, 38], [0, 1, 7, 19, 39], [3, 11, 20, 29, 35], [6, 9, 25, 27, 32], [4, 13, 21, 28, 33]],
    [[9, 12, 19, 28, 32], [3, 10, 22, 29, 37], [7, 8, 23, 26, 36], [0, 18, 20, 34, 38], [5, 6, 14, 21, 39], [4, 11, 16, 24, 35], [1, 15, 25, 27, 31], [2, 13, 17, 30, 33]])
PARTS[20] = ([[13, 17, 24, 26, 31], [4, 16, 25, 29, 36], [5, 19, 23, 28, 35], [1, 6, 8, 10, 39], [7, 9, 20, 27, 32], [3, 12, 14, 33, 34], [2, 15, 18, 22, 37], [0, 11, 21, 30, 38]],
    [[11, 12, 17, 20, 38], [3, 16, 26, 28, 34], [8, 10, 19, 29, 36], [7, 14, 25, 27, 31], [6, 13, 15, 24, 30], [0, 9, 22, 23, 39], [2, 4, 21, 32, 35], [1, 5, 18, 33, 37]])
PARTS[30] = ([[12, 16, 25, 29, 32], [0, 5, 9, 20, 39], [1, 18, 27, 34, 37], [7, 19, 22, 30, 35], [2, 6, 24, 26, 36], [4, 11, 13, 31, 33], [10, 15, 17, 21, 28], [3, 8, 14, 23, 38]],
    [[6, 9, 26, 28, 37], [1, 11, 24, 35, 38], [5, 17, 23, 31, 33], [8, 12, 21, 29, 36], [2, 4, 15, 22, 39], [7, 10, 14, 18, 34], [0, 16, 20, 30, 32], [3, 13, 19, 25, 27]])
PARTS[40] = ([[7, 13, 28, 29, 37], [10, 17, 22, 30, 36], [1, 4, 6, 23, 39], [9, 19, 26, 31, 33], [5, 12, 15, 18, 35], [2, 11, 16, 27, 34], [0, 8, 24, 25, 38], [3, 14, 20, 21, 32]],
    [[8, 17, 25, 31, 32], [3, 19, 22, 28, 38], [6, 15, 18, 33, 37], [2, 14, 24, 29, 39], [0, 12, 21, 27, 34], [1, 9, 13, 26, 36], [5, 7, 10, 23, 35], [4, 11, 16, 20, 30]])
PARTS[50] = ([[2, 19, 28, 35, 37], [0, 6, 11, 24, 39], [15, 17, 27, 29, 34], [1, 20, 30, 32, 38], [4, 7, 18, 23, 33], [9, 10, 12, 21, 31], [5, 13, 16, 25, 26], [3, 8, 14, 22, 36]],
    [[7, 15, 27, 30, 36], [8, 18, 19, 28, 38], [4, 14, 31, 33, 35], [6, 13, 20, 29, 39], [2, 3, 22, 23, 34], [0, 11, 12, 26, 37], [1, 9, 17, 24, 32], [5, 10, 16, 21, 25]])


def vr(a, n):
    return f"v[{a}:{a+n-1}]" if n > 1 else f"v{a}"


def sr(a, n=4):
    return f"s[{a}:{a+n-1}]"


def scan_dpp(e, v, full):
    for k in (1, 2, 4, 8):
        e(f"v_add_u32_dpp v{v}, v{v}, v{v} row_shr:{k} row_mask:0xf bank_mask:0xf")
    e(f"v_add_u32_dpp v{v}, v{v}, v{v} row_bcast:15 row_mask:0xa bank_mask:0xf")
    if full:
        e(f"v_add_u32_dpp v{v}, v{v}, v{v} row_bcast:31 row_mask:0xc bank_mask:0xf")


class TS:
    last = None

    def __init__(self, e, on, pair, vreg):
        self.e, self.on, self.pair, self.v, self.names = e, on, pair, vreg, []
        TS.last = self

    diag = None

    def stamp(self, name):
        if self.diag and self.diag[0] == name:
            self.e("s_memrealtime s[4:5]", "s_waitcnt lgkmcnt(0)", f"s_sub_u32 s4, s4, s{self.pair}", f"s_mul_i32 s{self.pair+1}, s4, {self.diag[1]}")
        if self.on and (self.on == 1 or name in str(self.on).split(",") or name in ("start", "end")):
            e, p = self.e, self.pair
            e(f"s_memrealtime s[{p}:{p+1}]", "s_waitcnt lgkmcnt(0)", f"v_writelane_b32 v{self.v}, s{p}, {len(self.names)}")
            self.names.append(name)


class VQ:
    def __init__(self, e):
        self.e, self.q = e, []

    def op(self, tag, text):
        self.e(text)
        self.q.append(tag)

    def n(self, tag):
        idx = max(i for i, t in enumerate(self.q) if t == tag)
        return len(self.q) - 1 - idx

    def wait(self, tag, extra=""):
        self.e(f"s_waitcnt vmcnt({self.n(tag)}) {extra}".strip())


def gen(P):
    e = Emitter()
    vq = VQ(e)
    D = P["D"]
    R = 8
    MAP, CNT2, WB, DEG, TOT, NODEOF, START, WR, WO = 0, 8192, 13312, 14336, 15360, 15616, 16384, 17408, 46080
    LIST = WO + 32768
    SHST = LIST + (CAP + 8 * GAP + 128) * 4
    EAST = SHST + CAP * 8
    assert SHST + CAP * 8 <= EAST
    ZERO = EAST + CAP * 32
    LDS = ZERO + 64
    AGL = 0
    ACNT, ASTART, AINV, ASKS = 23552, 24576, 25600, 30720
    assert ASKS + CS * 12 <= WO and LDS <= 163840
    LANE, X16, RLEN, RBASE, RG0, ONE, PFV = 1, 2, 3, 4, 5, 6, 7
    T = 8
    ACC, RW, XR, TP, AGN, PQ, EA0, EA1, WRF, CGF, ENT = 16, 64, 96, 128, 144, 160, 164, 168, 172, 188, 192
    MP, MQ = CGF + 2, CGF + 3
    SIX, ZAD = EA1, EA1 + 1
    eAG, eFR, eST, eWF, NOD = [208, 209, 210, 211, 212], 213, 214, 215, 205
    NK = P["WFK"]
    assert NK == 6
    WF = [216 + 4 * q for q in range(NK)] + [XR + 4 * q for q in range(8)] + [AGN, AGN + 4]
    K, KN, LA, LB, EAC, LAC, LBC, RT, TSV = 196, 197, 198, 199, 200, 201, 202, 203, 204
    cODD, cMAPW, cMAP1, cMAP2, cL12, cDEG, cSH, cR21, cROW, cTIE, cBIN, cNOD, cLST, c380 = range(240, 254)
    e.idx_range = {("v", i) for i in range(ACC, ACC + 48)}
    sX, sTAB, sSK, sEA, sA0, sA1, sOUT = 16, 20, 24, 28, 32, 36, 40
    sB, sNB, sNCNT, sN, sROFF, sNR, sNV, sBASE, sEM, sCNT, sT, sT2 = 44, 45, 46, 47, 48, 49, 50, 51, 52, 53, 54, 55
    sNODE = 56
    sOFF = 61
    sTAG, sTAG2 = 62, 63
    SK = 64
    sV = 80
    sM0, sEO = 86, 87
    sASG = [90, 91, 92, 93, 94]
    sNW, sK4 = 95, 98
    sA2, sTSP = 96, 100
    ts = TS(e, P["TS"], sTSP, TSV)
    if P["DIAGW"]:
        ts.diag = (P["DIAGAT"], P["DIAGK"])
    apol, ldpol = P["APOL"], P["LDPOL"]
    astage = [int(c) for c in str(P["AEA"]).zfill(5)]
    bstage = [int(c) for c in str(P["BEA"]).zfill(6)]

    def srd(s, lo, hi, off, size):
        if off is None:
            e(f"s_mov_b32 s{s}, s{lo}", f"s_mov_b32 s{s+1}, s{hi}")
        else:
            e(f"s_add_u32 s{s}, s{lo}, {off}", f"s_addc_u32 s{s+1}, s{hi}, 0")
        e(f"s_mov_b32 s{s+2}, {size}", f"s_mov_b32 s{s+3}, 0x20000")

    def init_round(first):
        e(f"v_lshlrev_b32 v{T+3}, 2, v0", f"v_mov_b32 v{T+4}, 0x00700000", f"v_mov_b32 v{T+5}, 0")
        for i in range(4):
            e(f"ds_write_b32 v{T+3}, v{T+4} offset:{MAP + i*2048}")
        for i in range(4 if first else 3):
            e(f"ds_write_b32 v{T+3}, v{T+5} offset:{CNT2 + i*2048}")

    DSTV, SRCV, SHV, BK, BA, RK, NL, KEY, CT, ST, PS = 64, 68, 72, 80, 84, 88, 92, 96, 100, 104, 108
    TABV = 112
    OUTV = 128
    IV = 156
    CGR = 120
    if P["TS"]:
        e("s_memrealtime s[92:93]")
    e("s_cmp_ge_u32 s2, 256", "s_cbranch_scc1 L_done")
    e("s_load_dwordx4 s[4:7], s[0:1], 8")
    e("s_load_dwordx4 s[8:11], s[0:1], 24")
    e("s_load_dwordx2 s[14:15], s[0:1], 80")
    e(f"s_load_dwordx2 s[{SK}:{SK+1}], s[0:1], 0")
    e(f"s_load_dwordx2 s[{SK+2}:{SK+3}], s[0:1], 40")
    e(f"s_load_dwordx4 s[{SK+4}:{SK+7}], s[0:1], 48")
    e("s_load_dwordx2 s[12:13], s[0:1], 64")

    def cpf():
        e(f"s_getpc_b64 s[{sV}:{sV+1}]")
        e.label("L_pc")
        e(f"s_and_b32 s{sB}, s2, 0xf8", f"s_lshl_b32 s{sB}, s{sB}, 6")
        e(f"v_and_b32 v{T+3}, 0x180, v{T+2}", f"v_add_u32 v{T+3}, s{sB}, v{T+3}", f"v_min_u32 v{T+3}, L_end-L_pc, v{T+3}")
        e(f"v_mov_b32 v{TABV+1}, s{sV+1}", f"v_add_co_u32 v{TABV}, vcc, s{sV}, v{T+3}", f"v_addc_co_u32 v{TABV+1}, vcc, 0, v{TABV+1}, vcc")
        vq.op("cpf", f"global_load_dword v{TSV+1}, {vr(TABV,2)}, off")

    def srd_hi(s, size):
        e(f"s_mov_b32 s{s+2}, {size}", f"s_mov_b32 s{s+3}, 0x20000")

    def srd_lo(s, lo, off):
        e(f"s_add_u32 s{s}, s{lo}, {off}", f"s_addc_u32 s{s+1}, s{lo+1}, 0")

    e(f"v_lshlrev_b32 v{T+2}, 3, v0")
    if P["CPF"] == 2:
        cpf()
    e(f"v_lshrrev_b32 v{T}, 6, v0", f"v_and_b32 v{LANE}, 63, v0", f"v_lshlrev_b32 v{T+1}, 2, v0", f"v_mov_b32 v{T+5}, 0")
    e(f"v_readfirstlane_b32 s3, v{T}")
    e(f"ds_write_b32 v{T+1}, v{T+5} offset:{ACNT}", f"ds_write_b32 v{T+1}, v{T+5} offset:{AINV+3072}")
    e(f"s_mul_i32 s{sT}, s2, {CH*4}", f"s_mul_i32 s{sT2}, s2, {CH*8}", f"s_mul_i32 s{sOFF}, s2, {CH*32}")
    e(f"v_lshlrev_b32 v{X16}, 4, v{LANE}", f"v_lshlrev_b32 v{T+7}, 4, v0", f"v_mov_b32 v{ONE}, 1")
    e(f"s_lshl_b32 s{sEM}, s3, 10", f"s_add_u32 s{sEM}, s{sEM}, {EAST}", f"s_movk_i32 s{sCNT}, 4096", f"s_movk_i32 s{sNV}, 8192")
    srd_hi(sA0, CH * 4); srd_hi(sA1, CH * 4); srd_hi(sA2, CH * 8); srd_hi(sEA, CH * 32)
    if P["DIAGW"]:
        e(f"s_memrealtime s[{sTSP}:{sTSP+1}]")
    e("s_waitcnt lgkmcnt(0)")
    if P["TS"]:
        e(f"v_writelane_b32 v{TSV}, s92, 0")
        ts.names.append("first")
    ts.stamp("start")
    srd_lo(sA0, 6, f"s{sT}")
    for i in range(3):
        o = f"0 offen offset:{2048*i}" if i < 2 else f"s{sCNT} offen"
        vq.op("dst", f"buffer_load_dword v{DSTV+i}, v{T+1}, {sr(sA0)}, {o} {apol}")
    srd_lo(sA1, 4, f"s{sT}")
    if P["ABAR"] == 2:
        e("s_barrier")
    for i in range(3):
        o = f"0 offen offset:{2048*i}" if i < 2 else f"s{sCNT} offen"
        vq.op("src", f"buffer_load_dword v{SRCV+i}, v{T+1}, {sr(sA1)}, {o} {apol}")
    e(f"s_load_dword s{sTAG}, s[14:15], {WS_W}")
    if P["CPF"] == 1:
        cpf()
    srd_lo(sA2, 8, f"s{sT2}")
    srd_lo(sEA, 10, f"s{sOFF}")
    if P["ABAR"] == 1:
        e("s_barrier")
    for i, o in enumerate(("0", f"s{sCNT}", f"s{sNV}")):
        vq.op("sh", f"buffer_load_dwordx2 {vr(SHV+2*i,2)}, v{T+2}, {sr(sA2)}, {o} offen {apol}")

    def aea(p):
        for i in range(5):
            if astage[i] == p:
                e(f"s_add_u32 m0, s{sEM}, {8192*i}", f"s_mov_b32 s{sT}, {8192*i}")
                vq.op("ea", f"buffer_load_dwordx4 v{T+7}, {sr(sEA)}, s{sT} offen {apol} lds")
        if P["WST"] == p:
            weights()
        if P["WOST"] == p:
            wout()

    def weights():
        e("s_cmp_lt_u32 s3, 4")
        e(f"s_cselect_b32 s{sX}, s{SK+4}, s{SK+2}", f"s_cselect_b32 s{sX+1}, s{SK+5}, s{SK+3}", f"s_movk_i32 s{sT}, 128",
          f"s_cselect_b32 s{sX+2}, s{sCNT}, s{sT}", f"s_mov_b32 s{sX+3}, 0x20000")
        e(f"s_min_u32 s{sT}, s3, 5", f"s_lshl_b32 s{sT}, s{sT}, 10", f"s_add_u32 m0, s{sT}, {WR}", f"s_and_b32 s{sT}, s{sT}, 0xc00")
        vq.op("w", f"buffer_load_dwordx4 v{X16}, {sr(sX)}, s{sT} offen lds")

    def wout():
        srd(sOUT, SK + 6, SK + 7, None, 32768)
        e(f"s_lshl_b32 s{sT2}, s3, 12", f"s_add_u32 m0, s{sT2}, {WO}")
        for i in range(4):
            vq.op("w", f"buffer_load_dwordx4 v{X16}, {sr(sOUT)}, s{sT2} offen offset:{i*1024} lds")

    aea(0)
    if not P["ABAR"]:
        e("s_barrier")
    e(f"s_mov_b32 s{SK+8}, 109951168", f"s_movk_i32 s{SK+9}, 625", f"s_movk_i32 s{SK+10}, 838")
    e(f"v_cmp_gt_u32 s[{sV+4}:{sV+5}], {CH-1024}, v0") if CH - 1024 <= 64 else e(f"s_movk_i32 s{sT}, {CH-1024}", f"v_cmp_gt_u32 s[{sV+4}:{sV+5}], s{sT}, v0")
    srd(sTAB, 14, 15, None, WS_W + 64)
    init_round(True)
    if P["ACCZ"] == 9:
        for i in range(48):
            e(f"v_mov_b32 v{ACC+i}, 0")
    vq.wait("dst")
    ts.stamp("dst")
    for k in range(3):
        e(f"v_mul_hi_u32 v{BK+k}, v{DSTV+k}, s{SK+8}")
    for k in range(3):
        e(f"v_lshlrev_b32 v{BA+k}, 2, v{BK+k}")
        if k == 2:
            e(f"s_mov_b64 exec, s[{sV+4}:{sV+5}]")
        e(f"ds_add_rtn_u32 v{RK+k}, v{BA+k}, v{ONE} offset:{ACNT}")
    e("s_mov_b64 exec, -1")
    e("s_waitcnt lgkmcnt(0)", "s_barrier")
    ts.stamp("hist")
    e(f"ds_read_b128 {vr(CT,4)}, v{X16} offset:{ACNT}")
    e(f"s_mul_i32 s{sTAG}, s{sTAG}, 0x9e3779b1", f"s_add_u32 s{sTAG}, s{sTAG}, 0x7f4a7c15")
    e(f"s_mul_i32 s{sTAG2}, s{sTAG}, 0x85ebca6b", f"s_and_b32 s{sTAG2}, s{sTAG2}, 0xffc00000")
    aea(1)
    for k in range(3):
        e(f"v_mad_u32_u24 v{NL+k}, v{BK+k}, s{SK+9}, 15", f"v_lshrrev_b32 v{NL+k}, 4, v{NL+k}", f"v_sub_u32 v{NL+k}, v{DSTV+k}, v{NL+k}")
    e("s_waitcnt lgkmcnt(0)")
    e(f"v_add_u32 v{T+3}, v{CT}, v{CT+1}", f"v_add3_u32 v{T+3}, v{T+3}, v{CT+2}, v{CT+3}", f"v_mov_b32 v{T+4}, v{T+3}")
    scan_dpp(e, T + 4, True)
    e(f"v_sub_u32 v{ST}, v{T+4}, v{T+3}")
    for k in range(3):
        e(f"v_add_u32 v{ST+1+k}, v{ST+k}, v{CT+k}")
    e(f"ds_write_b128 v{X16}, {vr(ST,4)} offset:{ASTART}")
    for k in range(3):
        e(f"ds_read_b32 v{PS+k}, v{BA+k} offset:{ASTART}")
    vq.wait("src")
    for k in range(3):
        e(f"v_mul_u32_u24 v{KEY+k}, s{SK+10}, v{SRCV+k}", f"v_bfe_u32 v{KEY+k}, v{KEY+k}, 18, 5")
        e(f"v_lshl_or_b32 v{KEY+k}, v{NL+k}, 5, v{KEY+k}",
          f"v_lshlrev_b32 v{KEY+k}, 21, v{KEY+k}", f"v_lshl_or_b32 v{KEY+k}, v{SRCV+k}, 7, v{KEY+k}")
    e(f"v_lshlrev_b32 v{NL}, 5, v0", f"v_add_u32 v{NL+1}, {512*32}, v{NL}", f"v_add_u32 v{NL+2}, {1024*32}, v{NL}")
    e(f"s_mov_b32 s{sT2}, {ASKS}")
    vq.wait("sh", "lgkmcnt(0)")
    for k in range(3):
        e(f"v_add_u32 v{PS+k}, v{PS+k}, v{RK+k}")
        e(f"v_lshlrev_b32 v{BA+k}, 2, v{PS+k}", f"v_mad_u32_u24 v{PS+k}, v{PS+k}, 12, s{sT2}")
        if k == 2:
            e(f"s_mov_b64 exec, s[{sV+4}:{sV+5}]")
        e(f"ds_write_b32 v{BA+k}, v{NL+k} offset:{AINV}")
        e(f"ds_write2_b32 v{PS+k}, v{SHV+2*k}, v{SHV+2*k+1} offset0:0 offset1:1")
        e(f"ds_write_b32 v{PS+k}, v{KEY+k} offset:8")
    e("s_mov_b64 exec, -1")
    aea(2)
    e(f"s_lshl_b32 s{sT}, s3, 7", f"v_lshl_add_u32 v{T+3}, v{LANE}, 3, s{sT}")
    e(f"ds_read_b64 {vr(CT,2)}, v{T+3} offset:{ACNT}", f"ds_read_b64 {vr(ST,2)}, v{T+3} offset:{ASTART}")
    e(f"s_mul_i32 s{sT}, s2, {CS*12}", f"s_add_u32 s{sT}, s{sT}, {WS_SK}")
    srd(sA0, 14, 15, f"s{sT}", CS * 12)
    e(f"s_mul_i32 s{sT}, s2, {CS*32}", f"s_add_u32 s{sT}, s{sT}, {WS_EA}")
    srd(sA1, 14, 15, f"s{sT}", CH * 32)
    e(f"v_lshrrev_b32 v{T+3}, 1, v0", f"v_lshlrev_b32 v{T+3}, 2, v{T+3}")
    e(f"v_and_b32 v{T+4}, 1, v0", f"v_lshlrev_b32 v{T+4}, 4, v{T+4}", f"v_add_u32 v{T+4}, {EAST}, v{T+4}", f"v_add_u32 v{T+6}, {ASKS}, v{T+7}")
    e("s_waitcnt lgkmcnt(0)", "s_barrier")
    ts.stamp("scat")
    e(f"ds_read_b128 {vr(OUTV,4)}, v{T+6}", f"ds_read_b128 {vr(OUTV+4,4)}, v{T+6} offset:8192")
    for i in range(5):
        e(f"ds_read_b32 v{IV+i}, v{T+3} offset:{AINV + i*1024}")
    aea(3)

    def skst():
        vq.op("skst", f"buffer_store_dwordx4 {vr(OUTV,4)}, v{T+7}, {sr(sA0)}, 0 offen sc1")
        vq.op("skst", f"buffer_store_dwordx4 {vr(OUTV+4,4)}, v{T+7}, {sr(sA0)}, s{sNV} offen sc1")

    def frag_r(F0, t0, t1, t2):
        e(f"v_lshrrev_b32 v{t0}, 5, v{LANE}", f"v_lshlrev_b32 v{t0}, 10, v{t0}", f"v_and_b32 v{t1}, 15, v{LANE}", f"v_lshl_add_u32 v{t0}, v{t1}, 4, v{t0}")
        for i in range(8):
            e(f"ds_read_b128 {vr(F0+4*i,4)}, v{t0} offset:{WR + 2048*(i//4) + 256*(i%4)}")
        e(f"v_lshrrev_b32 v{t0}, 4, v{LANE}", f"v_lshlrev_b32 v{t0}, 5, v{t0}", f"v_and_b32 v{t1}, 3, v{LANE}", f"v_lshl_add_u32 v{t0}, v{t1}, 1, v{t0}")
        for v in range(4):
            e(f"ds_read_u16 v{F0+32+v}, v{t0} offset:{WR + 4096 + 8*v}")
        e(f"v_bfe_i32 v{t2}, v{LANE}, 4, 1", f"v_and_b32 v{t2}, 0x02020202, v{t2}", f"v_add_u32 v{t2}, 0x05040100, v{t2}")
        e("s_waitcnt lgkmcnt(0)")
        for h in range(2):
            for t in range(2):
                for ip in range(4):
                    e(f"v_perm_b32 v{WRF+8*h+2*ip+t}, v{F0+4*(2*ip+1)+t+2*h}, v{F0+4*(2*ip)+t+2*h}, v{t2}")
        e(f"v_lshl_or_b32 v{CGF}, v{F0+33}, 16, v{F0+32}", f"v_lshl_or_b32 v{CGF+1}, v{F0+35}, 16, v{F0+34}")

    def frag_o(F0, F1, t0, t1, sM):
        e(f"v_and_b32 v{t1}, 7, v{LANE}", f"v_lshrrev_b32 v{t0}, 4, v{LANE}", f"v_lshlrev_b32 v{t0}, 13, v{t0}", f"v_lshl_add_u32 v{t0}, v{t1}, 4, v{t0}",
          f"v_and_b32 v{t1}, 8, v{LANE}", f"s_and_b32 s{sM}, s3, 3", f"s_lshl_b32 s{sM}, s{sM}, 8", f"s_lshr_b32 s{sM+1}, s3, 2", f"s_lshl_b32 s{sM+1}, s{sM+1}, 7",
          f"s_add_u32 s{sM}, s{sM}, s{sM+1}", f"s_add_u32 s{sM}, s{sM}, {WO}", f"v_add3_u32 v{t0}, v{t0}, v{t1}, s{sM}")
        for ip in range(4):
            e(f"ds_read2st64_b64 {vr(F0+4*ip,4)}, v{t0} offset0:{4*ip} offset1:{4*ip+2}")
        e(f"s_mov_b32 s{sM}, 0x05040100", f"s_mov_b32 s{sM+1}, 0x07060302")
        for ip in range(4):
            e(f"s_waitcnt lgkmcnt({3-ip})")
            for t in range(4):
                e(f"v_perm_b32 v{F1+4*t+ip}, v{F0+4*ip+2+t//2}, v{F0+4*ip+t//2}, s{sM+t%2}")

    def consts():
        e(f"s_and_b32 s{sB}, s2, 7", f"s_lshl_b32 s{sB}, s{sB}, 5", f"s_lshr_b32 s{sT}, s2, 3", f"s_add_u32 s{sB}, s{sB}, s{sT}")
        e(f"s_mul_i32 s{sNB}, s{sB}, 625", f"s_add_u32 s{sNCNT}, s{sNB}, 640", f"s_add_u32 s{sNB}, s{sNB}, 15",
          f"s_lshr_b32 s{sNB}, s{sNB}, 4", f"s_lshr_b32 s{sNCNT}, s{sNCNT}, 4", f"s_sub_u32 s{sNCNT}, s{sNCNT}, s{sNB}")
        e(f"v_bfe_i32 v{SIX}, v{LANE}, 2, 1", f"v_and_b32 v{SIX}, 0xaaaa, v{SIX}", f"v_add_u32 v{SIX}, 0x4444, v{SIX}")
        e(f"v_mov_b32 v{ZAD}, {ZERO}", f"v_and_b32 v{T+3}, 60, v{T+1}", f"v_add_u32 v{T+3}, v{T+3}, v{ZAD}", f"ds_write_b32 v{T+3}, v{T+5}")
        e(f"v_and_b32 v{T+3}, 4, v{LANE}", f"v_lshlrev_b32 v{T+3}, 2, v{T+3}", f"v_mov_b32 v{T+4}, 0xffff", f"v_lshlrev_b32 v{T+4}, v{T+3}, v{T+4}")
        e(f"v_bfe_i32 v{T+3}, v{LANE}, 3, 1", f"v_and_b32 v{MQ}, v{T+3}, v{T+4}", f"v_xor_b32 v{MP}, v{MQ}, v{T+4}")
        if P["PQP"]:
            e(f"v_mov_b32 v{T+3}, 0x0c0c0c0c", f"v_mov_b32 v{T+4}, 0x03020302")
            e(f"v_bfi_b32 v254, v{MP}, v{T+4}, v{T+3}", f"v_bfi_b32 v255, v{MQ}, v{T+4}, v{T+3}", f"v_mov_b32 v{T+4}, 0x01000100")
            e(f"v_bfi_b32 v{MP}, v{MP}, v{T+4}, v{T+3}", f"v_bfi_b32 v{MQ}, v{MQ}, v{T+4}, v{T+3}")
        e(f"v_lshrrev_b32 v{EAC}, 5, v{LANE}", f"v_lshlrev_b32 v{EAC}, 4, v{EAC}", f"v_add_u32 v{EAC}, {EAST}, v{EAC}")
        e(f"v_and_b32 v{LAC}, 15, v{LANE}", f"v_lshlrev_b32 v{LAC}, 2, v{LAC}")
        e(f"v_bfe_u32 v{T+3}, v{LANE}, 3, 2", f"v_and_b32 v{T+4}, 3, v{LANE}", f"v_lshl_add_u32 v{T+3}, v{T+3}, 2, v{T+4}", f"v_lshlrev_b32 v{LBC}, 2, v{T+3}")
        e(f"v_bfe_i32 v{cODD}, v0, 0, 1", f"s_lshl_b32 s{sT}, s3, 10", f"v_and_b32 v{cMAPW}, 4, v{cODD}", f"v_add_u32 v{cMAPW}, s{sT}, v{cMAPW}")
        e(f"v_lshl_add_u32 v{cMAP1}, v{LANE}, 2, s{sT}", f"v_lshrrev_b32 v{cMAP2}, 1, v{LANE}", f"v_lshl_add_u32 v{cMAP2}, v{cMAP2}, 2, s{sT}")
        e(f"v_mul_u32_u24 v{cL12}, 12, v{LANE}", f"v_and_b32 v{cDEG}, 12, v{cMAP1}", f"v_and_b32 v{cBIN}, 124, v{cMAP1}")
        e(f"s_mul_i32 s{sT}, s3, {CAPW}", f"v_add_u32 v{cR21}, s{sT}, v{LANE}", f"v_lshlrev_b32 v{cSH}, 3, v{cR21}", f"v_add_u32 v{cSH}, {SHST}, v{cSH}", f"v_lshlrev_b32 v{cR21}, 21, v{cR21}")
        e(f"s_mul_i32 s{sT}, s3, 640", f"v_add_u32 v{cROW}, s{sT}, v{cBIN}", f"v_sub_u32 v{cTIE}, 63, v{LANE}")
        e(f"s_getreg_b32 s{sM0}, hwreg(HW_REG_XCC_ID, 0, 3)", f"s_lshl_b32 s{sT}, s{sM0}, 4", f"v_subrev_u32 v{cBIN}, s{sT}, v{cBIN}", f"v_and_b32 v{cBIN}, 124, v{cBIN}")
        e(f"v_min_u32 v{cNOD}, 39, v{LANE}", f"v_lshlrev_b32 v{cNOD}, 7, v{cNOD}", f"v_mov_b32 v{c380}, 0x380")
        e(f"v_lshrrev_b32 v{cLST}, 3, v{LANE}", f"v_mul_u32_u24 v{cLST}, {GAP*4}, v{cLST}", f"v_add_u32 v{cLST}, {LIST}, v{cLST}")
        e(f"s_lshr_b32 s{sEO}, s3, 1", f"s_mul_i32 s{sEO}, s{sEO}, 3", f"s_min_u32 s{sEO}, s{sEO}, 8", f"s_mul_i32 s{sT}, s{sEO}, 4608")
        e(f"v_and_b32 v{T+3}, 15, v{LANE}", f"v_lshrrev_b32 v{T+4}, 4, v{LANE}")
        e(f"v_mul_u32_u24 v{eFR}, 288, v{T+3}", f"v_lshl_add_u32 v{eFR}, v{T+4}, 4, v{eFR}", f"v_add_u32 v{eFR}, s{sT}, v{eFR}")
        e(f"v_lshrrev_b32 v{T+4}, 3, v{LANE}", f"v_lshlrev_b32 v{T+4}, 9, v{T+4}", f"v_and_b32 v{T+3}, 7, v{LANE}", f"v_lshl_add_u32 v{eST}, v{T+3}, 4, v{T+4}")
        e(f"s_lshl_b32 s{sEO}, s{sEO}, 12", f"s_and_b32 s{sT}, s3, 1", f"s_lshl_b32 s{sT}, s{sT}, 7", f"s_add_u32 s{sEO}, s{sEO}, s{sT}",
          f"s_lshl_b32 s{sT}, s{sT}, 7", f"s_add_u32 s{sT}, s{sT}, {WO}", f"v_add_u32 v{eWF}, s{sT}, v{X16}")
        e(f"s_cmp_eq_u32 s{sNCNT}, 40")
        tabs = []
        for part in PARTS[P["BIAS"]]:
            t = [0] * 40
            for w, p in enumerate(part):
                for sl, r in enumerate(p):
                    t[r] = w * 8 + sl
            tabs.append([sum(t[5 * q + i] << (6 * i) for i in range(5)) for q in range(8)])
        e(f"v_mov_b32 v{RT}, 0")
        for q in range(8):
            e(f"s_mov_b32 s{sT}, {tabs[0][q]}", f"s_cselect_b32 s{sT}, {tabs[1][q]}, s{sT}")
            m = 31 << (5 * q)
            e(f"s_mov_b32 exec_lo, {m & 0xffffffff}", f"s_mov_b32 exec_hi, {m >> 32}", f"v_mov_b32 v{RT}, s{sT}")
        e("s_mov_b64 exec, -1")
        e(f"v_mul_u32_u24 v{T+3}, 52, v{LANE}", f"v_lshrrev_b32 v{T+3}, 8, v{T+3}", f"v_mad_i32_i24 v{T+3}, v{T+3}, -5, v{LANE}",
          f"v_mul_u32_u24 v{T+3}, 6, v{T+3}", f"v_lshrrev_b32 v{RT}, v{T+3}, v{RT}")
        e(f"v_and_b32 v{T+3}, 7, v{RT}", f"v_bfe_u32 v{RT}, v{RT}, 3, 3", f"v_lshlrev_b32 v{T+3}, 12, v{T+3}", f"v_lshl_or_b32 v{RT}, v{RT}, 7, v{T+3}")
        srd(sSK, 14, 15, WS_SK, NCH * CS * 12)

    def extra(pos):
        if P["CPOS"] == pos:
            consts()
        if P["ACCZ"] == pos:
            for i in range(48):
                e(f"v_mov_b32 v{ACC+i}, 0")

    e("s_waitcnt lgkmcnt(0)")
    for i in range(5):
        e(f"v_add_u32 v{IV+i}, v{T+4}, v{IV+i}")
    for k in range(2):
        e(f"v_lshl_or_b32 v{TABV+2*k}, v{CT+k}, 11, v{ST+k}", f"v_or_b32 v{TABV+2*k}, s{sTAG2}, v{TABV+2*k}", f"v_mov_b32 v{TABV+2*k+1}, s{sTAG}")
    extra(0)
    e(f"s_waitcnt vmcnt({min(vq.n('w') + P['WGN'], vq.n('ea'))})")
    e("s_barrier")
    ts.stamp("land")
    for i in range(5):
        e(f"ds_read_b128 {vr(OUTV+8+4*i,4)}, v{IV+i}")
    extra(1)
    ts.stamp("guard")
    skst()
    for i in range(5):
        e(f"s_mov_b32 s{sT}, {8192*i}", f"s_waitcnt lgkmcnt({4-i})")
        vq.op("st", f"buffer_store_dwordx4 {vr(OUTV+8+4*i,4)}, v{T+7}, {sr(sA1)}, s{sT} offen sc1")
    aea(4)
    ts.stamp("issued")

    extra(2)
    TL = P["TL"]
    if TL:
        e(f"s_lshl_b32 s{sT}, s3, 10", f"s_add_u32 s{sT}, s{sT}, s2", f"s_lshl_b32 s{sT}, s{sT}, 6")
        e(f"v_lshrrev_b32 v{T+3}, 2, v{LANE}", f"v_and_b32 v{T+4}, 48, v{X16}", f"v_lshl_add_u32 v{T+3}, v{T+3}, 14, v{T+4}")
    else:
        e(f"s_lshl_b32 s{sT}, s2, 3", f"s_add_u32 s{sT}, s{sT}, s3", f"s_lshl_b32 s{sT}, s{sT}, 8")
    srd(sX, SK, SK + 1, None, N * 1024)
    srd(sEA, 14, 15, WS_EA, NCH * CS * 32)
    if P["XPF"]:
        n = P["XPF"]
        e(f"s_and_b32 s{sBASE}, s{sM0}, 7", f"s_mul_i32 s{sBASE}, s{sBASE}, {1252*1024}", f"s_and_b32 s{sT2}, s2, 0xf8",
          f"s_add_u32 s{sT2}, s{sT2}, s3", f"s_mul_i32 s{sT2}, s{sT2}, {n*128}", f"s_add_u32 s{sBASE}, s{sBASE}, s{sT2}")
        e(f"v_min_u32 v{T+6}, {n-1}, v{LANE}", f"v_lshlrev_b32 v{T+6}, 7, v{T+6}")
    xpf = f"buffer_load_dword v{PFV}, v{T+6}, {sr(sX)}, s{sBASE} offen"
    if P["XPF"] and P["XPOS"] < 0:
        e(f"s_waitcnt vmcnt({-P['XPOS']-1})", xpf, "s_waitcnt vmcnt(1)", "s_barrier")
    else:
        e("s_waitcnt vmcnt(0)", "s_barrier")
    ts.stamp("drained")
    e("s_mov_b64 exec, 0xffff")
    e(f"buffer_store_dwordx4 {vr(TABV,4)}, v{T+3 if TL else X16}, {sr(sTAB)}, s{sT} offen sc1")
    e("s_mov_b64 exec, -1")
    if P["XPF"] and P["XPOS"] == 0:
        e(xpf)
    e(f"s_lshl_b32 s{sT}, s{sNB}, 10", f"s_add_u32 s{sOUT}, s12, s{sT}", f"s_addc_u32 s{sOUT+1}, s13, 0",
      f"s_lshl_b32 s{sOUT+2}, s{sNCNT}, 10", f"s_mov_b32 s{sOUT+3}, 0x20000")
    frag_r(RW, T, T + 1, T + 2)
    if P["XPF"] and P["XPOS"] == 1:
        e(xpf)
    frag_o(128, 144, T, T + 1, SK + 8)
    for i in range(32):
        e(f"v_mov_b32 v{RW+i}, 0")
    e(f"s_lshl_b32 s{sT}, s3, 12", f"v_add_u32 v{T}, s{sT}, v{X16}")
    extra(3)
    if P["XPF"] and P["XPOS"] == 3:
        e("s_waitcnt vmcnt(0)")
    if P["XPF"] and P["XPOS"] >= 2:
        e(xpf)
    e(f"v_lshrrev_b32 v{T+1}, 1, v0", f"v_lshlrev_b32 v{T+2}, {6 if TL else 11}, v{T+1}", f"s_lshl_b32 s{sNR}, s{sB}, 3")
    if TL:
        e(f"s_and_b32 s{sNR}, s{sNR}, 56", f"s_lshr_b32 s{sCNT}, s{sB}, 3", f"s_lshl_b32 s{sCNT}, s{sCNT}, 14", f"s_add_u32 s{sNR}, s{sNR}, s{sCNT}")
    e(f"v_mul_u32_u24 v{RG0}, {CS}, v{T+1}", f"s_mov_b32 s{sROFF}, 0", f"s_mov_b32 s{sCNT}, {SPIN}", f"s_mov_b32 s{sT2}, 0xffc00000")
    e(f"s_mul_i32 s{sEM}, s3, {CAPW*32}", f"s_add_u32 s{sEM}, s{sEM}, {EAST}", f"s_movk_i32 s{sK4}, 4096")
    e(f"s_waitcnt vmcnt({P['PW']})", "s_barrier")
    ts.stamp("frag")
    PL = 206
    poll1 = f"buffer_load_dwordx2 {vr(PL,2)}, v{T+2}, {sr(sTAB)}, s{sNR} offen sc1"

    def tagcheck():
        e(f"v_xor_b32 v{T+3}, s{sTAG2}, v{PL}", f"v_xor_b32 v{T+4}, s{sTAG}, v{PL+1}", f"v_and_or_b32 v{T+3}, v{T+3}, s{sT2}, v{T+4}")
        e(f"v_cmpx_ne_u32 vcc, 0, v{T+3}")

    e(poll1)
    for t in range(4):
        e(f"ds_write_b128 v{T}, {vr(144+4*t,4)} offset:{WO + 1024*t}")
    e("s_waitcnt vmcnt(0)")
    tagcheck()
    e("s_cbranch_execnz L_poll")
    e.label("L_polled")
    e("s_mov_b64 exec, -1")
    ts.stamp("tab")
    G1, G2, SKR, RNK, CA = TP + 8, TP + 12, TP + 20, TP, TP + 4
    MU = P["MU"]
    sVm = [sV, sV + 2, sV + 4, sA2]

    m0st = [None]

    def bea1(i):
        if m0st[0] != i // 4 or i == 6:
            e(f"s_add_u32 m0, s{sEM}, {4096*(i//4)}")
        m0st[0] = i // 4
        vq.op("ea", f"buffer_load_dwordx4 v{G2+i}, {sr(sEA)}, {'0' if i < 4 else 's%d' % sK4} offen offset:{1024*(i%4)} {ldpol} lds")

    def bea(p):
        for i in range(6):
            if bstage[i] == p:
                bea1(i)

    def skld(i):
        e(f"v_mad_u32_u24 v{G1+i}, v{G1+i}, 12, v{cL12}")
        vq.op(f"sk{i}", f"buffer_load_dwordx3 {vr(SKR+4*i,3)}, v{G1+i}, {sr(sSK)}, 0 offen offset:{768*i} {ldpol}")

    cmps = [f"v_cmp_lt_i32 s[{SK+2*i}:{SK+2*i+1}], {2*i}, v{T+2}" for i in range(MU + 1)]
    e(f"v_bfe_u32 v{RLEN}, v{PL}, 11, 11", f"v_and_b32 v{RBASE}, v{RLEN}, v{cODD}", f"v_add_u32 v{T+2}, v{RLEN}, v{cODD}")
    fill = [f"v_and_b32 v{T+3}, 0x7ff, v{PL}"] + cmps + [f"v_add_u32 v{RG0}, v{RG0}, v{T+3}"]
    e(fill.pop(0))
    for mod in ("row_shr:1 row_mask:0xf", "row_shr:2 row_mask:0xf", "row_shr:4 row_mask:0xf", "row_shr:8 row_mask:0xf", "row_bcast:15 row_mask:0xa", "row_bcast:31 row_mask:0xc"):
        e(f"v_add_u32_dpp v{RBASE}, v{RBASE}, v{RBASE} {mod} bank_mask:0xf")
        e(*fill[:2]); fill = fill[2:]
    e(f"v_readlane_b32 s{sNW}, v{RBASE}, 63")
    e(f"v_mov_b32_dpp v{RBASE}, v{RBASE} quad_perm:[0,0,2,2] row_mask:0xf bank_mask:0xf")
    e(f"v_sub_u32 v{RG0}, v{RG0}, v{RBASE}")
    e(f"v_lshl_add_u32 v{T}, v{RBASE}, 2, v{cMAPW}")
    e(f"s_cmp_gt_u32 s{sNW}, {CAPW}", "s_cbranch_scc1 L_clip")
    e.label("L_mapw")
    for i in range(MU):
        e(f"s_mov_b64 exec, s[{SK+2*i}:{SK+2*i+1}]")
        e(f"ds_write_b32 v{T}, v{RG0} offset:{8*i}")
    e("s_mov_b64 exec, -1")
    e(f"s_cmp_lg_u64 s[{SK+2*MU}:{SK+2*MU+1}], 0", "s_cbranch_scc1 L_map2")
    for i in range(3):
        e(f"ds_read_b32 v{G1+i}, v{cMAP1} offset:{256*i}")
    for i in range(6):
        e(f"ds_read_b32 v{G2+i}, v{cMAP2} offset:{128*i}")
    e(f"s_cmp_gt_i32 s{sNW}, 192", "s_cbranch_scc1 L_r1")
    e.label("L_r1b")
    e("s_waitcnt lgkmcnt(6)")
    ts.stamp("map")
    for i in range(3):
        skld(i)
    e(f"v_mov_b32 v{T+3}, s{sNW}", "s_mov_b64 exec, 1", f"ds_max_i32 v{T+5}, v{T+3} offset:{TOT}", "s_mov_b64 exec, -1")
    e("s_waitcnt lgkmcnt(1)")
    for i in range(6):
        e(f"v_lshl_add_u32 v{G2+i}, v{G2+i}, 5, v{X16}")
    if P["SKBAR"]:
        e("s_barrier")
    ts.stamp("skiss")
    bea(0)
    assert 5 not in bstage
    e(f"s_min_i32 s{sT}, s{sNW}, {CAPW}")
    for i in range(4):
        e(f"v_cmp_gt_i32 s[{sVm[i]}:{sVm[i]+1}], s{sT}, v{LANE}", f"s_sub_i32 s{sT}, s{sT}, 64")
    e(f"s_mov_b32 s{sT2}, 0x1fff80", f"s_mul_i32 s{sOFF}, s3, 5")
    assert P["SKBAR"]
    for q in range(NK):
        e(f"ds_read_b128 {vr(WF[q],4)}, v{eWF} offset:{1024*q}")

    def count(i):
        key = SKR + 4 * i + 2
        e(f"v_lshrrev_b32 v{CA+i}, 21, v{key}", f"v_lshlrev_b32 v{CA+i}, 2, v{CA+i}")
        e(f"v_lshrrev_b32 v{T+3}, 26, v{key}", f"v_lshl_or_b32 v{T+3}, v{T+3}, 4, v{cDEG}")
        e(f"s_mov_b64 exec, s[{sVm[i]}:{sVm[i]+1}]")
        e(f"ds_add_rtn_u32 v{RNK+i}, v{CA+i}, v{ONE} offset:{CNT2}")
        e(f"ds_add_u32 v{T+3}, v{ONE} offset:{DEG}")
        e("s_mov_b64 exec, -1")

    def entry(i):
        key = SKR + 4 * i + 2
        if i == 3:
            e("s_mov_b32 exec_hi, 0")
        e(f"ds_write_b64 v{cSH}, {vr(SKR+4*i,2)} offset:{512*i}")
        if i == 3:
            e("s_mov_b32 exec_hi, -1")
        e(f"v_and_or_b32 v{key}, v{key}, s{sT2}, v{cR21}")
        if i:
            e(f"v_add_u32 v{key}, {64*i << 21}, v{key}")

    for i in range(3):
        vq.wait(f"sk{i}")
        if i == 0:
            ts.stamp("sk")
        count(i)
    e(f"s_cmp_gt_i32 s{sNW}, 192", "s_cbranch_scc1 L_r2")
    e.label("L_r2b")
    ts.stamp("atom")
    bea(1)
    for j in range(1, 5):
        e(f"s_add_u32 s{SK+j}, s{sOFF}, {j}")
    e("s_waitcnt lgkmcnt(0)", "s_barrier")
    ts.stamp("b1")
    CN, CAD = XR, XR + 8
    e(f"s_cmp_lg_u32 s{sROFF}, 0", "s_cbranch_scc1 L_rank2")
    e(f"ds_read_b128 {vr(CAD,4)}, v{X16} offset:{DEG}")
    for j in range(5):
        e(f"ds_read_b32 v{CN+j}, v{cROW} offset:{CNT2 + 128*j}")
    e(f"ds_read_b32 v{T+6}, v{T+5} offset:{TOT}")
    if P["ENP"] == 0:
        for i in range(3):
            entry(i)
    e(f"s_waitcnt lgkmcnt({9 if P['ENP'] == 0 else 6})")
    e(f"v_add_u32 v{T+1}, v{CAD}, v{CAD+1}", f"v_add3_u32 v{T+1}, v{T+1}, v{CAD+2}, v{CAD+3}")
    e(f"v_lshl_or_b32 v{T+1}, v{T+1}, 6, v{cTIE}")
    for j in range(5):
        e(f"v_readlane_b32 s{SK+j}, v{T+1}, s{SK+j if j else sOFF}")
    for j in range(5):
        e(f"v_cmp_lt_u32 s[{SK+6+2*j}:{SK+7+2*j}], s{SK+j}, v{T+1}")
    for j in range(5):
        e(f"s_bcnt1_i32_b64 s{SK+j}, s[{SK+6+2*j}:{SK+7+2*j}]")
    e(f"s_waitcnt lgkmcnt({3 if P['ENP'] == 0 else 0})")
    for j in range(5):
        e(f"v_readlane_b32 s{sASG[j]}, v{RT}, s{SK+j}")
    e(f"v_readfirstlane_b32 s{sN}, v{T+6}")
    e.label("L_ranked")
    e("s_mov_b32 exec_hi, 0")
    for j in range(5):
        e(f"v_and_or_b32 v{CAD+j}, s{sASG[j]}, v{c380}, v{cBIN}")
        e(f"ds_add_rtn_u32 v{CN+j}, v{CAD+j}, v{CN+j} offset:{WB}")
    for j in range(5):
        e(f"v_or_b32 v{CAD+j}, s{sASG[j]}, v{cBIN}")
    e(f"s_lshl_b32 s{sT}, s3, 3", f"s_add_u32 s{sOFF}, s{sT}, 7")
    for j in range(5):
        if j in (0, 2):
            e(f"s_waitcnt lgkmcnt({3 if j == 0 else 2})")
        e(f"v_lshl_or_b32 v{CN+j}, v{CN+j}, 16, v{CAD+j}")
        e(f"ds_write_b32 v{cROW}, v{CN+j} offset:{CNT2 + 128*j}")
    e("s_mov_b32 exec_hi, -1")
    ts.stamp("rank")
    bea(2)
    if P["ENP"] == 1:
        for i in range(3):
            entry(i)
    e(f"s_waitcnt lgkmcnt({3 if P['ENP'] == 1 else 0})", "s_barrier")
    ts.stamp("b2")
    e(f"ds_read_b128 {vr(CN,4)}, v{X16} offset:{WB}")
    for i in range(3):
        e(f"ds_read_b32 v{CA+i}, v{CA+i} offset:{CNT2}")
    bea(6)
    e("s_waitcnt lgkmcnt(3)")
    e(f"v_add_u32 v{T+1}, v{CN}, v{CN+1}", f"v_add3_u32 v{T+1}, v{T+1}, v{CN+2}, v{CN+3}", f"v_mov_b32 v{T+2}, v{T+1}")
    e("s_waitcnt lgkmcnt(0)")

    def place(i):
        key = SKR + 4 * i + 2
        return [f"v_bfe_u32 v{T+7}, v{CA+i}, 12, 3", f"v_or_b32 v{key}, v{T+7}, v{key}", f"v_and_b32 v{G1+i}, 0x3ff, v{CA+i}",
                f"v_lshrrev_b32 v{CA+i}, 16, v{CA+i}", f"v_add_u32 v{CA+i}, v{CA+i}, v{RNK+i}"]

    fill = place(0) + place(1) + place(2)
    e(fill.pop(0))
    for mod in ("row_shr:1 row_mask:0xf", "row_shr:2 row_mask:0xf", "row_shr:4 row_mask:0xf", "row_shr:8 row_mask:0xf", "row_bcast:15 row_mask:0xa", "row_bcast:31 row_mask:0xc"):
        e(f"v_add_u32_dpp v{T+2}, v{T+2}, v{T+2} {mod} bank_mask:0xf")
        e(*fill[:2]); fill = fill[2:]
    e(f"v_sub_u32 v{T+1}, v{T+2}, v{T+1}")
    e(f"v_lshl_add_u32 v{CAD}, v{T+1}, 2, v{cLST}")
    for k in range(3):
        e(f"v_lshl_add_u32 v{CAD+1+k}, v{CN+k}, 2, v{CAD+k}")
    e(f"ds_write_b128 v{X16}, {vr(CAD,4)} offset:{START}")
    for i in range(3):
        e(f"ds_read_b32 v{G1+i}, v{G1+i} offset:{START}")
    e(*fill)
    e(f"v_readlane_b32 s{sNV}, v{T+2}, s{sOFF}", f"v_readlane_b32 s{sCNT}, v{T+1}, s{sT}", f"v_readlane_b32 s{sBASE}, v{CAD}, s{sT}")
    e(f"v_mov_b32 v{T+6}, {(0x3fff << 7) | 5}")
    e(f"s_sub_u32 s{sNV}, s{sNV}, s{sCNT}", f"s_lshl2_add_u32 s{sT2}, s{sNV}, s{sBASE}", f"v_add_u32 v{T+1}, s{sT2}, v{LAC}")
    e(f"ds_write_b32 v{T+1}, v{T+6}")
    assert D == 6
    sP0 = sT
    e(f"s_add_u32 s{sCNT}, s{sNV}, 15", f"s_lshr_b32 s{sCNT}, s{sCNT}, 4", f"s_sub_u32 s{sP0}, 0, s{sNV}", f"s_and_b32 s{sP0}, s{sP0}, 14",
      f"s_sub_u32 s{sCNT}, s{sCNT}, 1", f"s_cmp_gt_i32 s{sCNT}, 0", f"s_cselect_b32 s{sP0}, s{sP0}, 0", f"s_lshl_b32 s{sOFF}, s{sP0}, 2",
      f"s_sub_u32 s{sBASE}, s{sBASE}, s{sOFF}")

    def scatter(i):
        e(f"s_mov_b64 exec, s[{sVm[i]}:{sVm[i]+1}]")
        e(f"ds_write_b32 v{CA+i}, v{SKR+4*i+2}")

    e("s_waitcnt lgkmcnt(1)")
    for i in range(3):
        e(f"v_lshl_add_u32 v{CA+i}, v{CA+i}, 2, v{G1+i}")
    for i in range(3):
        scatter(i)
    e("s_mov_b64 exec, -1")
    e(f"s_cmp_gt_i32 s{sNW}, 192", "s_cbranch_scc1 L_r3")
    e.label("L_r3b")
    bea(3)
    ts.stamp("list")
    e(f"v_add_u32 v{LA}, s{sBASE}, v{LAC}", f"v_add_u32 v{LB}, s{sBASE}, v{LBC}",
      f"s_and_b32 s{sOFF}, s{sOFF}, 32", f"v_add_u32 v{T+4}, s{sOFF}, v{LA}", f"s_and_b32 s{SK+8}, s{sP0}, 6")
    e(f"s_mov_b32 s{sT2}, 0x00fffc38", f"s_mov_b32 s{sNR}, 0xffffff00", f"s_mov_b32 s{sBASE}, {SHST}")
    if P["PRIO"] == 1:
        e("s_cmp_lt_u32 s3, 4", "s_cbranch_scc1 L_np", "s_setprio 1")
        e.label("L_np")
    e("s_waitcnt lgkmcnt(0)", "s_barrier")
    ts.stamp("b4")
    e(f"ds_read_b32 v{K}, v{T+4}", f"ds_read_b32 v{ENT+2}, v{LB}", f"ds_read_b32 v{KN}, v{LA} offset:{4*D}", f"ds_read_b32 v{NOD}, v{cNOD} offset:{CNT2}")
    e(f"s_cmp_eq_u32 s{sNV}, 0", "s_cbranch_scc1 L_empty")

    def agaddr():
        e(f"v_lshlrev_b32 v{T+4}, 2, v{LANE}", f"s_lshl_b32 s{sOFF}, s3, 7")
        e(f"v_and_b32 v{NOD}, 0x7380, v{NOD}", f"v_xor_b32 v{NOD}, s{sOFF}, v{NOD}")
        e(f"v_alignbit_b32 v{NOD}, v{NOD}, v{NOD}, 12")
        m = [f"s[{q}:{q+1}]" for q in sVm] + ["vcc"]
        for j in range(5):
            e(f"v_cmp_eq_u32 {m[j]}, {j}, v{NOD}")
        for j in range(5):
            e(f"s_ff1_i32_b64 s{sNODE+j}, {m[j]}", f"s_mul_i32 s{sNODE+j}, s{sNODE+j}, 1152", f"v_add_u32 v{eAG[j]}, s{sNODE+j}, v{T+4}")

    AL = P["ALIGN"]

    def al():
        if AL:
            e(".p2align 3")

    def ea_reads():
        e(f"v_lshrrev_b32 v{T}, 21, v{ENT+2}", f"v_lshl_add_u32 v{T+3}, v{T}, 3, s{sBASE}", f"v_lshl_add_u32 v{T}, v{T}, 5, v{EAC}")
        e(f"ds_read_b64 {vr(ENT,2)}, v{T+3}")
        e(f"ds_read_b128 {vr(EA0,4)}, v{T}")

    def wfr(*qs):
        for q in qs:
            e(f"ds_read_b128 {vr(WF[q],4)}, v{eWF} offset:{1024*q}")

    def zq(q):
        e(f"ds_read_b128 {vr(RW+4*q,4)}, v{ZAD}", f"ds_read_b128 {vr(RW+16+4*q,4)}, v{ZAD}")

    def pq(j):
        p = PQ + 2 * (j % 2)
        if P["PQP"]:
            pr = [f"v_perm_b32 v{p}, v{T+1}, v{T+1}, v{(MP, 254)[j%2]}", f"v_perm_b32 v{p+1}, v{T+1}, v{T+1}, v{(MQ, 255)[j%2]}"]
            return pr if j % 2 else [f"v_cvt_pk_bf16_f32 v{T+1}, v{AGN+j}, v{AGN+j+1}"] + pr
        return [f"v_cvt_pk_bf16_f32 v{T+1+j%2}, v{AGN+j}, v{AGN+j}", f"v_and_b32 v{p}, v{MP}, v{T+1+j%2}", f"v_and_b32 v{p+1}, v{MQ}, v{T+1+j%2}"]

    def head(kind):
        e(f"s_waitcnt lgkmcnt({0 if kind == 'first' else 2})"); al()
        for q in range(4):
            e(f"v_mfma_f32_4x4x4_16b_bf16 {vr(AGN+4*q,4)}, {vr(ENT,2)}, {vr(CGF,2)}, 0 cbsz:4 abid:{2*q}")
        e(f"v_lshlrev_b32 v{K}, 3, v{KN}", f"v_and_b32 v{K}, s{sT2}, v{K}")
        rd = []
        if kind != "last":
            e(f"v_add_u32 v{LA}, 64, v{LA}", f"v_add_u32 v{LB}, 64, v{LB}")
            rd = [f"ds_read_b32 v{KN}, v{LA} offset:{4*D}", f"ds_read_b32 v{ENT+2}, v{LB}"]
        if kind != "first":
            e("s_waitcnt lgkmcnt(0)"); al()
        groups = [rd + (pq(0) if kind != "first" else []), []]
        for h in range(2):
            e(f"v_smfmac_f32_32x32x32_bf16 {vr(RW+16*h,16)}, {vr(EA0,4)}, {vr(WRF+8*h,8)}, v{SIX}")
            e(*groups[h])

    def pks(j):
        t = TP + 8 * (j % 2)
        for h in range(2):
            r = RW + 16 * h + j
            rp = r & ~1
            sel = "op_sel:[0,1,0] op_sel_hi:[1,1,1]" if r & 1 else "op_sel_hi:[1,0,1]"
            for q in range(2):
                a = ACC + 4 * h + 2 * q
                e(f"v_pk_fma_f32 {vr(a,2)}, {vr(t+4*h+2*q,2)}, {vr(rp,2)}, {vr(a,2)} {sel}")

    def mf(j, h):
        t, p, s = TP + 8 * (j % 2), PQ + 2 * (j % 2), XR + 4 * (j % R)
        e(f"v_mfma_f32_16x16x16_bf16 {vr(t+4*h,4)}, {vr(p,2)}, {vr(s+2*h,2)}, 0")

    def rl(q, lane):
        e(f"v_readlane_b32 s{SK + q % 8}, v{K}, {lane}")

    def sand(q):
        e(f"s_and_b32 s{sOFF}, s{SK + q % 8}, s{sNR}")

    def xl(q):
        e(f"buffer_load_dwordx4 {vr(XR + 4 * (q % R),4)}, v{X16}, {sr(sX)}, s{sOFF} offen")

    def body(last):
        for j in range(0, 16, 2):
            ld = not last or j + D < 16
            if not last or j == 0:
                e.label(f"L_{'f' if last else 'j'}{j}")
            nx = pq(j + 1)
            e(f"s_waitcnt vmcnt({D-1 if ld else 15-j})"); al()
            mf(j, 0)
            if ld:
                rl(j + D, j)
            e(*nx[:1]); mf(j, 1); e(*nx[1:])
            if ld and P["SCH"] == 2:
                sand(j + D); e(f"s_waitcnt vmcnt({D-2})"); xl(j + D)
            elif ld:
                sand(j + D); xl(j + D); e(f"s_waitcnt vmcnt({D-1})")
            else:
                e(f"s_waitcnt vmcnt({14-j})"); al()
            nx = pq(j + 2) if j < 14 else []
            mf(j + 1, 0)
            if ld:
                rl(j + 1 + D, j + 1)
            e(*nx[:1]); mf(j + 1, 1); e(*nx[1:])
            if last and j == 2 and P["AGP"] == 2:
                agaddr(); al()
            if j == 2 and not last:
                e("s_waitcnt lgkmcnt(0)")
                ea_reads(); al()
            if ld:
                sand(j + 1 + D)
            e(f"s_set_gpr_idx_on s{SK + j % 8}, gpr_idx(SRC2,DST)")
            xl(j + 1 + D) if ld else al()
            pks(j)
            e(f"s_set_gpr_idx_idx s{SK + (j + 1) % 8}")
            if j == 14 and not last:
                e(f"s_sub_u32 s{sCNT}, s{sCNT}, 1")
            al()
            pks(j + 1)
            if j % 4 == 2 and not last:
                zq(j // 4)
            if last and j >= 6 and P["WFT"]:
                wfr(*((14, 15) if j == 6 else (j - 2, j - 1)))
            e("s_set_gpr_idx_off")

    e("s_waitcnt lgkmcnt(3)")
    e(f"v_lshlrev_b32 v{K}, 3, v{K}", f"v_and_b32 v{K}, s{sT2}, v{K}")
    NB5 = P["NB5"]

    def pair(q):
        rl(q, q); rl(q + 1, q + 1)
        sand(q); xl(q); sand(q + 1); xl(q + 1)

    for q in (2, 4, 6):
        e(f"s_cmp_eq_u32 s{SK+8}, {q}", f"s_cbranch_scc1 L_p{q}")
    for q0 in (0, 2, 4, 6):
        e.label(f"L_p{q0}")
        for i in range(NB5):
            pair(q0 + 2 * i)
        if P["AGP"] == 0:
            e("s_waitcnt lgkmcnt(0)")
            agaddr()
        e(f"s_waitcnt vmcnt({2*NB5}) lgkmcnt(0)", "s_barrier")
        ea_reads()
        for i in range(NB5, 3):
            pair(q0 + 2 * i)
        if q0 < 6:
            e("s_branch L_pd")
    e.label("L_pd")
    if P["AGP"] == 1:
        agaddr()
    ts.stamp("b5")
    head("first")
    e(f"s_set_gpr_idx_on s{sP0}, gpr_idx(SRC0,SRC1)")
    e.idx_range, keep = {("v", i) for i in range(AGN, AGN + 16)}, e.idx_range
    e(pq(0)[0])
    e.idx_range = keep
    e("s_set_gpr_idx_off")
    e(*pq(0)[1:])
    e("s_waitcnt lgkmcnt(0)")
    ea_reads()
    e(f"s_cmp_eq_u32 s{sCNT}, 0", "s_cbranch_scc1 L_f0")
    for j in range(0, 14, 2):
        e(f"s_cmp_eq_u32 s{sP0}, {j}", f"s_cbranch_scc1 L_j{j}")
        if j % 4 == 2:
            zq(j // 4)
    e("s_branch L_j14")
    e(".p2align 3")
    e.label("L_loop")
    head("mid")
    body(False)
    e(f"s_cmp_lg_u32 s{sCNT}, 0", "s_cbranch_scc1 L_loop")
    head("last")
    body(True)
    e.label("L_swept")
    ts.stamp("swept")
    e(f"s_add_u32 s{sROFF}, s{sROFF}, {CAPW}", f"s_cmp_lt_u32 s{sROFF}, s{sN}", "s_cbranch_scc1 L_again")
    AF, DD, OB, OT = ACC, 160, 64, 80
    if P["EPRIO"] >= 0:
        e(f"s_setprio {P['EPRIO']}")
    for s in range(5):
        for w in range(4):
            e(f"v_cvt_pk_bf16_f32 v{RW+4*s+w}, v{ACC+8*s+w}, v{ACC+8*s+4+w}")
        for w in (0, 2):
            e(f"ds_write2_b32 v{eAG[s]}, v{RW+4*s+w}, v{RW+4*s+w+1} offset0:{72*w} offset1:{72*w+72}")
    NPRE = 16
    if not P["WFT"]:
        wfr(*range(NK, 16))
    e(f"s_waitcnt lgkmcnt({0 if P['WFT'] else NPRE - NK})", "s_barrier")
    ts.stamp("agb")
    lq = [f"w{q}" for q in range(NPRE)]

    def lop(tag, text):
        e(text); lq.append(tag)

    def lwait(*tags):
        n = len(lq) - 1 - max(lq.index(t) for t in tags)
        e(f"s_waitcnt lgkmcnt({min(n, 15)})")

    def afrag(k, ss=range(4)):
        for s in ss:
            lop(f"a{k}{s}", f"ds_read_b128 {vr(AF+16*k+4*s,4)}, v{eFR} offset:{AGL + 4608*k + 64*s}")

    def post(k, pol=P['OUTPOL']):
        d, o = DD + 16 * (k % 2), OB + 8 * (k % 2)
        x = []
        for r in range(2):
            for c in range(2):
                x.append(f"v_cvt_pk_bf16_f32 v{o+4*r+c}, v{d+8*c+r}, v{d+8*c+4+r}")
                x.append(f"v_cvt_pk_bf16_f32 v{OT+2*r+c}, v{d+8*c+r}, v{d+8*c+4+r}")
                x.append(f"v_cvt_pk_bf16_f32 v{o+4*r+2+c}, v{d+8*c+r+2}, v{d+8*c+4+r+2}")
            for c in range(2):
                x.append(f"v_mov_b32_dpp v{o+4*r+c}, v{o+4*r+2+c} row_ror:8 row_mask:0xf bank_mask:0xc")
            for c in range(2):
                x.append(f"v_mov_b32_dpp v{o+4*r+2+c}, v{OT+2*r+c} row_ror:8 row_mask:0xf bank_mask:0x3")
            x.append(f"buffer_store_dwordx4 {vr(o+4*r,4)}, v{eST}, {sr(sOUT)}, s{sEO} offen offset:{256*r} {pol}")
        x.append(f"s_add_u32 s{sEO}, s{sEO}, 4096")
        return x

    def tile(k, pend):
        d = DD + 16 * (k % 2)
        for s in range(4):
            if k == 0:
                lwait(f"a0{s}", f"w{4*s+3}")
            elif s == 0:
                lwait(f"a{k}3")
            for t in range(4):
                c = "0" if s == 0 else vr(d + 4 * t, 4)
                e(f"v_mfma_f32_16x16x32_bf16 {vr(d+4*t,4)}, {vr(AF+16*k+4*s,4)}, {vr(WF[4*s+t],4)}, {c}")
                if 4 * s + t >= 4:
                    e(*pend[:2]); pend = pend[2:]
            if k == 0 and s == 0:
                afrag(1)
            if k == 0 and s == 1:
                afrag(2)
        e(*pend)

    for s in range(4):
        afrag(0, [s])
        for q in range(max(NPRE, 4 * s), 4 * s + 4):
            lop(f"w{q}", f"ds_read_b128 {vr(WF[q],4)}, v{eWF} offset:{1024*q}")
    tile(0, [])
    tile(1, post(0))
    e("s_cmp_ge_u32 s3, 4", "s_cbranch_scc1 L_two")
    tile(2, post(1))
    e(*post(2, P['LASTPOL']))
    e.label("L_stored")
    ts.stamp("stored")
    e("s_or_b32 s4, s2, s3", "s_cbranch_scc1 L_notag")
    e(f"v_mov_b32 v{T}, s{sTAG}", f"v_lshlrev_b32 v{T+2}, 2, v{LANE}", f"s_mov_b32 s{sT}, {WS_W}")
    e(f"buffer_store_dword v{T}, v{T+2}, {sr(sTAB)}, s{sT} offen sc1")
    e.label("L_notag")
    if P["DIAGW"] and P["DIAGAT"] == "fin":
        e("s_waitcnt vmcnt(0)")
        ts.stamp("fin")
    if P["DIAGW"]:
        e(f"s_add_u32 s6, s{sTSP+1}, {P['DIAGW']}", "s_min_u32 s6, s6, 30000")
        e.label("L_diag")
        e("s_memrealtime s[4:5]", "s_waitcnt lgkmcnt(0)", f"s_sub_u32 s4, s4, s{sTSP}", "s_cmp_lt_u32 s4, s6", "s_cbranch_scc1 L_diag")
    if P["TS"]:
        e("s_waitcnt vmcnt(0)")
        ts.stamp("end")
        e(f"s_lshl_b32 s{sT}, s2, 3", f"s_add_u32 s{sT}, s{sT}, s3", f"s_lshl_b32 s{sT}, s{sT}, 8", f"s_add_u32 s{sT}, s{sT}, {WS_TS}")
        e(f"v_lshl_add_u32 v{T}, v{LANE}, 2, s{sT}", f"global_store_dword v{T}, v{TSV}, s[14:15]")
        if P["DBG"]:
            e(f"s_cmp_lg_u32 s2, {P['DBG']}", "s_cbranch_scc1 L_done", "s_cmp_lg_u32 s3, 0", "s_cbranch_scc1 L_done")
            e("s_load_dwordx2 s[4:5], s[0:1], 72", f"v_readlane_b32 s{sT}, v{TSV}, 0", f"v_lshlrev_b32 v{T}, 2, v{LANE}")
            e(f"v_subrev_u32 v{TSV}, s{sT}, v{TSV}", "s_waitcnt lgkmcnt(0)", f"global_store_dword v{T}, v{TSV}, s[4:5]")
    e.label("L_done")
    e("s_endpgm")
    e.label("L_again")
    e("s_waitcnt vmcnt(0) lgkmcnt(0)", "s_barrier")
    init_round(False)
    for i in range(32):
        e(f"v_mov_b32 v{RW+i}, 0")
    e(f"v_add_u32 v{RLEN}, v{RLEN}, v{RBASE}", f"v_subrev_u32 v{RLEN}, {CAPW}, v{RLEN}", f"v_max_i32 v{RLEN}, 0, v{RLEN}")
    e(f"v_subrev_u32 v{RBASE}, {CAPW}, v{RBASE}", f"v_max_i32 v{RBASE}, 0, v{RBASE}", f"v_sub_u32 v{RLEN}, v{RLEN}, v{RBASE}")
    e(f"v_add_u32 v{RG0}, {CAPW}, v{RG0}", f"s_sub_i32 s{sNW}, s{sNW}, {CAPW}", f"v_lshl_add_u32 v{T}, v{RBASE}, 2, v{cMAPW}")
    e("s_waitcnt lgkmcnt(0)", "s_barrier")
    e.label("L_clip")
    e(f"v_add_u32 v{T+2}, v{RBASE}, v{RLEN}", f"v_min_i32 v{T+2}, {CAPW}, v{T+2}", f"v_sub_u32 v{T+2}, v{T+2}, v{RBASE}", f"v_add_u32 v{T+2}, v{T+2}, v{cODD}")
    e.label("L_masks")
    e(*cmps)
    e("s_nop 0", "s_branch L_mapw")
    e.label("L_map2")
    e(f"v_add_u32 v{T}, {8*MU}, v{T}", f"v_subrev_u32 v{T+2}, {2*MU}, v{T+2}")
    e("s_branch L_masks")
    e.label("L_r1")
    e(f"ds_read_b32 v{G1+3}, v{cMAP1} offset:768", f"ds_read_b32 v{G2+6}, v{cMAP2} offset:768")
    e("s_waitcnt lgkmcnt(0)")
    skld(3)
    for i in (6,):
        e(f"v_lshl_add_u32 v{G2+i}, v{G2+i}, 5, v{X16}")
        bea1(i)
    e("s_branch L_r1b")
    e.label("L_r2")
    count(3)
    entry(3)
    e("s_branch L_r2b")
    e.label("L_r3")
    e(f"ds_read_b32 v{CA+3}, v{CA+3} offset:{CNT2}", "s_waitcnt lgkmcnt(0)")
    e(*place(3))
    e(f"ds_read_b32 v{G1+3}, v{G1+3} offset:{START}", "s_waitcnt lgkmcnt(0)")
    e(f"v_lshl_add_u32 v{CA+3}, v{CA+3}, 2, v{G1+3}")
    scatter(3)
    e("s_mov_b64 exec, -1", "s_branch L_r3b")
    e.label("L_empty")
    e("s_waitcnt vmcnt(0) lgkmcnt(0)", "s_barrier")
    agaddr()
    if P["WFT"]:
        wfr(*range(NK, 16))
    e("s_branch L_swept")
    e.label("L_two", pad=8)
    e(*post(1, P['LASTPOL']))
    e("s_branch L_stored")
    e.label("L_poll")
    e(poll1, f"s_sub_u32 s{sCNT}, s{sCNT}, 1", "s_cbranch_scc1 L_done", "s_waitcnt vmcnt(0)")
    tagcheck()
    e("s_cbranch_execnz L_poll", "s_branch L_polled")
    e.label("L_rank2")
    for j in range(5):
        e(f"ds_read_b32 v{CN+j}, v{cROW} offset:{CNT2 + 128*j}")
    if P["ENP"] == 0:
        for i in range(3):
            entry(i)
    e("s_waitcnt lgkmcnt(0)")
    e.label("L_end")
    e("s_branch L_ranked")
    return e.text(), LDS, 256, 102


HEADER = """; Kernarg layout for this problem (88 bytes, ptrs only, base s[0:1]):
"""


def generate(**kw):
    P = dict(DEF)
    P.update(kw)
    k, lds, v, s = gen(P)
    n = NAME + "_kernel"
    out = HEADER
    out += f"; @launch grid=(256,1,1) block=(512,1,1) lds={lds}\n"
    out += '.amdgcn_target "amdgcn-amd-amdhsa--gfx950"\n.text\n'
    out += f".globl {n}\n.p2align 8\n.type {n},@function\n{n}:\n{k}"
    out += '.section .rodata,"a"\n'
    out += (f".p2align 6\n.amdhsa_kernel {n}\n  .amdhsa_next_free_vgpr {v}\n  .amdhsa_next_free_sgpr {s}\n"
            f"  .amdhsa_accum_offset {(v+3)//4*4}\n  .amdhsa_group_segment_fixed_size 0\n  .amdhsa_kernarg_size 88\n"
            f"  .amdhsa_user_sgpr_count 2\n  .amdhsa_user_sgpr_kernarg_segment_ptr 1\n  .amdhsa_system_sgpr_workgroup_id_x 1\n"
            f"  .amdhsa_float_denorm_mode_32 3\n.end_amdhsa_kernel\n")
    return out


if __name__ == "__main__":
    kw = {}
    for a in sys.argv[1:]:
        k, v = a.split("=", 1)
        kw[k] = int(v) if v.lstrip("-").isdigit() else v
    sys.stdout.write(generate(**kw))
```
